```python
import torch

def _softmax(x, axis=-1):
    return torch.softmax(x, dim=axis)

def _gelu(x):
    return torch.nn.functional.gelu(x, approximate='tanh')

def _silu(x):
    return torch.nn.functional.silu(x)

def _sigmoid(x):
    return torch.sigmoid(x)

def _layernorm(x, axis=-1, eps=1e-05):
    m = x.mean(dim=axis, keepdim=True)
    v = x.var(dim=axis, keepdim=True, unbiased=False)
    return (x - m) / torch.sqrt(v + eps)

def _scatter_add(tgt, idx, src, axis=0):
    return tgt.clone().index_add_(axis, idx, src)

def _segment_sum(src, seg, n):
    out = torch.zeros((n,) + src.shape[1:], dtype=src.dtype)
    return out.index_add_(0, seg, src)

def _pad(x, pw):
    flat = tuple((v for pair in reversed(pw) for v in pair))
    return torch.nn.functional.pad(x, flat)
kernel_name = 'recurrent_scan__memory_aug_recurrent_mem_tr__glu_gated_bilinear__prompt'

def setup_inputs():

    _w = lambda a: (lambda t: t.to(torch.bfloat16) if t.is_floating_point() else t)(torch.as_tensor(a))

    def _A_setup():
        B, S, Dm = (1, 2048, 512)
        H, Dh = (32, 128)
        M, seg = (8, 32)
        seg = min(seg, S)
        S = S // seg * seg
        return {'x': _w((lambda *s: torch.randn(*s, dtype=torch.bfloat16) * 0.1)(B, S, Dm)), 'mem0': _w((lambda *s: torch.randn(*s, dtype=torch.bfloat16) * 1.6)(B, M, Dm)), 'Wq': _w((lambda *s: torch.randn(*s, dtype=torch.bfloat16) * 0.8)(Dm, H, Dh) * Dm ** (-0.5)), 'Wk': _w((lambda *s: torch.randn(*s, dtype=torch.bfloat16) * 0.8)(Dm, H, Dh) * Dm ** (-0.5)), 'Wv': _w((lambda *s: torch.randn(*s, dtype=torch.bfloat16) * 1.6)(Dm, H, Dh) * Dm ** (-0.5)), 'Wo': _w((lambda *s: torch.randn(*s, dtype=torch.bfloat16) * 1.6)(H, Dh, Dm) * (H * Dh) ** (-0.5)), 'seg_len': seg}
    _A_in = _A_setup()

    def _B_setup():
        B, S, D, F = (1, 2048, 512, 1792)
        return {'x': _w((lambda *s: torch.randn(*s, dtype=torch.bfloat16) * 0.1)(B, S, D)), 'w_gate': _w((lambda *s: torch.randn(*s, dtype=torch.bfloat16) * 0.4)(D, F) * D ** (-0.5)), 'w_up': _w((lambda *s: torch.randn(*s, dtype=torch.bfloat16) * 0.4)(D, F) * D ** (-0.5)), 'w_down': _w((lambda *s: torch.randn(*s, dtype=torch.bfloat16) * 0.4)(F, D) * F ** (-0.5))}
    _B_in = _B_setup()
    return {'A_x': _A_in['x'], 'A_mem0': _A_in['mem0'], 'A_Wq': _A_in['Wq'], 'A_Wk': _A_in['Wk'], 'A_Wv': _A_in['Wv'], 'A_Wo': _A_in['Wo'], 'A_seg_len': _A_in['seg_len'], 'B_x': _B_in['x'], 'B_w_gate': _B_in['w_gate'], 'B_w_up': _B_in['w_up'], 'B_w_down': _B_in['w_down']}

def reference(A_x, A_mem0, A_Wq, A_Wk, A_Wv, A_Wo, A_seg_len, B_x, B_w_gate, B_w_up, B_w_down):

    def _A_ref(x, mem0, Wq, Wk, Wv, Wo, seg_len):
        B, S, Dm = x.shape
        H, Dh = (Wq.shape[1], Wq.shape[2])
        M = mem0.shape[1]
        scale = Dh ** (-0.5)
        n_seg = S // seg_len
        L = M + seg_len
        idx = torch.arange(L)
        mask = (idx[:, None] < M) | (idx[:, None] >= idx[None, :])
        mem = mem0
        outs = []
        for s in range(n_seg):
            xs = x[:, s * seg_len:(s + 1) * seg_len, :].clone()
            h = torch.concatenate([mem, xs], axis=1)
            q = torch.einsum('btd,dhe->bhte', h, Wq)
            k = torch.einsum('btd,dhe->bhte', h, Wk)
            v = torch.einsum('btd,dhe->bhte', h, Wv)
            scores = torch.einsum('bhqe,bhke->bhqk', q, k) * scale
            scores = torch.where(mask[None, None], scores, -1000000000.0)
            p = _softmax(scores, axis=-1)
            o = torch.einsum('bhqk,bhke->bhqe', p, v)
            o = torch.einsum('bhte,hed->btd', o, Wo)
            mem = o[:, :M, :].clone()
            outs.append(o[:, M:, :])
        return torch.concatenate(outs, axis=1)

    def _B_ref(x, w_gate, w_up, w_down):
        g = torch.einsum('bsd,df->bsf', x, w_gate)
        u = torch.einsum('bsd,df->bsf', x, w_up)
        h = g * u
        return torch.einsum('bsf,fd->bsd', h, w_down)
    x = A_x
    xn = _layernorm(x, axis=-1)
    s = _A_ref(xn, A_mem0, A_Wq, A_Wk, A_Wv, A_Wo, A_seg_len)
    g = _silu(_B_ref(xn, B_w_gate, B_w_up, B_w_down))
    return x + s * g
```

```python
import re

REG_RE = re.compile(r'(?<![\w.])([vas])(\d+)(?![\w\[])|(?<![\w.])([vas])\[(\d+):(\d+)\]|(?<![\w.])(vcc_lo|vcc_hi|vcc|exec_lo|exec_hi|exec|m0)(?![\w])')
TRANS = ('v_exp_f32', 'v_log_f32', 'v_rcp_f32', 'v_rsq_f32', 'v_sqrt_f32', 'v_sin_f32', 'v_cos_f32', 'v_rcp_iflag_f32')


def regs_of(op):
    out = set()
    for m in REG_RE.finditer(op):
        if m.group(1):
            out.add((m.group(1), int(m.group(2))))
        elif m.group(3):
            for i in range(int(m.group(4)), int(m.group(5)) + 1):
                out.add((m.group(3), i))
        else:
            n = m.group(6)
            if n.startswith('vcc'):
                out.add(('vcc', 0))
            elif n.startswith('exec'):
                out.add(('exec', 0))
            else:
                out.add(('m0', 0))
    return out


def split_ops(s):
    ops, depth, cur = [], 0, ''
    for ch in s:
        if ch in '[(':
            depth += 1
        if ch in '])':
            depth -= 1
        if ch == ',' and depth == 0:
            ops.append(cur.strip())
            cur = ''
        else:
            cur += ch
    if cur.strip():
        ops.append(cur.strip())
    return ops


class Ins:
    __slots__ = ('text', 'mn', 'kind', 'rd', 'wr', 'srcc', 'ab', 'passes', 'dpp', 'trans', 'wide_data',
                 'states', 'label', 'target', 'lds_dma', 'perm', 'rdlane', 'dexact', 'sdwa')

    def __init__(self, text):
        self.text = text
        self.label = None
        self.target = None
        self.rd, self.wr, self.srcc, self.ab, self.wide_data = set(), set(), set(), set(), set()
        self.passes = 0
        self.dpp = self.trans = self.lds_dma = self.perm = self.rdlane = self.sdwa = False
        self.states = 1
        self.dexact = None
        body = text.split(';')[0].strip()
        if body.endswith(':'):
            self.kind = 'label'
            self.label = body[:-1]
            self.mn = ''
            self.states = 0
            return
        if not body or body.startswith('.'):
            self.kind = 'none'
            self.mn = ''
            self.states = 0
            return
        parts = body.split(None, 1)
        mn = parts[0]
        self.mn = mn
        rest = parts[1] if len(parts) > 1 else ''
        ops = split_ops(rest)
        R = [regs_of(o) for o in ops]
        allr = set().union(*R) if R else set()
        if mn.startswith('v_mfma') or mn.startswith('v_smfmac'):
            self.kind = 'mfma'
            self.passes = 8 if '32x32' in mn else 4
            self.wr = R[0]
            self.dexact = ops[0].strip()
            if mn.startswith('v_smfmac'):
                self.srcc = R[0]
                self.ab = R[1] | R[2] | R[3]
            else:
                self.srcc = R[3]
                self.ab = R[1] | R[2]
            self.rd = self.ab | self.srcc
        elif mn.startswith('v_'):
            self.kind = 'valu'
            self.dpp = ('_dpp' in mn) or ('row_' in rest) or ('quad_perm' in rest)
            self.sdwa = ('_sdwa' in mn) and ('dst_sel:DWORD' not in rest)
            self.trans = any(mn.startswith(t) for t in TRANS)
            if mn.startswith('v_permlane'):
                self.perm = True
                self.rd = allr
                self.wr = allr
            elif mn.startswith('v_cmp'):
                self.wr = R[0]
                self.rd = set().union(*R[1:])
            elif mn.startswith('v_readfirstlane') or mn.startswith('v_readlane'):
                self.rdlane = True
                self.wr = R[0]
                self.rd = set().union(*R[1:])
            elif re.match(r'v_(add|sub|subrev|addc|subb)_co_', mn):
                self.wr = R[0] | R[1]
                self.rd = set().union(*R[2:])
            elif mn == 'v_nop':
                pass
            else:
                self.wr = R[0]
                self.rd = set().union(*R[1:]) if len(R) > 1 else set()
                if mn.startswith('v_fmac') or mn.startswith('v_dot2c') or mn.startswith('v_pk_fmac') or self.dpp or self.sdwa:
                    self.rd = self.rd | R[0]
                if mn.startswith('v_cndmask') and len(ops) == 3:
                    self.rd.add(('vcc', 0))
        elif mn.startswith('ds_'):
            self.kind = 'ds'
            if mn.startswith('ds_read') or 'permute' in mn or 'swizzle' in mn or '_rtn' in mn:
                self.wr = R[0]
                self.rd = set().union(*R[1:])
            else:
                self.rd = allr
        elif mn.startswith('buffer_') or mn.startswith('global_'):
            self.kind = 'vmem'
            toks = rest.replace(',', ' ').split()
            if mn in ('buffer_inv', 'buffer_wbl2'):
                pass
            elif 'lds' in toks or '_lds_' in mn:
                self.lds_dma = True
                self.rd = allr | {('m0', 0)}
            elif '_load' in mn:
                self.wr = R[0]
                self.rd = set().union(*R[1:])
            elif '_atomic' in mn:
                self.rd = allr
                if 'sc0' in toks:
                    self.wr = R[0]
            else:
                self.rd = allr
                if 'x4' in mn or 'x3' in mn:
                    self.wide_data = R[0] if mn.startswith('buffer_') else R[1]
        elif mn.startswith('s_'):
            self.kind = 'salu'
            if mn == 's_nop':
                self.states = int(ops[0], 0) + 1
            elif mn.startswith('s_cbranch') or mn == 's_branch':
                self.kind = 'branch'
                self.target = ops[0]
                if 'vcc' in mn:
                    self.rd = {('vcc', 0)}
            elif mn.startswith('s_cmp') or mn.startswith('s_bitcmp') or mn in (
                    's_waitcnt', 's_barrier', 's_sleep', 's_setprio', 's_endpgm', 's_sethalt'):
                self.rd = allr
            elif mn.startswith('s_load') or mn.startswith('s_buffer_load') or mn.startswith('s_memtime') or mn.startswith('s_memrealtime'):
                self.kind = 'smem'
                self.wr = R[0]
                self.rd = set().union(*R[1:]) if len(R) > 1 else set()
            else:
                self.wr = R[0] if R else set()
                self.rd = set().union(*R[1:]) if len(R) > 1 else set()
                if 'saveexec' in mn:
                    self.wr = self.wr | {('exec', 0)}
        else:
            raise ValueError('unknown instr ' + text)


def vg(s):
    return {r for r in s if r[0] in 'va'}


def sg(s):
    return {r for r in s if r[0] in ('s', 'vcc')}


def need(p, c):
    n = 0
    if p.kind == 'valu':
        w = vg(p.wr)
        if c.kind == 'mfma' and w & c.rd:
            n = max(n, 2)
        if c.kind == 'valu':
            if c.dpp and w & c.rd:
                n = max(n, 2)
            if c.perm and w & c.rd:
                n = max(n, 2)
            if c.rdlane and w & c.rd:
                n = max(n, 1)
            if p.trans and not c.trans and w & c.rd:
                n = max(n, 1)
            if p.sdwa and w & (c.rd | c.wr):
                n = max(n, 1)
        if p.trans and c.kind in ('vmem', 'ds') and w & c.rd:
            n = max(n, 1)
        ws = sg(p.wr)
        if ws:
            if c.kind == 'valu' and ws & c.rd:
                n = max(n, 4 if c.rdlane else 2)
            if c.kind == 'vmem' and ws & c.rd:
                n = max(n, 5)
            if c.kind in ('salu', 'smem') and ws & c.rd:
                n = max(n, 1)
    if p.kind == 'mfma':
        big = {4: 8, 8: 12}[p.passes]
        d = p.wr
        if c.kind == 'mfma':
            if d & c.ab:
                n = max(n, big)
            if d & c.srcc:
                if not (c.srcc == d and c.passes == p.passes):
                    n = max(n, {4: 6, 8: 10}[p.passes])
            elif d & c.wr:
                n = max(n, big)
        elif c.kind == 'valu':
            if d & (c.rd | c.wr):
                n = max(n, big)
            if p.srcc & c.wr:
                n = max(n, {4: 3, 8: 7}[p.passes])
        elif c.kind in ('vmem', 'ds'):
            if d & (c.rd | c.wr):
                n = max(n, big)
    if p.kind == 'salu' and ('m0', 0) in p.wr and c.lds_dma:
        n = max(n, 1)
    if p.kind == 'vmem' and p.wide_data:
        if p.wide_data & c.wr:
            n = max(n, 2 if c.kind in ('valu', 'mfma') else 1)
    return n


WINDOW = 14


class Asm:
    def __init__(self):
        self.ins = []
        self.vm_n = 0
        self.lg_n = 0
        self.uid = 0

    def __call__(self, text):
        for line in text.strip('\n').split('\n'):
            self.emit(line.strip())

    def emit(self, line):
        i = Ins(line)
        if i.kind not in ('label', 'none'):
            dist = 0
            req = 0
            for p in reversed(self.ins):
                if p.kind in ('label', 'none'):
                    continue
                if p.mn in ('s_branch', 's_endpgm'):
                    break
                r = need(p, i) - dist
                if r > req:
                    req = r
                dist += p.states
                if dist >= WINDOW:
                    break
            while req > 0:
                k = min(req, 16)
                self.ins.append(Ins('s_nop %d' % (k - 1)))
                req -= k
        self.ins.append(i)
        tok = None
        if i.kind == 'vmem':
            self.vm_n += 1
            tok = ('vm', self.vm_n)
        elif i.kind == 'ds':
            self.lg_n += 1
            tok = ('lg', self.lg_n)
        return tok

    def I(self, fmt, *args):
        return self.emit(fmt % args if args else fmt)

    def label(self, name):
        self.emit(name + ':')

    def newlabel(self, base='L'):
        self.uid += 1
        return '%s_%d' % (base, self.uid)

    def c(self, text):
        self.ins.append(Ins('; ' + text))

    def wait(self, *toks):
        vm = [t[1] for t in toks if t and t[0] == 'vm']
        lg = [t[1] for t in toks if t and t[0] == 'lg']
        s = []
        if vm:
            n = self.vm_n - max(vm)
            if n <= 63:
                s.append('vmcnt(%d)' % n)
            else:
                s.append('vmcnt(63)')
        if lg:
            n = self.lg_n - max(lg)
            s.append('lgkmcnt(%d)' % min(n, 15))
        if s:
            self.emit('s_waitcnt ' + ' '.join(s))

    def verify_edges(self):
        pos = {i.label: k for k, i in enumerate(self.ins) if i.kind == 'label'}
        errs = []
        for k, b in enumerate(self.ins):
            if b.kind != 'branch' or b.target not in pos:
                continue
            pre = []
            d = 0
            j = k
            while j >= 0 and d < WINDOW:
                p = self.ins[j]
                if p.kind not in ('label', 'none'):
                    if j != k and p.mn in ('s_branch', 's_endpgm'):
                        break
                    pre.append((p, d))
                    d += p.states
                j -= 1
            d2 = 0
            j = pos[b.target]
            while j < len(self.ins) and d2 < WINDOW:
                c = self.ins[j]
                if c.kind not in ('label', 'none'):
                    for p, dp in pre:
                        if need(p, c) > dp + d2:
                            errs.append('edge %s -> %s: "%s" then "%s" need %d have %d' % (
                                b.text, b.target, p.text, c.text, need(p, c), dp + d2))
                    d2 += c.states
                    if c.mn in ('s_branch', 's_endpgm'):
                        break
                j += 1
        return errs

    def text(self):
        out = []
        for i in self.ins:
            if i.kind == 'label':
                out.append(i.text)
            else:
                out.append('    ' + i.text)
        return '\n'.join(out) + '\n'


def vr(base, n=1):
    return 'v%d' % base if n == 1 else 'v[%d:%d]' % (base, base + n - 1)


def ar(base, n=1):
    return 'a%d' % base if n == 1 else 'a[%d:%d]' % (base, base + n - 1)


def sr(base, n=1):
    return 's%d' % base if n == 1 else 's[%d:%d]' % (base, base + n - 1)
```

```python
from asmlib import *
from common import *
from rec import srd, f32bits

WS = 's[%d:%d]' % (S_WS, S_WS + 3)
DBG = 's[%d:%d]' % (S_DBG, S_DBG + 3)
DP = ' row_mask:0xf bank_mask:0xf'
sT = 84
sSpin = 83
SPIN_MAX = 0x400000


def spin(a, fail='B_fail'):
    a.I('s_add_u32 s%d, s%d, 1', sSpin, sSpin)
    a.I('s_cmp_gt_u32 s%d, 0x%x', sSpin, SPIN_MAX)
    a.I('s_cbranch_scc1 %s', fail)


def wave_allsum(a, regs, tmp):
    for sh in (1, 2, 4, 8):
        for r in regs:
            a.I('v_add_f32_dpp v%d, v%d, v%d row_ror:%d' + DP, r, r, r, sh)
    for op in ('v_permlane16_swap_b32', 'v_permlane32_swap_b32'):
        for r, t in zip(regs, tmp):
            a.I('v_mov_b32 v%d, v%d', t, r)
        for r, t in zip(regs, tmp):
            a.I('%s v%d, v%d', op, r, t)
        for r, t in zip(regs, tmp):
            a.I('v_add_f32 v%d, v%d, v%d', r, r, t)


def rnd_bf16(a, r):
    a.I('v_cvt_pk_bf16_f32 v%d, v%d, v%d', r, r, r)
    a.I('v_and_b32 v%d, 0xffff0000, v%d', r, r)


def ln_issue(a, B=200):
    srd(a, S_W, P_X, 2097152)
    a.I('v_and_b32 v%d, 63, v0', B + 8)
    a.I('v_lshlrev_b32 v%d, 4, v%d', B + 8, B + 8)
    a.I('s_lshl_b32 s%d, s2, 13', sT + 7)
    a.I('s_lshl_b32 s%d, s%d, 11', sT, S_WAVE)
    a.I('s_add_u32 s%d, s%d, s%d', sT + 7, sT + 7, sT)
    a.I('buffer_load_dwordx4 v[%d:%d], v%d, s[%d:%d], s%d offen', B, B + 3, B + 8, S_W, S_W + 3, sT + 7)
    return a.I('buffer_load_dwordx4 v[%d:%d], v%d, s[%d:%d], s%d offen offset:1024', B + 4, B + 7, B + 8, S_W, S_W + 3, sT + 7)


def ln_compute(a, tok, B=200):
    X = [B + 10, B + 18]
    S = [B + 26, B + 27]
    TM = [B + 28, B + 29]
    MB = [B + 30, B + 31]
    D = [B + 32, B + 40]
    if tok:
        a.wait(tok)
    for r in range(2):
        for k in range(4):
            a.I('v_lshlrev_b32 v%d, 16, v%d', X[r] + 2 * k, B + 4 * r + k)
            a.I('v_and_b32 v%d, 0xffff0000, v%d', X[r] + 2 * k + 1, B + 4 * r + k)
    for r in range(2):
        a.I('v_add_f32 v%d, v%d, v%d', S[r], X[r], X[r] + 1)
        for k in range(2, 8):
            a.I('v_add_f32 v%d, v%d, v%d', S[r], S[r], X[r] + k)
    wave_allsum(a, S, TM)
    for r in range(2):
        a.I('v_mul_f32 v%d, 0x%x, v%d', MB[r], f32bits(1.0 / 512), S[r])
    for r in range(2):
        for k in range(8):
            a.I('v_sub_f32 v%d, v%d, v%d', D[r] + k, X[r] + k, MB[r])
        a.I('v_mul_f32 v%d, v%d, v%d', S[r], D[r], D[r])
        for k in range(1, 8):
            a.I('v_fmac_f32 v%d, v%d, v%d', S[r], D[r] + k, D[r] + k)
    wave_allsum(a, S, TM)
    for r in range(2):
        a.I('v_mul_f32 v%d, 0x%x, v%d', S[r], f32bits(1.0 / 512), S[r])
        rnd_bf16(a, S[r])
        a.I('v_add_f32 v%d, 0x%x, v%d', S[r], f32bits(1e-5), S[r])
        rnd_bf16(a, S[r])
        a.I('v_sqrt_f32 v%d, v%d', S[r], S[r])
        rnd_bf16(a, S[r])
        a.I('v_rcp_f32 v%d, v%d', S[r], S[r])
        rnd_bf16(a, MB[r])
    for r in range(2):
        for k in range(4):
            a.I('v_sub_f32 v%d, v%d, v%d', D[r] + 2 * k, X[r] + 2 * k, MB[r])
            a.I('v_sub_f32 v%d, v%d, v%d', D[r] + 2 * k + 1, X[r] + 2 * k + 1, MB[r])
            a.I('v_cvt_pk_bf16_f32 v%d, v%d, v%d', TM[r], D[r] + 2 * k, D[r] + 2 * k + 1)
            a.I('v_lshlrev_b32 v%d, 16, v%d', D[r] + 2 * k, TM[r])
            a.I('v_and_b32 v%d, 0xffff0000, v%d', D[r] + 2 * k + 1, TM[r])
            a.I('v_mul_f32 v%d, v%d, v%d', D[r] + 2 * k, D[r] + 2 * k, S[r])
            a.I('v_mul_f32 v%d, v%d, v%d', D[r] + 2 * k + 1, D[r] + 2 * k + 1, S[r])
            a.I('v_cvt_pk_bf16_f32 v%d, v%d, v%d', B + 4 * r + k, D[r] + 2 * k, D[r] + 2 * k + 1)
    a.I('buffer_store_dwordx4 v[%d:%d], v%d, %s, s%d offen sc1', B, B + 3, B + 8, WS, sT + 7)
    return a.I('buffer_store_dwordx4 v[%d:%d], v%d, %s, s%d offen offset:1024 sc1', B + 4, B + 7, B + 8, WS, sT + 7)


def wait_dbg(a, dword, minval, V=250, fail='B_fail', sleep=2):
    lab = a.newlabel('WD')
    a.I('v_mov_b32 v%d, %d', V, dword * 4)
    a.I('s_mov_b32 s%d, 0', sSpin)
    a.label(lab)
    a.I('buffer_load_dword v%d, v%d, %s, 0 offen sc1', V + 1, V, DBG)
    spin(a, fail)
    a.I('s_waitcnt vmcnt(0)')
    a.I('v_readfirstlane_b32 s%d, v%d', sT, V + 1)
    a.I('s_cmp_ge_u32 s%d, %d', sT, minval)
    done = a.newlabel('WDd')
    a.I('s_cbranch_scc1 %s', done)
    a.I('s_sleep %d', sleep)
    a.I('s_branch %s', lab)
    a.label(done)


def flag_store(a, soff, V=250, val=1):
    a.I('s_mov_b64 exec, 1')
    a.I('v_mov_b32 v%d, 0', V)
    a.I('v_mov_b32 v%d, %d', V + 1, val)
    a.I('buffer_store_dword v%d, v%d, %s, s%d offen sc1', V + 1, V, WS, soff)
    a.I('s_mov_b64 exec, -1')


sSeg, sStride, sSlice, sCol, sOut, sSrc, sBuf, sFlagPrev, sHave = 64, 65, 66, 67, 68, 69, 70, 71, 72
sPermLo, sPermHi = 95, 96
vLane, vN, vG, vL16, vSrc, vWa, vWb = 1, 2, 3, 4, 5, 6, 7
FR = 16
ACC = 48
OUT = 80
WB = 100


def lane_consts(a):
    a.I('v_and_b32 v%d, 63, v0', vLane)
    a.I('v_and_b32 v%d, 15, v%d', vN, vLane)
    a.I('v_lshrrev_b32 v%d, 4, v%d', vG, vLane)
    a.I('v_lshlrev_b32 v%d, 4, v%d', vL16, vLane)
    a.I('s_mov_b32 s%d, 0x05040100', sPermLo)
    a.I('s_mov_b32 s%d, 0x07060302', sPermHi)


def gemm_weights(a, ffn):
    stride = 3584 if ffn else 8192
    a.I('s_mov_b32 s%d, %d', sT, stride * 8)
    a.I('v_mul_lo_u32 v%d, v%d, s%d', vWa, vG, sT)
    a.I('v_lshl_add_u32 v%d, v%d, %d, v%d', vWa, vN, 2 if ffn else 3, vWa)
    NB = 3
    toks = {}

    def issue(g):
        b = WB + 32 * (g % NB)
        for h in range(2):
            ks = 2 * g + h
            for kk in range(8):
                r = b + 16 * h + 2 * kk
                a.I('s_add_u32 s%d, s%d, %d', sT, sCol, (32 * ks + kk) * stride)
                if ffn:
                    a.I('buffer_load_dword v%d, v%d, s[%d:%d], s%d offen', r, vWa, S_W, S_W + 3, sT)
                    t = a.I('buffer_load_dword v%d, v%d, s[%d:%d], s%d offen', r + 1, vWa, S_W2, S_W2 + 3, sT)
                else:
                    t = a.I('buffer_load_dwordx2 v[%d:%d], v%d, s[%d:%d], s%d offen', r, r + 1, vWa, S_W, S_W + 3, sT)
        toks[g] = t

    def consume(g):
        b = WB + 32 * (g % NB)
        a.wait(toks[g])
        for h in range(2):
            ks = 2 * g + h
            for t in range(4):
                for p in range(4):
                    r0 = b + 16 * h + 4 * p + t // 2
                    a.I('v_perm_b32 v%d, v%d, v%d, s%d', OUT + 4 * t + p, r0 + 2, r0, sPermLo if t % 2 == 0 else sPermHi)
            for k in range(16):
                a.I('v_accvgpr_write_b32 a%d, v%d', 16 * ks + k, OUT + k)
    depth = 1 if ffn else 3
    for g in range(depth):
        issue(g)
    for g in range(8):
        if ffn and g + 1 < 8:
            issue(g + 1)
        consume(g)
        if not ffn and g + depth < 8:
            issue(g + depth)


def gemm_loop(a, kind):
    L = 'A%s_' % kind

    def dma():
        for j in range(8):
            a.I('s_add_u32 m0, s%d, %d', sBuf, j * (1024 - 64))
            a.I('buffer_load_dwordx4 v%d, %s, s%d offen offset:%d sc1 lds', vSrc, WS, sSrc, j * 64)

    a.I('s_lshl_b32 s%d, s%d, 13', sBuf, S_WAVE)
    a.I('s_lshl_b32 s%d, s%d, 15', sSrc, sSeg)
    dma()
    a.I('s_mov_b32 s%d, 0', sHave)
    a.I('v_mov_b32 v%d, v%d', vWb, vL16)
    a.I('s_waitcnt vmcnt(0)')
    a.I('s_barrier')
    a.label(L + 'loop')
    a.I('s_add_u32 s%d, s%d, s%d', sT + 1, sSeg, sStride)
    a.I('s_min_u32 s%d, s%d, 63', sT + 1, sT + 1)
    a.I('s_lshl_b32 s%d, s%d, 15', sSrc, sT + 1)
    a.I('s_xor_b32 s%d, s%d, 32768', sBuf, sBuf)
    ft = {}

    def rd(ks):
        st = ks % 3
        a.I('ds_read_b128 v[%d:%d], v%d offset:%d', FR + 8 * st, FR + 8 * st + 3, vWb, ks * 1024)
        ft[ks] = a.I('ds_read_b128 v[%d:%d], v%d offset:%d', FR + 8 * st + 4, FR + 8 * st + 7, vWb, 16384 + ks * 1024)
    rd(0)
    rd(1)
    dma()
    for ks in range(16):
        if ks + 2 < 16:
            rd(ks + 2)
        a.wait(ft[ks])
        st = ks % 3
        for T in range(2):
            for t in range(4):
                d = ACC + 16 * T + 4 * t
                x = vr(FR + 8 * st + 4 * T, 4)
                w = ar(16 * ks + 4 * t, 4)
                A, B = (x, w) if kind == 'v' else (w, x)
                a.I('v_mfma_f32_16x16x32_bf16 v[%d:%d], %s, %s, %s', d, d + 3, A, B, '0' if ks == 0 else vr(d, 4))
        if ks == 8:
            a.I('s_waitcnt vmcnt(8)')
            a.I('s_barrier')
            sk = a.newlabel(L + 'nf')
            a.I('s_or_b32 s%d, s%d, s%d', sT, S_WAVE, sHave)
            a.I('s_cmp_lg_u32 s%d, 0x100', sT)
            a.I('s_cbranch_scc1 %s', sk)
            flag_store(a, sFlagPrev)
            a.label(sk)
            a.vm_n -= 1
    a.I('s_waitcnt vmcnt(0)')
    a.I('s_barrier')
    if kind == 'qk':
        a.I('s_lshl_b32 s%d, s%d, 18', sT, sSeg)
        a.I('s_add_u32 s%d, s%d, s%d', sT, sT, sOut)
        a.I('s_add_u32 s%d, s%d, 4096', sT + 1, sT)
        for T in range(2):
            for i in range(4):
                for tp in range(2):
                    a.I('v_cvt_pk_bf16_f32 v%d, v%d, v%d', OUT + 8 * T + 2 * i + tp, ACC + 16 * T + 8 * tp + i, ACC + 16 * T + 8 * tp + 4 + i)
            for hf in range(2):
                a.I('buffer_store_dwordx4 v[%d:%d], v%d, %s, s%d offen offset:%d sc1', OUT + 8 * T + 4 * hf, OUT + 8 * T + 4 * hf + 3,
                    vL16, WS, sT + T, 1024 * hf)
    elif kind == 'v':
        a.I('s_lshl_b32 s%d, s%d, 18', sT, sSeg)
        a.I('s_add_u32 s%d, s%d, s%d', sT, sT, sOut)
        for t in range(4):
            for T in range(2):
                for i2 in range(2):
                    a.I('v_cvt_pk_bf16_f32 v%d, v%d, v%d', OUT + 4 * t + 2 * T + i2, ACC + 16 * T + 4 * t + 2 * i2, ACC + 16 * T + 4 * t + 2 * i2 + 1)
            a.I('buffer_store_dwordx4 v[%d:%d], v%d, %s, s%d offen offset:%d sc1', OUT + 4 * t, OUT + 4 * t + 3, vL16, WS, sT, 1024 * t)
    else:
        a.I('s_mul_i32 s%d, s%d, %d', sT, sSeg, 2 * 56 * 1024)
        a.I('s_add_u32 s%d, s%d, s%d', sT, sT, sOut)
        a.I('s_add_u32 s%d, s%d, %d', sT + 1, sT, 56 * 1024)
        for T in range(2):
            for i in range(4):
                g0, g1, u0, u1 = [ACC + 16 * T + 4 * t + i for t in range(4)]
                a.I('v_cvt_pk_bf16_f32 v%d, v%d, v%d', g0, g0, g1)
                a.I('v_cvt_pk_bf16_f32 v%d, v%d, v%d', u0, u0, u1)
                a.I('v_and_b32 v%d, 0xffff0000, v%d', g1, g0)
                a.I('v_and_b32 v%d, 0xffff0000, v%d', u1, u0)
                a.I('v_lshlrev_b32 v%d, 16, v%d', g0, g0)
                a.I('v_lshlrev_b32 v%d, 16, v%d', u0, u0)
                a.I('v_mul_f32 v%d, v%d, v%d', g0, g0, u0)
                a.I('v_mul_f32 v%d, v%d, v%d', g1, g1, u1)
                a.I('v_cvt_pk_bf16_f32 v%d, v%d, v%d', OUT + 4 * T + i, g0, g1)
            a.I('buffer_store_dwordx4 v[%d:%d], v%d, %s, s%d offen sc1', OUT + 4 * T, OUT + 4 * T + 3, vL16, WS, sT + T)
    a.I('s_lshl_b32 s%d, s%d, 8', sT, sSeg)
    a.I('s_lshl_b32 s%d, s%d, 2', sT + 1, sSlice)
    a.I('s_add_u32 s%d, s%d, s%d', sT, sT, sT + 1)
    a.I('s_add_u32 s%d, s%d, 0x%x', sFlagPrev, sT, WS_FLAGS + FL_SEG)
    a.I('s_mov_b32 s%d, 0x100', sHave)
    a.I('v_xor_b32 v%d, 32768, v%d', vWb, vWb)
    a.I('s_add_u32 s%d, s%d, s%d', sSeg, sSeg, sStride)
    a.I('s_cmp_lt_u32 s%d, 64', sSeg)
    a.I('s_cbranch_scc1 %sloop', L)
    a.I('s_waitcnt vmcnt(0)')
    a.I('s_barrier')
    sk = a.newlabel(L + 'nf')
    a.I('s_cmp_lg_u32 s%d, 0', S_WAVE)
    a.I('s_cbranch_scc1 %s', sk)
    flag_store(a, sFlagPrev)
    a.label(sk)
    a.I('s_branch A_done')


def wait_xn(a):
    lab = a.newlabel('WX')
    a.I('s_mov_b32 s%d, 0x%x', sT + 1, WS_FLAGS + FL_XN)
    a.I('s_mov_b32 s%d, 0', sSpin)
    a.label(lab)
    a.I('buffer_load_dwordx4 v[%d:%d], v%d, %s, s%d offen sc1', FR, FR + 3, vL16, WS, sT + 1)
    spin(a)
    a.I('s_waitcnt vmcnt(0)')
    a.I('v_min3_u32 v%d, v%d, v%d, v%d', FR, FR, FR + 1, FR + 2)
    a.I('v_min_u32 v%d, v%d, v%d', FR, FR, FR + 3)
    a.I('v_cmp_eq_u32 vcc, 0, v%d', FR)
    done = a.newlabel('WXd')
    a.I('s_cbranch_vccz %s', done)
    a.I('s_sleep 2')
    a.I('s_branch %s', lab)
    a.label(done)


def gen_phase_a(a):
    a.c('================ phase A: projections, ticket in s%d ================' % S_ROLE)
    lane_consts(a)
    a.I('v_lshlrev_b32 v%d, 10, v%d', vSrc, vN)
    a.I('v_lshl_add_u32 v%d, v%d, 4, v%d', vSrc, vG, vSrc)
    a.I('s_lshr_b32 s%d, s%d, 1', sT, S_WAVE)
    a.I('s_lshl_b32 s%d, s%d, 14', sT, sT)
    a.I('s_and_b32 s%d, s%d, 1', sT + 1, S_WAVE)
    a.I('s_lshl_b32 s%d, s%d, 9', sT + 1, sT + 1)
    a.I('s_add_u32 s%d, s%d, s%d', sT, sT, sT + 1)
    a.I('v_add_u32 v%d, s%d, v%d', vSrc, sT, vSrc)
    a.I('s_cmp_ge_u32 s%d, 218', S_ROLE)
    a.I('s_cbranch_scc1 A_done')
    a.I('s_cmp_ge_u32 s%d, 176', S_ROLE)
    a.I('s_cbranch_scc1 A_h')
    a.I('s_and_b32 s%d, s%d, 31', sSlice, S_ROLE)
    a.I('s_lshr_b32 s%d, s%d, 5', sSeg, S_ROLE)
    a.I('s_mov_b32 s%d, 4', sStride)
    a.I('s_cmp_lt_u32 s%d, 128', S_ROLE)
    a.I('s_cbranch_scc1 A_kv')
    a.I('s_sub_u32 s%d, s%d, 128', sT, S_ROLE)
    a.I('s_and_b32 s%d, s%d, 15', sSlice, sT)
    a.I('s_add_u32 s%d, s%d, 32', sSlice, sSlice)
    a.I('s_lshr_b32 s%d, s%d, 4', sSeg, sT)
    a.I('s_mov_b32 s%d, 3', sStride)
    a.label('A_kv')
    a.I('s_and_b32 s%d, s%d, 15', sT, sSlice)
    a.I('s_lshl_b32 s%d, s%d, 9', sCol, sT)
    a.I('s_lshl_b32 s%d, s%d, 7', sT + 1, S_WAVE)
    a.I('s_add_u32 s%d, s%d, s%d', sCol, sCol, sT + 1)
    a.I('s_lshl_b32 s%d, s%d, 14', sOut, sT)
    a.I('s_lshr_b32 s%d, s%d, 1', sT + 1, S_WAVE)
    a.I('s_lshl_b32 s%d, s%d, 13', sT + 1, sT + 1)
    a.I('s_add_u32 s%d, s%d, s%d', sOut, sOut, sT + 1)
    a.I('s_and_b32 s%d, s%d, 1', sT + 2, S_WAVE)
    a.I('s_lshr_b32 s%d, s%d, 4', sT + 3, sSlice)
    a.I('s_cmp_eq_u32 s%d, 1', sT + 3)
    a.I('s_cbranch_scc1 A_v')
    a.I('s_lshl_b32 s%d, s%d, 11', sT + 2, sT + 2)
    a.I('s_add_u32 s%d, s%d, s%d', sOut, sOut, sT + 2)
    a.I('s_cmp_eq_u32 s%d, 0', sT + 3)
    a.I('s_cselect_b32 s%d, s%d, s%d', S_W, P_WK, P_WQ)
    a.I('s_cselect_b32 s%d, s%d, s%d', S_W + 1, P_WK + 1, P_WQ + 1)
    a.I('s_cselect_b32 s%d, 0x%x, 0x%x' % (sT, WS_K >> 20, WS_Q >> 20))
    a.I('s_lshl_b32 s%d, s%d, 20', sT, sT)
    a.I('s_add_u32 s%d, s%d, s%d', sOut, sOut, sT)
    a.I('s_and_b32 s%d, s%d, 0xffff', S_W + 1, S_W + 1)
    a.I('s_mov_b32 s%d, 4194304', S_W + 2)
    a.I('s_mov_b32 s%d, 0x20000', S_W + 3)
    a.I('s_branch A_w')
    a.label('A_v')
    a.I('s_lshl_b32 s%d, s%d, 12', sT + 2, sT + 2)
    a.I('s_add_u32 s%d, s%d, s%d', sOut, sOut, sT + 2)
    a.I('s_add_u32 s%d, s%d, 0x%x', sOut, sOut, WS_V)
    srd(a, S_W, P_WV, 4194304)
    a.label('A_w')
    gemm_weights(a, False)
    wait_xn(a)
    a.I('s_lshr_b32 s%d, s%d, 4', sT + 3, sSlice)
    a.I('s_cmp_eq_u32 s%d, 1', sT + 3)
    a.I('s_cbranch_scc1 A_vloop')
    gemm_loop(a, 'qk')
    a.label('A_vloop')
    gemm_loop(a, 'v')
    a.label('A_h')
    a.I('s_sub_u32 s%d, s%d, 176', sT, S_ROLE)
    a.I('s_mov_b32 s%d, 0', sSeg)
    for k in range(2):
        a.I('s_cmp_ge_u32 s%d, 14', sT)
        a.I('s_cselect_b32 s%d, 14, 0', sT + 1)
        a.I('s_sub_u32 s%d, s%d, s%d', sT, sT, sT + 1)
        a.I('s_lshr_b32 s%d, s%d, 3', sT + 1, sT + 1)
        a.I('s_add_u32 s%d, s%d, s%d', sSeg, sSeg, sT + 1)
    a.I('s_add_u32 s%d, s%d, 48', sSlice, sT)
    a.I('s_mov_b32 s%d, 3', sStride)
    a.I('s_lshl_b32 s%d, s%d, 2', sT, sT)
    a.I('s_add_u32 s%d, s%d, s%d', sT, sT, S_WAVE)
    a.I('s_lshl_b32 s%d, s%d, 6', sCol, sT)
    a.I('s_lshl_b32 s%d, s%d, 10', sOut, sT)
    a.I('s_add_u32 s%d, s%d, 0x%x', sOut, sOut, WS_H)
    srd(a, S_W, P_WG, 512 * 3584)
    srd(a, S_W2, P_WU, 512 * 3584)
    gemm_weights(a, True)
    wait_xn(a)
    gemm_loop(a, 'h')
    a.label('A_done')


def poll_flags(a, vaddr, soff, nlanes, smin, V, sleep=2):
    lab = a.newlabel('PF')
    done = a.newlabel('PFd')
    a.I('s_mov_b32 s%d, 0', sSpin)
    a.I('s_mov_b64 exec, 0x%x', (1 << nlanes) - 1)
    a.label(lab)
    a.I('buffer_load_dword v%d, v%d, %s, s%d offen sc1', V, vaddr, WS, soff)
    spin(a)
    a.I('s_waitcnt vmcnt(0)')
    if smin is None:
        a.I('v_cmp_eq_u32 vcc, 0, v%d', V)
    else:
        a.I('v_cmp_gt_u32 vcc, s%d, v%d', smin, V)
    a.I('s_cbranch_vccz %s', done)
    a.I('s_sleep %d', sleep)
    a.I('s_branch %s', lab)
    a.label(done)
    a.I('s_mov_b64 exec, -1')


NT1 = 96


def gen_t1(a):
    a.c('================ T1: token attention ================')
    sTask, sSegT, sHead, sBase, sB2, sNeed, sC = 64, 65, 66, 67, 68, 69, 70
    sMask = 72
    sLo = 80
    vKm, vVm, vF64, vF128, vNeg = 5, 6, 7, 8, 9
    TM = 10
    QF, KF, VF, KM, VM, S, P, O = 16, 48, 80, 112, 128, 144, 164, 176
    lane_consts(a)
    a.I('s_mov_b32 s%d, 0x%x', sC, f32bits(128 ** -0.5 * 1.4426950408889634))
    a.I('v_mov_b32 v%d, 0x%x', vNeg, f32bits(-3.0e38))
    a.I('v_lshlrev_b32 v%d, 2, v%d', TM, vG)
    for i in range(4):
        a.I('v_add_u32 v%d, %d, v%d', TM + 1, i, TM)
        a.I('v_cmp_le_u32 s[%d:%d], v%d, v%d', sMask + 2 * i, sMask + 2 * i + 1, TM + 1, vN)
    a.I('s_mov_b32 s%d, -1', sLo)
    a.I('s_mov_b32 s%d, 0', sLo + 1)
    a.I('v_lshlrev_b32 v%d, 6, v%d', vF64, vLane)
    a.I('v_lshlrev_b32 v%d, 7, v%d', vF128, vLane)
    a.I('v_lshrrev_b32 v%d, 1, v%d', TM, vG)
    a.I('v_lshlrev_b32 v%d, 10, v%d', vKm, TM)
    a.I('v_and_b32 v%d, 1, v%d', TM, vG)
    a.I('v_lshl_add_u32 v%d, v%d, 7, v%d', vKm, TM, vKm)
    a.I('v_bfe_u32 v%d, v%d, 1, 2', TM, vN)
    a.I('v_lshl_add_u32 v%d, v%d, 8, v%d', vKm, TM, vKm)
    a.I('v_and_b32 v%d, 1, v%d', TM, vN)
    a.I('v_lshl_add_u32 v%d, v%d, 2, v%d', vKm, TM, vKm)
    a.I('v_add_u32 v%d, 4, v%d', vKm, vKm)
    a.I('v_lshrrev_b32 v%d, 3, v%d', TM, vN)
    a.I('v_lshlrev_b32 v%d, 10, v%d', vVm, TM)
    a.I('v_and_b32 v%d, 1, v%d', TM, vG)
    a.I('v_lshl_add_u32 v%d, v%d, 9, v%d', vVm, TM, vVm)
    a.I('v_and_b32 v%d, 7, v%d', TM, vN)
    a.I('v_lshl_add_u32 v%d, v%d, 5, v%d', vVm, TM, vVm)
    a.I('s_lshl_b32 s%d, s%d, 2', sTask, S_ROLE)
    a.I('s_add_u32 s%d, s%d, s%d', sTask, sTask, S_WAVE)
    a.label('T1_loop')
    a.I('s_lshr_b32 s%d, s%d, 5', sSegT, sTask)
    a.I('s_and_b32 s%d, s%d, 31', sHead, sTask)
    a.I('s_lshl_b32 s%d, s%d, 8', sT + 1, sSegT)
    a.I('s_lshr_b32 s%d, s%d, 1', sT + 2, sHead)
    a.I('s_lshl_b32 s%d, s%d, 2', sT + 2, sT + 2)
    a.I('s_add_u32 s%d, s%d, s%d', sT + 1, sT + 1, sT + 2)
    a.I('s_add_u32 s%d, s%d, 0x%x', sT + 1, sT + 1, WS_FLAGS + FL_SEG)
    poll_flags(a, vF64, sT + 1, 3, None, TM, sleep=8)
    a.I('s_lshl_b32 s%d, s%d, 13', sBase, sTask)
    tk = {}
    for nm, R, W0 in (('k', KF, WS_K), ('q', QF, WS_Q), ('v', VF, WS_V)):
        a.I('s_add_u32 s%d, s%d, 0x%x', sT + 1, sBase, W0)
        a.I('s_add_u32 s%d, s%d, 0x%x', sT + 2, sBase, W0 + 4096)
        for f in range(8):
            tk[nm, f] = a.I('buffer_load_dwordx4 v[%d:%d], v%d, %s, s%d offen offset:%d sc1', R + 4 * f, R + 4 * f + 3, vL16, WS,
                            sT + 1 + f // 4, (f % 4) * 1024)
    a.wait(tk['q', 7])
    for (D, Tk, Tq) in ((S, 0, 0), (S + 8, 0, 1), (S + 12, 1, 1)):
        for f in range(4):
            a.I('v_mfma_f32_16x16x32_bf16 v[%d:%d], %s, %s, %s', D, D + 3, vr(KF + 16 * Tk + 4 * f, 4), vr(QF + 16 * Tq + 4 * f, 4),
                '0' if f == 0 else vr(D, 4))
    a.I('s_add_u32 s%d, s%d, 1', sNeed, sSegT)
    a.I('s_lshl_b32 s%d, s%d, 9', sT + 1, sHead)
    a.I('s_add_u32 s%d, s%d, 0x%x', sT + 1, sT + 1, WS_FLAGS + FL_KM)
    for i in range(4):
        a.I('v_cndmask_b32 v%d, v%d, v%d, s[%d:%d]', S + i, vNeg, S + i, sMask + 2 * i, sMask + 2 * i + 1)
        a.I('v_cndmask_b32 v%d, v%d, v%d, s[%d:%d]', S + 12 + i, vNeg, S + 12 + i, sMask + 2 * i, sMask + 2 * i + 1)
    a.I('v_max3_f32 v%d, v%d, v%d, v%d', TM + 2, S, S + 1, S + 2)
    a.I('v_max_f32 v%d, v%d, v%d', TM + 2, TM + 2, S + 3)
    a.I('v_max3_f32 v%d, v%d, v%d, v%d', TM + 3, S + 8, S + 9, S + 10)
    a.I('v_max3_f32 v%d, v%d, v%d, v%d', TM + 3, TM + 3, S + 11, S + 12)
    a.I('v_max3_f32 v%d, v%d, v%d, v%d', TM + 3, TM + 3, S + 13, S + 14)
    a.I('v_max_f32 v%d, v%d, v%d', TM + 3, TM + 3, S + 15)
    poll_flags(a, vF128, sT + 1, 4, sNeed, TM, sleep=4)
    a.I('s_lshl_b32 s%d, s%d, 12', sB2, sTask)
    a.I('s_add_u32 s%d, s%d, 0x%x', sB2, sB2, WS_VM)
    for f in range(4):
        for c in range(4):
            t = a.I('buffer_load_dword v%d, v%d, %s, s%d offen offset:%d sc1', KM + 4 * f + c, vKm, WS, sB2, (f // 2) * 2048 + (f % 2) * 64 + c * 16)
        tk['km', f] = t
    for tau in range(8):
        G, t = tau // 4, tau % 4
        for j in range(2):
            tk['vm'] = a.I('buffer_load_dword v%d, v%d, %s, s%d offen offset:%d sc1', VM + 2 * tau + j, vVm, WS, sB2,
                           G * 2048 + j * 256 + (t // 2) * 16 + (t % 2) * 12)
    for f in range(4):
        a.wait(tk['km', f])
        for Tq, D in ((0, S + 4), (1, S + 16)):
            a.I('v_mfma_f32_16x16x32_bf16 v[%d:%d], %s, %s, %s', D, D + 3, vr(KM + 4 * f, 4), vr(QF + 16 * Tq + 4 * f, 4), '0' if f == 0 else vr(D, 4))
    MX = [TM + 2, TM + 3]
    MT = [TM + 4, TM + 5]
    for Tq, D in ((0, S + 4), (1, S + 16)):
        a.I('v_max3_f32 v%d, v%d, v%d, v%d', MX[Tq], MX[Tq], D, D + 1)
        a.I('v_max3_f32 v%d, v%d, v%d, v%d', MX[Tq], MX[Tq], D + 2, D + 3)
    for op in ('v_permlane32_swap_b32', 'v_permlane16_swap_b32'):
        for Tq in range(2):
            a.I('v_mov_b32 v%d, v%d', MT[Tq], MX[Tq])
        for Tq in range(2):
            a.I('%s v%d, v%d', op, MX[Tq], MT[Tq])
        for Tq in range(2):
            a.I('v_max_f32 v%d, v%d, v%d', MX[Tq], MX[Tq], MT[Tq])
    for Tq, D in ((0, S + 4), (1, S + 16)):
        a.I('v_mul_f32 v%d, s%d, v%d', MX[Tq], sC, MX[Tq])
        for i in range(4):
            a.I('v_cndmask_b32 v%d, v%d, v%d, s[%d:%d]', D + i, vNeg, D + i, sLo, sLo + 1)
    rng = {0: range(S, S + 8), 1: range(S + 8, S + 20)}
    for Tq in range(2):
        for r in rng[Tq]:
            a.I('v_fma_f32 v%d, v%d, s%d, -v%d', r, r, sC, MX[Tq])
        for r in rng[Tq]:
            a.I('v_exp_f32 v%d, v%d', r, r)
    a.I('v_cvt_pk_bf16_f32 v%d, v%d, v%d', P, S, S + 1)
    a.I('v_cvt_pk_bf16_f32 v%d, v%d, v%d', P + 1, S + 2, S + 3)
    a.I('v_mov_b32 v%d, 0', P + 2)
    a.I('v_mov_b32 v%d, 0', P + 3)
    for k in range(4):
        a.I('v_cvt_pk_bf16_f32 v%d, v%d, v%d', P + 4 + k, S + 8 + 2 * k, S + 9 + 2 * k)
    for Tq, D in ((0, S + 4), (1, S + 16)):
        a.I('v_cvt_pk_bf16_f32 v%d, v%d, v%d', P + 8 + 2 * Tq, D, D + 1)
        a.I('v_cvt_pk_bf16_f32 v%d, v%d, v%d', P + 9 + 2 * Tq, D + 2, D + 3)
    for Tq in range(2):
        for tau in range(8):
            D = O + 32 * Tq + 4 * tau
            a.I('v_mfma_f32_16x16x32_bf16 v[%d:%d], %s, %s, 0', D, D + 3, vr(VF + 4 * tau, 4), vr(P + 4 * Tq, 4))
            if Tq == 0:
                k = tau
                if k == 0:
                    a.I('v_add_f32 v%d, v%d, v%d', MX[0], S, S + 1)
                    a.I('v_add_f32 v%d, v%d, v%d', MX[1], S + 8, S + 9)
                elif k < 7:
                    a.I('v_add_f32 v%d, v%d, v%d', MX[0], MX[0], S + 1 + k)
                    a.I('v_add_f32 v%d, v%d, v%d', MX[1], MX[1], S + 9 + k)
                else:
                    a.I('v_add_f32 v%d, v%d, v%d', MX[1], MX[1], S + 16)
                    a.I('v_add_f32 v%d, v%d, v%d', MX[1], MX[1], S + 17)
            elif tau == 0:
                a.I('v_add_f32 v%d, v%d, v%d', MX[1], MX[1], S + 18)
                a.I('v_add_f32 v%d, v%d, v%d', MX[1], MX[1], S + 19)
    a.wait(tk['vm'])
    for Tq in range(2):
        for tau in range(8):
            D = O + 32 * Tq + 4 * tau
            a.I('v_mfma_f32_16x16x16_bf16 v[%d:%d], %s, %s, %s', D, D + 3, vr(VM + 2 * tau, 2), vr(P + 8 + 2 * Tq, 2), vr(D, 4))
    for op in ('v_permlane32_swap_b32', 'v_permlane16_swap_b32'):
        for Tq in range(2):
            a.I('v_mov_b32 v%d, v%d', MT[Tq], MX[Tq])
        for Tq in range(2):
            a.I('%s v%d, v%d', op, MX[Tq], MT[Tq])
        for Tq in range(2):
            a.I('v_add_f32 v%d, v%d, v%d', MX[Tq], MX[Tq], MT[Tq])
    for Tq in range(2):
        a.I('v_rcp_f32 v%d, v%d', MX[Tq], MX[Tq])
    a.I('s_add_u32 s%d, s%d, 0x%x', sT + 1, sBase, WS_O)
    a.I('s_add_u32 s%d, s%d, 0x%x', sT + 2, sBase, WS_O + 4096)
    for Tq in range(2):
        for G in range(2):
            B = O + 32 * Tq + 16 * G
            for r in range(16):
                a.I('v_mul_f32 v%d, v%d, v%d', B + r, B + r, MX[Tq])
            PK = KF + 16 * Tq + 8 * G
            for i in range(4):
                for tp in range(2):
                    a.I('v_cvt_pk_bf16_f32 v%d, v%d, v%d', PK + 2 * i + tp, B + 8 * tp + i, B + 8 * tp + 4 + i)
            for hf in range(2):
                a.I('buffer_store_dwordx4 v[%d:%d], v%d, %s, s%d offen offset:%d sc1', PK + 4 * hf, PK + 4 * hf + 3, vL16, WS, sT + 1 + Tq,
                    G * 2048 + hf * 1024)
    a.I('s_lshl_b32 s%d, s%d, 2', sT + 3, sTask)
    a.I('s_add_u32 s%d, s%d, 0x%x', sT + 3, sT + 3, WS_FLAGS + FL_O)
    a.I('s_waitcnt vmcnt(0)')
    flag_store(a, sT + 3, V=TM)
    a.I('s_add_u32 s%d, s%d, %d', sTask, sTask, NT1 * 4)
    a.I('s_cmp_lt_u32 s%d, 2048', sTask)
    a.I('s_cbranch_scc1 T1_loop')
    a.I('s_endpgm')


def gen_t2(a):
    a.c('================ T2: output projection + FFN down + final ================')
    sTile, sSl, sSegT, sPar, sOB, sXO, sL2e = 64, 65, 66, 67, 68, 69, 70
    vW1, vW2, vF4, vLw, vLr, vXo = 5, 6, 7, 8, 9, 10
    TM = 12
    SA, FA = 20, 28
    BUF = 36
    XR = 132
    HW = 144
    lane_consts(a)
    a.I('s_and_b32 s%d, s%d, 15', sSl, S_ROLE)
    a.I('s_lshr_b32 s%d, s%d, 4', sTile, S_ROLE)
    a.I('s_mov_b32 s%d, 0x%x', sL2e, f32bits(-1.4426950408889634))
    a.I('v_lshlrev_b32 v%d, 14, v%d', vW1, vG)
    a.I('v_lshl_add_u32 v%d, v%d, 2, v%d', vW1, vN, vW1)
    a.I('v_lshlrev_b32 v%d, 13, v%d', vW2, vG)
    a.I('v_lshl_add_u32 v%d, v%d, 2, v%d', vW2, vN, vW2)
    a.I('v_lshlrev_b32 v%d, 2, v%d', vF4, vLane)
    a.I('s_lshl_b32 s%d, s%d, 12', sT, S_WAVE)
    a.I('v_add_u32 v%d, s%d, v%d', vLw, sT, vL16)
    a.I('s_lshl_b32 s%d, s%d, 10', sT, S_WAVE)
    a.I('v_add_u32 v%d, s%d, v%d', vLr, sT, vL16)
    a.I('v_lshlrev_b32 v%d, 10, v%d', vXo, vN)
    a.I('v_lshl_add_u32 v%d, v%d, 4, v%d', vXo, vG, vXo)
    a.I('s_lshl_b32 s%d, s%d, 6', sT, sSl)
    a.I('s_lshl_b32 s%d, s%d, 2', sT + 1, S_WAVE)
    a.I('s_add_u32 s%d, s%d, s%d', sT, sT, sT + 1)
    a.I('v_add_u32 v%d, s%d, v%d', vXo, sT, vXo)
    srd(a, S_W, P_WO, 4194304)
    srd(a, S_W2, P_WD, 1792 * 1024)
    sWo, sWd = sT + 2, sT + 3
    a.I('s_lshl_b32 s%d, s%d, 6', sT, sSl)
    a.I('s_lshl_b32 s%d, s%d, 20', sWo, S_WAVE)
    a.I('s_add_u32 s%d, s%d, s%d', sWo, sWo, sT)
    a.I('s_mul_i32 s%d, s%d, %d', sWd, S_WAVE, 14 * 32 * 1024)
    a.I('s_add_u32 s%d, s%d, s%d', sWd, sWd, sT)
    frs = [('d', j) for j in range(14)] + [('o', j) for j in range(32)]
    GS = 2
    groups = [frs[i:i + GS] for i in range(0, len(frs), GS)]
    NB = 3
    toks = {}

    def issue(gi):
        b = BUF + 16 * (gi % (NB + 1))
        for q, (kind, j) in enumerate(groups[gi]):
            for e in range(8):
                if kind == 'o':
                    row = (j // 4) * 128 + 64 * ((j % 4) // 2) + 8 * (j % 2) + e
                    a.I('s_add_u32 s%d, s%d, %d', sT, sWo, row * 1024)
                    t = a.I('buffer_load_dword v%d, v%d, s[%d:%d], s%d offen', b + 8 * q + e, vW1, S_W, S_W + 3, sT)
                else:
                    a.I('s_add_u32 s%d, s%d, %d', sT, sWd, (32 * j + e) * 1024)
                    t = a.I('buffer_load_dword v%d, v%d, s[%d:%d], s%d offen', b + 8 * q + e, vW2, S_W2, S_W2 + 3, sT)
        toks[gi] = t

    def consume(gi):
        b = BUF + 16 * (gi % (NB + 1))
        a.wait(toks[gi])
        for q, (kind, j) in enumerate(groups[gi]):
            for t in range(2):
                for p in range(4):
                    dst = HW + 8 * j + 4 * t + p if kind == 'd' else TM + 4 * t + p
                    a.I('v_perm_b32 v%d, v%d, v%d, s%d', dst, b + 8 * q + 2 * p + 1, b + 8 * q + 2 * p, sPermLo if t == 0 else sPermHi)
            if kind == 'o':
                for k in range(8):
                    a.I('v_accvgpr_write_b32 a%d, v%d', 8 * j + k, TM + k)
    for gi in range(NB):
        issue(gi)
    for gi in range(len(groups)):
        if gi + NB < len(groups):
            issue(gi + NB)
        consume(gi)
    srd(a, S_W, P_X, 2097152)
    srd(a, S_W2, P_OUT, 2097152)
    a.I('s_mov_b32 s%d, 0', sPar)
    a.label('T2_loop')
    a.I('s_lshr_b32 s%d, s%d, 1', sSegT, sTile)
    a.I('s_lshl_b32 s%d, s%d, 8', sT + 1, sSegT)
    a.I('s_add_u32 s%d, s%d, 0x%x', sT + 1, sT + 1, WS_FLAGS + FL_SEG + 48 * 4)
    poll_flags(a, vF4, sT + 1, 14, None, TM, sleep=8)
    a.I('s_mul_i32 s%d, s%d, %d', sT + 1, sTile, 56 * 1024)
    a.I('s_mul_i32 s%d, s%d, %d', sT + 2, S_WAVE, 14 * 1024)
    a.I('s_add_u32 s%d, s%d, s%d', sT + 1, sT + 1, sT + 2)
    a.I('s_add_u32 s%d, s%d, 0x%x', sT + 1, sT + 1, WS_H)
    ht = []
    for j in range(14):
        if j and j % 4 == 0:
            a.I('s_add_u32 s%d, s%d, 4096', sT + 1, sT + 1)
        ht.append(a.I('buffer_load_dwordx4 v[%d:%d], v%d, %s, s%d offen offset:%d sc1', BUF + 4 * j, BUF + 4 * j + 3, vL16, WS, sT + 1, (j % 4) * 1024))
    a.I('s_lshl_b32 s%d, s%d, 14', sXO, sTile)
    a.I('buffer_load_dword v%d, v%d, s[%d:%d], s%d offen', XR, vXo, S_W, S_W + 3, sXO)
    for j in range(14):
        a.wait(ht[j])
        for t in range(2):
            a.I('v_mfma_f32_16x16x32_bf16 v[%d:%d], %s, %s, %s', FA + 4 * t, FA + 4 * t + 3, vr(HW + 8 * j + 4 * t, 4), vr(BUF + 4 * j, 4),
                '0' if j == 0 else vr(FA + 4 * t, 4))
    a.I('s_lshl_b32 s%d, s%d, 7', sT + 1, sSegT)
    a.I('s_lshl_b32 s%d, s%d, 5', sT + 2, S_WAVE)
    a.I('s_add_u32 s%d, s%d, s%d', sT + 1, sT + 1, sT + 2)
    a.I('s_add_u32 s%d, s%d, 0x%x', sT + 1, sT + 1, WS_FLAGS + FL_O)
    a.I('s_lshl_b32 s%d, s%d, 18', sOB, sSegT)
    a.I('s_lshl_b32 s%d, s%d, 16', sT + 2, S_WAVE)
    a.I('s_add_u32 s%d, s%d, s%d', sOB, sOB, sT + 2)
    a.I('s_and_b32 s%d, s%d, 1', sT + 2, sTile)
    a.I('s_lshl_b32 s%d, s%d, 12', sT + 2, sT + 2)
    a.I('s_add_u32 s%d, s%d, s%d', sOB, sOB, sT + 2)
    a.I('s_add_u32 s%d, s%d, 0x%x', sOB, sOB, WS_O)
    for t in range(2):
        for i in range(4):
            a.I('ds_write_b32 v%d, v%d offset:%d', vLw, FA + 4 * t + i, i * 1024 + 8 + 4 * t)
    poll_flags(a, vF4, sT + 1, 8, None, TM, sleep=4)
    ot = {}

    def oload(j):
        if j % 4 == 0:
            a.I('s_add_u32 s%d, s%d, %d', sT + 1, sOB, (j // 4) * 8192)
        r = BUF + 4 * (j % 24)
        ot[j] = a.I('buffer_load_dwordx4 v[%d:%d], v%d, %s, s%d offen offset:%d sc1', r, r + 3, vL16, WS, sT + 1, (j % 4) * 1024)
    for j in range(24):
        oload(j)
    for j in range(32):
        a.wait(ot[j])
        r = BUF + 4 * (j % 24)
        for t in range(2):
            a.I('v_mfma_f32_16x16x32_bf16 v[%d:%d], %s, %s, %s', SA + 4 * t, SA + 4 * t + 3, ar(8 * j + 4 * t, 4), vr(r, 4),
                '0' if j == 0 else vr(SA + 4 * t, 4))
        if j + 24 < 32:
            oload(j + 24)
    for t in range(2):
        for i in range(4):
            a.I('ds_write_b32 v%d, v%d offset:%d', vLw, SA + 4 * t + i, i * 1024 + 4 * t)
    a.I('s_waitcnt lgkmcnt(0)')
    a.I('s_barrier')
    R = BUF
    for w in range(4):
        a.I('ds_read_b128 v[%d:%d], v%d offset:%d', R + 4 * w, R + 4 * w + 3, vLr, w * 4096)
    a.I('v_xor_b32 v%d, 16384, v%d', vLw, vLw)
    a.I('v_xor_b32 v%d, 16384, v%d', vLr, vLr)
    a.I('s_waitcnt lgkmcnt(0)')
    for k in range(4):
        a.I('v_add_f32 v%d, v%d, v%d', R + k, R + k, R + 4 + k)
        a.I('v_add_f32 v%d, v%d, v%d', R + 8 + k, R + 8 + k, R + 12 + k)
    for k in range(4):
        a.I('v_add_f32 v%d, v%d, v%d', R + k, R + k, R + 8 + k)

    def unpack(dst, src):
        a.I('v_and_b32 v%d, 0xffff0000, v%d', dst + 1, src)
        a.I('v_lshlrev_b32 v%d, 16, v%d', dst, src)
    a.I('v_cvt_pk_bf16_f32 v%d, v%d, v%d', R, R, R + 1)
    a.I('v_cvt_pk_bf16_f32 v%d, v%d, v%d', R + 2, R + 2, R + 3)
    unpack(R, R)
    unpack(R + 2, R + 2)
    for k in range(2):
        a.I('v_mul_f32 v%d, s%d, v%d', R + 4 + k, sL2e, R + 2 + k)
    for k in range(2):
        a.I('v_exp_f32 v%d, v%d', R + 4 + k, R + 4 + k)
    for k in range(2):
        a.I('v_add_f32 v%d, 1.0, v%d', R + 4 + k, R + 4 + k)
    for k in range(2):
        a.I('v_rcp_f32 v%d, v%d', R + 4 + k, R + 4 + k)
    for k in range(2):
        a.I('v_mul_f32 v%d, v%d, v%d', R + 2 + k, R + 2 + k, R + 4 + k)
    a.I('v_cvt_pk_bf16_f32 v%d, v%d, v%d', R + 2, R + 2, R + 3)
    unpack(R + 2, R + 2)
    for k in range(2):
        a.I('v_mul_f32 v%d, v%d, v%d', R + k, R + k, R + 2 + k)
    a.I('v_cvt_pk_bf16_f32 v%d, v%d, v%d', R, R, R + 1)
    unpack(R, R)
    unpack(R + 2, XR)
    for k in range(2):
        a.I('v_add_f32 v%d, v%d, v%d', R + k, R + k, R + 2 + k)
    a.I('v_cvt_pk_bf16_f32 v%d, v%d, v%d', TM + 1, R, R + 1)
    a.I('buffer_store_dword v%d, v%d, s[%d:%d], s%d offen', TM + 1, vXo, S_W2, S_W2 + 3, sXO)
    a.I('s_add_u32 s%d, s%d, 8', sTile, sTile)
    a.I('s_cmp_lt_u32 s%d, 128', sTile)
    a.I('s_cbranch_scc1 T2_loop')
    a.I('s_endpgm')
```

```python
KNAME = 'recurrent_scan__memory_aug_recurrent_mem_tr__glu_gated_bilinear__prompt'

WS_XN = 0x0000000
WS_K = 0x1000000
WS_Q = 0x2000000
WS_V = 0x3000000
WS_O = 0x4000000
WS_H = 0x5000000
WS_KM = 0x6000000
WS_VM = 0x6800000
WS_MEMX = 0x7000000
WS_INBOX = 0x7100000
WS_FLAGS = 0x7200000
WS_DBG = 0x7300000
WS_SIZE = 0x10000000

FL_SEG = 0x0000
FL_O = 0x4000
FL_XN = 0x6000
FL_KM = 0x8000
FL_SIZE = 0xC000

S_WS = 8
S_DBG = 12
S_W = 16
S_W2 = 20
P_X, P_MEM0, P_WQ, P_WK, P_WV, P_WO, P_SEG, P_BX = 32, 34, 36, 38, 40, 42, 44, 46
P_WG, P_WU, P_WD, P_OUT, P_DBG, P_WS = 48, 50, 52, 54, 56, 58
S_XCC = 60
S_WAVE = 61
S_ROLE = 62

D_TICK_REC = 0
D_CNT_X0 = 1
D_CNT_OTH = 2
D_INIT = 3
D_ERR = 4
D_FINIT = 5
D_TICK_A = 32
D_TICK_B = 33
```

```python
import struct
from asmlib import *
from common import *

LKX, LX1, LX2, LMISC, LW = 0, 8192, 12288, 14336, 16384
LM = 8192
LWSTRIDE = 18 * 2048

vM0, vIdx, vBias, vL16, vLW, vInSt, vM1, vMxSt = 0, 1, 2, 3, 4, 5, 6, 7
vVld, vKxSrc, vX1w, vX1rq, vX1rk, vX2w, vM2, vM3 = 8, 9, 10, 11, 12, 13, 14, 15
vWarm, vDummy, vSaveV, vT0 = 16, 17, 18, 20
MEM, ACC, VT, STG, WV = 24, 56, 80, 96, 144

sStep, sTag, sMxRd = 64, 65, 66
sRing = 88
sMxWr, sMxRst = 88, 90
sW10, sStampAddr = 68, 69
sRetry = 67
sIn = 70
sInLd, sInLd2 = 72, 73
sMxW = 74
sKx, sV, sKm, sVm, sVmPrev = 75, 76, 77, 78, 79
sHalf = 80
sC = 82
sSpin = 83
sT = 84
sM0a, sM0b = 92, 93
sFl = 94
sPermLo, sPermHi = 95, 96
sWarm = 97
sMxRd2 = 98
sReady, sNeed = 73, 77
sSel = 24


def f32bits(x):
    return struct.unpack('<I', struct.pack('<f', x))[0]


def mem(k):
    return MEM + 4 * k


def acc(i):
    return ACC + 4 * i


def slot(j):
    return STG + 8 * j


WO_ORDER = [('o', b, t, ks) for b in range(2) for t in range(4) for ks in range(2)]


def placement():
    P = {}
    lds = [('q', 0, 0), ('q', 1, 0), ('k', 0, 0), ('k', 1, 0), ('v', 0, 0), ('v', 1, 0)]
    lds += WO_ORDER[0:6] + WO_ORDER[10:16]
    for i, k in enumerate(lds):
        P[k] = ('l', i)
    rest = []
    for X in 'qkv':
        for kp in range(8):
            for t in range(2):
                if (X, t, kp) not in P:
                    rest.append((X, t, kp))
    rest += WO_ORDER[6:10]
    assert len(rest) == 46
    for n, k in enumerate(rest):
        P[k] = ('v', WV + 8 * n) if n < 14 else ('a', 8 * (n - 14))
    return P


PL = placement()


def breg(key):
    kind, r = PL[key]
    if kind == 'v':
        return vr(r, 8)
    if kind == 'a':
        return ar(r, 8)
    return vr(slot(r % 6), 8)


def d0_instr(m):
    return 32 * (m // 4) + 8 * (m % 2) + 2 * ((m % 4) // 2)


def srd(a, s, ptr, size):
    a.I('s_mov_b32 s%d, s%d', s, ptr)
    a.I('s_and_b32 s%d, s%d, 0xffff', s + 1, ptr + 1)
    a.I('s_mov_b32 s%d, 0x%x', s + 2, size)
    a.I('s_mov_b32 s%d, 0x20000', s + 3)


def stamp(a, cfg, idx):
    if not cfg.get('stamps'):
        return
    if cfg['stamps'] >= 2 and idx != 0:
        return
    if cfg['stamps'] == 4:
        return
    a.I('s_memtime s[%d:%d]', 32 + 2 * idx, 33 + 2 * idx)


def gen_rec(a, cfg):
    if cfg.get('stamps') == 3:
        orig_emit = a.emit
        cnt = dict(n=0, on=False)

        def emit(line):
            if line.startswith('R_goA:'):
                cnt['on'] = True
            if cnt['on'] and (line.startswith('v_smfmac') or line.startswith('v_mfma')):
                k = cnt['n'] - cfg['st0']
                if cnt['n'] >= 12 and k >= 0 and k % cfg['stp'] == 0 and k // cfg['stp'] < 9:
                    orig_emit('s_memtime s[%d:%d]' % (34 + 2 * (k // cfg['stp']), 35 + 2 * (k // cfg['stp'])))
                cnt['n'] += 1
            return orig_emit(line)
        a.emit = emit
    fast = cfg.get('fast', True)
    stf = '' if fast else ' sc1'
    nsteps = cfg.get('nsteps', 64)
    T0, T1, T2, T3 = vT0, vT0 + 1, vT0 + 2, vT0 + 3
    WS = 's[%d:%d]' % (S_WS, S_WS + 3)
    vLane = VT + 15
    vN, vG = T0, T1
    a.c('================ recurrence role: s%d = head ================' % S_ROLE)
    a.I('v_and_b32 v%d, 63, v0', vLane)
    a.I('v_lshlrev_b32 v%d, 4, v%d', vL16, vLane)
    a.I('v_and_b32 v%d, 15, v%d', vN, vLane)
    a.I('v_lshrrev_b32 v%d, 4, v%d', vG, vLane)
    a.I('s_mov_b32 s%d, 0xaaaaaaaa', sHalf)
    a.I('s_mov_b32 s%d, 0xaaaaaaaa', sHalf + 1)
    a.I('v_mov_b32 v%d, 0x4444', vIdx)
    a.I('v_mov_b32 v%d, 0xeeee', T2)
    a.I('v_cndmask_b32 v%d, v%d, v%d, s[%d:%d]', vIdx, vIdx, T2, sHalf, sHalf + 1)
    a.I('s_mov_b32 s%d, 0', sT)
    a.I('s_mov_b32 s%d, 0x55555555', sT + 1)
    a.I('v_mov_b32 v%d, 0', vBias)
    a.I('v_mov_b32 v%d, 0x%x', T2, f32bits(3.0e38))
    a.I('v_cndmask_b32 v%d, v%d, v%d, s[%d:%d]', vBias, vBias, T2, sT, sT + 1)
    a.I('s_mov_b32 s%d, 0x%x', sC, f32bits(128 ** -0.5 * 1.4426950408889634))
    a.I('s_mov_b32 s%d, 0x05040100', sPermLo)
    a.I('s_mov_b32 s%d, 0x07060302', sPermHi)
    for k, m in enumerate((0x000f000f, 0x00f000f0, 0xcccccccc)):
        a.I('s_mov_b32 s%d, 0x%x', sSel + 2 * k, m)
        a.I('s_mov_b32 s%d, 0x%x', sSel + 2 * k + 1, m)
    a.I('s_mul_i32 s%d, s%d, %d', sT, S_WAVE, LWSTRIDE)
    a.I('s_add_u32 s%d, s%d, %d', sT, sT, LW)
    a.I('v_add_u32 v%d, s%d, v%d', vLW, sT, vL16)
    a.I('s_lshl_b32 s%d, s%d, 10', sT, S_WAVE)
    a.I('s_add_u32 s%d, s%d, 0x%x', sMxW, sT, WS_MEMX)
    a.I('s_add_u32 s%d, s%d, %d', sT, sT, LM)
    a.I('v_add_u32 v%d, s%d, v%d', vM0, sT, vL16)
    a.I('v_xor_b32 v%d, 1024, v%d', vM1, vM0)
    a.I('v_xor_b32 v%d, 2048, v%d', vM2, vM0)
    a.I('v_xor_b32 v%d, 3072, v%d', vM3, vM0)
    a.I('v_lshlrev_b32 v%d, 13, v%d', vInSt, vG)
    a.I('v_lshrrev_b32 v%d, 2, v%d', T2, vN)
    a.I('v_lshl_add_u32 v%d, v%d, 11, v%d', vInSt, T2, vInSt)
    a.I('v_and_b32 v%d, 3, v%d', T2, vN)
    a.I('v_lshl_add_u32 v%d, v%d, 4, v%d', vInSt, T2, vInSt)
    a.I('s_lshl_b32 s%d, s%d, 15', sT, S_WAVE)
    a.I('s_lshl_b32 s%d, s%d, 6', sT + 1, S_ROLE)
    a.I('s_add_u32 s%d, s%d, s%d', sT, sT, sT + 1)
    a.I('s_add_u32 s%d, s%d, 0x%x', sIn, sT, WS_INBOX)
    a.I('s_add_u32 s%d, s%d, 0x%x', sIn + 1, sT, WS_INBOX + 131072)
    a.I('s_lshl_b32 s%d, s%d, 13', sT, S_ROLE)
    a.I('s_lshl_b32 s%d, s%d, 11', sT + 1, S_WAVE)
    a.I('s_add_u32 s%d, s%d, s%d', sT, sT, sT + 1)
    a.I('s_add_u32 s%d, s%d, 0x%x', sInLd, sT, WS_INBOX)
    a.I('s_lshr_b32 s%d, s%d, 2', sT, S_ROLE)
    a.I('s_lshl_b32 s%d, s%d, 10', sT, sT)
    a.I('s_and_b32 s%d, s%d, 3', sT + 1, S_ROLE)
    a.I('s_lshl_b32 s%d, s%d, 6', sT + 1, sT + 1)
    a.I('s_add_u32 s%d, s%d, s%d', sT, sT, sT + 1)
    a.I('s_lshl_b32 s%d, s%d, 8', sT + 1, S_WAVE)
    a.I('s_add_u32 s%d, s%d, s%d', sT, sT, sT + 1)
    a.I('v_and_b32 v%d, 1, v%d', T2, vG)
    a.I('v_lshlrev_b32 v%d, 5, v%d', vMxSt, T2)
    a.I('v_and_b32 v%d, 3, v%d', T2, vN)
    a.I('v_lshl_add_u32 v%d, v%d, 3, v%d', vMxSt, T2, vMxSt)
    a.I('v_add_u32 v%d, s%d, v%d', vMxSt, sT, vMxSt)
    a.I('v_and_b32 v%d, 1, v%d', T2, vN)
    a.I('v_lshlrev_b32 v%d, 11, v%d', vVld, T2)
    a.I('v_lshrrev_b32 v%d, 1, v%d', T2, vG)
    a.I('v_lshl_add_u32 v%d, v%d, 8, v%d', vVld, T2, vVld)
    a.I('v_lshrrev_b32 v%d, 1, v%d', T2, vN)
    a.I('v_lshl_add_u32 v%d, v%d, 4, v%d', vVld, T2, vVld)
    a.I('v_and_b32 v%d, 1, v%d', T2, vG)
    a.I('v_lshlrev_b32 v%d, 2, v%d', T2, T2)
    a.I('v_sub_u32 v%d, v%d, v%d', vVld, vVld, T2)
    a.I('s_lshr_b32 s%d, s%d, 1', sT, S_WAVE)
    a.I('s_lshl_b32 s%d, s%d, 12', sT, sT)
    a.I('s_and_b32 s%d, s%d, 1', sT + 1, S_WAVE)
    a.I('s_lshl_b32 s%d, s%d, 7', sT + 1, sT + 1)
    a.I('s_add_u32 s%d, s%d, s%d', sT, sT, sT + 1)
    a.I('s_add_u32 s%d, s%d, 4', sT, sT)
    a.I('v_add_u32 v%d, s%d, v%d', vVld, sT, vVld)
    a.I('v_and_b32 v%d, 1, v%d', T2, vG)
    a.I('v_lshlrev_b32 v%d, 10, v%d', vKxSrc, T2)
    a.I('v_lshrrev_b32 v%d, 1, v%d', T2, vG)
    a.I('v_lshl_add_u32 v%d, v%d, 8, v%d', vKxSrc, T2, vKxSrc)
    a.I('v_lshl_add_u32 v%d, v%d, 4, v%d', vKxSrc, vN, vKxSrc)
    a.I('s_lshl_b32 s%d, s%d, 11', sM0a, S_WAVE)
    a.I('v_add_u32 v%d, s%d, v%d', vKxSrc, sM0a, vKxSrc)
    a.I('s_add_u32 s%d, s%d, %d', sM0a, sM0a, LKX)
    a.I('s_add_u32 s%d, s%d, %d', sM0b, sM0a, 1024 - 512)
    a.I('v_lshrrev_b32 v%d, 2, v%d', T2, vN)
    a.I('v_lshlrev_b32 v%d, 8, v%d', vX1w, T2)
    a.I('v_lshl_add_u32 v%d, v%d, 5, v%d', vX1w, vG, vX1w)
    a.I('v_and_b32 v%d, 3, v%d', T2, vN)
    a.I('v_lshl_add_u32 v%d, v%d, 2, v%d', vX1w, T2, vX1w)
    a.I('s_lshl_b32 s%d, s%d, 10', sT, S_WAVE)
    a.I('s_add_u32 s%d, s%d, %d', sT, sT, LX1)
    a.I('v_add_u32 v%d, s%d, v%d', vX1w, sT, vX1w)
    a.I('v_lshrrev_b32 v%d, 1, v%d', T2, vN)
    a.I('v_lshlrev_b32 v%d, 4, v%d', T2, T2)
    a.I('v_lshl_add_u32 v%d, v%d, 8, v%d', vX1rq, vG, T2)
    a.I('v_add_u32 v%d, %d, v%d', vX1rq, LX1, vX1rq)
    a.I('v_and_b32 v%d, 7, v%d', T2, vN)
    a.I('v_lshlrev_b32 v%d, 4, v%d', T2, T2)
    a.I('v_lshl_add_u32 v%d, v%d, 8, v%d', vX1rk, vG, T2)
    a.I('v_add_u32 v%d, %d, v%d', vX1rk, LX1 + 128, vX1rk)
    a.I('v_lshrrev_b32 v%d, 3, v%d', T2, vN)
    a.I('v_lshlrev_b32 v%d, 8, v%d', vX2w, T2)
    a.I('v_lshl_add_u32 v%d, v%d, 6, v%d', vX2w, vG, vX2w)
    a.I('v_and_b32 v%d, 7, v%d', T2, vN)
    a.I('v_lshl_add_u32 v%d, v%d, 2, v%d', vX2w, T2, vX2w)
    a.I('s_lshl_b32 s%d, s%d, 9', sT, S_WAVE)
    a.I('s_add_u32 s%d, s%d, %d', sT, sT, LX2)
    a.I('v_add_u32 v%d, s%d, v%d', vX2w, sT, vX2w)
    a.I('v_lshlrev_b32 v%d, 6, v%d', vWarm, vLane)
    a.I('s_lshl_b32 s%d, s%d, 13', sT, S_ROLE)
    a.I('s_and_b32 s%d, s%d, 1', sT + 1, S_WAVE)
    a.I('s_lshl_b32 s%d, s%d, 12', sT + 1, sT + 1)
    a.I('s_add_u32 s%d, s%d, s%d', sT, sT, sT + 1)
    a.I('s_lshr_b32 s%d, s%d, 1', sT + 1, S_WAVE)
    a.I('s_mul_i32 s%d, s%d, 0x%x', sT + 1, sT + 1, WS_V - WS_K)
    a.I('s_add_u32 s%d, s%d, s%d', sT, sT, sT + 1)
    a.I('v_add_u32 v%d, s%d, v%d', vWarm, sT, vWarm)
    a.I('s_lshl_b32 s%d, s%d, 13', sT, S_ROLE)
    a.I('s_add_u32 s%d, s%d, 0x%x', sKx, sT, WS_K)
    a.I('s_add_u32 s%d, s%d, 0x%x', sV, sT, WS_V - 4)
    a.I('s_lshl_b32 s%d, s%d, 12', sT, S_ROLE)
    a.I('s_lshl_b32 s%d, s%d, 10', sT + 1, S_WAVE)
    a.I('s_add_u32 s%d, s%d, s%d', sT, sT, sT + 1)
    a.I('s_add_u32 s%d, s%d, 0x%x', sVm, sT, WS_VM)
    a.I('s_mov_b32 s%d, s%d', sVmPrev, sVm)
    a.I('s_lshl_b32 s%d, s%d, 9', sT, S_ROLE)
    a.I('s_lshl_b32 s%d, s%d, 7', sT + 1, S_WAVE)
    a.I('s_add_u32 s%d, s%d, s%d', sT, sT, sT + 1)
    a.I('s_add_u32 s%d, s%d, 0x%x', sFl, sT, WS_FLAGS + FL_KM)
    a.I('s_mov_b32 s%d, 0x%x', sWarm, WS_K + 2 * 262144)

    a.c('init exchange buffers')
    for k in range(4):
        a.I('v_mov_b32 v%d, -1', ACC + k)
    for k in range(2):
        a.I('buffer_store_dwordx4 v[%d:%d], v%d, %s, s%d offen offset:%d sc1', ACC, ACC + 3, vL16, WS, sInLd, 1024 * k)
    a.I('v_lshlrev_b32 v%d, 2, v%d', T2, vLane)
    a.I('s_lshl_b32 s%d, s%d, 10', sT, S_ROLE)
    a.I('s_lshl_b32 s%d, s%d, 8', sT + 1, S_WAVE)
    a.I('s_add_u32 s%d, s%d, s%d', sT, sT, sT + 1)
    a.I('s_add_u32 s%d, s%d, 0x%x', sT, sT, WS_MEMX)
    a.I('buffer_store_dword v%d, v%d, %s, s%d offen sc1', ACC, T2, WS, sT)

    a.c('weights')
    vRow, vWo = VT + 13, VT + 14
    a.I('v_lshrrev_b32 v%d, 1, v%d', vRow, vG)
    a.I('v_lshlrev_b32 v%d, 4, v%d', vRow, vRow)
    a.I('v_and_b32 v%d, 1, v%d', vWo, vG)
    a.I('v_lshl_add_u32 v%d, v%d, 2, v%d', vRow, vWo, vRow)
    a.I('v_lshlrev_b32 v%d, 10, v%d', vWo, vRow)
    a.I('v_lshl_add_u32 v%d, v%d, 3, v%d', vWo, vN, vWo)
    a.I('v_lshlrev_b32 v%d, 13, v%d', vRow, vRow)
    a.I('v_lshl_add_u32 v%d, v%d, 2, v%d', vRow, vN, vRow)
    sRow = sT + 2
    sOb = sT + 6
    a.I('s_lshl_b32 s%d, s%d, 8', sT, S_ROLE)
    a.I('s_lshl_b32 s%d, s%d, 6', sT + 1, S_WAVE)
    a.I('s_add_u32 s%d, s%d, s%d', sT + 1, sT, sT + 1)
    for kp in range(4):
        a.I('s_xor_b32 s%d, s%d, %d', sT, S_WAVE, kp)
        a.I('s_lshl_b32 s%d, s%d, 19', sT, sT)
        a.I('s_add_u32 s%d, s%d, s%d', sRow + kp, sT, sT + 1)
    a.I('s_lshl_b32 s%d, s%d, 17', sOb, S_ROLE)
    a.I('s_lshl_b32 s%d, s%d, 7', sT, S_WAVE)
    a.I('s_add_u32 s%d, s%d, s%d', sOb, sOb, sT)
    groups = []
    for X, ptr in (('q', P_WQ), ('k', P_WK), ('v', P_WV)):
        for kp in range(8):
            groups.append((X, ptr, kp, None, None))
    for b in range(2):
        for ks in range(2):
            for mh in range(2):
                groups.append(('o', P_WO, ks, b, mh))
    NBUF = 3
    bufs = [96, 112, 128]
    outb = MEM
    toks = {}
    state = dict(ptr=None, srd=S_W2)

    def issue(gi):
        X, ptr, ks, b_, mh = groups[gi]
        if state['ptr'] != ptr:
            state['srd'] = S_W if state['srd'] == S_W2 else S_W2
            srd(a, state['srd'], ptr, 4194304)
            state['ptr'] = ptr
        sr_ = state['srd']
        b = bufs[gi % NBUF]
        if X == 'o':
            for mm in range(4):
                m = 4 * mh + mm
                for j in range(2):
                    row = 64 * ks + d0_instr(m) + j
                    a.I('s_add_u32 s%d, s%d, %d', sT, sOb, row * 1024 + 512 * b_)
                    r = b + 4 * mm + 2 * j
                    t = a.I('buffer_load_dwordx2 v[%d:%d], v%d, s[%d:%d], s%d offen', r, r + 1, vWo, sr_, sr_ + 3, sT)
        else:
            for m in range(8):
                for j in range(2):
                    row = 64 * (ks & 4) + d0_instr(m) + j
                    a.I('s_add_u32 s%d, s%d, %d', sT, sRow + (ks & 3), row * 8192)
                    t = a.I('buffer_load_dword v%d, v%d, s[%d:%d], s%d offen', b + 2 * m + j, vRow, sr_, sr_ + 3, sT)
        toks[gi] = t

    def put(key, m0, nm, srcs):
        kind, r = PL[key]
        ob = outb + (put.n % 4) * 8
        put.n += 1
        for k, (rh, rl, sel) in enumerate(srcs):
            dst = r + m0 + k if kind == 'v' else ob + k
            a.I('v_perm_b32 v%d, v%d, v%d, s%d', dst, rh, rl, sel)
        if kind == 'a':
            for k in range(nm):
                a.I('v_accvgpr_write_b32 a%d, v%d', r + m0 + k, ob + k)
        elif kind == 'l':
            for q in range(nm // 4):
                a.I('ds_write_b128 v%d, v[%d:%d] offset:%d', vLW, ob + 4 * q, ob + 4 * q + 3, r * 2048 + ((m0 // 4) + q) * 1024)
    put.n = 0

    def consume(gi):
        X, ptr, ks, b_, mh = groups[gi]
        b = bufs[gi % NBUF]
        a.wait(toks[gi])
        a.I('s_waitcnt lgkmcnt(0)')
        if X == 'o':
            for t in range(4):
                sel = sPermLo if t % 2 == 0 else sPermHi
                put(('o', b_, t, ks), 4 * mh, 4, [(b + 4 * mm + 2 + t // 2, b + 4 * mm + t // 2, sel) for mm in range(4)])
        else:
            for t in range(2):
                sel = sPermLo if t == 0 else sPermHi
                put((X, t, ks), 0, 8, [(b + 2 * m + 1, b + 2 * m, sel) for m in range(8)])

    for gi in range(NBUF):
        issue(gi)
    for gi in range(len(groups)):
        consume(gi)
        if gi == 0:
            a.I('s_barrier')
            lab = a.newlabel('R_sig')
            a.I('s_cmp_lg_u32 s%d, 0', S_WAVE)
            a.I('s_cbranch_scc1 %s', lab)
            a.I('s_mov_b64 exec, 1')
            a.I('v_mov_b32 v%d, 1', VT)
            a.I('v_mov_b32 v%d, %d', VT + 1, D_INIT * 4)
            a.I('buffer_atomic_add v%d, v%d, s[%d:%d], 0 offen', VT, VT + 1, S_DBG, S_DBG + 3)
            a.I('s_mov_b64 exec, -1')
            a.label(lab)
            a.vm_n -= 1
        if gi + NBUF < len(groups):
            issue(gi + NBUF)

    if cfg.get('stamps'):
        a.I('s_memrealtime s[100:101]')
        a.I('s_waitcnt lgkmcnt(0)')
        a.I('s_mov_b32 s3, s100')
    a.c('wait init done')
    a.I('s_mov_b32 s%d, 0', sSpin)
    a.I('v_mov_b32 v%d, %d', T2, D_INIT * 4)
    lw = a.newlabel('R_winit')
    a.label(lw)
    a.I('buffer_load_dword v%d, v%d, s[%d:%d], 0 offen sc1', T3, T2, S_DBG, S_DBG + 3)
    a.I('s_add_u32 s%d, s%d, 1', sSpin, sSpin)
    a.I('s_cmp_gt_u32 s%d, 0x100000', sSpin)
    a.I('s_cbranch_scc1 R_fail')
    a.I('s_waitcnt vmcnt(0)')
    a.I('v_readfirstlane_b32 s%d, v%d', sT, T3)
    a.I('s_cmp_lt_u32 s%d, 32', sT)
    a.I('s_cbranch_scc1 %s', lw)

    def rest(PFX, stf):
        a.c('mem0 slice (every wave stores the same bytes)')
        srd(a, S_W, P_MEM0, 8192)
        a.I('v_and_b32 v%d, 1, v%d', T2, vG)
        a.I('v_lshlrev_b32 v%d, 10, v%d', T2, T2)
        a.I('v_and_b32 v%d, 3, v%d', T3, vN)
        a.I('v_lshl_add_u32 v%d, v%d, 3, v%d', T2, T3, T2)
        a.I('s_lshl_b32 s%d, s%d, 5', sT, S_WAVE)
        a.I('v_add_u32 v%d, s%d, v%d', T2, sT, T2)
        a.I('s_and_b32 s%d, s%d, 3', sT, S_ROLE)
        a.I('s_lshl_b32 s%d, s%d, 11', sT, sT)
        a.I('s_lshr_b32 s%d, s%d, 2', sT + 1, S_ROLE)
        a.I('s_lshl_b32 s%d, s%d, 7', sT + 1, sT + 1)
        a.I('s_add_u32 s%d, s%d, s%d', sT, sT, sT + 1)
        a.I('buffer_load_dwordx2 v[%d:%d], v%d, s[%d:%d], s%d offen', ACC, ACC + 1, T2, S_W, S_W + 3, sT)
        a.I('s_mov_b32 s%d, 0', sStep)
        a.I('s_mov_b32 s%d, 0', sTag)
        a.I('s_mov_b32 s%d, 0', sRetry)
        a.I('s_mov_b32 s%d, s%d', sMxRd, sMxW)
        for k in range(4):
            a.I('s_mov_b32 s%d, 0x%x', sRing + k, WS_MEMX + k * 8192)
        a.I('s_lshl_b32 s%d, s%d, 10', sW10, S_WAVE)
        a.I('s_mov_b32 s%d, 0x%x', sT, WS_MEMX)
        a.I('s_waitcnt vmcnt(0)')
        a.I('v_min_u32 v%d, -2, v%d', ACC, ACC)
        a.I('buffer_store_dwordx2 v[%d:%d], v%d, %s, s%d offen%s', ACC, ACC + 1, vMxSt, WS, sT, stf)

        def load_kx():
            a.I('s_mov_b32 m0, s%d', sM0a)
            a.I('buffer_load_dwordx4 v%d, %s, s%d offen sc1 lds', vKxSrc, WS, sKx)
            a.I('s_mov_b32 m0, s%d', sM0b)
            a.I('buffer_load_dwordx4 v%d, %s, s%d offen offset:512 sc1 lds', vKxSrc, WS, sKx)

        def load_v():
            for t in range(2):
                for hf in range(2):
                    a.I('buffer_load_dwordx4 v[%d:%d], v%d, %s, s%d offen offset:%d sc1', VT + 8 * t + 4 * hf, VT + 8 * t + 4 * hf + 3,
                        vVld, WS, sV, 1024 * t + 512 * hf)

        def lds_half(j, hf):
            sl = j % 6
            return a.I('ds_read_b128 v[%d:%d], v%d offset:%d', slot(sl) + 4 * hf, slot(sl) + 4 * hf + 3, vLW, j * 2048 + 1024 * hf)

        def lds_set(j):
            lds_half(j, 0)
            return lds_half(j, 1)

        def zero(r, n):
            for k in range(0, n, 2):
                a.I('v_mov_b64 v[%d:%d], 0', r + k, r + k + 1)

        def spin():
            a.I('s_add_u32 s%d, s%d, 1', sSpin, sSpin)
            a.I('s_cmp_gt_u32 s%d, 0x100000', sSpin)
            a.I('s_cbranch_scc1 ' + PFX + 'fail')

        def kv_refresh(R):
            a.I('v_lshlrev_b32 v%d, 4, v%d', R, vL16)
            a.I('s_lshr_b32 s%d, s%d, 1', sT + 2, S_ROLE)
            a.I('s_lshl_b32 s%d, s%d, 2', sT + 2, sT + 2)
            a.I('s_add_u32 s%d, s%d, 0x%x', sT + 2, sT + 2, WS_FLAGS + FL_SEG)
            a.I('buffer_load_dword v%d, v%d, %s, s%d offen sc1', R + 1, R, WS, sT + 2)
            a.I('buffer_load_dword v%d, v%d, %s, s%d offen offset:64 sc1', R + 2, R, WS, sT + 2)
            a.I('s_waitcnt vmcnt(0)')
            a.I('v_and_b32 v%d, v%d, v%d', R + 1, R + 1, R + 2)
            a.I('v_cmp_eq_u32 vcc, 0, v%d', R + 1)
            a.I('s_nop 1')
            a.I('s_ff1_i32_b64 s%d, vcc', sReady)
            a.I('s_min_u32 s%d, s%d, 64', sReady, sReady)

        if cfg.get('kvflags'):
            a.I('s_mov_b32 s%d, 0', sSpin)
            a.I('s_mov_b32 s%d, 3', sNeed)
            a.label(PFX + 'kvfirst')
            kv_refresh(MEM)
            spin()
            a.I('s_cmp_lt_u32 s%d, 2', sReady)
            a.I('s_cbranch_scc1 ' + PFX + 'kvfirst')
        a.I('s_waitcnt lgkmcnt(0)')
        a.I('s_barrier')
        load_kx()
        a.I('s_add_u32 s%d, s%d, 262144', sKx, sKx)
        zero(T0, 4)
        C0, C1 = vSaveV, vSaveV + 1
        zero(ACC, 24)
        for j in range(6):
            lds_set(j)
        a.I('s_mov_b32 s%d, 0', sSpin)
        a.I('s_waitcnt lgkmcnt(0)')

        accidx = {('q', 0): 0, ('q', 1): 1, ('k', 0): 2, ('k', 1): 3, ('v', 0): 4, ('v', 1): 5}

        def M(X, t, kp, src=None):
            d = acc(accidx[(X, t)])
            r = mem(kp) if src is None else src
            a.I('v_smfmac_f32_16x16x64_bf16 v[%d:%d], v[%d:%d], %s, v%d', d, d + 3, r, r + 3, breg((X, t, kp)), vIdx)

        def ldv(i):
            if cfg.get('no_kv'):
                return None
            t, hf = i // 2, i % 2
            return a.I('buffer_load_dwordx4 v[%d:%d], v%d, %s, s%d offen offset:%d sc1', VT + 8 * t + 4 * hf, VT + 8 * t + 4 * hf + 3,
                       vVld, WS, sV, 1024 * t + 512 * hf)

        def poll(r0, r1):
            a.I('buffer_load_dwordx4 v[%d:%d], v%d, %s, s%d offen sc1', r0, r0 + 3, vL16, WS, sMxRd)
            a.I('buffer_load_dwordx4 v[%d:%d], v%d, %s, s%d offen sc1', r1, r1 + 3, vL16, WS, sMxRd2)

        kx, mt = {}, {}

        def rkx(f):
            kx[f] = a.I('ds_read_b128 v[%d:%d], v%d offset:%d', STG + 4 * f, STG + 4 * f + 3, vL16, LKX + f * 1024)

        def rm(k):
            mt[k] = a.I('ds_read_b128 v[%d:%d], v%d offset:%d', mem(k), mem(k) + 3, (vM0, vM1, vM2, vM3)[k & 3], 4096 * (k // 4))

        vSaveK = vSaveV

        def savepub():
            a.I('v_mov_b32 v%d, v%d', T0, VT)
            a.I('v_mov_b32 v%d, v%d', T1, vSaveK)
            a.I('v_mov_b32 v%d, v%d', T2, vSaveK + 1)
            a.I('v_mov_b32 v%d, v%d', T3, VT + 8)

        if cfg.get('stamps'):
            a.I('s_memrealtime s[6:7]')
            a.I('s_waitcnt lgkmcnt(0)')
        a.I('s_add_u32 s%d, s%d, 4096', sMxRd2, sMxRd)
        a.c('================ step loop ================')
        a.label(PFX + 'loop')
        stamp(a, cfg, 0)
        PA, PB = (mem(0), mem(4)), (VT, VT + 4)
        poll(*PA)
        if cfg.get('stamps') and cfg['stamps'] != 4:
            a.I('s_waitcnt lgkmcnt(0)')
            a.I('v_mov_b32 v%d, 0', vDummy)
            a.I('v_writelane_b32 v%d, s%d, 0', vDummy, 52)
            for k in range(1, 10):
                a.I('v_writelane_b32 v%d, s%d, %d', vDummy, 32 + 2 * k, k)
            a.I('v_writelane_b32 v%d, s%d, 10', vDummy, sRetry)
            a.I('s_mov_b32 s52, s32')
            a.I('s_lshl_b32 s%d, s%d, 6', sT, S_ROLE)
            a.I('s_add_u32 s%d, s%d, s%d', sT, sT, sStep)
            a.I('s_lshl_b32 s%d, s%d, 2', sT, sT)
            a.I('s_add_u32 s%d, s%d, s%d', sT, sT, S_WAVE)
            a.I('s_lshl_b32 s%d, s%d, 6', sT, sT)
            a.I('s_add_u32 s%d, s%d, 0x%x', sStampAddr, sT, WS_DBG)
        else:
            for k in range(cfg.get('pgap', 2)):
                a.I('s_nop 11')
        poll(*PB)

        def head(src, bad):
            s0, s1 = src
            a.I('s_waitcnt vmcnt(2)')
            a.I('v_max3_u32 v%d, v%d, v%d, v%d', C0, s0, s0 + 2, s1)
            a.I('v_max_u32 v%d, v%d, v%d', C0, C0, s1 + 2)
            a.I('v_cmp_eq_u32 vcc, -1, v%d', C0)
            a.I('ds_write_b128 v%d, v[%d:%d]', vM0, s0, s0 + 3)
            wA = a.I('ds_write_b128 v%d, v[%d:%d] offset:4096', vM0, s1, s1 + 3)
            M('q', 0, 0, s0)
            M('q', 1, 0, s0)
            a.I('s_cbranch_vccnz %s', bad)
            stamp(a, cfg, 1)
            M('q', 0, 4, s1)
            M('q', 1, 4, s1)
            M('k', 0, 0, s0)
            M('k', 1, 0, s0)
            a.wait(wA)
            a.I('s_barrier')
            rm(1)
            M('k', 0, 4, s1); rm(2)
            M('k', 1, 4, s1); rm(3)
            M('v', 0, 0, s0); rm(5)
            M('v', 1, 0, s0); rm(6)
            M('v', 0, 4, s1); rm(7)
            M('v', 1, 4, s1)
        a.I('s_branch ' + PFX + 'goA')
        a.label(PFX + 'badA')
        poll(*PA)
        spin()
        a.I('s_nop 2')
        zero(ACC, 8)
        head(PB, PFX + 'badB')
        a.I('s_branch ' + PFX + 'join')
        a.label(PFX + 'badB')
        poll(*PB)
        a.I('s_add_u32 s%d, s%d, 0x10000', sRetry, sRetry)
        a.I('s_nop 4')
        zero(ACC, 8)
        a.label(PFX + 'goA')
        head(PA, PFX + 'badA')
        a.label(PFX + 'join')
        rkx(0)
        a.wait(mt[2])
        M('q', 0, 1); rkx(1)
        M('q', 1, 1); ldv(0)
        M('q', 0, 2); rkx(2)
        M('q', 1, 2); rkx(3); a.wait(mt[5])
        M('q', 0, 3); rkx(4)
        M('q', 1, 3); ldv(1)
        M('q', 0, 5); rkx(5)
        M('q', 1, 5); rkx(6); a.wait(mt[7])
        M('q', 0, 6); rkx(7)
        a.I('s_barrier')
        M('q', 1, 6); ldv(2)
        M('q', 0, 7)
        a.I('s_sub_u32 s%d, s%d, 1', sT, sStep)
        a.I('s_max_i32 s%d, s%d, 0', sT, sT)
        a.I('v_mov_b32 v%d, s%d', C1, sT)
        M('q', 1, 7)
        tv = ldv(3)
        stamp(a, cfg, 2)
        q0, q1, k0, k1, v0_, v1_ = [acc(i) for i in range(6)]
        QT = mem(0)
        M('k', 0, 1)
        a.I('s_add_u32 s%d, s%d, 262144', sV, sV)
        a.I('s_and_b32 s%d, s%d, 1', sTag, sStep)
        a.I('s_waitcnt vmcnt(%d)' % (0 if cfg.get('no_kv') else 4))
        M('k', 1, 1)
        a.I('s_mov_b32 s%d, s%d', sT, sRing)
        a.I('s_mov_b32 s%d, s%d', sRing, sRing + 1)
        a.I('v_add_f32 v%d, v%d, v%d', QT, q0, q0 + 1)
        M('k', 0, 2)
        a.I('v_add_f32 v%d, v%d, v%d', QT + 1, q0 + 2, q0 + 3)
        a.I('v_add_f32 v%d, v%d, v%d', QT + 2, q1, q1 + 1)
        a.I('v_add_f32 v%d, v%d, v%d', QT + 3, q1 + 2, q1 + 3)
        a.I('v_cvt_pk_bf16_f32 v%d, v%d, v%d', QT, QT, QT + 2)
        a.I('v_cvt_pk_bf16_f32 v%d, v%d, v%d', QT + 1, QT + 1, QT + 3)
        wq = a.I('ds_write2_b32 v%d, v%d, v%d offset0:0 offset1:4', vX1w, QT, QT + 1)
        M('k', 1, 2)
        if not cfg.get('no_pub'):
            a.I('buffer_store_dwordx4 v[%d:%d], v%d, %s, s%d offen sc1', T0, T0 + 3, vL16, WS, sVmPrev)
        if cfg.get('stamps') and cfg['stamps'] != 4:
            a.I('v_lshrrev_b32 v%d, 2, v%d', C0, vL16)
            a.I('s_mov_b64 exec, 0xffff')
            a.I('buffer_store_dword v%d, v%d, %s, s%d offen', vDummy, C0, WS, sStampAddr)
            a.I('s_mov_b64 exec, -1')
        M('k', 0, 3)
        a.I('s_mov_b32 s%d, s%d', sRing + 1, sRing + 2)
        a.I('s_mov_b32 s%d, s%d', sRing + 2, sRing + 3)
        M('k', 1, 3)
        a.I('s_mov_b64 exec, 1')
        if not cfg.get('no_pub') and not cfg.get('no_flag'):
            a.I('buffer_store_dword v%d, v%d, %s, s%d offen sc1', C1, vL16, WS, sFl)
        a.I('s_mov_b64 exec, -1')
        M('k', 0, 5)
        a.I('s_mov_b32 s%d, s%d', sRing + 3, sT)
        if cfg.get('kvflags'):
            a.I('s_cmp_lt_u32 s%d, s%d', sReady, sNeed)
            a.I('s_cbranch_scc1 ' + PFX + 'kvwait')
            a.label(PFX + 'kvok')
        M('k', 1, 5)
        if not cfg.get('no_warm'):
            a.I('buffer_load_dword v%d, v%d, %s, s%d offen sc1', vDummy, vWarm, WS, sWarm)
        a.wait(wq)
        a.I('s_barrier')
        qt = {}

        def rq(ks):
            qt[ks] = a.I('ds_read_b128 v[%d:%d], v%d offset:%d', slot(4) + 4 * ks, slot(4) + 4 * ks + 3, vX1rq, ks * 1024)
        rq(0)
        M('k', 0, 6); rq(1)
        a.I('s_add_u32 s%d, s%d, s%d', sMxRd, sRing, sW10)
        M('k', 1, 6); rq(2)
        a.I('s_add_u32 s%d, s%d, 4096', sMxRd2, sMxRd)
        M('k', 0, 7); rq(3)
        a.I('s_mov_b32 m0, s%d', sM0a)
        M('k', 1, 7)
        stamp(a, cfg, 3)
        S0, S1, S2, Pm = acc(0), acc(1), acc(2), acc(3)
        X0, X1 = S1 + 2, S1 + 3
        ON = T0
        PV0, PV1, LS = mem(4), mem(0), mem(1)
        KMR = [STG, STG + 4, STG + 8, STG + 12]

        def SM(D, A, ks):
            a.I('v_mfma_f32_16x16x32_bf16 v[%d:%d], v[%d:%d], v[%d:%d], %s', D, D + 3, A, A + 3,
                slot(4) + 4 * ks, slot(4) + 4 * ks + 3, '0' if ks == 0 else vr(D, 4))
        km = {}

        def rkm(k):
            km[k] = a.I('ds_read_b128 v[%d:%d], v%d offset:%d', KMR[k], KMR[k] + 3, vX1rk, k * 1024)
        a.wait(qt[1])
        SM(S0, STG, 0)
        if not cfg.get('no_kv'):
            a.I('buffer_load_dwordx4 v%d, %s, s%d offen sc1 lds', vKxSrc, WS, sKx)
        a.I('s_mov_b32 m0, s%d', sM0b)
        SM(S0, STG + 4, 1)
        a.wait(qt[3])
        a.I('v_add_f32 v%d, v%d, v%d', QT, k0, k0 + 1)
        a.I('v_add_f32 v%d, v%d, v%d', QT + 1, k0 + 2, k0 + 3)
        SM(S0, STG + 8, 2)
        a.I('v_add_f32 v%d, v%d, v%d', QT + 2, k1, k1 + 1)
        a.I('v_add_f32 v%d, v%d, v%d', QT + 3, k1 + 2, k1 + 3)
        SM(S0, STG + 12, 3)
        a.I('v_cvt_pk_bf16_f32 v%d, v%d, v%d', vSaveK, QT, QT + 2)
        a.I('v_cvt_pk_bf16_f32 v%d, v%d, v%d', vSaveK + 1, QT + 1, QT + 3)
        wk = a.I('ds_write2_b32 v%d, v%d, v%d offset0:32 offset1:36', vX1w, vSaveK, vSaveK + 1)
        SM(S1, STG + 16, 0)
        if not cfg.get('no_kv'):
            a.I('buffer_load_dwordx4 v%d, %s, s%d offen offset:512 sc1 lds', vKxSrc, WS, sKx)
        a.I('v_mov_b32 v%d, 0x3f803f80', ON)
        a.I('v_mov_b32 v%d, 0x3f803f80', ON + 1)
        SM(S1, STG + 20, 1)
        vm_mark = a.vm_n
        a.I('v_mov_b32 v%d, 0x3f803f80', ON + 2)
        a.I('v_mov_b32 v%d, 0x3f803f80', ON + 3)
        SM(S1, STG + 24, 2)
        a.I('s_add_u32 s%d, s%d, 262144', sKx, sKx)
        a.I('v_max3_f32 v%d, v%d, v%d, v%d', Pm, S0, S0 + 1, S0 + 2)
        SM(S1, STG + 28, 3)
        a.I('s_add_u32 s%d, s%d, 262144', sWarm, sWarm)
        a.I('s_mov_b32 s%d, s%d', sVmPrev, sVm)
        zero(PV0, 4)
        M('v', 0, 1)
        a.wait(wk)
        a.I('s_barrier')
        rkm(0)
        M('v', 1, 1); rkm(1)
        a.I('v_mov_b32 v%d, 0', Pm + 3)
        M('v', 0, 2); rkm(2)
        a.I('v_max3_f32 v%d, v%d, v%d, v%d', Pm, Pm, S0 + 3, S1)
        M('v', 1, 2); rkm(3)
        a.I('v_max3_f32 v%d, v%d, v%d, v%d', Pm + 1, S1 + 1, S1 + 2, S1 + 3)
        M('v', 0, 3); lds_half(8, 0)
        a.I('v_cndmask_b32 v%d, v%d, v%d, s[%d:%d]', S1, S1, S1 + 2, sHalf, sHalf + 1)
        a.wait(km[1])
        SM(S2, KMR[0], 0); lds_half(8, 1)
        a.I('v_cndmask_b32 v%d, v%d, v%d, s[%d:%d]', S1 + 1, S1 + 1, S1 + 3, sHalf, sHalf + 1)
        a.I('v_max_f32 v%d, v%d, v%d', X0, Pm, Pm + 1)
        SM(S2, KMR[1], 1)
        a.wait(km[3])
        zero(PV1, 4)
        SM(S2, KMR[2], 2); lds_half(9, 0)
        SM(S2, KMR[3], 3); lds_half(9, 1)
        stamp(a, cfg, 4)
        M('v', 1, 3); lds_half(6, 0)
        M('v', 0, 5); lds_half(6, 1)
        M('v', 1, 5); lds_half(7, 0)
        a.I('v_max3_f32 v%d, v%d, v%d, v%d', X0, X0, S2, S2 + 1)
        a.I('v_max3_f32 v%d, v%d, v%d, v%d', X0, X0, S2 + 2, S2 + 3)
        a.I('v_mov_b32 v%d, v%d', X1, X0)
        M('v', 0, 6); lds_half(7, 1)
        a.I('v_permlane32_swap_b32 v%d, v%d', X0, X1)
        a.I('v_max_f32 v%d, v%d, v%d', X0, X0, X1)
        a.I('v_mov_b32 v%d, v%d', X1, X0)
        M('v', 1, 6); lds_half(10, 0)
        a.I('v_permlane16_swap_b32 v%d, v%d', X0, X1)
        a.I('v_max_f32 v%d, v%d, v%d', X0, X0, X1)
        a.I('v_mul_f32 v%d, s%d, v%d', X0, sC, X0)
        M('v', 0, 7); lds_half(10, 1)
        a.I('v_fma_f32 v%d, v%d, s%d, -v%d', S1, S1, sC, X0)
        a.I('v_cndmask_b32 v%d, v%d, v%d, s[%d:%d]', S2, S2, S0 + 2, sHalf, sHalf + 1)
        a.I('v_exp_f32 v%d, v%d', S1, S1)
        M('v', 1, 7); lds_half(11, 0)
        a.I('v_fma_f32 v%d, v%d, s%d, -v%d', S1 + 1, S1 + 1, sC, X0)
        a.I('v_add_f32 v%d, v%d, v%d', X1, X0, vBias)
        a.I('v_exp_f32 v%d, v%d', S1 + 1, S1 + 1)
        a.I('v_cndmask_b32 v%d, v%d, v%d, s[%d:%d]', S2 + 1, S2 + 1, S0 + 3, sHalf, sHalf + 1)
        a.I('v_fma_f32 v%d, v%d, s%d, -v%d', S2, S2, sC, X1)
        a.I('v_cndmask_b32 v%d, v%d, v%d, s[%d:%d]', S2 + 2, S2 + 2, S0, sHalf, sHalf + 1)
        a.I('v_exp_f32 v%d, v%d', S2, S2)
        a.I('v_fma_f32 v%d, v%d, s%d, -v%d', S2 + 1, S2 + 1, sC, X1)
        a.I('v_cndmask_b32 v%d, v%d, v%d, s[%d:%d]', S2 + 3, S2 + 3, S0 + 1, sHalf, sHalf + 1)
        a.I('v_exp_f32 v%d, v%d', S2 + 1, S2 + 1)
        a.I('v_fma_f32 v%d, v%d, s%d, -v%d', S2 + 2, S2 + 2, sC, X1)
        a.I('v_fma_f32 v%d, v%d, s%d, -v%d', S2 + 3, S2 + 3, sC, X1)
        a.I('v_exp_f32 v%d, v%d', S2 + 2, S2 + 2)
        a.I('v_cvt_pk_bf16_f32 v%d, v%d, v%d', Pm + 1, S1, S1 + 1)
        a.I('v_exp_f32 v%d, v%d', S2 + 3, S2 + 3)
        a.I('v_cvt_pk_bf16_f32 v%d, v%d, v%d', Pm, S2, S2 + 1)
        a.I('v_add_f32 v%d, v%d, v%d', S0, v0_, v0_ + 1)
        a.I('v_cvt_pk_bf16_f32 v%d, v%d, v%d', Pm + 2, S2 + 2, S2 + 3)
        a.I('v_add_f32 v%d, v%d, v%d', S0 + 1, v0_ + 2, v0_ + 3)
        if tv:
            a.I('s_waitcnt vmcnt(%d)' % (vm_mark - tv[1]))
        stamp(a, cfg, 5)
        a.I('v_mfma_f32_16x16x32_bf16 v[%d:%d], v[%d:%d], v[%d:%d], 0', LS, LS + 3, Pm, Pm + 3, ON, ON + 3)
        lds_half(11, 1)
        a.I('v_cvt_pk_bf16_f32 v%d, v%d, v%d', VT, S0, S0 + 1)
        a.I('v_add_f32 v%d, v%d, v%d', S0 + 2, v1_, v1_ + 1)
        a.I('v_add_f32 v%d, v%d, v%d', S0 + 3, v1_ + 2, v1_ + 3)
        a.I('v_smfmac_f32_16x16x64_bf16 v[%d:%d], v[%d:%d], v[%d:%d], v%d', PV0, PV0 + 3, Pm, Pm + 3, VT, VT + 7, vIdx)
        a.I('s_cmp_eq_u32 s%d, %d', sStep, nsteps - 1)
        a.I('v_cvt_pk_bf16_f32 v%d, v%d, v%d', VT + 8, S0 + 2, S0 + 3)
        a.I('s_nop 0')
        a.I('v_add_f32 v%d, v%d, v%d', X0, LS, LS + 1)
        a.I('v_smfmac_f32_16x16x64_bf16 v[%d:%d], v[%d:%d], v[%d:%d], v%d', PV1, PV1 + 3, Pm, Pm + 3, VT + 8, VT + 15, vIdx)
        a.I('s_cbranch_scc1 ' + PFX + 'done')
        a.I('v_add_f32 v%d, v%d, v%d', X1, LS + 2, LS + 3)
        a.I('v_rcp_f32 v%d, v%d', X0, X0)
        a.I('v_rcp_f32 v%d, v%d', X1, X1)
        a.I('v_add_f32 v%d, v%d, v%d', PV0, PV0, PV0 + 1)
        a.I('v_add_f32 v%d, v%d, v%d', PV0 + 2, PV0 + 2, PV0 + 3)
        a.I('v_mul_f32 v%d, v%d, v%d', PV0, PV0, X0)
        a.I('v_mul_f32 v%d, v%d, v%d', PV0 + 2, PV0 + 2, X1)
        a.I('v_add_f32 v%d, v%d, v%d', PV1, PV1, PV1 + 1)
        a.I('v_add_f32 v%d, v%d, v%d', PV1 + 2, PV1 + 2, PV1 + 3)
        a.I('v_mul_f32 v%d, v%d, v%d', PV1, PV1, X0)
        a.I('v_mul_f32 v%d, v%d, v%d', PV1 + 2, PV1 + 2, X1)
        a.I('v_cvt_pk_bf16_f32 v%d, v%d, v%d', S0, PV0, PV1)
        a.I('v_cvt_pk_bf16_f32 v%d, v%d, v%d', S0 + 1, PV0 + 2, PV1 + 2)
        wo = a.I('ds_write2_b32 v%d, v%d, v%d offset0:0 offset1:8', vX2w, S0, S0 + 1)
        zero(MEM, 16)
        savepub()
        a.wait(wo)
        a.I('s_barrier')
        OF = acc(4)
        of0 = a.I('ds_read_b128 v[%d:%d], v%d offset:%d', OF, OF + 3, vL16, LX2)
        of1 = a.I('ds_read_b128 v[%d:%d], v%d offset:%d', OF + 4, OF + 7, vL16, LX2 + 1024)
        zero(MEM + 16, 16)
        SEL, RD = ACC + 8, ACC + 12
        stamp(a, cfg, 6)

        def wt(b, t):
            return MEM + 16 * b + 4 * t

        def W(n):
            key = WO_ORDER[n]
            _, b, t, ks = key
            a.I('v_smfmac_f32_16x16x64_bf16 v[%d:%d], v[%d:%d], %s, v%d', wt(b, t), wt(b, t) + 3, OF + 4 * ks, OF + 4 * ks + 3, breg(key), vIdx)

        def ha(b, t, h):
            D = wt(b, t) + 2 * h
            a.I('v_add_f32 v%d, v%d, v%d', D, D, D + 1)

        G = [ACC, ACC + 4]

        def pk(b, h, tok):
            a.I('v_cvt_pk_bf16_f32 v%d, v%d, v%d', G[b] + 2 * tok + h, wt(b, 2 * h) + 2 * tok, wt(b, 2 * h + 1) + 2 * tok)

        def send(b):
            a.I('buffer_store_dwordx4 v[%d:%d], v%d, %s, s%d offen%s', G[b], G[b] + 3, vInSt, WS, sIn + b, stf)

        def tag(b):
            a.I('v_bfi_b32 v%d, 1, s%d, v%d', G[b], sTag, G[b])

        def selgen(k):
            if k == 0:
                a.I('v_mov_b32 v%d, 0x3f80', RD)
            elif k == 1:
                a.I('v_cndmask_b32 v%d, v%d, 1.0, s[%d:%d]', RD, RD, sSel + 4, sSel + 5)
            else:
                a.I('v_cndmask_b32 v%d, 0, v%d, s[%d:%d]', SEL + k - 2, RD, sSel + 2 * (k % 2), sSel + 2 * (k % 2) + 1)

        def rload(i):
            return a.I('buffer_load_dwordx4 v[%d:%d], v%d, %s, s%d offen offset:%d sc1', VT + 4 * i, VT + 4 * i + 3, vL16, WS, sInLd, i * 1024)

        lt = {}
        a.wait(of0)
        W(0); lds_half(12, 0); a.wait(of1)
        W(1); lt[12] = lds_half(12, 1)
        W(2); lds_half(13, 0)
        W(3); lt[13] = lds_half(13, 1)
        W(4); lds_half(14, 0)
        W(5); lt[14] = lds_half(14, 1); ha(0, 0, 0)
        W(6); lds_half(15, 0); ha(0, 0, 1); ha(0, 1, 0)
        W(7); lt[15] = lds_half(15, 1); ha(0, 1, 1); pk(0, 0, 0)
        W(8); lds_half(16, 0); pk(0, 0, 1); ha(0, 2, 0)
        W(9); lt[16] = lds_half(16, 1); a.wait(lt[13]); ha(0, 2, 1); tag(0)
        W(10); lds_half(17, 0); ha(0, 3, 0); ha(0, 3, 1)
        W(11); lt[17] = lds_half(17, 1); a.wait(lt[15]); pk(0, 1, 0); pk(0, 1, 1)
        send(0)
        W(12); ha(1, 0, 0); ha(1, 0, 1)
        W(13); a.wait(lt[17])
        a.I('s_add_u32 s%d, s%d, 131072', sVm, sVm)
        ha(1, 1, 0)
        if cfg.get('kvflags'):
            a.I('s_add_u32 s%d, s%d, 1', sNeed, sNeed)
            a.I('s_min_u32 s%d, s%d, 64', sNeed, sNeed)
        W(14); ha(1, 1, 1); pk(1, 0, 0)
        W(15)
        a.I('s_mov_b32 s%d, 0', sSpin)
        a.I('s_add_u32 s%d, s%d, 1', sStep, sStep)
        pk(1, 0, 1)
        tag(1)
        ha(1, 2, 0); ha(1, 2, 1)
        lds_half(0, 0)
        lds_half(0, 1)
        ha(1, 3, 0); ha(1, 3, 1)
        pk(1, 1, 0); pk(1, 1, 1)
        send(1)
        stamp(a, cfg, 7)
        U0, U1, U2, U3 = ACC + 16, ACC + 17, ACC + 18, ACC + 19
        npre = cfg.get('npre', 3)
        for j in range(1, 1 + npre):
            lds_set(j)
        for k in range(6):
            selgen(k)
        zero(RD, 4)
        for k in range(cfg.get('d1', 0)):
            a.I('s_nop 7')
        rload(0); rload(1)
        for j in range(1 + npre, 6):
            lds_set(j)
        zero(ACC + 20, 4)
        zero(ACC, 8)
        a.I('v_mov_b32 v%d, -1', U2)
        a.I('v_mov_b32 v%d, -1', U3)
        a.I('s_waitcnt vmcnt(0) lgkmcnt(0)')
        a.label(PFX + 'chk1')
        a.I('v_smfmac_f32_16x16x64_bf16 v[%d:%d], v[%d:%d], v[%d:%d], v%d', RD, RD + 3, SEL, SEL + 3, VT, VT + 7, vIdx)
        a.I('v_bitop3_b32 v%d, v%d, v%d, s%d bitop3:0x7e', U0, VT, VT + 4, sTag)
        a.I('v_and_b32 v%d, 1, v%d', U0, U0)
        a.I('v_cmp_ne_u32 vcc, 0, v%d', U0)
        DP = ' row_mask:0xf bank_mask:0xf'
        Z = VT + 8
        for k in range(4):
            a.I('v_add_f32_dpp v%d, v%d, v%d row_ror:4' + DP, Z + k, RD + k, RD + k)
        a.I('s_cbranch_vccnz ' + PFX + 'slow1')
        for k in (0, 2, 1, 3):
            a.I('v_add_f32_dpp v%d, v%d, v%d row_ror:8' + DP, Z + 4 + k, Z + k, Z + k)
        stamp(a, cfg, 8)
        a.I('s_mov_b64 exec, 0x000f000f')
        a.I('v_cvt_pk_bf16_f32 v%d, v%d, v%d', U0, Z + 4, Z + 6)
        a.I('v_cvt_pk_bf16_f32 v%d, v%d, v%d', U1, Z + 5, Z + 7)
        a.I('v_min_u32 v%d, -2, v%d', U0, U0)
        a.I('buffer_store_dwordx2 v[%d:%d], v%d, %s, s%d offen%s', U0, U1, vMxSt, WS, sMxWr, stf)
        a.I('buffer_store_dwordx2 v[%d:%d], v%d, %s, s%d offen%s', U2, U3, vMxSt, WS, sMxRst, stf)
        a.I('s_mov_b64 exec, -1')
        stamp(a, cfg, 9)
        a.I('s_add_u32 s%d, s%d, s%d', sRetry, sRetry, sSpin)
        a.I('s_mov_b32 s%d, 0', sSpin)
        zero(ACC + 8, 12)
        for k in range(cfg.get('d2', 0)):
            a.I('s_nop 7')
        a.I('s_branch ' + PFX + 'loop')

        a.label(PFX + 'slow1')
        rload(0); rload(1)
        spin()
        zero(RD, 4)
        a.I('s_waitcnt vmcnt(0)')
        a.I('s_branch ' + PFX + 'chk1')

        if cfg.get('kvflags'):
            a.label(PFX + 'kvwait')
            kv_refresh(QT)
            spin()
            a.I('s_cmp_lt_u32 s%d, s%d', sReady, sNeed)
            a.I('s_cbranch_scc1 ' + PFX + 'kvwait')
            a.I('s_branch ' + PFX + 'kvok')

        a.label(PFX + 'done')
        savepub()
        a.I('buffer_store_dwordx4 v[%d:%d], v%d, %s, s%d offen sc1', T0, T0 + 3, vL16, WS, sVm)
        a.I('s_waitcnt vmcnt(0)')
        a.I('v_mov_b32 v%d, %d', T1, nsteps)
        a.I('s_mov_b64 exec, 1')
        a.I('buffer_store_dword v%d, v%d, %s, s%d offen sc1', T1, vL16, WS, sFl)
        if cfg.get('stamps'):
            a.I('s_memrealtime s[100:101]')
            a.I('s_waitcnt lgkmcnt(0)')
            a.I('v_mov_b32 v%d, s4', T0)
            a.I('v_mov_b32 v%d, s6', T1)
            a.I('v_mov_b32 v%d, s100', T2)
            a.I('v_mov_b32 v%d, s3', T3)
            a.I('s_lshl_b32 s%d, s%d, 2', sT, S_ROLE)
            a.I('s_add_u32 s%d, s%d, s%d', sT, sT, S_WAVE)
            a.I('s_lshl_b32 s%d, s%d, 4', sT, sT)
            a.I('s_add_u32 s%d, s%d, 0x%x', sT, sT, WS_DBG + 0x80000)
            a.I('buffer_store_dwordx4 v[%d:%d], v%d, %s, s%d offen', T0, T3, vL16, WS, sT)
        a.I('s_endpgm')
        a.label(PFX + 'fail')
        a.I('s_mov_b64 exec, 1')
        a.I('v_mov_b32 v%d, %d', T2, D_ERR * 4)
        a.I('v_mov_b32 v%d, s%d', T3, sStep)
        a.I('v_or_b32 v%d, 0x40000000, v%d', T3, T3)
        a.I('buffer_store_dword v%d, v%d, s[%d:%d], 0 offen sc1', T3, T2, S_DBG, S_DBG + 3)
        a.I('s_endpgm')

    if cfg.get('both_modes'):
        a.c('mode: plain stores only if all 32 recurrence workgroups sit on the chosen XCD')
        a.I('v_mov_b32 v%d, %d', T2, D_CNT_OTH * 4)
        a.I('buffer_load_dword v%d, v%d, s[%d:%d], 0 offen sc1', T3, T2, S_DBG, S_DBG + 3)
        a.I('s_waitcnt vmcnt(0)')
        a.I('v_readfirstlane_b32 s%d, v%d', sT, T3)
        a.I('s_cmp_lg_u32 s%d, 0', sT)
        a.I('s_cbranch_scc1 R_safe')
        rest('R_', '')
        a.label('R_safe')
        rest('RS_', ' sc1')
    else:
        rest('R_', stf)
```

```python
import sys
from asmlib import *
from common import *
import rec, bulk
from bulk import sT, WS, DBG

LDS_TK = 14336


def ticket(a, dword, sdst):
    lab = a.newlabel('TK')
    a.I('v_mov_b32 v253, %d', LDS_TK)
    a.I('s_cmp_lg_u32 s%d, 0', S_WAVE)
    a.I('s_cbranch_scc1 %s', lab)
    a.I('s_mov_b64 exec, 1')
    a.I('v_mov_b32 v251, 1')
    a.I('v_mov_b32 v252, %d', dword * 4)
    a.I('buffer_atomic_add v251, v252, %s, 0 offen sc0', DBG)
    a.I('s_waitcnt vmcnt(0)')
    a.I('ds_write_b32 v253, v251')
    a.I('s_waitcnt lgkmcnt(0)')
    a.I('s_mov_b64 exec, -1')
    a.label(lab)
    a.I('s_barrier')
    a.I('ds_read_b32 v251, v253')
    a.I('s_waitcnt lgkmcnt(0)')
    a.I('v_readfirstlane_b32 s%d, v251', sdst)
    a.I('s_barrier')


def dbg_add(a, dword):
    lab = a.newlabel('DA')
    a.I('s_cmp_lg_u32 s%d, 0', S_WAVE)
    a.I('s_cbranch_scc1 %s', lab)
    a.I('s_mov_b64 exec, 1')
    a.I('v_mov_b32 v251, 1')
    a.I('v_mov_b32 v252, %d', dword * 4)
    a.I('buffer_atomic_add v251, v252, %s, 0 offen', DBG)
    a.I('s_waitcnt vmcnt(0)')
    a.I('s_mov_b64 exec, -1')
    a.label(lab)


def build(cfg):
    a = Asm()
    a.I('s_cmp_ge_u32 s2, 256')
    a.I('s_cbranch_scc1 K_exit')
    if cfg.get('stamps'):
        a.I('s_memrealtime s[4:5]')
    a.I('s_load_dwordx16 s[32:47], s[0:1], 0')
    a.I('s_load_dwordx8 s[48:55], s[0:1], 64')
    a.I('s_load_dwordx4 s[56:59], s[0:1], 96')
    a.I('s_getreg_b32 s%d, hwreg(HW_REG_XCC_ID)', S_XCC)
    a.I('s_and_b32 s%d, s%d, 15', S_XCC, S_XCC)
    a.I('v_lshrrev_b32 v1, 6, v0')
    a.I('v_readfirstlane_b32 s%d, v1', S_WAVE)
    a.I('s_waitcnt lgkmcnt(0)')
    rec.srd(a, S_WS, P_WS, WS_SIZE)
    rec.srd(a, S_DBG, P_DBG, 256)
    tok = bulk.ln_issue(a)
    a.I('s_cmp_lg_u32 s2, 0')
    a.I('s_cbranch_scc1 K_nz')
    for k in range(4):
        a.I('v_mov_b32 v%d, 0', 240 + k)
    a.I('s_mul_i32 s%d, s%d, %d', sT, S_WAVE, FL_SIZE // 4)
    a.I('s_add_u32 s%d, s%d, 0x%x', sT, sT, WS_FLAGS)
    for k in range(FL_SIZE // 4096):
        if k and k % 4 == 0:
            a.I('s_add_u32 s%d, s%d, 4096', sT, sT)
        a.I('buffer_store_dwordx4 v[240:243], v208, %s, s%d offen offset:%d sc1', WS, sT, (k % 4) * 1024)
    a.I('s_waitcnt vmcnt(0)')
    a.I('s_barrier')
    dbg_add(a, D_FINIT)
    a.label('K_nz')
    a.I('s_mov_b32 s63, 0')
    a.I('s_cmp_lg_u32 s%d, %d', S_XCC, cfg.get('xcd', 0))
    a.I('s_cbranch_scc1 K_bulk_t')
    ticket(a, D_TICK_REC, S_ROLE)
    a.I('s_cmp_ge_u32 s%d, 32', S_ROLE)
    a.I('s_cbranch_scc1 K_bulk_t')
    a.I('s_mov_b32 s63, 1')
    a.I('s_branch K_ln')
    a.label('K_bulk_t')
    ticket(a, D_TICK_A, S_ROLE)
    a.label('K_ln')
    a.I('s_waitcnt vmcnt(0)')
    bulk.ln_compute(a, None)
    bulk.wait_dbg(a, D_FINIT, 1)
    a.I('s_barrier')
    lab = a.newlabel('LNF')
    a.I('s_cmp_lg_u32 s%d, 0', S_WAVE)
    a.I('s_cbranch_scc1 %s', lab)
    a.I('s_lshl_b32 s%d, s2, 2', sT + 1)
    a.I('s_add_u32 s%d, s%d, 0x%x', sT + 1, sT + 1, WS_FLAGS + FL_XN)
    bulk.flag_store(a, sT + 1)
    a.label(lab)
    a.I('s_cmp_eq_u32 s63, 1')
    a.I('s_cbranch_scc1 K_rec')
    a.label('K_a')
    bulk.gen_phase_a(a)
    bulk.wait_xn(a)
    ticket(a, D_TICK_REC, S_ROLE)
    a.I('s_cmp_ge_u32 s%d, 32', S_ROLE)
    a.I('s_cbranch_scc1 K_b')
    dbg_add(a, D_CNT_OTH)
    a.I('s_branch K_rec')
    a.label('K_b')
    ticket(a, D_TICK_B, S_ROLE)
    a.I('s_cmp_lt_u32 s%d, %d', S_ROLE, bulk.NT1)
    a.I('s_cbranch_scc1 K_t1')
    a.I('s_sub_u32 s%d, s%d, %d', S_ROLE, S_ROLE, bulk.NT1)
    a.I('s_cmp_ge_u32 s%d, 128', S_ROLE)
    a.I('s_cbranch_scc1 K_exit')
    bulk.gen_t2(a)
    a.label('K_t1')
    bulk.gen_t1(a)
    a.label('B_fail')
    a.I('s_mov_b64 exec, 1')
    a.I('v_mov_b32 v252, %d', (D_ERR + 2) * 4)
    a.I('v_mov_b32 v251, s%d', S_ROLE)
    a.I('v_or_b32 v251, 0x20000000, v251')
    a.I('buffer_store_dword v251, v252, %s, 0 offen sc1', DBG)
    a.label('K_exit')
    a.I('s_endpgm')
    a.label('K_rec')
    rec.gen_rec(a, cfg)
    errs = a.verify_edges()
    for e in errs:
        print('HAZARD', e, file=sys.stderr)
    k = KNAME + '_kernel'
    ref = open('cdna_kernels/%s.s.ref' % KNAME).read().split('\n')
    hdr = '\n'.join(l for l in ref[:17] if l.startswith(';') and '@launch' not in l) + '\n'
    hdr += '; @launch grid=(256,1,1) block=(256,1,1) lds=163840\n.amdgcn_target "amdgcn-amd-amdhsa--gfx950"\n.text\n.globl %s\n.p2align 8\n.type %s,@function\n%s:\n' % (k, k, k)
    ftr = '''.section .rodata,"a"
.p2align 6
.amdhsa_kernel %s
  .amdhsa_next_free_vgpr 512
  .amdhsa_next_free_sgpr 102
  .amdhsa_accum_offset 256
  .amdhsa_group_segment_fixed_size 0
  .amdhsa_kernarg_size 112
  .amdhsa_user_sgpr_count 2
  .amdhsa_user_sgpr_kernarg_segment_ptr 1
  .amdhsa_system_sgpr_workgroup_id_x 1
  .amdhsa_float_denorm_mode_32 3
.end_amdhsa_kernel
''' % k
    return hdr + a.text() + ftr


if __name__ == '__main__':
    cfg = dict(fast=True, kvflags=1, both_modes=1, npre=5, d1=5, d2=4, pgap=4)
    for arg in sys.argv[2:]:
        k, v = arg.split('=')
        cfg[k] = int(v)
    open(sys.argv[1], 'w').write(build(cfg))
```

```python
from asmlib import *
from common import *
from rec import srd, f32bits

WS = 's[%d:%d]' % (S_WS, S_WS + 3)
DBG = 's[%d:%d]' % (S_DBG, S_DBG + 3)
DP = ' row_mask:0xf bank_mask:0xf'
sT = 84
sSpin = 83
SPIN_MAX = 0x400000


BST = False
HOLD = 0


def bstamp(a, idx):
    if not BST:
        return
    lab = a.newlabel('BS')
    a.I('s_cmp_lg_u32 s%d, 0', S_WAVE)
    a.I('s_cbranch_scc1 %s', lab)
    a.I('s_memrealtime s[100:101]')
    a.I('s_lshl_b32 s99, s2, 6')
    a.I('s_add_u32 s99, s99, 0x%x', WS_DBG + 0x90000 + idx * 4)
    a.I('s_waitcnt lgkmcnt(0)')
    a.I('s_mov_b64 exec, 1')
    a.I('v_mov_b32 v14, 0')
    a.I('v_mov_b32 v15, s100')
    a.I('buffer_store_dword v15, v14, %s, s99 offen', WS)
    a.I('v_mov_b32 v15, s%d', S_ROLE)
    a.I('buffer_store_dword v15, v14, %s, s99 offen offset:32', WS)
    a.I('s_mov_b64 exec, -1')
    a.label(lab)
    a.vm_n -= 2


def spin(a, fail='B_fail'):
    a.I('s_add_u32 s%d, s%d, 1', sSpin, sSpin)
    a.I('s_cmp_gt_u32 s%d, 0x%x', sSpin, SPIN_MAX)
    a.I('s_cbranch_scc1 %s', fail)


def wave_allsum(a, regs, tmp):
    for sh in (1, 2, 4, 8):
        for r in regs:
            a.I('v_add_f32_dpp v%d, v%d, v%d row_ror:%d' + DP, r, r, r, sh)
    for op in ('v_permlane16_swap_b32', 'v_permlane32_swap_b32'):
        for r, t in zip(regs, tmp):
            a.I('v_mov_b32 v%d, v%d', t, r)
        for r, t in zip(regs, tmp):
            a.I('%s v%d, v%d', op, r, t)
        for r, t in zip(regs, tmp):
            a.I('v_add_f32 v%d, v%d, v%d', r, r, t)


def rnd_bf16(a, r):
    a.I('v_cvt_pk_bf16_f32 v%d, v%d, v%d', r, r, r)
    a.I('v_and_b32 v%d, 0xffff0000, v%d', r, r)


def ln_issue(a, srow, B=200):
    a.I('v_and_b32 v%d, 63, v0', B + 8)
    a.I('v_lshlrev_b32 v%d, 4, v%d', B + 8, B + 8)
    a.I('buffer_load_dwordx4 v[%d:%d], v%d, s[%d:%d], s%d offen', B, B + 3, B + 8, S_W, S_W + 3, srow)
    return a.I('buffer_load_dwordx4 v[%d:%d], v%d, s[%d:%d], s%d offen offset:1024', B + 4, B + 7, B + 8, S_W, S_W + 3, srow)


def ln_compute(a, tok, srow, B=200):
    X = [B + 10, B + 18]
    S = [B + 26, B + 27]
    TM = [B + 28, B + 29]
    MB = [B + 30, B + 31]
    D = [B + 32, B + 40]
    if tok:
        a.wait(tok)
    for r in range(2):
        for k in range(4):
            a.I('v_lshlrev_b32 v%d, 16, v%d', X[r] + 2 * k, B + 4 * r + k)
            a.I('v_and_b32 v%d, 0xffff0000, v%d', X[r] + 2 * k + 1, B + 4 * r + k)
    for r in range(2):
        a.I('v_add_f32 v%d, v%d, v%d', S[r], X[r], X[r] + 1)
        for k in range(2, 8):
            a.I('v_add_f32 v%d, v%d, v%d', S[r], S[r], X[r] + k)
    wave_allsum(a, S, TM)
    for r in range(2):
        a.I('v_mul_f32 v%d, 0x%x, v%d', MB[r], f32bits(1.0 / 512), S[r])
    for r in range(2):
        for k in range(8):
            a.I('v_sub_f32 v%d, v%d, v%d', D[r] + k, X[r] + k, MB[r])
        a.I('v_mul_f32 v%d, v%d, v%d', S[r], D[r], D[r])
        for k in range(1, 8):
            a.I('v_fmac_f32 v%d, v%d, v%d', S[r], D[r] + k, D[r] + k)
    wave_allsum(a, S, TM)
    for r in range(2):
        a.I('v_mul_f32 v%d, 0x%x, v%d', S[r], f32bits(1.0 / 512), S[r])
        rnd_bf16(a, S[r])
        a.I('v_add_f32 v%d, 0x%x, v%d', S[r], f32bits(1e-5), S[r])
        rnd_bf16(a, S[r])
        a.I('v_sqrt_f32 v%d, v%d', S[r], S[r])
        rnd_bf16(a, S[r])
        a.I('v_rcp_f32 v%d, v%d', S[r], S[r])
        rnd_bf16(a, MB[r])
    for r in range(2):
        for k in range(4):
            a.I('v_sub_f32 v%d, v%d, v%d', D[r] + 2 * k, X[r] + 2 * k, MB[r])
            a.I('v_sub_f32 v%d, v%d, v%d', D[r] + 2 * k + 1, X[r] + 2 * k + 1, MB[r])
            a.I('v_cvt_pk_bf16_f32 v%d, v%d, v%d', TM[r], D[r] + 2 * k, D[r] + 2 * k + 1)
            a.I('v_lshlrev_b32 v%d, 16, v%d', D[r] + 2 * k, TM[r])
            a.I('v_and_b32 v%d, 0xffff0000, v%d', D[r] + 2 * k + 1, TM[r])
            a.I('v_mul_f32 v%d, v%d, v%d', D[r] + 2 * k, D[r] + 2 * k, S[r])
            a.I('v_mul_f32 v%d, v%d, v%d', D[r] + 2 * k + 1, D[r] + 2 * k + 1, S[r])
            a.I('v_cvt_pk_bf16_f32 v%d, v%d, v%d', B + 4 * r + k, D[r] + 2 * k, D[r] + 2 * k + 1)
    a.I('buffer_store_dwordx4 v[%d:%d], v%d, %s, s%d offen sc1', B, B + 3, B + 8, WS, srow)
    return a.I('buffer_store_dwordx4 v[%d:%d], v%d, %s, s%d offen offset:1024 sc1', B + 4, B + 7, B + 8, WS, srow)


def wait_dbg(a, dword, minval, V=250, fail='B_fail', sleep=2):
    lab = a.newlabel('WD')
    a.I('v_mov_b32 v%d, %d', V, dword * 4)
    a.I('s_mov_b32 s%d, 0', sSpin)
    a.label(lab)
    a.I('buffer_load_dword v%d, v%d, %s, 0 offen sc1', V + 1, V, DBG)
    spin(a, fail)
    a.I('s_waitcnt vmcnt(0)')
    a.I('v_readfirstlane_b32 s%d, v%d', sT, V + 1)
    a.I('s_cmp_ge_u32 s%d, %d', sT, minval)
    done = a.newlabel('WDd')
    a.I('s_cbranch_scc1 %s', done)
    a.I('s_sleep %d', sleep)
    a.I('s_branch %s', lab)
    a.label(done)


def flag_store(a, soff, V=250, val=1):
    a.I('s_mov_b64 exec, 1')
    a.I('v_mov_b32 v%d, 0', V)
    a.I('v_mov_b32 v%d, %d', V + 1, val)
    a.I('buffer_store_dword v%d, v%d, %s, s%d offen sc1', V + 1, V, WS, soff)
    a.I('s_mov_b64 exec, -1')


sSeg, sStride, sSlice, sCol, sOut, sSrc, sBuf, sFlagPrev, sHave = 64, 65, 66, 67, 68, 69, 70, 71, 72
sFlagBase = 73
sPermLo, sPermHi = 95, 96
vLane, vN, vG, vL16, vSrc, vWa, vWb = 1, 2, 3, 4, 5, 6, 7
FR = 16
ACC = 48
OUT = 80
WB = 100


def lane_consts(a):
    a.I('v_and_b32 v%d, 63, v0', vLane)
    a.I('v_and_b32 v%d, 15, v%d', vN, vLane)
    a.I('v_lshrrev_b32 v%d, 4, v%d', vG, vLane)
    a.I('v_lshlrev_b32 v%d, 4, v%d', vL16, vLane)
    a.I('s_mov_b32 s%d, 0x05040100', sPermLo)
    a.I('s_mov_b32 s%d, 0x07060302', sPermHi)


def gemm_weights(a, ffn):
    stride = 3584 if ffn else 8192
    a.I('s_mov_b32 s%d, %d', sT, stride * 8)
    a.I('v_mul_lo_u32 v%d, v%d, s%d', vWa, vG, sT)
    a.I('v_lshl_add_u32 v%d, v%d, %d, v%d', vWa, vN, 2 if ffn else 3, vWa)
    NB = 3
    toks = {}

    def issue(g):
        b = WB + 32 * (g % NB)
        for h in range(2):
            ks = 2 * g + h
            for kk in range(8):
                r = b + 16 * h + 2 * kk
                a.I('s_add_u32 s%d, s%d, %d', sT, sCol, (32 * ks + kk) * stride)
                if ffn:
                    a.I('buffer_load_dword v%d, v%d, s[%d:%d], s%d offen', r, vWa, S_W, S_W + 3, sT)
                    t = a.I('buffer_load_dword v%d, v%d, s[%d:%d], s%d offen', r + 1, vWa, S_W2, S_W2 + 3, sT)
                else:
                    t = a.I('buffer_load_dwordx2 v[%d:%d], v%d, s[%d:%d], s%d offen', r, r + 1, vWa, S_W, S_W + 3, sT)
        toks[g] = t

    def consume(g):
        b = WB + 32 * (g % NB)
        a.wait(toks[g])
        for h in range(2):
            ks = 2 * g + h
            for t in range(4):
                for p in range(4):
                    r0 = b + 16 * h + 4 * p + t // 2
                    a.I('v_perm_b32 v%d, v%d, v%d, s%d', OUT + 4 * t + p, r0 + 2, r0, sPermLo if t % 2 == 0 else sPermHi)
            for k in range(16):
                a.I('v_accvgpr_write_b32 a%d, v%d', 16 * ks + k, OUT + k)
    depth = 1 if ffn else 3
    for g in range(depth):
        issue(g)
    for g in range(8):
        if ffn and g + 1 < 8:
            issue(g + 1)
        consume(g)
        if not ffn and g + depth < 8:
            issue(g + depth)


def gemm_loop(a, kind):
    L = 'A%s_' % kind

    def dma():
        for j in range(8):
            a.I('s_add_u32 m0, s%d, %d', sBuf, j * (1024 - 64))
            a.I('buffer_load_dwordx4 v%d, %s, s%d offen offset:%d sc1 lds', vSrc, WS, sSrc, j * 64)

    a.I('s_lshl_b32 s%d, s%d, 13', sBuf, S_WAVE)
    a.I('s_lshl_b32 s%d, s%d, 15', sSrc, sSeg)
    dma()
    a.I('s_mov_b32 s%d, 0', sHave)
    a.I('v_mov_b32 v%d, v%d', vWb, vL16)
    a.I('s_waitcnt vmcnt(0)')
    a.I('s_barrier')
    a.label(L + 'loop')
    a.I('s_add_u32 s%d, s%d, s%d', sT + 1, sSeg, sStride)
    a.I('s_min_u32 s%d, s%d, 63', sT + 1, sT + 1)
    a.I('s_lshl_b32 s%d, s%d, 15', sSrc, sT + 1)
    a.I('s_xor_b32 s%d, s%d, 32768', sBuf, sBuf)
    ft = {}

    def rd(ks):
        st = ks % 3
        a.I('ds_read_b128 v[%d:%d], v%d offset:%d', FR + 8 * st, FR + 8 * st + 3, vWb, ks * 1024)
        ft[ks] = a.I('ds_read_b128 v[%d:%d], v%d offset:%d', FR + 8 * st + 4, FR + 8 * st + 7, vWb, 16384 + ks * 1024)
    rd(0)
    rd(1)
    dma()
    for ks in range(16):
        if ks + 2 < 16:
            rd(ks + 2)
        a.wait(ft[ks])
        st = ks % 3
        for T in range(2):
            for t in range(4):
                d = ACC + 16 * T + 4 * t
                x = vr(FR + 8 * st + 4 * T, 4)
                w = ar(16 * ks + 4 * t, 4)
                A, B = (x, w) if kind == 'v' else (w, x)
                a.I('v_mfma_f32_16x16x32_bf16 v[%d:%d], %s, %s, %s', d, d + 3, A, B, '0' if ks == 0 else vr(d, 4))
        if ks == 8:
            a.I('s_waitcnt vmcnt(8)')
            a.I('s_barrier')
            sk = a.newlabel(L + 'nf')
            a.I('s_or_b32 s%d, s%d, s%d', sT, S_WAVE, sHave)
            a.I('s_cmp_lg_u32 s%d, 0x100', sT)
            a.I('s_cbranch_scc1 %s', sk)
            flag_store(a, sFlagPrev)
            a.label(sk)
            a.vm_n -= 1
    a.I('s_waitcnt vmcnt(0)')
    a.I('s_barrier')
    if kind == 'qk':
        a.I('s_lshl_b32 s%d, s%d, 18', sT, sSeg)
        a.I('s_add_u32 s%d, s%d, s%d', sT, sT, sOut)
        a.I('s_add_u32 s%d, s%d, 4096', sT + 1, sT)
        for T in range(2):
            for i in range(4):
                for tp in range(2):
                    a.I('v_cvt_pk_bf16_f32 v%d, v%d, v%d', OUT + 8 * T + 2 * i + tp, ACC + 16 * T + 8 * tp + i, ACC + 16 * T + 8 * tp + 4 + i)
            for hf in range(2):
                a.I('buffer_store_dwordx4 v[%d:%d], v%d, %s, s%d offen offset:%d sc1', OUT + 8 * T + 4 * hf, OUT + 8 * T + 4 * hf + 3,
                    vL16, WS, sT + T, 1024 * hf)
    elif kind == 'v':
        a.I('s_lshl_b32 s%d, s%d, 18', sT, sSeg)
        a.I('s_add_u32 s%d, s%d, s%d', sT, sT, sOut)
        for t in range(4):
            for T in range(2):
                for i2 in range(2):
                    a.I('v_cvt_pk_bf16_f32 v%d, v%d, v%d', OUT + 4 * t + 2 * T + i2, ACC + 16 * T + 4 * t + 2 * i2, ACC + 16 * T + 4 * t + 2 * i2 + 1)
            a.I('buffer_store_dwordx4 v[%d:%d], v%d, %s, s%d offen offset:%d sc1', OUT + 4 * t, OUT + 4 * t + 3, vL16, WS, sT, 1024 * t)
    else:
        a.I('s_mul_i32 s%d, s%d, %d', sT, sSeg, 2 * 56 * 1024)
        a.I('s_add_u32 s%d, s%d, s%d', sT, sT, sOut)
        a.I('s_add_u32 s%d, s%d, %d', sT + 1, sT, 56 * 1024)
        for T in range(2):
            for i in range(4):
                g0, g1, u0, u1 = [ACC + 16 * T + 4 * t + i for t in range(4)]
                a.I('v_cvt_pk_bf16_f32 v%d, v%d, v%d', g0, g0, g1)
                a.I('v_cvt_pk_bf16_f32 v%d, v%d, v%d', u0, u0, u1)
                a.I('v_and_b32 v%d, 0xffff0000, v%d', g1, g0)
                a.I('v_and_b32 v%d, 0xffff0000, v%d', u1, u0)
                a.I('v_lshlrev_b32 v%d, 16, v%d', g0, g0)
                a.I('v_lshlrev_b32 v%d, 16, v%d', u0, u0)
                a.I('v_mul_f32 v%d, v%d, v%d', g0, g0, u0)
                a.I('v_mul_f32 v%d, v%d, v%d', g1, g1, u1)
                a.I('v_cvt_pk_bf16_f32 v%d, v%d, v%d', OUT + 4 * T + i, g0, g1)
            a.I('buffer_store_dwordx4 v[%d:%d], v%d, %s, s%d offen sc1', OUT + 4 * T, OUT + 4 * T + 3, vL16, WS, sT + T)
    a.I('s_lshl_b32 s%d, s%d, %d', sT, sSeg, 6 if kind == 'h' else 5)
    a.I('s_add_u32 s%d, s%d, s%d', sFlagPrev, sT, sFlagBase)
    a.I('s_mov_b32 s%d, 0x100', sHave)
    a.I('v_xor_b32 v%d, 32768, v%d', vWb, vWb)
    a.I('s_add_u32 s%d, s%d, s%d', sSeg, sSeg, sStride)
    a.I('s_cmp_lt_u32 s%d, 64', sSeg)
    a.I('s_cbranch_scc1 %sloop', L)
    a.I('s_waitcnt vmcnt(0)')
    a.I('s_barrier')
    sk = a.newlabel(L + 'nf')
    a.I('s_cmp_lg_u32 s%d, 0', S_WAVE)
    a.I('s_cbranch_scc1 %s', sk)
    flag_store(a, sFlagPrev)
    a.label(sk)
    a.I('s_branch A_done')


def wait_xn(a):
    wait_dbg(a, D_FINIT, 1, V=FR)
    lab = a.newlabel('WX')
    a.I('v_lshrrev_b32 v%d, 1, v%d', FR + 2, vL16)
    a.I('s_mov_b32 s%d, 0x%x', sT + 1, WS_FLAGS + FL_XN)
    a.I('s_mov_b32 s%d, 0', sSpin)
    a.label(lab)
    a.I('buffer_load_dwordx2 v[%d:%d], v%d, %s, s%d offen sc1', FR, FR + 1, FR + 2, WS, sT + 1)
    spin(a)
    a.I('s_waitcnt vmcnt(0)')
    a.I('v_min_u32 v%d, v%d, v%d', FR, FR, FR + 1)
    a.I('v_cmp_eq_u32 vcc, 0, v%d', FR)
    done = a.newlabel('WXd')
    a.I('s_cbranch_vccz %s', done)
    a.I('s_sleep 2')
    a.I('s_branch %s', lab)
    a.label(done)


def gen_phase_a(a):
    a.c('================ phase A: projections, ticket in s%d ================' % S_ROLE)
    lane_consts(a)
    a.I('v_lshlrev_b32 v%d, 10, v%d', vSrc, vN)
    a.I('v_lshl_add_u32 v%d, v%d, 4, v%d', vSrc, vG, vSrc)
    a.I('s_lshr_b32 s%d, s%d, 1', sT, S_WAVE)
    a.I('s_lshl_b32 s%d, s%d, 14', sT, sT)
    a.I('s_and_b32 s%d, s%d, 1', sT + 1, S_WAVE)
    a.I('s_lshl_b32 s%d, s%d, 9', sT + 1, sT + 1)
    a.I('s_add_u32 s%d, s%d, s%d', sT, sT, sT + 1)
    a.I('v_add_u32 v%d, s%d, v%d', vSrc, sT, vSrc)
    a.I('s_cmp_ge_u32 s%d, 218', S_ROLE)
    a.I('s_cbranch_scc1 A_done')
    a.I('s_cmp_ge_u32 s%d, 176', S_ROLE)
    a.I('s_cbranch_scc1 A_h')
    a.I('s_and_b32 s%d, s%d, 31', sSlice, S_ROLE)
    a.I('s_lshr_b32 s%d, s%d, 5', sSeg, S_ROLE)
    a.I('s_mov_b32 s%d, 4', sStride)
    a.I('s_cmp_lt_u32 s%d, 128', S_ROLE)
    a.I('s_cbranch_scc1 A_kv')
    a.I('s_sub_u32 s%d, s%d, 128', sT, S_ROLE)
    a.I('s_and_b32 s%d, s%d, 15', sSlice, sT)
    a.I('s_add_u32 s%d, s%d, 32', sSlice, sSlice)
    a.I('s_lshr_b32 s%d, s%d, 4', sSeg, sT)
    a.I('s_mov_b32 s%d, 3', sStride)
    if HOLD:
        wait_dbg(a, D_WDONE, HOLD, V=FR, sleep=16)
    a.label('A_kv')
    a.I('s_and_b32 s%d, s%d, 15', sT, sSlice)
    a.I('s_lshl_b32 s%d, s%d, 9', sCol, sT)
    a.I('s_lshl_b32 s%d, s%d, 7', sT + 1, S_WAVE)
    a.I('s_add_u32 s%d, s%d, s%d', sCol, sCol, sT + 1)
    a.I('s_lshl_b32 s%d, s%d, 14', sOut, sT)
    a.I('s_lshr_b32 s%d, s%d, 1', sT + 1, S_WAVE)
    a.I('s_lshl_b32 s%d, s%d, 13', sT + 1, sT + 1)
    a.I('s_add_u32 s%d, s%d, s%d', sOut, sOut, sT + 1)
    a.I('s_and_b32 s%d, s%d, 1', sT + 2, S_WAVE)
    a.I('s_lshr_b32 s%d, s%d, 4', sT + 3, sSlice)
    a.I('s_lshl_b32 s%d, s%d, 11', sFlagBase, sT)
    a.I('s_add_u32 s%d, s%d, 0x%x', sFlagBase, sFlagBase, WS_FLAGS + FL_KV)
    a.I('s_cmp_eq_u32 s%d, 1', sT + 3)
    a.I('s_cbranch_scc1 A_v')
    a.I('s_lshl_b32 s%d, s%d, 11', sT + 2, sT + 2)
    a.I('s_add_u32 s%d, s%d, s%d', sOut, sOut, sT + 2)
    a.I('s_cmp_eq_u32 s%d, 0', sT + 3)
    a.I('s_cselect_b32 s%d, s%d, s%d', S_W, P_WK, P_WQ)
    a.I('s_cselect_b32 s%d, s%d, s%d', S_W + 1, P_WK + 1, P_WQ + 1)
    a.I('s_cselect_b32 s%d, 0, 8', sT + 1)
    a.I('s_cselect_b32 s%d, 0x%x, 0x%x' % (sT, WS_K >> 20, WS_Q >> 20))
    a.I('s_add_u32 s%d, s%d, s%d', sFlagBase, sFlagBase, sT + 1)
    a.I('s_lshl_b32 s%d, s%d, 20', sT, sT)
    a.I('s_add_u32 s%d, s%d, s%d', sOut, sOut, sT)
    a.I('s_and_b32 s%d, s%d, 0xffff', S_W + 1, S_W + 1)
    a.I('s_mov_b32 s%d, 4194304', S_W + 2)
    a.I('s_mov_b32 s%d, 0x20000', S_W + 3)
    a.I('s_branch A_w')
    a.label('A_v')
    a.I('s_lshl_b32 s%d, s%d, 12', sT + 2, sT + 2)
    a.I('s_add_u32 s%d, s%d, s%d', sOut, sOut, sT + 2)
    a.I('s_add_u32 s%d, s%d, 0x%x', sOut, sOut, WS_V)
    a.I('s_add_u32 s%d, s%d, 16', sFlagBase, sFlagBase)
    srd(a, S_W, P_WV, 4194304)
    a.label('A_w')
    gemm_weights(a, False)
    bstamp(a, 2)
    wait_xn(a)
    bstamp(a, 3)
    a.I('s_lshr_b32 s%d, s%d, 4', sT + 3, sSlice)
    a.I('s_cmp_eq_u32 s%d, 1', sT + 3)
    a.I('s_cbranch_scc1 A_vloop')
    gemm_loop(a, 'qk')
    a.label('A_vloop')
    gemm_loop(a, 'v')
    a.label('A_h')
    if HOLD:
        wait_dbg(a, D_WDONE, HOLD, V=FR, sleep=16)
    a.I('s_sub_u32 s%d, s%d, 176', sT, S_ROLE)
    a.I('s_mov_b32 s%d, 0', sSeg)
    for k in range(2):
        a.I('s_cmp_ge_u32 s%d, 14', sT)
        a.I('s_cselect_b32 s%d, 14, 0', sT + 1)
        a.I('s_sub_u32 s%d, s%d, s%d', sT, sT, sT + 1)
        a.I('s_lshr_b32 s%d, s%d, 3', sT + 1, sT + 1)
        a.I('s_add_u32 s%d, s%d, s%d', sSeg, sSeg, sT + 1)
    a.I('s_add_u32 s%d, s%d, 48', sSlice, sT)
    a.I('s_mov_b32 s%d, 3', sStride)
    a.I('s_lshl_b32 s%d, s%d, 2', sT, sT)
    a.I('s_add_u32 s%d, s%d, 0x%x', sFlagBase, sT, WS_FLAGS + FL_H)
    a.I('s_add_u32 s%d, s%d, s%d', sT, sT, S_WAVE)
    a.I('s_lshl_b32 s%d, s%d, 6', sCol, sT)
    a.I('s_lshl_b32 s%d, s%d, 10', sOut, sT)
    a.I('s_add_u32 s%d, s%d, 0x%x', sOut, sOut, WS_H)
    srd(a, S_W, P_WG, 512 * 3584)
    srd(a, S_W2, P_WU, 512 * 3584)
    gemm_weights(a, True)
    bstamp(a, 2)
    wait_xn(a)
    bstamp(a, 3)
    gemm_loop(a, 'h')
    a.label('A_done')
    bstamp(a, 4)


def poll_flags(a, vaddr, soff, nlanes, smin, V, sleep=2):
    lab = a.newlabel('PF')
    done = a.newlabel('PFd')
    a.I('s_mov_b32 s%d, 0', sSpin)
    a.I('s_mov_b64 exec, 0x%x', (1 << nlanes) - 1)
    a.label(lab)
    a.I('buffer_load_dword v%d, v%d, %s, s%d offen sc1', V, vaddr, WS, soff)
    spin(a)
    a.I('s_waitcnt vmcnt(0)')
    if smin is None:
        a.I('v_cmp_eq_u32 vcc, 0, v%d', V)
    else:
        a.I('v_cmp_gt_u32 vcc, s%d, v%d', smin, V)
    a.I('s_cbranch_vccz %s', done)
    a.I('s_sleep %d', sleep)
    a.I('s_branch %s', lab)
    a.label(done)
    a.I('s_mov_b64 exec, -1')


NT1 = 96


def gen_t1(a):
    a.c('================ T1: token attention ================')
    sTask, sSegT, sHead, sBase, sB2, sNeed, sC = 64, 65, 66, 67, 68, 69, 70
    sMask = 72
    sLo = 80
    vKm, vVm, vF64, vF128, vNeg = 5, 6, 7, 8, 9
    TM = 10
    QF, KF, VF, KM, VM, S, P, O = 16, 48, 80, 112, 128, 144, 164, 176
    lane_consts(a)
    a.I('s_mov_b32 s%d, 0x%x', sC, f32bits(128 ** -0.5 * 1.4426950408889634))
    a.I('v_mov_b32 v%d, 0x%x', vNeg, f32bits(-3.0e38))
    a.I('v_lshlrev_b32 v%d, 2, v%d', TM, vG)
    for i in range(4):
        a.I('v_add_u32 v%d, %d, v%d', TM + 1, i, TM)
        a.I('v_cmp_le_u32 s[%d:%d], v%d, v%d', sMask + 2 * i, sMask + 2 * i + 1, TM + 1, vN)
    a.I('s_mov_b32 s%d, -1', sLo)
    a.I('s_mov_b32 s%d, 0', sLo + 1)
    a.I('v_lshlrev_b32 v%d, 3, v%d', vF64, vLane)
    a.I('v_lshlrev_b32 v%d, 7, v%d', vF128, vLane)
    a.I('v_lshrrev_b32 v%d, 1, v%d', TM, vG)
    a.I('v_lshlrev_b32 v%d, 10, v%d', vKm, TM)
    a.I('v_and_b32 v%d, 1, v%d', TM, vG)
    a.I('v_lshl_add_u32 v%d, v%d, 7, v%d', vKm, TM, vKm)
    a.I('v_bfe_u32 v%d, v%d, 1, 2', TM, vN)
    a.I('v_lshl_add_u32 v%d, v%d, 8, v%d', vKm, TM, vKm)
    a.I('v_and_b32 v%d, 1, v%d', TM, vN)
    a.I('v_lshl_add_u32 v%d, v%d, 2, v%d', vKm, TM, vKm)
    a.I('v_add_u32 v%d, 4, v%d', vKm, vKm)
    a.I('v_lshrrev_b32 v%d, 3, v%d', TM, vN)
    a.I('v_lshlrev_b32 v%d, 10, v%d', vVm, TM)
    a.I('v_and_b32 v%d, 1, v%d', TM, vG)
    a.I('v_lshl_add_u32 v%d, v%d, 9, v%d', vVm, TM, vVm)
    a.I('v_and_b32 v%d, 7, v%d', TM, vN)
    a.I('v_lshl_add_u32 v%d, v%d, 5, v%d', vVm, TM, vVm)
    a.I('s_lshl_b32 s%d, s%d, 2', sTask, S_ROLE)
    a.I('s_add_u32 s%d, s%d, s%d', sTask, sTask, S_WAVE)
    bstamp(a, 5)
    a.label('T1_loop')
    a.I('s_lshr_b32 s%d, s%d, 5', sSegT, sTask)
    a.I('s_and_b32 s%d, s%d, 31', sHead, sTask)
    a.I('s_lshl_b32 s%d, s%d, 5', sT + 1, sSegT)
    a.I('s_lshr_b32 s%d, s%d, 1', sT + 2, sHead)
    a.I('s_lshl_b32 s%d, s%d, 11', sT + 2, sT + 2)
    a.I('s_add_u32 s%d, s%d, s%d', sT + 1, sT + 1, sT + 2)
    a.I('s_add_u32 s%d, s%d, 0x%x', sT + 1, sT + 1, WS_FLAGS + FL_KV)
    poll_flags(a, vF64, sT + 1, 3, None, TM, sleep=8)
    a.I('s_lshl_b32 s%d, s%d, 13', sBase, sTask)
    tk = {}
    for nm, R, W0 in (('k', KF, WS_K), ('q', QF, WS_Q), ('v', VF, WS_V)):
        a.I('s_add_u32 s%d, s%d, 0x%x', sT + 1, sBase, W0)
        a.I('s_add_u32 s%d, s%d, 0x%x', sT + 2, sBase, W0 + 4096)
        for f in range(8):
            tk[nm, f] = a.I('buffer_load_dwordx4 v[%d:%d], v%d, %s, s%d offen offset:%d sc1', R + 4 * f, R + 4 * f + 3, vL16, WS,
                            sT + 1 + f // 4, (f % 4) * 1024)
    a.wait(tk['q', 7])
    for (D, Tk, Tq) in ((S, 0, 0), (S + 8, 0, 1), (S + 12, 1, 1)):
        for f in range(4):
            a.I('v_mfma_f32_16x16x32_bf16 v[%d:%d], %s, %s, %s', D, D + 3, vr(KF + 16 * Tk + 4 * f, 4), vr(QF + 16 * Tq + 4 * f, 4),
                '0' if f == 0 else vr(D, 4))
    a.I('s_add_u32 s%d, s%d, 1', sNeed, sSegT)
    a.I('s_lshl_b32 s%d, s%d, 9', sT + 1, sHead)
    a.I('s_add_u32 s%d, s%d, 0x%x', sT + 1, sT + 1, WS_FLAGS + FL_KM)
    for i in range(4):
        a.I('v_cndmask_b32 v%d, v%d, v%d, s[%d:%d]', S + i, vNeg, S + i, sMask + 2 * i, sMask + 2 * i + 1)
        a.I('v_cndmask_b32 v%d, v%d, v%d, s[%d:%d]', S + 12 + i, vNeg, S + 12 + i, sMask + 2 * i, sMask + 2 * i + 1)
    a.I('v_max3_f32 v%d, v%d, v%d, v%d', TM + 2, S, S + 1, S + 2)
    a.I('v_max_f32 v%d, v%d, v%d', TM + 2, TM + 2, S + 3)
    a.I('v_max3_f32 v%d, v%d, v%d, v%d', TM + 3, S + 8, S + 9, S + 10)
    a.I('v_max3_f32 v%d, v%d, v%d, v%d', TM + 3, TM + 3, S + 11, S + 12)
    a.I('v_max3_f32 v%d, v%d, v%d, v%d', TM + 3, TM + 3, S + 13, S + 14)
    a.I('v_max_f32 v%d, v%d, v%d', TM + 3, TM + 3, S + 15)
    poll_flags(a, vF128, sT + 1, 4, sNeed, TM, sleep=4)
    a.I('s_lshl_b32 s%d, s%d, 12', sB2, sTask)
    a.I('s_add_u32 s%d, s%d, 0x%x', sB2, sB2, WS_VM)
    for f in range(4):
        for c in range(4):
            t = a.I('buffer_load_dword v%d, v%d, %s, s%d offen offset:%d sc1', KM + 4 * f + c, vKm, WS, sB2, (f // 2) * 2048 + (f % 2) * 64 + c * 16)
        tk['km', f] = t
    for tau in range(8):
        G, t = tau // 4, tau % 4
        for j in range(2):
            tk['vm'] = a.I('buffer_load_dword v%d, v%d, %s, s%d offen offset:%d sc1', VM + 2 * tau + j, vVm, WS, sB2,
                           G * 2048 + j * 256 + (t // 2) * 16 + (t % 2) * 12)
    for f in range(4):
        a.wait(tk['km', f])
        for Tq, D in ((0, S + 4), (1, S + 16)):
            a.I('v_mfma_f32_16x16x32_bf16 v[%d:%d], %s, %s, %s', D, D + 3, vr(KM + 4 * f, 4), vr(QF + 16 * Tq + 4 * f, 4), '0' if f == 0 else vr(D, 4))
    MX = [TM + 2, TM + 3]
    MT = [TM + 4, TM + 5]
    for Tq, D in ((0, S + 4), (1, S + 16)):
        a.I('v_max3_f32 v%d, v%d, v%d, v%d', MX[Tq], MX[Tq], D, D + 1)
        a.I('v_max3_f32 v%d, v%d, v%d, v%d', MX[Tq], MX[Tq], D + 2, D + 3)
    for op in ('v_permlane32_swap_b32', 'v_permlane16_swap_b32'):
        for Tq in range(2):
            a.I('v_mov_b32 v%d, v%d', MT[Tq], MX[Tq])
        for Tq in range(2):
            a.I('%s v%d, v%d', op, MX[Tq], MT[Tq])
        for Tq in range(2):
            a.I('v_max_f32 v%d, v%d, v%d', MX[Tq], MX[Tq], MT[Tq])
    for Tq, D in ((0, S + 4), (1, S + 16)):
        a.I('v_mul_f32 v%d, s%d, v%d', MX[Tq], sC, MX[Tq])
        for i in range(4):
            a.I('v_cndmask_b32 v%d, v%d, v%d, s[%d:%d]', D + i, vNeg, D + i, sLo, sLo + 1)
    rng = {0: range(S, S + 8), 1: range(S + 8, S + 20)}
    for Tq in range(2):
        for r in rng[Tq]:
            a.I('v_fma_f32 v%d, v%d, s%d, -v%d', r, r, sC, MX[Tq])
        for r in rng[Tq]:
            a.I('v_exp_f32 v%d, v%d', r, r)
    a.I('v_cvt_pk_bf16_f32 v%d, v%d, v%d', P, S, S + 1)
    a.I('v_cvt_pk_bf16_f32 v%d, v%d, v%d', P + 1, S + 2, S + 3)
    a.I('v_mov_b32 v%d, 0', P + 2)
    a.I('v_mov_b32 v%d, 0', P + 3)
    for k in range(4):
        a.I('v_cvt_pk_bf16_f32 v%d, v%d, v%d', P + 4 + k, S + 8 + 2 * k, S + 9 + 2 * k)
    for Tq, D in ((0, S + 4), (1, S + 16)):
        a.I('v_cvt_pk_bf16_f32 v%d, v%d, v%d', P + 8 + 2 * Tq, D, D + 1)
        a.I('v_cvt_pk_bf16_f32 v%d, v%d, v%d', P + 9 + 2 * Tq, D + 2, D + 3)
    for Tq in range(2):
        for tau in range(8):
            D = O + 32 * Tq + 4 * tau
            a.I('v_mfma_f32_16x16x32_bf16 v[%d:%d], %s, %s, 0', D, D + 3, vr(VF + 4 * tau, 4), vr(P + 4 * Tq, 4))
            if Tq == 0:
                k = tau
                if k == 0:
                    a.I('v_add_f32 v%d, v%d, v%d', MX[0], S, S + 1)
                    a.I('v_add_f32 v%d, v%d, v%d', MX[1], S + 8, S + 9)
                elif k < 7:
                    a.I('v_add_f32 v%d, v%d, v%d', MX[0], MX[0], S + 1 + k)
                    a.I('v_add_f32 v%d, v%d, v%d', MX[1], MX[1], S + 9 + k)
                else:
                    a.I('v_add_f32 v%d, v%d, v%d', MX[1], MX[1], S + 16)
                    a.I('v_add_f32 v%d, v%d, v%d', MX[1], MX[1], S + 17)
            elif tau == 0:
                a.I('v_add_f32 v%d, v%d, v%d', MX[1], MX[1], S + 18)
                a.I('v_add_f32 v%d, v%d, v%d', MX[1], MX[1], S + 19)
    a.wait(tk['vm'])
    for Tq in range(2):
        for tau in range(8):
            D = O + 32 * Tq + 4 * tau
            a.I('v_mfma_f32_16x16x16_bf16 v[%d:%d], %s, %s, %s', D, D + 3, vr(VM + 2 * tau, 2), vr(P + 8 + 2 * Tq, 2), vr(D, 4))
    for op in ('v_permlane32_swap_b32', 'v_permlane16_swap_b32'):
        for Tq in range(2):
            a.I('v_mov_b32 v%d, v%d', MT[Tq], MX[Tq])
        for Tq in range(2):
            a.I('%s v%d, v%d', op, MX[Tq], MT[Tq])
        for Tq in range(2):
            a.I('v_add_f32 v%d, v%d, v%d', MX[Tq], MX[Tq], MT[Tq])
    for Tq in range(2):
        a.I('v_rcp_f32 v%d, v%d', MX[Tq], MX[Tq])
    a.I('s_add_u32 s%d, s%d, 0x%x', sT + 1, sBase, WS_O)
    a.I('s_add_u32 s%d, s%d, 0x%x', sT + 2, sBase, WS_O + 4096)
    for Tq in range(2):
        for G in range(2):
            B = O + 32 * Tq + 16 * G
            for r in range(16):
                a.I('v_mul_f32 v%d, v%d, v%d', B + r, B + r, MX[Tq])
            PK = KF + 16 * Tq + 8 * G
            for i in range(4):
                for tp in range(2):
                    a.I('v_cvt_pk_bf16_f32 v%d, v%d, v%d', PK + 2 * i + tp, B + 8 * tp + i, B + 8 * tp + 4 + i)
            for hf in range(2):
                a.I('buffer_store_dwordx4 v[%d:%d], v%d, %s, s%d offen offset:%d sc1', PK + 4 * hf, PK + 4 * hf + 3, vL16, WS, sT + 1 + Tq,
                    G * 2048 + hf * 1024)
    a.I('s_lshl_b32 s%d, s%d, 2', sT + 3, sTask)
    a.I('s_add_u32 s%d, s%d, 0x%x', sT + 3, sT + 3, WS_FLAGS + FL_O)
    a.I('s_waitcnt vmcnt(0)')
    flag_store(a, sT + 3, V=TM)
    a.I('s_add_u32 s%d, s%d, %d', sTask, sTask, NT1 * 4)
    a.I('s_cmp_lt_u32 s%d, 2048', sTask)
    a.I('s_cbranch_scc1 T1_loop')
    bstamp(a, 6)
    a.I('s_endpgm')


def gen_t2(a):
    a.c('================ T2: output projection + FFN down + final ================')
    sTile, sSl, sSegT, sPar, sOB, sXO, sL2e = 64, 65, 66, 67, 68, 69, 70
    vW1, vW2, vF4, vLw, vLr, vXo = 5, 6, 7, 8, 9, 10
    TM = 12
    SA, FA = 20, 28
    BUF = 36
    XR = 132
    HW = 144
    lane_consts(a)
    a.I('s_and_b32 s%d, s%d, 15', sSl, S_ROLE)
    a.I('s_lshr_b32 s%d, s%d, 4', sTile, S_ROLE)
    a.I('s_mov_b32 s%d, 0x%x', sL2e, f32bits(-1.4426950408889634))
    a.I('v_lshlrev_b32 v%d, 14, v%d', vW1, vG)
    a.I('v_lshl_add_u32 v%d, v%d, 2, v%d', vW1, vN, vW1)
    a.I('v_lshlrev_b32 v%d, 13, v%d', vW2, vG)
    a.I('v_lshl_add_u32 v%d, v%d, 2, v%d', vW2, vN, vW2)
    a.I('v_lshlrev_b32 v%d, 2, v%d', vF4, vLane)
    a.I('s_lshl_b32 s%d, s%d, 12', sT, S_WAVE)
    a.I('v_add_u32 v%d, s%d, v%d', vLw, sT, vL16)
    a.I('s_lshl_b32 s%d, s%d, 10', sT, S_WAVE)
    a.I('v_add_u32 v%d, s%d, v%d', vLr, sT, vL16)
    a.I('v_lshlrev_b32 v%d, 10, v%d', vXo, vN)
    a.I('v_lshl_add_u32 v%d, v%d, 4, v%d', vXo, vG, vXo)
    a.I('s_lshl_b32 s%d, s%d, 6', sT, sSl)
    a.I('s_lshl_b32 s%d, s%d, 2', sT + 1, S_WAVE)
    a.I('s_add_u32 s%d, s%d, s%d', sT, sT, sT + 1)
    a.I('v_add_u32 v%d, s%d, v%d', vXo, sT, vXo)
    srd(a, S_W, P_WO, 4194304)
    srd(a, S_W2, P_WD, 1792 * 1024)
    sWo, sWd = sT + 2, sT + 3
    a.I('s_lshl_b32 s%d, s%d, 6', sT, sSl)
    a.I('s_lshl_b32 s%d, s%d, 20', sWo, S_WAVE)
    a.I('s_add_u32 s%d, s%d, s%d', sWo, sWo, sT)
    a.I('s_mul_i32 s%d, s%d, %d', sWd, S_WAVE, 14 * 32 * 1024)
    a.I('s_add_u32 s%d, s%d, s%d', sWd, sWd, sT)
    frs = [('d', j) for j in range(14)] + [('o', j) for j in range(32)]
    GS = 2
    groups = [frs[i:i + GS] for i in range(0, len(frs), GS)]
    NB = 3
    toks = {}

    def issue(gi):
        b = BUF + 16 * (gi % (NB + 1))
        for q, (kind, j) in enumerate(groups[gi]):
            for e in range(8):
                if kind == 'o':
                    row = (j // 4) * 128 + 64 * ((j % 4) // 2) + 8 * (j % 2) + e
                    a.I('s_add_u32 s%d, s%d, %d', sT, sWo, row * 1024)
                    t = a.I('buffer_load_dword v%d, v%d, s[%d:%d], s%d offen', b + 8 * q + e, vW1, S_W, S_W + 3, sT)
                else:
                    a.I('s_add_u32 s%d, s%d, %d', sT, sWd, (32 * j + e) * 1024)
                    t = a.I('buffer_load_dword v%d, v%d, s[%d:%d], s%d offen', b + 8 * q + e, vW2, S_W2, S_W2 + 3, sT)
        toks[gi] = t

    def consume(gi):
        b = BUF + 16 * (gi % (NB + 1))
        a.wait(toks[gi])
        for q, (kind, j) in enumerate(groups[gi]):
            for t in range(2):
                for p in range(4):
                    dst = HW + 8 * j + 4 * t + p if kind == 'd' else TM + 4 * t + p
                    a.I('v_perm_b32 v%d, v%d, v%d, s%d', dst, b + 8 * q + 2 * p + 1, b + 8 * q + 2 * p, sPermLo if t == 0 else sPermHi)
            if kind == 'o':
                for k in range(8):
                    a.I('v_accvgpr_write_b32 a%d, v%d', 8 * j + k, TM + k)
    for gi in range(NB):
        issue(gi)
    for gi in range(len(groups)):
        if gi + NB < len(groups):
            issue(gi + NB)
        consume(gi)
    srd(a, S_W, P_X, 2097152)
    srd(a, S_W2, P_OUT, 2097152)
    a.I('s_mov_b32 s%d, 0', sPar)
    bstamp(a, 5)
    a.label('T2_loop')
    a.I('s_lshr_b32 s%d, s%d, 1', sSegT, sTile)
    a.I('s_lshl_b32 s%d, s%d, 6', sT + 1, sSegT)
    a.I('s_add_u32 s%d, s%d, 0x%x', sT + 1, sT + 1, WS_FLAGS + FL_H)
    poll_flags(a, vF4, sT + 1, 14, None, TM, sleep=8)
    a.I('s_mul_i32 s%d, s%d, %d', sT + 1, sTile, 56 * 1024)
    a.I('s_mul_i32 s%d, s%d, %d', sT + 2, S_WAVE, 14 * 1024)
    a.I('s_add_u32 s%d, s%d, s%d', sT + 1, sT + 1, sT + 2)
    a.I('s_add_u32 s%d, s%d, 0x%x', sT + 1, sT + 1, WS_H)
    ht = []
    for j in range(14):
        if j and j % 4 == 0:
            a.I('s_add_u32 s%d, s%d, 4096', sT + 1, sT + 1)
        ht.append(a.I('buffer_load_dwordx4 v[%d:%d], v%d, %s, s%d offen offset:%d sc1', BUF + 4 * j, BUF + 4 * j + 3, vL16, WS, sT + 1, (j % 4) * 1024))
    a.I('s_lshl_b32 s%d, s%d, 14', sXO, sTile)
    a.I('buffer_load_dword v%d, v%d, s[%d:%d], s%d offen', XR, vXo, S_W, S_W + 3, sXO)
    for j in range(14):
        a.wait(ht[j])
        for t in range(2):
            a.I('v_mfma_f32_16x16x32_bf16 v[%d:%d], %s, %s, %s', FA + 4 * t, FA + 4 * t + 3, vr(HW + 8 * j + 4 * t, 4), vr(BUF + 4 * j, 4),
                '0' if j == 0 else vr(FA + 4 * t, 4))
    a.I('s_lshl_b32 s%d, s%d, 7', sT + 1, sSegT)
    a.I('s_lshl_b32 s%d, s%d, 5', sT + 2, S_WAVE)
    a.I('s_add_u32 s%d, s%d, s%d', sT + 1, sT + 1, sT + 2)
    a.I('s_add_u32 s%d, s%d, 0x%x', sT + 1, sT + 1, WS_FLAGS + FL_O)
    a.I('s_lshl_b32 s%d, s%d, 18', sOB, sSegT)
    a.I('s_lshl_b32 s%d, s%d, 16', sT + 2, S_WAVE)
    a.I('s_add_u32 s%d, s%d, s%d', sOB, sOB, sT + 2)
    a.I('s_and_b32 s%d, s%d, 1', sT + 2, sTile)
    a.I('s_lshl_b32 s%d, s%d, 12', sT + 2, sT + 2)
    a.I('s_add_u32 s%d, s%d, s%d', sOB, sOB, sT + 2)
    a.I('s_add_u32 s%d, s%d, 0x%x', sOB, sOB, WS_O)
    for t in range(2):
        for i in range(4):
            a.I('ds_write_b32 v%d, v%d offset:%d', vLw, FA + 4 * t + i, i * 1024 + 8 + 4 * t)
    poll_flags(a, vF4, sT + 1, 8, None, TM, sleep=4)
    ot = {}

    def oload(j):
        if j % 4 == 0:
            a.I('s_add_u32 s%d, s%d, %d', sT + 1, sOB, (j // 4) * 8192)
        r = BUF + 4 * (j % 24)
        ot[j] = a.I('buffer_load_dwordx4 v[%d:%d], v%d, %s, s%d offen offset:%d sc1', r, r + 3, vL16, WS, sT + 1, (j % 4) * 1024)
    for j in range(24):
        oload(j)
    for j in range(32):
        a.wait(ot[j])
        r = BUF + 4 * (j % 24)
        for t in range(2):
            a.I('v_mfma_f32_16x16x32_bf16 v[%d:%d], %s, %s, %s', SA + 4 * t, SA + 4 * t + 3, ar(8 * j + 4 * t, 4), vr(r, 4),
                '0' if j == 0 else vr(SA + 4 * t, 4))
        if j + 24 < 32:
            oload(j + 24)
    for t in range(2):
        for i in range(4):
            a.I('ds_write_b32 v%d, v%d offset:%d', vLw, SA + 4 * t + i, i * 1024 + 4 * t)
    a.I('s_waitcnt lgkmcnt(0)')
    a.I('s_barrier')
    R = BUF
    for w in range(4):
        a.I('ds_read_b128 v[%d:%d], v%d offset:%d', R + 4 * w, R + 4 * w + 3, vLr, w * 4096)
    a.I('v_xor_b32 v%d, 16384, v%d', vLw, vLw)
    a.I('v_xor_b32 v%d, 16384, v%d', vLr, vLr)
    a.I('s_waitcnt lgkmcnt(0)')
    for k in range(4):
        a.I('v_add_f32 v%d, v%d, v%d', R + k, R + k, R + 4 + k)
        a.I('v_add_f32 v%d, v%d, v%d', R + 8 + k, R + 8 + k, R + 12 + k)
    for k in range(4):
        a.I('v_add_f32 v%d, v%d, v%d', R + k, R + k, R + 8 + k)

    def unpack(dst, src):
        a.I('v_and_b32 v%d, 0xffff0000, v%d', dst + 1, src)
        a.I('v_lshlrev_b32 v%d, 16, v%d', dst, src)
    a.I('v_cvt_pk_bf16_f32 v%d, v%d, v%d', R, R, R + 1)
    a.I('v_cvt_pk_bf16_f32 v%d, v%d, v%d', R + 2, R + 2, R + 3)
    unpack(R, R)
    unpack(R + 2, R + 2)
    for k in range(2):
        a.I('v_mul_f32 v%d, s%d, v%d', R + 4 + k, sL2e, R + 2 + k)
    for k in range(2):
        a.I('v_exp_f32 v%d, v%d', R + 4 + k, R + 4 + k)
    for k in range(2):
        a.I('v_add_f32 v%d, 1.0, v%d', R + 4 + k, R + 4 + k)
    for k in range(2):
        a.I('v_rcp_f32 v%d, v%d', R + 4 + k, R + 4 + k)
    for k in range(2):
        a.I('v_mul_f32 v%d, v%d, v%d', R + 2 + k, R + 2 + k, R + 4 + k)
    a.I('v_cvt_pk_bf16_f32 v%d, v%d, v%d', R + 2, R + 2, R + 3)
    unpack(R + 2, R + 2)
    for k in range(2):
        a.I('v_mul_f32 v%d, v%d, v%d', R + k, R + k, R + 2 + k)
    a.I('v_cvt_pk_bf16_f32 v%d, v%d, v%d', R, R, R + 1)
    unpack(R, R)
    unpack(R + 2, XR)
    for k in range(2):
        a.I('v_add_f32 v%d, v%d, v%d', R + k, R + k, R + 2 + k)
    a.I('v_cvt_pk_bf16_f32 v%d, v%d, v%d', TM + 1, R, R + 1)
    a.I('buffer_store_dword v%d, v%d, s[%d:%d], s%d offen', TM + 1, vXo, S_W2, S_W2 + 3, sXO)
    a.I('s_add_u32 s%d, s%d, 8', sTile, sTile)
    a.I('s_cmp_lt_u32 s%d, 128', sTile)
    a.I('s_cbranch_scc1 T2_loop')
    bstamp(a, 6)
    a.I('s_endpgm')
```

```python
KNAME = 'recurrent_scan__memory_aug_recurrent_mem_tr__glu_gated_bilinear__prompt'

WS_XN = 0x0000000
WS_K = 0x1000000
WS_Q = 0x2000000
WS_V = 0x3000000
WS_O = 0x4000000
WS_H = 0x5000000
WS_KM = 0x6000000
WS_VM = 0x6800000
WS_MEMX = 0x7000000
WS_INBOX = 0x7100000
WS_FLAGS = 0x7200000
WS_DBG = 0x7300000
WS_SIZE = 0x10000000

FL_KV = 0x0000
FL_KM = 0x8000
FL_O = 0xC000
FL_H = 0xF000
FL_XN = 0x10000
FL_SIZE = 0x14000
NZERO = 4

S_WS = 8
S_DBG = 12
S_W = 16
S_W2 = 20
P_X, P_MEM0, P_WQ, P_WK, P_WV, P_WO, P_SEG, P_BX = 32, 34, 36, 38, 40, 42, 44, 46
P_WG, P_WU, P_WD, P_OUT, P_DBG, P_WS = 48, 50, 52, 54, 56, 58
S_XCC = 60
S_WAVE = 61
S_ROLE = 62

D_TICK_REC = 0
D_CNT_X0 = 1
D_CNT_OTH = 2
D_INIT = 3
D_ERR = 4
D_FINIT = 5
D_WDONE = 34
D_TICK_A = 32
D_TICK_B = 33
```

```python
import struct
from asmlib import *
from common import *

LKX, LX1, LX2, LMISC, LW = 0, 8192, 12288, 14336, 16384
LM = 8192
LWSTRIDE = 18 * 2048

vM0, vIdx, vBias, vL16, vLW, vInSt, vM1, vMxSt = 0, 1, 2, 3, 4, 5, 6, 7
vVld, vKxSrc, vX1w, vX1rq, vX1rk, vX2w, vM2, vM3 = 8, 9, 10, 11, 12, 13, 14, 15
vWarm, vDummy, vSaveV, vT0 = 16, 17, 18, 20
MEM, ACC, VT, STG, WV = 24, 56, 80, 96, 144

sStep, sTag, sMxRd = 64, 65, 66
sRing = 88
sMxWr, sMxRst = 88, 90
sW10, sStampAddr = 68, 69
sRetry = 67
sIn = 70
sInLd, sInLd2 = 72, 73
sMxW = 74
sKx, sV, sKm, sVm, sVmPrev = 75, 76, 77, 78, 79
sHalf = 80
sC = 82
sSpin = 83
sT = 84
sM0a, sM0b = 92, 93
sFl = 94
sPermLo, sPermHi = 95, 96
sWarm = 97
sMxRd2 = 98
sKvf, sKvfMax = 73, 77
sPiece = 99
sC2, sNC = 30, 82
sSel = 24


def f32bits(x):
    return struct.unpack('<I', struct.pack('<f', x))[0]


def mem(k):
    return MEM + 4 * k


def acc(i):
    return ACC + 4 * i


def slot(j):
    return STG + 8 * j


WO_ORDER = [('o', b, t, ks) for b in range(2) for t in range(4) for ks in range(2)]


def placement():
    P = {}
    lds = [('q', 0, 0), ('q', 1, 0), ('k', 0, 0), ('k', 1, 0), ('v', 0, 0), ('v', 1, 0)]
    lds += WO_ORDER[0:6] + WO_ORDER[10:16]
    for i, k in enumerate(lds):
        P[k] = ('l', i)
    rest = []
    for X in 'qkv':
        for kp in range(8):
            for t in range(2):
                if (X, t, kp) not in P:
                    rest.append((X, t, kp))
    rest += WO_ORDER[6:10]
    assert len(rest) == 46
    for n, k in enumerate(rest):
        P[k] = ('v', WV + 8 * n) if n < 14 else ('a', 8 * (n - 14))
    return P


PL = placement()


def breg(key):
    kind, r = PL[key]
    if kind == 'v':
        return vr(r, 8)
    if kind == 'a':
        return ar(r, 8)
    return vr(slot(r % 6), 8)


def d0_instr(m):
    return 32 * (m // 4) + 8 * (m % 2) + 2 * ((m % 4) // 2)


def srd(a, s, ptr, size):
    a.I('s_mov_b32 s%d, s%d', s, ptr)
    a.I('s_and_b32 s%d, s%d, 0xffff', s + 1, ptr + 1)
    a.I('s_mov_b32 s%d, 0x%x', s + 2, size)
    a.I('s_mov_b32 s%d, 0x20000', s + 3)


def stamp(a, cfg, idx):
    if not cfg.get('stamps'):
        return
    if cfg['stamps'] >= 2 and idx != 0:
        return
    if cfg['stamps'] == 4:
        return
    a.I('s_memtime s[%d:%d]', 32 + 2 * idx, 33 + 2 * idx)


def gen_rec(a, cfg):
    if cfg.get('stamps') == 3:
        orig_emit = a.emit
        cnt = dict(n=0, on=False)

        def emit(line):
            if line.startswith('R_goA:'):
                cnt['on'] = True
            if cnt['on'] and (line.startswith('v_smfmac') or line.startswith('v_mfma')):
                k = cnt['n'] - cfg['st0']
                if cnt['n'] >= 12 and k >= 0 and k % cfg['stp'] == 0 and k // cfg['stp'] < 9:
                    orig_emit('s_memtime s[%d:%d]' % (34 + 2 * (k // cfg['stp']), 35 + 2 * (k // cfg['stp'])))
                cnt['n'] += 1
            return orig_emit(line)
        a.emit = emit
    fast = cfg.get('fast', True)
    stf = '' if fast else ' sc1'
    nsteps = cfg.get('nsteps', 64)
    T0, T1, T2, T3 = vT0, vT0 + 1, vT0 + 2, vT0 + 3
    WS = 's[%d:%d]' % (S_WS, S_WS + 3)
    vLane = VT + 15
    vN, vG = T0, T1
    a.c('================ recurrence role: s%d = head ================' % S_ROLE)
    a.I('v_and_b32 v%d, 63, v0', vLane)
    a.I('v_lshlrev_b32 v%d, 4, v%d', vL16, vLane)
    a.I('v_and_b32 v%d, 15, v%d', vN, vLane)
    a.I('v_lshrrev_b32 v%d, 4, v%d', vG, vLane)
    a.I('s_mov_b32 s%d, 0xcccccccc', sHalf)
    a.I('s_mov_b32 s%d, 0xcccccccc', sHalf + 1)
    a.I('v_mov_b32 v%d, 0x4444', vIdx)
    a.I('v_mov_b32 v%d, 0xeeee', T2)
    a.I('v_cndmask_b32 v%d, v%d, v%d, s[%d:%d]', vIdx, vIdx, T2, sHalf, sHalf + 1)
    a.I('s_mov_b32 s%d, 0', sT)
    a.I('s_mov_b32 s%d, 0x33333333', sT + 1)
    a.I('v_mov_b32 v%d, 0', vBias)
    a.I('v_mov_b32 v%d, 0x%x', T2, f32bits(3.0e38))
    a.I('v_cndmask_b32 v%d, v%d, v%d, s[%d:%d]', vBias, vBias, T2, sT, sT + 1)
    a.I('s_mov_b32 s%d, 0x%x', sC2, f32bits(128 ** -0.5 * 1.4426950408889634))
    a.I('s_mov_b32 s%d, 0x%x', sC2 + 1, f32bits(128 ** -0.5 * 1.4426950408889634))
    a.I('s_mov_b32 s%d, 0x%x', sNC, f32bits(-128 ** -0.5 * 1.4426950408889634))
    a.I('s_mov_b32 s%d, 0x05040100', sPermLo)
    a.I('s_mov_b32 s%d, 0x07060302', sPermHi)
    for k, m in enumerate((0x000f000f, 0x00f000f0, 0xaaaaaaaa)):
        a.I('s_mov_b32 s%d, 0x%x', sSel + 2 * k, m)
        a.I('s_mov_b32 s%d, 0x%x', sSel + 2 * k + 1, m)
    a.I('s_mul_i32 s%d, s%d, %d', sT, S_WAVE, LWSTRIDE)
    a.I('s_add_u32 s%d, s%d, %d', sT, sT, LW)
    a.I('v_add_u32 v%d, s%d, v%d', vLW, sT, vL16)
    a.I('s_lshl_b32 s%d, s%d, 10', sT, S_WAVE)
    a.I('s_add_u32 s%d, s%d, 0x%x', sMxW, sT, WS_MEMX)
    a.I('s_add_u32 s%d, s%d, %d', sT, sT, LM)
    a.I('v_add_u32 v%d, s%d, v%d', vM0, sT, vL16)
    a.I('v_xor_b32 v%d, 1024, v%d', vM1, vM0)
    a.I('v_xor_b32 v%d, 2048, v%d', vM2, vM0)
    a.I('v_xor_b32 v%d, 3072, v%d', vM3, vM0)
    a.I('v_lshlrev_b32 v%d, 13, v%d', vInSt, vG)
    a.I('v_lshrrev_b32 v%d, 2, v%d', T2, vN)
    a.I('v_lshl_add_u32 v%d, v%d, 11, v%d', vInSt, T2, vInSt)
    a.I('v_and_b32 v%d, 3, v%d', T2, vN)
    a.I('v_lshl_add_u32 v%d, v%d, 4, v%d', vInSt, T2, vInSt)
    a.I('s_lshl_b32 s%d, s%d, 15', sT, S_WAVE)
    a.I('s_lshl_b32 s%d, s%d, 6', sT + 1, S_ROLE)
    a.I('s_add_u32 s%d, s%d, s%d', sT, sT, sT + 1)
    a.I('s_add_u32 s%d, s%d, 0x%x', sIn, sT, WS_INBOX)
    a.I('s_add_u32 s%d, s%d, 0x%x', sIn + 1, sT, WS_INBOX + 131072)
    sPi = sT + 4
    a.I('s_lshl_b32 s%d, s%d, 1', sPi, S_ROLE)
    a.I('s_and_b32 s%d, s%d, 1', sT, S_WAVE)
    a.I('s_add_u32 s%d, s%d, s%d', sPi, sPi, sT)
    a.I('s_lshr_b32 s%d, s%d, 1', sT, S_WAVE)
    a.I('s_lshl_b32 s%d, s%d, 6', sT, sT)
    a.I('s_add_u32 s%d, s%d, s%d', sPi, sPi, sT)
    a.I('s_mov_b32 s%d, s%d', sPiece, sPi)
    a.I('s_lshl_b32 s%d, s%d, 11', sT, sPi)
    a.I('s_add_u32 s%d, s%d, 0x%x', sInLd, sT, WS_INBOX)
    a.I('s_lshr_b32 s%d, s%d, 4', sT, sPi)
    a.I('s_lshl_b32 s%d, s%d, 10', sT, sT)
    a.I('s_bfe_u32 s%d, s%d, 0x20002', sT + 1, sPi)
    a.I('s_lshl_b32 s%d, s%d, 6', sT + 1, sT + 1)
    a.I('s_add_u32 s%d, s%d, s%d', sT, sT, sT + 1)
    a.I('s_and_b32 s%d, s%d, 3', sT + 1, sPi)
    a.I('s_lshl_b32 s%d, s%d, 8', sT + 1, sT + 1)
    a.I('s_add_u32 s%d, s%d, s%d', sT, sT, sT + 1)
    a.I('v_and_b32 v%d, 1, v%d', T2, vG)
    a.I('v_lshlrev_b32 v%d, 4, v%d', vMxSt, T2)
    a.I('v_bfe_u32 v%d, v%d, 1, 1', T2, vN)
    a.I('v_lshl_add_u32 v%d, v%d, 5, v%d', vMxSt, T2, vMxSt)
    a.I('v_and_b32 v%d, 1, v%d', T2, vN)
    a.I('v_lshl_add_u32 v%d, v%d, 3, v%d', vMxSt, T2, vMxSt)
    a.I('v_add_u32 v%d, s%d, v%d', vMxSt, sT, vMxSt)
    a.I('v_and_b32 v%d, 1, v%d', T2, vN)
    a.I('v_lshlrev_b32 v%d, 11, v%d', vVld, T2)
    a.I('v_lshrrev_b32 v%d, 1, v%d', T2, vG)
    a.I('v_lshl_add_u32 v%d, v%d, 8, v%d', vVld, T2, vVld)
    a.I('v_lshrrev_b32 v%d, 1, v%d', T2, vN)
    a.I('v_lshl_add_u32 v%d, v%d, 4, v%d', vVld, T2, vVld)
    a.I('v_and_b32 v%d, 1, v%d', T2, vG)
    a.I('v_lshlrev_b32 v%d, 2, v%d', T2, T2)
    a.I('v_sub_u32 v%d, v%d, v%d', vVld, vVld, T2)
    a.I('s_lshr_b32 s%d, s%d, 1', sT, S_WAVE)
    a.I('s_lshl_b32 s%d, s%d, 12', sT, sT)
    a.I('s_and_b32 s%d, s%d, 1', sT + 1, S_WAVE)
    a.I('s_lshl_b32 s%d, s%d, 7', sT + 1, sT + 1)
    a.I('s_add_u32 s%d, s%d, s%d', sT, sT, sT + 1)
    a.I('s_add_u32 s%d, s%d, 4', sT, sT)
    a.I('v_add_u32 v%d, s%d, v%d', vVld, sT, vVld)
    a.I('v_and_b32 v%d, 1, v%d', T2, vG)
    a.I('v_lshlrev_b32 v%d, 10, v%d', vKxSrc, T2)
    a.I('v_lshrrev_b32 v%d, 1, v%d', T2, vG)
    a.I('v_lshl_add_u32 v%d, v%d, 8, v%d', vKxSrc, T2, vKxSrc)
    a.I('v_lshl_add_u32 v%d, v%d, 4, v%d', vKxSrc, vN, vKxSrc)
    a.I('s_lshl_b32 s%d, s%d, 11', sM0a, S_WAVE)
    a.I('v_add_u32 v%d, s%d, v%d', vKxSrc, sM0a, vKxSrc)
    a.I('s_add_u32 s%d, s%d, %d', sM0a, sM0a, LKX)
    a.I('s_add_u32 s%d, s%d, %d', sM0b, sM0a, 1024 - 512)
    a.I('v_lshrrev_b32 v%d, 2, v%d', T2, vN)
    a.I('v_lshlrev_b32 v%d, 8, v%d', vX1w, T2)
    a.I('v_lshl_add_u32 v%d, v%d, 5, v%d', vX1w, vG, vX1w)
    a.I('v_and_b32 v%d, 3, v%d', T2, vN)
    a.I('v_lshl_add_u32 v%d, v%d, 2, v%d', vX1w, T2, vX1w)
    a.I('s_lshl_b32 s%d, s%d, 10', sT, S_WAVE)
    a.I('s_add_u32 s%d, s%d, %d', sT, sT, LX1)
    a.I('v_add_u32 v%d, s%d, v%d', vX1w, sT, vX1w)
    a.I('v_lshrrev_b32 v%d, 2, v%d', T2, vN)
    a.I('v_lshlrev_b32 v%d, 5, v%d', T2, T2)
    a.I('v_and_b32 v%d, 1, v%d', T3, vN)
    a.I('v_lshl_add_u32 v%d, v%d, 4, v%d', T2, T3, T2)
    a.I('v_lshl_add_u32 v%d, v%d, 8, v%d', vX1rq, vG, T2)
    a.I('v_add_u32 v%d, %d, v%d', vX1rq, LX1, vX1rq)
    a.I('v_and_b32 v%d, 7, v%d', T2, vN)
    a.I('v_lshlrev_b32 v%d, 4, v%d', T2, T2)
    a.I('v_lshl_add_u32 v%d, v%d, 8, v%d', vX1rk, vG, T2)
    a.I('v_add_u32 v%d, %d, v%d', vX1rk, LX1 + 128, vX1rk)
    a.I('v_lshrrev_b32 v%d, 3, v%d', T2, vN)
    a.I('v_lshlrev_b32 v%d, 8, v%d', vX2w, T2)
    a.I('v_lshl_add_u32 v%d, v%d, 6, v%d', vX2w, vG, vX2w)
    a.I('v_bfe_u32 v%d, v%d, 2, 1', T2, vN)
    a.I('v_lshl_add_u32 v%d, v%d, 5, v%d', vX2w, T2, vX2w)
    a.I('v_and_b32 v%d, 3, v%d', T2, vN)
    a.I('v_lshl_add_u32 v%d, v%d, 2, v%d', vX2w, T2, vX2w)
    a.I('s_lshl_b32 s%d, s%d, 9', sT, S_WAVE)
    a.I('s_add_u32 s%d, s%d, %d', sT, sT, LX2)
    a.I('v_add_u32 v%d, s%d, v%d', vX2w, sT, vX2w)
    if cfg.get('warm128'):
        a.I('v_lshrrev_b32 v%d, 1, v%d', vWarm, vLane)
        a.I('v_lshlrev_b32 v%d, 7, v%d', vWarm, vWarm)
    else:
        a.I('v_lshlrev_b32 v%d, 6, v%d', vWarm, vLane)
    a.I('s_lshl_b32 s%d, s%d, 13', sT, S_ROLE)
    a.I('s_and_b32 s%d, s%d, 1', sT + 1, S_WAVE)
    a.I('s_lshl_b32 s%d, s%d, 12', sT + 1, sT + 1)
    a.I('s_add_u32 s%d, s%d, s%d', sT, sT, sT + 1)
    a.I('s_lshr_b32 s%d, s%d, 1', sT + 1, S_WAVE)
    a.I('s_mul_i32 s%d, s%d, 0x%x', sT + 1, sT + 1, WS_V - WS_K)
    a.I('s_add_u32 s%d, s%d, s%d', sT, sT, sT + 1)
    a.I('v_add_u32 v%d, s%d, v%d', vWarm, sT, vWarm)
    a.I('s_lshl_b32 s%d, s%d, 13', sT, S_ROLE)
    a.I('s_add_u32 s%d, s%d, 0x%x', sKx, sT, WS_K)
    a.I('s_add_u32 s%d, s%d, 0x%x', sV, sT, WS_V - 4)
    a.I('s_lshl_b32 s%d, s%d, 12', sT, S_ROLE)
    a.I('s_lshl_b32 s%d, s%d, 10', sT + 1, S_WAVE)
    a.I('s_add_u32 s%d, s%d, s%d', sT, sT, sT + 1)
    a.I('s_add_u32 s%d, s%d, 0x%x', sVm, sT, WS_VM)
    a.I('s_mov_b32 s%d, s%d', sVmPrev, sVm)
    a.I('s_lshl_b32 s%d, s%d, 9', sT, S_ROLE)
    a.I('s_lshl_b32 s%d, s%d, 7', sT + 1, S_WAVE)
    a.I('s_add_u32 s%d, s%d, s%d', sT, sT, sT + 1)
    a.I('s_add_u32 s%d, s%d, 0x%x', sFl, sT, WS_FLAGS + FL_KM)
    a.I('s_mov_b32 s%d, 0x%x', sWarm, WS_K + 2 * 262144)

    a.c('init exchange buffers')
    for k in range(4):
        a.I('v_mov_b32 v%d, -1', ACC + k)
    for k in range(2):
        a.I('buffer_store_dwordx4 v[%d:%d], v%d, %s, s%d offen offset:%d sc1', ACC, ACC + 3, vL16, WS, sInLd, 1024 * k)
    a.I('v_lshlrev_b32 v%d, 2, v%d', T2, vLane)
    a.I('s_lshl_b32 s%d, s%d, 10', sT, S_ROLE)
    a.I('s_lshl_b32 s%d, s%d, 8', sT + 1, S_WAVE)
    a.I('s_add_u32 s%d, s%d, s%d', sT, sT, sT + 1)
    a.I('s_add_u32 s%d, s%d, 0x%x', sT, sT, WS_MEMX)
    a.I('buffer_store_dword v%d, v%d, %s, s%d offen sc1', ACC, T2, WS, sT)

    a.c('weights')
    vRow, vWo = VT + 13, VT + 14
    a.I('v_lshrrev_b32 v%d, 1, v%d', vRow, vG)
    a.I('v_lshlrev_b32 v%d, 4, v%d', vRow, vRow)
    a.I('v_and_b32 v%d, 1, v%d', vWo, vG)
    a.I('v_lshl_add_u32 v%d, v%d, 2, v%d', vRow, vWo, vRow)
    a.I('v_lshlrev_b32 v%d, 10, v%d', vWo, vRow)
    a.I('v_lshl_add_u32 v%d, v%d, 3, v%d', vWo, vN, vWo)
    a.I('v_lshlrev_b32 v%d, 13, v%d', vRow, vRow)
    a.I('v_lshl_add_u32 v%d, v%d, 2, v%d', vRow, vN, vRow)
    sRow = sT + 2
    sOb = sT + 6
    a.I('s_lshl_b32 s%d, s%d, 8', sT, S_ROLE)
    a.I('s_lshl_b32 s%d, s%d, 6', sT + 1, S_WAVE)
    a.I('s_add_u32 s%d, s%d, s%d', sT + 1, sT, sT + 1)
    for kp in range(4):
        a.I('s_xor_b32 s%d, s%d, %d', sT, S_WAVE, kp)
        a.I('s_lshl_b32 s%d, s%d, 19', sT, sT)
        a.I('s_add_u32 s%d, s%d, s%d', sRow + kp, sT, sT + 1)
    a.I('s_lshl_b32 s%d, s%d, 17', sOb, S_ROLE)
    a.I('s_lshl_b32 s%d, s%d, 7', sT, S_WAVE)
    a.I('s_add_u32 s%d, s%d, s%d', sOb, sOb, sT)
    groups = []
    for X, ptr in (('q', P_WQ), ('k', P_WK), ('v', P_WV)):
        for kp in range(8):
            groups.append((X, ptr, kp, None, None))
    for b in range(2):
        for ks in range(2):
            for mh in range(2):
                groups.append(('o', P_WO, ks, b, mh))
    NBUF = cfg.get('nbuf', 4)
    bufs = [96, 112, 128, 64][:NBUF]
    outb = MEM
    toks = {}
    state = dict(ptr=None, srd=S_W2)

    def issue(gi):
        X, ptr, ks, b_, mh = groups[gi]
        if state['ptr'] != ptr:
            state['srd'] = S_W if state['srd'] == S_W2 else S_W2
            srd(a, state['srd'], ptr, 4194304)
            state['ptr'] = ptr
        sr_ = state['srd']
        b = bufs[gi % NBUF]
        if X == 'o':
            for mm in range(4):
                m = 4 * mh + mm
                for j in range(2):
                    row = 64 * ks + d0_instr(m) + j
                    a.I('s_add_u32 s%d, s%d, %d', sT, sOb, row * 1024 + 512 * b_)
                    r = b + 4 * mm + 2 * j
                    t = a.I('buffer_load_dwordx2 v[%d:%d], v%d, s[%d:%d], s%d offen', r, r + 1, vWo, sr_, sr_ + 3, sT)
        else:
            for m in range(8):
                for j in range(2):
                    row = 64 * (ks & 4) + d0_instr(m) + j
                    a.I('s_add_u32 s%d, s%d, %d', sT, sRow + (ks & 3), row * 8192)
                    t = a.I('buffer_load_dword v%d, v%d, s[%d:%d], s%d offen', b + 2 * m + j, vRow, sr_, sr_ + 3, sT)
        toks[gi] = t

    def put(key, m0, nm, srcs):
        kind, r = PL[key]
        ob = outb + (put.n % 4) * 8
        put.n += 1
        for k, (rh, rl, sel) in enumerate(srcs):
            dst = r + m0 + k if kind == 'v' else ob + k
            a.I('v_perm_b32 v%d, v%d, v%d, s%d', dst, rh, rl, sel)
        if kind == 'a':
            for k in range(nm):
                a.I('v_accvgpr_write_b32 a%d, v%d', r + m0 + k, ob + k)
        elif kind == 'l':
            for q in range(nm // 4):
                a.I('ds_write_b128 v%d, v[%d:%d] offset:%d', vLW, ob + 4 * q, ob + 4 * q + 3, r * 2048 + ((m0 // 4) + q) * 1024)
    put.n = 0

    def consume(gi):
        X, ptr, ks, b_, mh = groups[gi]
        b = bufs[gi % NBUF]
        a.wait(toks[gi])
        a.I('s_waitcnt lgkmcnt(0)')
        if X == 'o':
            for t in range(4):
                sel = sPermLo if t % 2 == 0 else sPermHi
                put(('o', b_, t, ks), 4 * mh, 4, [(b + 4 * mm + 2 + t // 2, b + 4 * mm + t // 2, sel) for mm in range(4)])
        else:
            for t in range(2):
                sel = sPermLo if t == 0 else sPermHi
                put((X, t, ks), 0, 8, [(b + 2 * m + 1, b + 2 * m, sel) for m in range(8)])

    for gi in range(NBUF):
        issue(gi)
    for gi in range(len(groups)):
        consume(gi)
        if gi == 0:
            a.I('s_barrier')
            lab = a.newlabel('R_sig')
            a.I('s_cmp_lg_u32 s%d, 0', S_WAVE)
            a.I('s_cbranch_scc1 %s', lab)
            a.I('s_mov_b64 exec, 1')
            a.I('v_mov_b32 v%d, 1', VT)
            a.I('v_mov_b32 v%d, %d', VT + 1, D_INIT * 4)
            a.I('buffer_atomic_add v%d, v%d, s[%d:%d], 0 offen', VT, VT + 1, S_DBG, S_DBG + 3)
            a.I('s_mov_b64 exec, -1')
            a.label(lab)
            a.vm_n -= 1
        if gi + NBUF < len(groups):
            issue(gi + NBUF)

    if cfg.get('stamps'):
        a.I('s_memrealtime s[100:101]')
        a.I('s_waitcnt lgkmcnt(0)')
        a.I('s_mov_b32 s3, s100')
    a.c('wait init done')
    a.I('s_mov_b32 s%d, 0', sSpin)
    a.I('v_mov_b32 v%d, %d', T2, D_INIT * 4)
    lw = a.newlabel('R_winit')
    a.label(lw)
    a.I('buffer_load_dword v%d, v%d, s[%d:%d], 0 offen sc1', T3, T2, S_DBG, S_DBG + 3)
    a.I('buffer_load_dword v%d, v%d, s[%d:%d], 0 offen offset:%d sc1', ACC + 2, T2, S_DBG, S_DBG + 3, (D_FINIT - D_INIT) * 4)
    a.I('s_add_u32 s%d, s%d, 1', sSpin, sSpin)
    a.I('s_cmp_gt_u32 s%d, 0x100000', sSpin)
    a.I('s_cbranch_scc1 R_fail')
    a.I('s_waitcnt vmcnt(0)')
    a.I('v_readfirstlane_b32 s%d, v%d', sT, T3)
    a.I('s_cmp_lt_u32 s%d, 32', sT)
    a.I('s_cbranch_scc1 %s', lw)
    if cfg.get('both_modes'):
        a.I('v_readfirstlane_b32 s%d, v%d', sT, ACC + 2)
        a.I('s_cmp_lt_u32 s%d, 1', sT)
        a.I('s_cbranch_scc1 %s', lw)

    def rest(PFX, stf):
        a.c('mem0 slice (every wave stores the same bytes)')
        srd(a, S_W, P_MEM0, 8192)
        a.I('v_and_b32 v%d, 1, v%d', T2, vG)
        a.I('v_lshlrev_b32 v%d, 10, v%d', T2, T2)
        a.I('v_and_b32 v%d, 3, v%d', T3, vN)
        a.I('v_lshl_add_u32 v%d, v%d, 3, v%d', T2, T3, T2)
        a.I('s_and_b32 s%d, s%d, 3', sT, sPiece)
        a.I('s_lshl_b32 s%d, s%d, 5', sT, sT)
        a.I('v_add_u32 v%d, s%d, v%d', T2, sT, T2)
        a.I('s_bfe_u32 s%d, s%d, 0x20002', sT, sPiece)
        a.I('s_lshl_b32 s%d, s%d, 11', sT, sT)
        a.I('s_lshr_b32 s%d, s%d, 4', sT + 1, sPiece)
        a.I('s_lshl_b32 s%d, s%d, 7', sT + 1, sT + 1)
        a.I('s_add_u32 s%d, s%d, s%d', sT, sT, sT + 1)
        a.I('buffer_load_dwordx2 v[%d:%d], v%d, s[%d:%d], s%d offen', ACC, ACC + 1, T2, S_W, S_W + 3, sT)
        a.I('s_mov_b32 s%d, 0', sStep)
        a.I('s_mov_b32 s%d, 0', sTag)
        a.I('s_mov_b32 s%d, 0', sRetry)
        a.I('s_mov_b32 s%d, s%d', sMxRd, sMxW)
        for k in range(4):
            a.I('s_mov_b32 s%d, 0x%x', sRing + k, WS_MEMX + k * 8192)
        a.I('s_lshl_b32 s%d, s%d, 10', sW10, S_WAVE)
        a.I('s_mov_b32 s%d, 0x%x', sT, WS_MEMX)
        a.I('s_waitcnt vmcnt(0)')
        a.I('v_min_u32 v%d, -2, v%d', ACC, ACC)
        a.I('buffer_store_dwordx2 v[%d:%d], v%d, %s, s%d offen%s', ACC, ACC + 1, vMxSt, WS, sT, stf)

        def load_kx():
            a.I('s_mov_b32 m0, s%d', sM0a)
            a.I('buffer_load_dwordx4 v%d, %s, s%d offen sc1 lds', vKxSrc, WS, sKx)
            a.I('s_mov_b32 m0, s%d', sM0b)
            a.I('buffer_load_dwordx4 v%d, %s, s%d offen offset:512 sc1 lds', vKxSrc, WS, sKx)

        def load_v():
            for t in range(2):
                for hf in range(2):
                    a.I('buffer_load_dwordx4 v[%d:%d], v%d, %s, s%d offen offset:%d sc1', VT + 8 * t + 4 * hf, VT + 8 * t + 4 * hf + 3,
                        vVld, WS, sV, 1024 * t + 512 * hf)

        def lds_half(j, hf):
            sl = j % 6
            return a.I('ds_read_b128 v[%d:%d], v%d offset:%d', slot(sl) + 4 * hf, slot(sl) + 4 * hf + 3, vLW, j * 2048 + 1024 * hf)

        def lds_set(j):
            lds_half(j, 0)
            return lds_half(j, 1)

        def zero(r, n):
            for k in range(0, n, 2):
                a.I('v_mov_b64 v[%d:%d], 0', r + k, r + k + 1)

        def spin():
            a.I('s_add_u32 s%d, s%d, 1', sSpin, sSpin)
            a.I('s_cmp_gt_u32 s%d, 0x100000', sSpin)
            a.I('s_cbranch_scc1 ' + PFX + 'fail')

        def kv_load():
            a.I('buffer_load_dword v%d, v%d, %s, s%d offen sc1', vDummy, vL16, WS, sKvf)

        if cfg.get('kvflags'):
            a.I('s_mov_b32 s%d, 0', sSpin)
            a.I('s_lshr_b32 s%d, s%d, 1', sKvf, S_ROLE)
            a.I('s_lshl_b32 s%d, s%d, 11', sKvf, sKvf)
            a.I('s_add_u32 s%d, s%d, 0x%x', sKvf, sKvf, WS_FLAGS + FL_KV)
            a.I('s_add_u32 s%d, s%d, %d', sKvfMax, sKvf, 63 * 32)
            a.label(PFX + 'kvfirst')
            kv_load()
            spin()
            a.I('s_waitcnt vmcnt(0)')
            a.I('v_cmp_eq_u32 vcc, 0, v%d', vDummy)
            a.I('s_nop 1')
            a.I('s_and_b32 s%d, vcc_lo, 15', sT)
            a.I('s_cbranch_scc1 ' + PFX + 'kvfirst')
            a.I('s_add_u32 s%d, s%d, 64', sKvf, sKvf)
            kv_load()
        a.I('s_waitcnt lgkmcnt(0)')
        a.I('s_barrier')
        load_kx()
        a.I('s_add_u32 s%d, s%d, 262144', sKx, sKx)
        zero(T0, 4)
        C0, C1 = vSaveV, vSaveV + 1
        zero(ACC, 24)
        for j in range(6):
            lds_set(j)
        a.I('s_mov_b32 s%d, 0', sSpin)
        a.I('s_waitcnt lgkmcnt(0)')

        accidx = {('q', 0): 0, ('q', 1): 1, ('k', 0): 2, ('k', 1): 3, ('v', 0): 4, ('v', 1): 5}

        def M(X, t, kp, src=None):
            d = acc(accidx[(X, t)])
            r = mem(kp) if src is None else src
            a.I('v_smfmac_f32_16x16x64_bf16 v[%d:%d], v[%d:%d], %s, v%d', d, d + 3, r, r + 3, breg((X, t, kp)), vIdx)

        def ldv(i):
            if cfg.get('no_kv'):
                return None
            t, hf = i // 2, i % 2
            return a.I('buffer_load_dwordx4 v[%d:%d], v%d, %s, s%d offen offset:%d sc1', VT + 8 * t + 4 * hf, VT + 8 * t + 4 * hf + 3,
                       vVld, WS, sV, 1024 * t + 512 * hf)

        def poll(r0, r1):
            a.I('buffer_load_dwordx4 v[%d:%d], v%d, %s, s%d offen sc1', r0, r0 + 3, vL16, WS, sMxRd)
            a.I('buffer_load_dwordx4 v[%d:%d], v%d, %s, s%d offen sc1', r1, r1 + 3, vL16, WS, sMxRd2)

        kx, mt = {}, {}

        def rkx(f):
            kx[f] = a.I('ds_read_b128 v[%d:%d], v%d offset:%d', STG + 4 * f, STG + 4 * f + 3, vL16, LKX + f * 1024)

        def rm(k):
            mt[k] = a.I('ds_read_b128 v[%d:%d], v%d offset:%d', mem(k), mem(k) + 3, (vM0, vM1, vM2, vM3)[k & 3], 4096 * (k // 4))

        vSaveK = vSaveV

        def savepub():
            a.I('v_mov_b32 v%d, v%d', T0, VT)
            a.I('v_mov_b32 v%d, v%d', T1, vSaveK)
            a.I('v_mov_b32 v%d, v%d', T2, vSaveK + 1)
            a.I('v_mov_b32 v%d, v%d', T3, VT + 8)

        if cfg.get('stamps'):
            a.I('s_memrealtime s[6:7]')
            a.I('s_waitcnt lgkmcnt(0)')
        a.I('s_add_u32 s%d, s%d, 4096', sMxRd2, sMxRd)
        a.c('================ step loop ================')
        a.label(PFX + 'loop')
        stamp(a, cfg, 0)
        PA, PB = (mem(0), mem(4)), (VT, VT + 4)
        poll(*PA)
        if cfg.get('stamps') and cfg['stamps'] != 4:
            a.I('s_waitcnt lgkmcnt(0)')
            a.I('v_mov_b32 v%d, 0', VT + 12)
            a.I('v_writelane_b32 v%d, s%d, 0', VT + 12, 52)
            for k in range(1, 10):
                a.I('v_writelane_b32 v%d, s%d, %d', VT + 12, 32 + 2 * k, k)
            a.I('v_writelane_b32 v%d, s%d, 10', VT + 12, sRetry)
            a.I('s_mov_b32 s52, s32')
            a.I('s_lshl_b32 s%d, s%d, 6', sT, S_ROLE)
            a.I('s_add_u32 s%d, s%d, s%d', sT, sT, sStep)
            a.I('s_lshl_b32 s%d, s%d, 2', sT, sT)
            a.I('s_add_u32 s%d, s%d, s%d', sT, sT, S_WAVE)
            a.I('s_lshl_b32 s%d, s%d, 6', sT, sT)
            a.I('s_add_u32 s%d, s%d, 0x%x', sStampAddr, sT, WS_DBG)
        else:
            for k in range(cfg.get('pgap', 2)):
                a.I('s_nop 11')
        poll(*PB)

        def head(src, bad):
            s0, s1 = src
            a.I('s_waitcnt vmcnt(2)')
            a.I('v_max3_u32 v%d, v%d, v%d, v%d', C0, s0, s0 + 2, s1)
            a.I('v_max_u32 v%d, v%d, v%d', C0, C0, s1 + 2)
            a.I('v_cmp_eq_u32 vcc, -1, v%d', C0)
            a.I('ds_write_b128 v%d, v[%d:%d]', vM0, s0, s0 + 3)
            wA = a.I('ds_write_b128 v%d, v[%d:%d] offset:4096', vM0, s1, s1 + 3)
            M('q', 0, 0, s0)
            M('q', 1, 0, s0)
            a.I('s_cbranch_vccnz %s', bad)
            stamp(a, cfg, 1)
            M('q', 0, 4, s1)
            M('q', 1, 4, s1)
            M('k', 0, 0, s0)
            M('k', 1, 0, s0)
            a.wait(wA)
            a.I('s_barrier')
            rm(1)
            M('k', 0, 4, s1); rm(2)
            M('k', 1, 4, s1); rm(3)
            M('v', 0, 0, s0); rm(5)
            M('v', 1, 0, s0); rm(6)
            M('v', 0, 4, s1); rm(7)
            M('v', 1, 4, s1)
        a.I('s_branch ' + PFX + 'goA')
        a.label(PFX + 'badA')
        poll(*PA)
        spin()
        a.I('s_add_u32 s%d, s%d, 0x10000', sRetry, sRetry)
        a.I('s_nop 1')
        zero(ACC, 8)
        head(PB, PFX + 'badB')
        a.I('s_branch ' + PFX + 'join')
        a.label(PFX + 'badB')
        poll(*PB)
        a.I('s_add_u32 s%d, s%d, 0x10000', sRetry, sRetry)
        a.I('s_nop 4')
        zero(ACC, 8)
        a.label(PFX + 'goA')
        head(PA, PFX + 'badA')
        a.label(PFX + 'join')
        rkx(0)
        a.wait(mt[2])
        M('q', 0, 1); rkx(1)
        M('q', 1, 1); ldv(0)
        M('q', 0, 2); rkx(2)
        M('q', 1, 2); ldv(1); a.wait(mt[5])
        M('q', 0, 3); rkx(3)
        M('q', 1, 3); ldv(2)
        M('q', 0, 5); rkx(4)
        if cfg.get('stamps') and cfg['stamps'] != 4:
            a.I('v_lshrrev_b32 v%d, 2, v%d', C0, vL16)
            a.I('s_mov_b64 exec, 0xffff')
            a.I('buffer_store_dword v%d, v%d, %s, s%d offen', VT + 12, C0, WS, sStampAddr)
            a.I('s_mov_b64 exec, -1')
        M('q', 1, 5); tv = ldv(3); a.wait(mt[7])
        M('q', 0, 6); rkx(5)
        a.I('s_barrier')
        M('q', 1, 6)
        if cfg.get('pubpos', 1) == 0 and not cfg.get('no_pub'):
            a.I('buffer_store_dwordx4 v[%d:%d], v%d, %s, s%d offen sc1', T0, T0 + 3, vL16, WS, sVmPrev)
        M('q', 0, 7); rkx(6)
        a.I('s_sub_u32 s%d, s%d, 1', sT, sStep)
        M('q', 1, 7); rkx(7)
        a.I('s_max_i32 s%d, s%d, 0', sT, sT)
        a.I('v_mov_b32 v%d, s%d', C1, sT)
        stamp(a, cfg, 2)
        q0, q1, k0, k1, v0_, v1_ = [acc(i) for i in range(6)]
        QT = mem(0)

        def add(d, x, y):
            a.I('v_add_f32 v%d, v%d, v%d', d, x, y)

        def cvt(d, x, y):
            a.I('v_cvt_pk_bf16_f32 v%d, v%d, v%d', d, x, y)

        def pkadd(d, x, y):
            a.I('v_pk_add_f32 v[%d:%d], v[%d:%d], v[%d:%d]', d, d + 1, x, x + 1, y, y + 1)

        def sel(d, x, y):
            a.I('v_cndmask_b32 v%d, v%d, v%d, s[%d:%d]', d, x, y, sHalf, sHalf + 1)
        M('k', 0, 1)
        a.I('s_add_u32 s%d, s%d, 262144', sV, sV)
        a.I('s_and_b32 s%d, s%d, 1', sTag, sStep)
        a.I('s_waitcnt vmcnt(%d)' % ((0 if cfg.get('no_kv') else 4) + (0 if cfg.get('no_pub') or cfg.get('pubpos', 1) else 1)))
        M('k', 1, 1)
        a.I('s_mov_b32 s%d, s%d', sT, sRing)
        a.I('s_mov_b32 s%d, s%d', sRing, sRing + 1)
        add(QT, q0, q0 + 2)
        M('k', 0, 2)
        add(QT + 1, q0 + 1, q0 + 3)
        add(QT + 2, q1, q1 + 2)
        add(QT + 3, q1 + 1, q1 + 3)
        cvt(QT, QT, QT + 2)
        cvt(QT + 1, QT + 1, QT + 3)
        wq = a.I('ds_write2_b32 v%d, v%d, v%d offset0:0 offset1:4', vX1w, QT, QT + 1)
        M('k', 1, 2)
        a.I('s_mov_b32 s%d, s%d', sRing + 1, sRing + 2)
        a.I('s_mov_b32 s%d, s%d', sRing + 2, sRing + 3)
        if cfg.get('kvflags'):
            a.I('v_cmp_eq_u32 vcc, 0, v%d', vDummy)
        M('k', 0, 3)
        a.I('s_mov_b32 s%d, s%d', sRing + 3, sT)
        a.I('s_add_u32 s%d, s%d, s%d', sMxRd, sRing, sW10)
        M('k', 1, 3)
        if cfg.get('kvflags'):
            a.I('s_and_b32 s%d, vcc_lo, 3', sT)
            a.I('s_cbranch_scc1 ' + PFX + 'kvwait')
            a.label(PFX + 'kvok')
        M('k', 0, 5)
        if not cfg.get('no_warm'):
            a.I('buffer_load_dword v%d, v%d, %s, s%d offen sc1', vDummy, vWarm, WS, sWarm)
        M('k', 1, 5)
        a.wait(wq)
        a.I('s_barrier')
        qt = {}

        def rq(ks):
            qt[ks] = a.I('ds_read_b128 v[%d:%d], v%d offset:%d', slot(4) + 4 * ks, slot(4) + 4 * ks + 3, vX1rq, ks * 1024)
        rq(0)
        M('k', 0, 6); rq(1)
        if cfg.get('kvflags'):
            a.I('s_add_u32 s%d, s%d, 32', sKvf, sKvf)
        M('k', 1, 6); rq(2)
        if cfg.get('kvflags'):
            a.I('s_min_u32 s%d, s%d, s%d', sKvf, sKvf, sKvfMax)
        M('k', 0, 7); rq(3)
        a.I('s_mov_b32 m0, s%d', sM0a)
        M('k', 1, 7)
        a.I('s_add_u32 s%d, s%d, 4096', sMxRd2, sMxRd)
        stamp(a, cfg, 3)
        S0, S1, S2, Pm = acc(0), acc(1), acc(2), acc(3)
        X0, X1 = S1 + 2, S1 + 3
        ON = T0
        PV0, PV1, LS = mem(4), mem(0), mem(1)
        KMR = [STG, STG + 4, STG + 8, STG + 12]

        def SM(D, A, ks):
            a.I('v_mfma_f32_16x16x32_bf16 v[%d:%d], v[%d:%d], v[%d:%d], %s', D, D + 3, A, A + 3,
                slot(4) + 4 * ks, slot(4) + 4 * ks + 3, '0' if ks == 0 else vr(D, 4))
        km = {}

        def rkm(k):
            km[k] = a.I('ds_read_b128 v[%d:%d], v%d offset:%d', KMR[k], KMR[k] + 3, vX1rk, k * 1024)
        M('v', 0, 1)
        if not cfg.get('no_kv'):
            a.I('buffer_load_dwordx4 v%d, %s, s%d offen sc1 lds', vKxSrc, WS, sKx)
        a.I('s_mov_b32 m0, s%d', sM0b)
        M('v', 1, 1)
        a.wait(qt[3])
        add(QT, k0, k0 + 2)
        SM(S0, STG, 0)
        add(QT + 1, k0 + 1, k0 + 3)
        add(QT + 2, k1, k1 + 2)
        SM(S0, STG + 4, 1)
        add(QT + 3, k1 + 1, k1 + 3)
        cvt(vSaveK, QT, QT + 2)
        SM(S0, STG + 8, 2)
        cvt(QT + 1, QT + 1, QT + 3)
        wk = a.I('ds_write2_b32 v%d, v%d, v%d offset0:32 offset1:36', vX1w, vSaveK, QT + 1)
        SM(S0, STG + 12, 3)
        if not cfg.get('no_kv'):
            a.I('buffer_load_dwordx4 v%d, %s, s%d offen offset:512 sc1 lds', vKxSrc, WS, sKx)
        a.I('v_mov_b32 v%d, 0', Pm + 3)
        SM(S1, STG + 16, 0)
        a.I('s_mov_b64 exec, 3')
        if cfg.get('kvflags'):
            kv_load()
        if not cfg.get('no_pub') and not cfg.get('no_flag'):
            a.I('buffer_store_dword v%d, v%d, %s, s%d offen sc1', C1, vL16, WS, sFl)
        a.I('s_mov_b64 exec, -1')
        SM(S1, STG + 20, 1)
        if cfg.get('pubpos', 1) == 1 and not cfg.get('no_pub'):
            a.I('buffer_store_dwordx4 v[%d:%d], v%d, %s, s%d offen sc1', T0, T0 + 3, vL16, WS, sVmPrev)
        vm_mark = a.vm_n
        zero(PV0, 4)
        SM(S1, STG + 24, 2)
        a.I('s_add_u32 s%d, s%d, 262144', sKx, sKx)
        a.I('v_mov_b32 v%d, v%d', vSaveK + 1, QT + 1)
        a.I('v_mov_b32 v%d, 0x3f803f80', ON)
        SM(S1, STG + 28, 3)
        a.wait(wk)
        a.I('s_barrier')
        rkm(0)
        M('v', 0, 2); rkm(1)
        a.I('v_max3_f32 v%d, v%d, v%d, v%d', Pm, S0, S0 + 1, S0 + 2)
        M('v', 1, 2); rkm(2)
        a.I('s_add_u32 s%d, s%d, 262144', sWarm, sWarm)
        a.I('v_mov_b32 v%d, 0x3f803f80', ON + 1)
        M('v', 0, 3); rkm(3)
        a.I('v_max3_f32 v%d, v%d, v%d, v%d', Pm, Pm, S0 + 3, S1)
        M('v', 1, 3); lds_half(8, 0)
        a.I('v_max3_f32 v%d, v%d, v%d, v%d', Pm + 1, S1 + 1, S1 + 2, S1 + 3)
        M('v', 0, 5); lds_half(8, 1)
        a.wait(km[1])
        sel(S1, S1, S1 + 2)
        SM(S2, KMR[0], 0); lds_half(9, 0)
        sel(S1 + 1, S1 + 1, S1 + 3)
        a.I('v_max_f32 v%d, v%d, v%d', X0, Pm, Pm + 1)
        SM(S2, KMR[1], 1)
        a.wait(km[3])
        zero(PV1, 4)
        SM(S2, KMR[2], 2); lds_half(9, 1)
        a.I('v_mov_b32 v%d, 0x3f803f80', ON + 2)
        a.I('v_mov_b32 v%d, 0x3f803f80', ON + 3)
        SM(S2, KMR[3], 3); lds_half(6, 0)
        stamp(a, cfg, 4)
        M('v', 1, 5); lds_half(6, 1)
        M('v', 0, 6); lds_half(7, 0)
        M('v', 1, 6); lds_half(7, 1)
        a.I('v_max3_f32 v%d, v%d, v%d, v%d', X0, X0, S2, S2 + 1)
        a.I('v_max3_f32 v%d, v%d, v%d, v%d', X0, X0, S2 + 2, S2 + 3)
        a.I('v_mov_b32 v%d, v%d', X1, X0)
        M('v', 0, 7); lds_half(10, 0)
        a.I('v_permlane32_swap_b32 v%d, v%d', X0, X1)
        a.I('v_max_f32 v%d, v%d, v%d', X0, X0, X1)
        a.I('v_mov_b32 v%d, v%d', X1, X0)
        M('v', 1, 7); lds_half(10, 1)
        a.I('v_permlane16_swap_b32 v%d, v%d', X0, X1)
        sel(S2, S2, S0 + 2)
        sel(S2 + 1, S2 + 1, S0 + 3)
        a.I('v_max_f32 v%d, v%d, v%d', X0, X0, X1)
        sel(S2 + 2, S2 + 2, S0)
        a.I('v_mul_f32 v%d, s%d, v%d', X0, sNC, X0)
        sel(S2 + 3, S2 + 3, S0 + 1)
        a.I('v_sub_f32 v%d, v%d, v%d', X1, X0, vBias)

        def pkfma(d, hi):
            a.I('v_pk_fma_f32 v[%d:%d], v[%d:%d], s[%d:%d], v[%d:%d] op_sel:[0,0,%d] op_sel_hi:[1,1,%d]', d, d + 1, d, d + 1, sC2, sC2 + 1, X0, X1, hi, hi)
        pkfma(S1, 0)
        pkfma(S2, 1)
        a.I('v_exp_f32 v%d, v%d', S1, S1)
        pkfma(S2 + 2, 1)
        a.I('v_exp_f32 v%d, v%d', S1 + 1, S1 + 1)
        pkadd(S0, v0_, v0_ + 2)
        a.I('v_exp_f32 v%d, v%d', S2, S2)
        pkadd(S0 + 2, v1_, v1_ + 2)
        a.I('v_exp_f32 v%d, v%d', S2 + 1, S2 + 1)
        cvt(Pm + 1, S1, S1 + 1)
        a.I('v_exp_f32 v%d, v%d', S2 + 2, S2 + 2)
        if tv:
            a.I('s_waitcnt vmcnt(%d)' % (vm_mark - tv[1]))
        cvt(VT, S0, S0 + 1)
        a.I('v_exp_f32 v%d, v%d', S2 + 3, S2 + 3)
        cvt(Pm, S2, S2 + 1)
        cvt(VT + 8, S0 + 2, S0 + 3)
        cvt(Pm + 2, S2 + 2, S2 + 3)
        lds_half(11, 0)
        a.I('s_cmp_eq_u32 s%d, %d', sStep, nsteps - 1)
        stamp(a, cfg, 5)
        a.I('v_mfma_f32_16x16x32_bf16 v[%d:%d], v[%d:%d], v[%d:%d], 0', LS, LS + 3, Pm, Pm + 3, ON, ON + 3)
        lds_half(11, 1)
        a.I('s_cbranch_scc1 ' + PFX + 'done')
        a.I('v_smfmac_f32_16x16x64_bf16 v[%d:%d], v[%d:%d], v[%d:%d], v%d', PV0, PV0 + 3, Pm, Pm + 3, VT, VT + 7, vIdx)
        a.I('v_mov_b32 v%d, v%d', T0, VT)
        a.I('v_smfmac_f32_16x16x64_bf16 v[%d:%d], v[%d:%d], v[%d:%d], v%d', PV1, PV1 + 3, Pm, Pm + 3, VT + 8, VT + 15, vIdx)
        a.I('v_mov_b32 v%d, v%d', T1, vSaveK)
        a.I('v_mov_b32 v%d, v%d', T2, vSaveK + 1)
        a.I('v_mov_b32 v%d, v%d', T3, VT + 8)
        pkadd(X0, LS, LS + 2)
        a.I('v_rcp_f32 v%d, v%d', X0, X0)
        a.I('v_rcp_f32 v%d, v%d', X1, X1)
        pkadd(PV0, PV0, PV0 + 2)
        pkadd(PV1, PV1, PV1 + 2)
        a.I('v_pk_mul_f32 v[%d:%d], v[%d:%d], v[%d:%d]', PV0, PV0 + 1, PV0, PV0 + 1, X0, X1)
        a.I('v_pk_mul_f32 v[%d:%d], v[%d:%d], v[%d:%d]', PV1, PV1 + 1, PV1, PV1 + 1, X0, X1)
        cvt(S0, PV0, PV1)
        cvt(S0 + 1, PV0 + 1, PV1 + 1)
        wo = a.I('ds_write2_b32 v%d, v%d, v%d offset0:0 offset1:4', vX2w, S0, S0 + 1)
        zero(MEM, 16)
        a.wait(wo)
        a.I('s_barrier')
        OF = acc(4)
        of0 = a.I('ds_read_b128 v[%d:%d], v%d offset:%d', OF, OF + 3, vL16, LX2)
        of1 = a.I('ds_read_b128 v[%d:%d], v%d offset:%d', OF + 4, OF + 7, vL16, LX2 + 1024)
        zero(MEM + 16, 16)
        SEL, RD = ACC + 8, ACC + 12
        stamp(a, cfg, 6)

        def wt(b, t):
            return MEM + 16 * b + 4 * t

        def W(n):
            key = WO_ORDER[n]
            _, b, t, ks = key
            a.I('v_smfmac_f32_16x16x64_bf16 v[%d:%d], v[%d:%d], %s, v%d', wt(b, t), wt(b, t) + 3, OF + 4 * ks, OF + 4 * ks + 3, breg(key), vIdx)

        def ha(b, t, h):
            D = wt(b, t) + h
            add(D, D, D + 2)

        def hp(b, t):
            D = wt(b, t)
            pkadd(D, D, D + 2)

        G = [ACC, ACC + 4]

        def pk(b, h, tok):
            cvt(G[b] + 2 * tok + h, wt(b, 2 * h) + tok, wt(b, 2 * h + 1) + tok)

        def send(b):
            a.I('buffer_store_dwordx4 v[%d:%d], v%d, %s, s%d offen%s', G[b], G[b] + 3, vInSt, WS, sIn + b, stf)

        def tag(b):
            a.I('v_bfi_b32 v%d, 1, s%d, v%d', G[b], sTag, G[b])

        def selgen(k):
            if k == 0:
                a.I('v_mov_b32 v%d, 0x3f80', RD)
            elif k == 1:
                a.I('v_cndmask_b32 v%d, v%d, 1.0, s[%d:%d]', RD, RD, sSel + 4, sSel + 5)
            else:
                a.I('v_cndmask_b32 v%d, 0, v%d, s[%d:%d]', SEL + k - 2, RD, sSel + 2 * (k % 2), sSel + 2 * (k % 2) + 1)

        def rload(i):
            return a.I('buffer_load_dwordx4 v[%d:%d], v%d, %s, s%d offen offset:%d sc1', VT + 4 * i, VT + 4 * i + 3, vL16, WS, sInLd, i * 1024)

        lt = {}
        a.wait(of0)
        W(0); lds_half(12, 0); a.wait(of1)
        W(1); lt[12] = lds_half(12, 1)
        W(2); lds_half(13, 0)
        W(3); lt[13] = lds_half(13, 1)
        W(4); lds_half(14, 0); ha(0, 0, 0)
        W(5); lt[14] = lds_half(14, 1); ha(0, 0, 1)
        W(6); lds_half(15, 0); ha(0, 1, 0)
        W(7); lt[15] = lds_half(15, 1); ha(0, 1, 1)
        pk(0, 0, 0); pk(0, 0, 1)
        tag(0)
        hp(0, 2)
        lds_half(16, 0)
        lt[16] = lds_half(16, 1)
        hp(0, 3)
        pk(0, 1, 0); pk(0, 1, 1)
        send(0)
        W(8); lds_half(17, 0)
        W(9); lt[17] = lds_half(17, 1); a.wait(lt[13])
        W(10)
        a.I('s_mov_b32 s%d, s%d', sVmPrev, sVm)
        a.I('s_add_u32 s%d, s%d, 131072', sVm, sVm)
        a.I('s_mov_b32 s%d, 0', sSpin)
        W(11); a.wait(lt[15])
        a.I('s_add_u32 s%d, s%d, 1', sStep, sStep)
        W(12); lds_half(0, 0); ha(1, 0, 0)
        W(13); a.wait(lt[17]); ha(1, 0, 1)
        W(14); lds_half(0, 1); ha(1, 1, 0)
        W(15); lds_half(1, 0); ha(1, 1, 1)
        pk(1, 0, 0); pk(1, 0, 1)
        tag(1)
        hp(1, 2)
        lds_half(1, 1)
        a.I('s_cmp_ge_u32 s%d, 2', S_WAVE)
        hp(1, 3)
        pk(1, 1, 0); pk(1, 1, 1)
        send(1)
        stamp(a, cfg, 7)
        U0, U1, U2, U3 = ACC + 16, ACC + 17, ACC + 18, ACC + 19
        npre = cfg.get('npre', 3)
        a.I('s_cbranch_scc1 ' + PFX + 'late')
        for k in range(cfg.get('d0', 0)):
            a.I('s_nop 7')
        rload(0); rload(1)
        a.label(PFX + 'late')
        for j in range(2, 1 + npre):
            lds_set(j)
        for k in range(6):
            selgen(k)
        zero(RD, 4)
        a.I('s_cbranch_scc0 ' + PFX + 'early')
        for k in range(cfg.get('d1', 0)):
            a.I('s_nop 7')
        rload(0); rload(1)
        a.label(PFX + 'early')
        for j in range(1 + npre, 6):
            lds_set(j)
        zero(ACC + 20, 4)
        zero(ACC, 8)
        a.I('v_mov_b32 v%d, -1', U2)
        a.I('v_mov_b32 v%d, -1', U3)
        a.I('s_waitcnt vmcnt(0) lgkmcnt(0)')
        a.label(PFX + 'chk1')
        a.I('v_smfmac_f32_16x16x64_bf16 v[%d:%d], v[%d:%d], v[%d:%d], v%d', RD, RD + 3, SEL, SEL + 3, VT, VT + 7, vIdx)
        a.I('v_bitop3_b32 v%d, v%d, v%d, s%d bitop3:0x7e', U0, VT, VT + 4, sTag)
        a.I('v_and_b32 v%d, 1, v%d', U0, U0)
        a.I('v_cmp_ne_u32 vcc, 0, v%d', U0)
        DP = ' row_mask:0xf bank_mask:0xf'
        Z = VT + 8
        for k in range(4):
            a.I('v_add_f32_dpp v%d, v%d, v%d row_ror:4' + DP, Z + k, RD + k, RD + k)
        a.I('s_cbranch_vccnz ' + PFX + 'slow1')
        for k in range(4):
            a.I('v_add_f32_dpp v%d, v%d, v%d row_ror:8' + DP, Z + 4 + k, Z + k, Z + k)
        stamp(a, cfg, 8)
        a.I('s_mov_b64 exec, 0x000f000f')
        a.I('v_cvt_pk_bf16_f32 v%d, v%d, v%d', U0, Z + 4, Z + 5)
        a.I('v_cvt_pk_bf16_f32 v%d, v%d, v%d', U1, Z + 6, Z + 7)
        a.I('v_min_u32 v%d, -2, v%d', U0, U0)
        a.I('buffer_store_dwordx2 v[%d:%d], v%d, %s, s%d offen%s', U0, U1, vMxSt, WS, sMxWr, stf)
        a.I('buffer_store_dwordx2 v[%d:%d], v%d, %s, s%d offen%s', U2, U3, vMxSt, WS, sMxRst, stf)
        a.I('s_mov_b64 exec, -1')
        stamp(a, cfg, 9)
        a.I('s_add_u32 s%d, s%d, s%d', sRetry, sRetry, sSpin)
        a.I('s_mov_b32 s%d, 0', sSpin)
        zero(ACC + 8, 12)
        for k in range(cfg.get('d2', 0)):
            a.I('s_nop 7')
        if cfg.get('b3'):
            a.I('s_barrier')
        a.I('s_branch ' + PFX + 'loop')

        a.label(PFX + 'slow1')
        rload(0); rload(1)
        spin()
        zero(RD, 4)
        a.I('s_waitcnt vmcnt(0)')
        a.I('s_branch ' + PFX + 'chk1')

        if cfg.get('kvflags'):
            a.label(PFX + 'kvwait')
            kv_load()
            spin()
            a.I('s_waitcnt vmcnt(0)')
            a.I('v_cmp_eq_u32 vcc, 0, v%d', vDummy)
            a.I('s_nop 1')
            a.I('s_and_b32 s%d, vcc_lo, 3', sT)
            a.I('s_cbranch_scc1 ' + PFX + 'kvwait')
            a.I('s_branch ' + PFX + 'kvok')

        a.label(PFX + 'done')
        savepub()
        a.I('buffer_store_dwordx4 v[%d:%d], v%d, %s, s%d offen sc1', T0, T0 + 3, vL16, WS, sVm)
        a.I('s_waitcnt vmcnt(0)')
        a.I('v_mov_b32 v%d, %d', T1, nsteps)
        a.I('s_mov_b64 exec, 1')
        a.I('buffer_store_dword v%d, v%d, %s, s%d offen sc1', T1, vL16, WS, sFl)
        if cfg.get('stamps'):
            a.I('s_memrealtime s[100:101]')
            a.I('s_waitcnt lgkmcnt(0)')
            a.I('v_mov_b32 v%d, s4', T0)
            a.I('v_mov_b32 v%d, s6', T1)
            a.I('v_mov_b32 v%d, s100', T2)
            a.I('v_mov_b32 v%d, s%d', T3, sRetry if cfg.get('cnt') else 3)
            a.I('s_lshl_b32 s%d, s%d, 2', sT, S_ROLE)
            a.I('s_add_u32 s%d, s%d, s%d', sT, sT, S_WAVE)
            a.I('s_lshl_b32 s%d, s%d, 4', sT, sT)
            a.I('s_add_u32 s%d, s%d, 0x%x', sT, sT, WS_DBG + 0x80000)
            a.I('buffer_store_dwordx4 v[%d:%d], v%d, %s, s%d offen', T0, T3, vL16, WS, sT)
        a.I('s_endpgm')
        a.label(PFX + 'fail')
        a.I('s_mov_b64 exec, 1')
        a.I('v_mov_b32 v%d, %d', T2, D_ERR * 4)
        a.I('v_mov_b32 v%d, s%d', T3, sStep)
        a.I('v_or_b32 v%d, 0x40000000, v%d', T3, T3)
        a.I('buffer_store_dword v%d, v%d, s[%d:%d], 0 offen sc1', T3, T2, S_DBG, S_DBG + 3)
        a.I('s_endpgm')

    if cfg.get('both_modes'):
        a.c('mode: plain stores only if all 32 recurrence workgroups sit on the chosen XCD')
        a.I('v_mov_b32 v%d, %d', T2, D_CNT_OTH * 4)
        a.I('buffer_load_dword v%d, v%d, s[%d:%d], 0 offen sc1', T3, T2, S_DBG, S_DBG + 3)
        a.I('s_waitcnt vmcnt(0)')
        a.I('v_readfirstlane_b32 s%d, v%d', sT, T3)
        a.I('s_cmp_lg_u32 s%d, 0', sT)
        a.I('s_cbranch_scc1 R_safe')
        rest('R_', '')
        a.label('R_safe')
        rest('RS_', ' sc1')
    else:
        rest('R_', stf)
```

```python
import sys
from asmlib import *
from common import *
import rec, bulk
from bulk import sT, WS, DBG

LDS_TK = 14336


def ticket(a, dword, sdst, pre=None):
    lab = a.newlabel('TK')
    a.I('v_mov_b32 v253, %d', LDS_TK)
    a.I('s_cmp_lg_u32 s%d, 0', S_WAVE)
    a.I('s_cbranch_scc1 %s', lab)
    a.I('s_mov_b64 exec, 1')
    a.I('v_mov_b32 v251, 1')
    a.I('v_mov_b32 v252, %d', dword * 4)
    if pre is not None:
        sk = a.newlabel('TKs')
        a.I('v_mov_b32 v251, 32')
        a.I('s_cmp_lt_u32 s%d, 256', pre)
        a.I('s_cbranch_scc1 %s', sk)
        a.I('v_mov_b32 v251, 1')
    a.I('buffer_atomic_add v251, v252, %s, 0 offen sc0', DBG)
    a.I('s_waitcnt vmcnt(0)')
    if pre is not None:
        a.label(sk)
    a.I('ds_write_b32 v253, v251')
    a.I('s_waitcnt lgkmcnt(0)')
    a.I('s_mov_b64 exec, -1')
    a.label(lab)
    a.I('s_barrier')
    a.I('ds_read_b32 v251, v253')
    a.I('s_waitcnt lgkmcnt(0)')
    a.I('v_readfirstlane_b32 s%d, v251', sdst)
    a.I('s_barrier')


def dbg_add(a, dword):
    lab = a.newlabel('DA')
    a.I('s_cmp_lg_u32 s%d, 0', S_WAVE)
    a.I('s_cbranch_scc1 %s', lab)
    a.I('s_mov_b64 exec, 1')
    a.I('v_mov_b32 v251, 1')
    a.I('v_mov_b32 v252, %d', dword * 4)
    a.I('buffer_atomic_add v251, v252, %s, 0 offen', DBG)
    a.I('s_waitcnt vmcnt(0)')
    a.I('s_mov_b64 exec, -1')
    a.label(lab)


def build(cfg):
    a = Asm()
    bulk.BST = bool(cfg.get('stamps'))
    a.I('s_cmp_ge_u32 s2, 256')
    a.I('s_cbranch_scc1 K_exit')
    if cfg.get('stamps'):
        a.I('s_memrealtime s[4:5]')
    a.I('s_load_dwordx16 s[32:47], s[0:1], 0')
    a.I('s_load_dwordx8 s[48:55], s[0:1], 64')
    a.I('s_load_dwordx4 s[56:59], s[0:1], 96')
    a.I('s_getreg_b32 s%d, hwreg(HW_REG_XCC_ID)', S_XCC)
    a.I('s_and_b32 s%d, s%d, 15', S_XCC, S_XCC)
    a.I('v_lshrrev_b32 v1, 6, v0')
    a.I('v_readfirstlane_b32 s%d, v1', S_WAVE)
    a.I('s_waitcnt lgkmcnt(0)')
    rec.srd(a, S_WS, P_WS, WS_SIZE)
    rec.srd(a, S_DBG, P_DBG, 256)
    a.I('s_cmp_lg_u32 s%d, %d', S_XCC, cfg.get('xcd', 0))
    a.I('s_cbranch_scc1 K_bulk_t')
    ticket(a, D_TICK_REC, S_ROLE)
    a.I('s_cmp_lt_u32 s%d, 32', S_ROLE)
    a.I('s_cbranch_scc1 K_rec')
    a.label('K_bulk_t')
    ticket(a, D_TICK_A, S_ROLE)
    bulk.bstamp(a, 0)
    a.I('s_cmp_lg_u32 s%d, 218', S_ROLE)
    a.I('s_cbranch_scc1 K_nz')
    for k in range(4):
        a.I('v_mov_b32 v%d, 0', 240 + k)
    a.I('v_and_b32 v244, 63, v0')
    a.I('v_lshlrev_b32 v244, 4, v244')
    a.I('s_mul_i32 s%d, s%d, %d', sT, S_WAVE, FL_SIZE // 4)
    a.I('s_add_u32 s%d, s%d, 0x%x', sT, sT, WS_FLAGS)
    for k in range(FL_SIZE // 4096):
        if k and k % 4 == 0:
            a.I('s_add_u32 s%d, s%d, 4096', sT, sT)
        a.I('buffer_store_dwordx4 v[240:243], v244, %s, s%d offen offset:%d sc1', WS, sT, (k % 4) * 1024)
    a.I('s_waitcnt vmcnt(0)')
    a.I('s_barrier')
    dbg_add(a, D_FINIT)
    a.label('K_nz')
    LN0 = cfg.get('ln0', 90)
    a.I('s_sub_u32 s%d, s%d, %d', sT + 5, S_ROLE, LN0)
    a.I('s_cmp_ge_u32 s%d, 128', sT + 5)
    a.I('s_cbranch_scc1 K_a')
    rec.srd(a, S_W, P_X, 2097152)
    a.I('s_lshl_b32 s%d, s%d, 14', sT + 6, sT + 5)
    a.I('s_lshl_b32 s%d, s%d, 12', sT, S_WAVE)
    a.I('s_add_u32 s%d, s%d, s%d', sT + 6, sT + 6, sT)
    a.I('s_add_u32 s%d, s%d, 2048', sT + 7, sT + 6)
    t0 = bulk.ln_issue(a, sT + 6, B=200)
    t1 = bulk.ln_issue(a, sT + 7, B=150)
    if cfg.get('wopf', 1):
        rec.srd(a, S_W2, P_WO, 4194304)
        a.I('s_lshl_b32 s%d, s%d, 1', sT + 4, sT + 6)
        for k in range(8):
            if k == 4:
                a.I('s_add_u32 s%d, s%d, 4096', sT + 4, sT + 4)
            a.I('buffer_load_dwordx4 v[%d:%d], v208, s[%d:%d], s%d offen offset:%d', 100 + 4 * k, 103 + 4 * k, S_W2, S_W2 + 3, sT + 4, (k % 4) * 1024)
    bulk.ln_compute(a, t0, sT + 6, B=200)
    bulk.ln_compute(a, t1, sT + 7, B=150)
    bulk.wait_dbg(a, D_FINIT, 1)
    a.I('s_barrier')
    lab = a.newlabel('LNF')
    a.I('s_cmp_lg_u32 s%d, 0', S_WAVE)
    a.I('s_cbranch_scc1 %s', lab)
    a.I('s_lshl_b32 s%d, s%d, 2', sT + 1, sT + 5)
    a.I('s_add_u32 s%d, s%d, 0x%x', sT + 1, sT + 1, WS_FLAGS + FL_XN)
    bulk.flag_store(a, sT + 1)
    a.label(lab)
    bulk.bstamp(a, 1)
    a.label('K_a')
    bulk.gen_phase_a(a)
    bulk.wait_dbg(a, D_FINIT, 1)
    a.I('s_mov_b32 s%d, 0', bulk.sSpin)
    a.I('v_mov_b32 v250, 0')
    a.label('K_arr')
    a.I('buffer_load_dword v251, v250, %s, 0 offen offset:%d sc1', DBG, D_TICK_REC * 4)
    a.I('buffer_load_dword v252, v250, %s, 0 offen offset:%d sc1', DBG, D_TICK_A * 4)
    bulk.spin(a)
    a.I('s_waitcnt vmcnt(0)')
    a.I('v_readfirstlane_b32 s%d, v251', sT)
    a.I('v_readfirstlane_b32 s%d, v252', sT + 1)
    a.I('s_cmp_ge_u32 s%d, 32', sT)
    a.I('s_cbranch_scc1 K_arr2')
    a.I('s_add_u32 s%d, s%d, s%d', sT, sT, sT + 1)
    a.I('s_cmp_lt_u32 s%d, 256', sT)
    a.I('s_cbranch_scc1 K_arr')
    a.label('K_arr2')
    ticket(a, D_TICK_REC, S_ROLE, pre=sT)
    a.I('s_cmp_ge_u32 s%d, 32', S_ROLE)
    a.I('s_cbranch_scc1 K_b')
    dbg_add(a, D_CNT_OTH)
    a.I('s_branch K_rec')
    a.label('K_b')
    ticket(a, D_TICK_B, S_ROLE)
    a.I('s_cmp_lt_u32 s%d, %d', S_ROLE, bulk.NT1)
    a.I('s_cbranch_scc1 K_t1')
    a.I('s_sub_u32 s%d, s%d, %d', S_ROLE, S_ROLE, bulk.NT1)
    a.I('s_cmp_ge_u32 s%d, 128', S_ROLE)
    a.I('s_cbranch_scc1 K_exit')
    bulk.gen_t2(a)
    a.label('K_t1')
    bulk.gen_t1(a)
    a.label('B_fail')
    a.I('s_mov_b64 exec, 1')
    a.I('v_mov_b32 v252, %d', (D_ERR + 2) * 4)
    a.I('v_mov_b32 v251, s%d', S_ROLE)
    a.I('v_or_b32 v251, 0x20000000, v251')
    a.I('buffer_store_dword v251, v252, %s, 0 offen sc1', DBG)
    a.label('K_exit')
    a.I('s_endpgm')
    a.label('K_rec')
    rec.gen_rec(a, cfg)
    errs = a.verify_edges()
    for e in errs:
        print('HAZARD', e, file=sys.stderr)
    k = KNAME + '_kernel'
    ref = open('cdna_kernels/%s.s.ref' % KNAME).read().split('\n')
    hdr = '\n'.join(l for l in ref[:17] if l.startswith(';') and '@launch' not in l) + '\n'
    hdr += '; @launch grid=(256,1,1) block=(256,1,1) lds=163840\n.amdgcn_target "amdgcn-amd-amdhsa--gfx950"\n.text\n.globl %s\n.p2align 8\n.type %s,@function\n%s:\n' % (k, k, k)
    ftr = '''.section .rodata,"a"
.p2align 6
.amdhsa_kernel %s
  .amdhsa_next_free_vgpr 512
  .amdhsa_next_free_sgpr 102
  .amdhsa_accum_offset 256
  .amdhsa_group_segment_fixed_size 0
  .amdhsa_kernarg_size 112
  .amdhsa_user_sgpr_count 2
  .amdhsa_user_sgpr_kernarg_segment_ptr 1
  .amdhsa_system_sgpr_workgroup_id_x 1
  .amdhsa_float_denorm_mode_32 3
.end_amdhsa_kernel
''' % k
    return hdr + a.text() + ftr


if __name__ == '__main__':
    cfg = dict(fast=True, kvflags=1, both_modes=1, npre=5, d0=5, d1=7, d2=2, pgap=4, b3=1, warm128=1, pubpos=0)
    for arg in sys.argv[2:]:
        k, v = arg.split('=')
        cfg[k] = int(v)
    open(sys.argv[1], 'w').write(build(cfg))
```

```python
from asmlib import *
from common import *
from rec import srd, f32bits

WS = 's[%d:%d]' % (S_WS, S_WS + 3)
DBG = 's[%d:%d]' % (S_DBG, S_DBG + 3)
DP = ' row_mask:0xf bank_mask:0xf'
sT = 84
sSpin = 83
SPIN_MAX = 0x400000


BST = False
HOLD = 0


def bstamp(a, idx, V=14):
    if not BST:
        return
    lab = a.newlabel('BS')
    a.I('s_cmp_lg_u32 s%d, 0', S_WAVE)
    a.I('s_cbranch_scc1 %s', lab)
    a.I('s_memrealtime s[100:101]')
    a.I('s_lshl_b32 s99, s2, 6')
    a.I('s_add_u32 s99, s99, 0x%x', WS_DBG + 0x90000 + idx * 4)
    a.I('s_waitcnt lgkmcnt(0)')
    a.I('s_mov_b64 exec, 1')
    a.I('v_mov_b32 v%d, 0', V)
    a.I('v_mov_b32 v%d, s100', V + 1)
    a.I('buffer_store_dword v%d, v%d, %s, s99 offen', V + 1, V, WS)
    a.I('v_mov_b32 v%d, s%d', V + 1, S_ROLE)
    a.I('buffer_store_dword v%d, v%d, %s, s99 offen offset:32', V + 1, V, WS)
    a.I('s_mov_b64 exec, -1')
    a.label(lab)
    a.vm_n -= 2


def spin(a, fail='B_fail'):
    a.I('s_add_u32 s%d, s%d, 1', sSpin, sSpin)
    a.I('s_cmp_gt_u32 s%d, 0x%x', sSpin, SPIN_MAX)
    a.I('s_cbranch_scc1 %s', fail)


def wave_allsum(a, regs, tmp):
    for sh in (1, 2, 4, 8):
        for r in regs:
            a.I('v_add_f32_dpp v%d, v%d, v%d row_ror:%d' + DP, r, r, r, sh)
    for op in ('v_permlane16_swap_b32', 'v_permlane32_swap_b32'):
        for r, t in zip(regs, tmp):
            a.I('v_mov_b32 v%d, v%d', t, r)
        for r, t in zip(regs, tmp):
            a.I('%s v%d, v%d', op, r, t)
        for r, t in zip(regs, tmp):
            a.I('v_add_f32 v%d, v%d, v%d', r, r, t)


def rnd_bf16(a, r):
    a.I('v_cvt_pk_bf16_f32 v%d, v%d, v%d', r, r, r)
    a.I('v_and_b32 v%d, 0xffff0000, v%d', r, r)


def ln_issue(a, srow, B=200):
    a.I('v_and_b32 v%d, 63, v0', B + 8)
    a.I('v_lshlrev_b32 v%d, 4, v%d', B + 8, B + 8)
    a.I('buffer_load_dwordx4 v[%d:%d], v%d, s[%d:%d], s%d offen', B, B + 3, B + 8, S_W, S_W + 3, srow)
    return a.I('buffer_load_dwordx4 v[%d:%d], v%d, s[%d:%d], s%d offen offset:1024', B + 4, B + 7, B + 8, S_W, S_W + 3, srow)


def ln_compute(a, tok, srow, B=200):
    X = [B + 10, B + 18]
    S = [B + 26, B + 27]
    TM = [B + 28, B + 29]
    MB = [B + 30, B + 31]
    D = [B + 32, B + 40]
    if tok:
        a.wait(tok)
    for r in range(2):
        for k in range(4):
            a.I('v_lshlrev_b32 v%d, 16, v%d', X[r] + 2 * k, B + 4 * r + k)
            a.I('v_and_b32 v%d, 0xffff0000, v%d', X[r] + 2 * k + 1, B + 4 * r + k)
    for r in range(2):
        a.I('v_add_f32 v%d, v%d, v%d', S[r], X[r], X[r] + 1)
        for k in range(2, 8):
            a.I('v_add_f32 v%d, v%d, v%d', S[r], S[r], X[r] + k)
    wave_allsum(a, S, TM)
    for r in range(2):
        a.I('v_mul_f32 v%d, 0x%x, v%d', MB[r], f32bits(1.0 / 512), S[r])
    for r in range(2):
        for k in range(8):
            a.I('v_sub_f32 v%d, v%d, v%d', D[r] + k, X[r] + k, MB[r])
        a.I('v_mul_f32 v%d, v%d, v%d', S[r], D[r], D[r])
        for k in range(1, 8):
            a.I('v_fmac_f32 v%d, v%d, v%d', S[r], D[r] + k, D[r] + k)
    wave_allsum(a, S, TM)
    for r in range(2):
        a.I('v_mul_f32 v%d, 0x%x, v%d', S[r], f32bits(1.0 / 512), S[r])
        rnd_bf16(a, S[r])
        a.I('v_add_f32 v%d, 0x%x, v%d', S[r], f32bits(1e-5), S[r])
        rnd_bf16(a, S[r])
        a.I('v_sqrt_f32 v%d, v%d', S[r], S[r])
        rnd_bf16(a, S[r])
        a.I('v_rcp_f32 v%d, v%d', S[r], S[r])
        rnd_bf16(a, MB[r])
    for r in range(2):
        for k in range(4):
            a.I('v_sub_f32 v%d, v%d, v%d', D[r] + 2 * k, X[r] + 2 * k, MB[r])
            a.I('v_sub_f32 v%d, v%d, v%d', D[r] + 2 * k + 1, X[r] + 2 * k + 1, MB[r])
            a.I('v_cvt_pk_bf16_f32 v%d, v%d, v%d', TM[r], D[r] + 2 * k, D[r] + 2 * k + 1)
            a.I('v_lshlrev_b32 v%d, 16, v%d', D[r] + 2 * k, TM[r])
            a.I('v_and_b32 v%d, 0xffff0000, v%d', D[r] + 2 * k + 1, TM[r])
            a.I('v_mul_f32 v%d, v%d, v%d', D[r] + 2 * k, D[r] + 2 * k, S[r])
            a.I('v_mul_f32 v%d, v%d, v%d', D[r] + 2 * k + 1, D[r] + 2 * k + 1, S[r])
            a.I('v_cvt_pk_bf16_f32 v%d, v%d, v%d', B + 4 * r + k, D[r] + 2 * k, D[r] + 2 * k + 1)
    a.I('buffer_store_dwordx4 v[%d:%d], v%d, %s, s%d offen sc1', B, B + 3, B + 8, WS, srow)
    return a.I('buffer_store_dwordx4 v[%d:%d], v%d, %s, s%d offen offset:1024 sc1', B + 4, B + 7, B + 8, WS, srow)


def wait_dbg(a, dword, minval, V=250, fail='B_fail', sleep=2):
    lab = a.newlabel('WD')
    a.I('v_mov_b32 v%d, %d', V, dword * 4)
    a.I('s_mov_b32 s%d, 0', sSpin)
    a.label(lab)
    a.I('buffer_load_dword v%d, v%d, %s, 0 offen sc1', V + 1, V, DBG)
    spin(a, fail)
    a.I('s_waitcnt vmcnt(0)')
    a.I('v_readfirstlane_b32 s%d, v%d', sT, V + 1)
    a.I('s_cmp_ge_u32 s%d, %d', sT, minval)
    done = a.newlabel('WDd')
    a.I('s_cbranch_scc1 %s', done)
    a.I('s_sleep %d', sleep)
    a.I('s_branch %s', lab)
    a.label(done)


def flag_store(a, soff, V=250, val=1):
    a.I('s_mov_b64 exec, 1')
    a.I('v_mov_b32 v%d, 0', V)
    a.I('v_mov_b32 v%d, %s', V + 1, str(val))
    a.I('buffer_store_dword v%d, v%d, %s, s%d offen sc1', V + 1, V, WS, soff)
    a.I('s_mov_b64 exec, -1')


sSeg, sStride, sSlice, sCol, sOut, sSrc, sBuf, sFlagPrev, sHave = 64, 65, 66, 67, 68, 69, 70, 71, 72
sFlagBase = 73
sPermLo, sPermHi = 95, 96
vLane, vN, vG, vL16, vSrc, vWa, vWb = 1, 2, 3, 4, 5, 6, 7
FR = 16
ACC = 48
OUT = 80
WB = 100


def lane_consts(a):
    a.I('v_and_b32 v%d, 63, v0', vLane)
    a.I('v_and_b32 v%d, 15, v%d', vN, vLane)
    a.I('v_lshrrev_b32 v%d, 4, v%d', vG, vLane)
    a.I('v_lshlrev_b32 v%d, 4, v%d', vL16, vLane)
    a.I('s_mov_b32 s%d, 0x05040100', sPermLo)
    a.I('s_mov_b32 s%d, 0x07060302', sPermHi)


def gemm_weights(a, ffn):
    stride = 3584 if ffn else 8192
    a.I('s_mov_b32 s%d, %d', sT, stride * 8)
    a.I('v_mul_lo_u32 v%d, v%d, s%d', vWa, vG, sT)
    a.I('v_lshl_add_u32 v%d, v%d, %d, v%d', vWa, vN, 2 if ffn else 3, vWa)
    NB = 3
    toks = {}

    def issue(g):
        b = WB + 32 * (g % NB)
        for h in range(2):
            ks = 2 * g + h
            for kk in range(8):
                r = b + 16 * h + 2 * kk
                a.I('s_add_u32 s%d, s%d, %d', sT, sCol, (32 * ks + kk) * stride)
                if ffn:
                    a.I('buffer_load_dword v%d, v%d, s[%d:%d], s%d offen', r, vWa, S_W, S_W + 3, sT)
                    t = a.I('buffer_load_dword v%d, v%d, s[%d:%d], s%d offen', r + 1, vWa, S_W2, S_W2 + 3, sT)
                else:
                    t = a.I('buffer_load_dwordx2 v[%d:%d], v%d, s[%d:%d], s%d offen', r, r + 1, vWa, S_W, S_W + 3, sT)
        toks[g] = t

    def consume(g):
        b = WB + 32 * (g % NB)
        a.wait(toks[g])
        for h in range(2):
            ks = 2 * g + h
            for t in range(4):
                for p in range(4):
                    r0 = b + 16 * h + 4 * p + t // 2
                    a.I('v_perm_b32 v%d, v%d, v%d, s%d', OUT + 4 * t + p, r0 + 2, r0, sPermLo if t % 2 == 0 else sPermHi)
            for k in range(16):
                a.I('v_accvgpr_write_b32 a%d, v%d', 16 * ks + k, OUT + k)
    depth = 1 if ffn else 3
    for g in range(depth):
        issue(g)
    for g in range(8):
        if ffn and g + 1 < 8:
            issue(g + 1)
        consume(g)
        if not ffn and g + depth < 8:
            issue(g + depth)


def gemm_loop(a, kind):
    L = 'A%s_' % kind

    def dma():
        for j in range(8):
            a.I('s_add_u32 m0, s%d, %d', sBuf, j * (1024 - 64))
            a.I('buffer_load_dwordx4 v%d, %s, s%d offen offset:%d sc1 lds', vSrc, WS, sSrc, j * 64)

    a.I('s_lshl_b32 s%d, s%d, 13', sBuf, S_WAVE)
    a.I('s_lshl_b32 s%d, s%d, 15', sSrc, sSeg)
    dma()
    a.I('s_mov_b32 s%d, 0', sHave)
    a.I('v_mov_b32 v%d, v%d', vWb, vL16)
    a.I('s_waitcnt vmcnt(0)')
    a.I('s_barrier')
    a.label(L + 'loop')
    a.I('s_add_u32 s%d, s%d, s%d', sT + 1, sSeg, sStride)
    a.I('s_min_u32 s%d, s%d, 63', sT + 1, sT + 1)
    a.I('s_lshl_b32 s%d, s%d, 15', sSrc, sT + 1)
    a.I('s_xor_b32 s%d, s%d, 32768', sBuf, sBuf)
    ft = {}

    def rd(ks):
        st = ks % 3
        a.I('ds_read_b128 v[%d:%d], v%d offset:%d', FR + 8 * st, FR + 8 * st + 3, vWb, ks * 1024)
        ft[ks] = a.I('ds_read_b128 v[%d:%d], v%d offset:%d', FR + 8 * st + 4, FR + 8 * st + 7, vWb, 16384 + ks * 1024)
    rd(0)
    rd(1)
    dma()
    for ks in range(16):
        if ks + 2 < 16:
            rd(ks + 2)
        a.wait(ft[ks])
        st = ks % 3
        for T in range(2):
            for t in range(4):
                d = ACC + 16 * T + 4 * t
                x = vr(FR + 8 * st + 4 * T, 4)
                w = ar(16 * ks + 4 * t, 4)
                A, B = (x, w) if kind == 'v' else (w, x)
                a.I('v_mfma_f32_16x16x32_bf16 v[%d:%d], %s, %s, %s', d, d + 3, A, B, '0' if ks == 0 else vr(d, 4))
        if ks == 8:
            a.I('s_waitcnt vmcnt(8)')
            a.I('s_barrier')
            sk = a.newlabel(L + 'nf')
            a.I('s_or_b32 s%d, s%d, s%d', sT, S_WAVE, sHave)
            a.I('s_cmp_lg_u32 s%d, 0x100', sT)
            a.I('s_cbranch_scc1 %s', sk)
            flag_store(a, sFlagPrev)
            a.label(sk)
            a.vm_n -= 1
    a.I('s_waitcnt vmcnt(0)')
    a.I('s_barrier')
    if kind == 'qk':
        a.I('s_lshl_b32 s%d, s%d, 18', sT, sSeg)
        a.I('s_add_u32 s%d, s%d, s%d', sT, sT, sOut)
        a.I('s_add_u32 s%d, s%d, 4096', sT + 1, sT)
        for T in range(2):
            for i in range(4):
                for tp in range(2):
                    a.I('v_cvt_pk_bf16_f32 v%d, v%d, v%d', OUT + 8 * T + 2 * i + tp, ACC + 16 * T + 8 * tp + i, ACC + 16 * T + 8 * tp + 4 + i)
            for hf in range(2):
                a.I('buffer_store_dwordx4 v[%d:%d], v%d, %s, s%d offen offset:%d sc1', OUT + 8 * T + 4 * hf, OUT + 8 * T + 4 * hf + 3,
                    vL16, WS, sT + T, 1024 * hf)
    elif kind == 'v':
        a.I('s_lshl_b32 s%d, s%d, 18', sT, sSeg)
        a.I('s_add_u32 s%d, s%d, s%d', sT, sT, sOut)
        for t in range(4):
            for T in range(2):
                for i2 in range(2):
                    a.I('v_cvt_pk_bf16_f32 v%d, v%d, v%d', OUT + 4 * t + 2 * T + i2, ACC + 16 * T + 4 * t + 2 * i2, ACC + 16 * T + 4 * t + 2 * i2 + 1)
            a.I('buffer_store_dwordx4 v[%d:%d], v%d, %s, s%d offen offset:%d sc1', OUT + 4 * t, OUT + 4 * t + 3, vL16, WS, sT, 1024 * t)
    else:
        a.I('s_mul_i32 s%d, s%d, %d', sT, sSeg, 2 * 56 * 1024)
        a.I('s_add_u32 s%d, s%d, s%d', sT, sT, sOut)
        a.I('s_add_u32 s%d, s%d, %d', sT + 1, sT, 56 * 1024)
        for T in range(2):
            for i in range(4):
                g0, g1, u0, u1 = [ACC + 16 * T + 4 * t + i for t in range(4)]
                a.I('v_cvt_pk_bf16_f32 v%d, v%d, v%d', g0, g0, g1)
                a.I('v_cvt_pk_bf16_f32 v%d, v%d, v%d', u0, u0, u1)
                a.I('v_and_b32 v%d, 0xffff0000, v%d', g1, g0)
                a.I('v_and_b32 v%d, 0xffff0000, v%d', u1, u0)
                a.I('v_lshlrev_b32 v%d, 16, v%d', g0, g0)
                a.I('v_lshlrev_b32 v%d, 16, v%d', u0, u0)
                a.I('v_mul_f32 v%d, v%d, v%d', g0, g0, u0)
                a.I('v_mul_f32 v%d, v%d, v%d', g1, g1, u1)
                a.I('v_cvt_pk_bf16_f32 v%d, v%d, v%d', OUT + 4 * T + i, g0, g1)
            a.I('buffer_store_dwordx4 v[%d:%d], v%d, %s, s%d offen sc1', OUT + 4 * T, OUT + 4 * T + 3, vL16, WS, sT + T)
    a.I('s_lshl_b32 s%d, s%d, %d', sT, sSeg, 6 if kind == 'h' else 5)
    a.I('s_add_u32 s%d, s%d, s%d', sFlagPrev, sT, sFlagBase)
    a.I('s_mov_b32 s%d, 0x100', sHave)
    a.I('v_xor_b32 v%d, 32768, v%d', vWb, vWb)
    a.I('s_add_u32 s%d, s%d, s%d', sSeg, sSeg, sStride)
    a.I('s_cmp_lt_u32 s%d, 64', sSeg)
    a.I('s_cbranch_scc1 %sloop', L)
    a.I('s_waitcnt vmcnt(0)')
    a.I('s_barrier')
    sk = a.newlabel(L + 'nf')
    a.I('s_cmp_lg_u32 s%d, 0', S_WAVE)
    a.I('s_cbranch_scc1 %s', sk)
    flag_store(a, sFlagPrev)
    a.label(sk)
    a.I('s_branch A_done')


def wait_xn(a):
    wait_dbg(a, D_FINIT, 1, V=FR)
    lab = a.newlabel('WX')
    a.I('v_lshrrev_b32 v%d, 1, v%d', FR + 2, vL16)
    a.I('s_mov_b32 s%d, 0x%x', sT + 1, WS_FLAGS + FL_XN)
    a.I('s_mov_b32 s%d, 0', sSpin)
    a.label(lab)
    a.I('buffer_load_dwordx2 v[%d:%d], v%d, %s, s%d offen sc1', FR, FR + 1, FR + 2, WS, sT + 1)
    spin(a)
    a.I('s_waitcnt vmcnt(0)')
    a.I('v_min_u32 v%d, v%d, v%d', FR, FR, FR + 1)
    a.I('v_cmp_eq_u32 vcc, 0, v%d', FR)
    done = a.newlabel('WXd')
    a.I('s_cbranch_vccz %s', done)
    a.I('s_sleep 2')
    a.I('s_branch %s', lab)
    a.label(done)


def gen_phase_a(a):
    a.c('================ phase A: projections, ticket in s%d ================' % S_ROLE)
    lane_consts(a)
    a.I('v_lshlrev_b32 v%d, 10, v%d', vSrc, vN)
    a.I('v_lshl_add_u32 v%d, v%d, 4, v%d', vSrc, vG, vSrc)
    a.I('s_lshr_b32 s%d, s%d, 1', sT, S_WAVE)
    a.I('s_lshl_b32 s%d, s%d, 14', sT, sT)
    a.I('s_and_b32 s%d, s%d, 1', sT + 1, S_WAVE)
    a.I('s_lshl_b32 s%d, s%d, 9', sT + 1, sT + 1)
    a.I('s_add_u32 s%d, s%d, s%d', sT, sT, sT + 1)
    a.I('v_add_u32 v%d, s%d, v%d', vSrc, sT, vSrc)
    a.I('s_cmp_ge_u32 s%d, 218', S_ROLE)
    a.I('s_cbranch_scc1 A_done')
    a.I('s_cmp_ge_u32 s%d, 176', S_ROLE)
    a.I('s_cbranch_scc1 A_h')
    a.I('s_and_b32 s%d, s%d, 31', sSlice, S_ROLE)
    a.I('s_lshr_b32 s%d, s%d, 5', sSeg, S_ROLE)
    a.I('s_mov_b32 s%d, 4', sStride)
    a.I('s_cmp_lt_u32 s%d, 128', S_ROLE)
    a.I('s_cbranch_scc1 A_kv')
    a.I('s_sub_u32 s%d, s%d, 128', sT, S_ROLE)
    a.I('s_and_b32 s%d, s%d, 15', sSlice, sT)
    a.I('s_add_u32 s%d, s%d, 32', sSlice, sSlice)
    a.I('s_lshr_b32 s%d, s%d, 4', sSeg, sT)
    a.I('s_mov_b32 s%d, 3', sStride)
    if HOLD:
        wait_dbg(a, D_WDONE, HOLD, V=FR, sleep=16)
    a.label('A_kv')
    a.I('s_and_b32 s%d, s%d, 15', sT, sSlice)
    a.I('s_lshl_b32 s%d, s%d, 9', sCol, sT)
    a.I('s_lshl_b32 s%d, s%d, 7', sT + 1, S_WAVE)
    a.I('s_add_u32 s%d, s%d, s%d', sCol, sCol, sT + 1)
    a.I('s_lshl_b32 s%d, s%d, 14', sOut, sT)
    a.I('s_lshr_b32 s%d, s%d, 1', sT + 1, S_WAVE)
    a.I('s_lshl_b32 s%d, s%d, 13', sT + 1, sT + 1)
    a.I('s_add_u32 s%d, s%d, s%d', sOut, sOut, sT + 1)
    a.I('s_and_b32 s%d, s%d, 1', sT + 2, S_WAVE)
    a.I('s_lshr_b32 s%d, s%d, 4', sT + 3, sSlice)
    a.I('s_lshl_b32 s%d, s%d, 11', sFlagBase, sT)
    a.I('s_add_u32 s%d, s%d, 0x%x', sFlagBase, sFlagBase, WS_FLAGS + FL_KV)
    a.I('s_cmp_eq_u32 s%d, 1', sT + 3)
    a.I('s_cbranch_scc1 A_v')
    a.I('s_lshl_b32 s%d, s%d, 11', sT + 2, sT + 2)
    a.I('s_add_u32 s%d, s%d, s%d', sOut, sOut, sT + 2)
    a.I('s_cmp_eq_u32 s%d, 0', sT + 3)
    a.I('s_cselect_b32 s%d, s%d, s%d', S_W, P_WK, P_WQ)
    a.I('s_cselect_b32 s%d, s%d, s%d', S_W + 1, P_WK + 1, P_WQ + 1)
    a.I('s_cselect_b32 s%d, 0, 8', sT + 1)
    a.I('s_cselect_b32 s%d, 0x%x, 0x%x' % (sT, WS_K >> 20, WS_Q >> 20))
    a.I('s_add_u32 s%d, s%d, s%d', sFlagBase, sFlagBase, sT + 1)
    a.I('s_lshl_b32 s%d, s%d, 20', sT, sT)
    a.I('s_add_u32 s%d, s%d, s%d', sOut, sOut, sT)
    a.I('s_and_b32 s%d, s%d, 0xffff', S_W + 1, S_W + 1)
    a.I('s_mov_b32 s%d, 4194304', S_W + 2)
    a.I('s_mov_b32 s%d, 0x20000', S_W + 3)
    a.I('s_branch A_w')
    a.label('A_v')
    a.I('s_lshl_b32 s%d, s%d, 12', sT + 2, sT + 2)
    a.I('s_add_u32 s%d, s%d, s%d', sOut, sOut, sT + 2)
    a.I('s_add_u32 s%d, s%d, 0x%x', sOut, sOut, WS_V)
    a.I('s_add_u32 s%d, s%d, 16', sFlagBase, sFlagBase)
    srd(a, S_W, P_WV, 4194304)
    a.label('A_w')
    gemm_weights(a, False)
    bstamp(a, 2)
    wait_xn(a)
    bstamp(a, 3)
    a.I('s_lshr_b32 s%d, s%d, 4', sT + 3, sSlice)
    a.I('s_cmp_eq_u32 s%d, 1', sT + 3)
    a.I('s_cbranch_scc1 A_vloop')
    gemm_loop(a, 'qk')
    a.label('A_vloop')
    gemm_loop(a, 'v')
    a.label('A_h')
    if HOLD:
        wait_dbg(a, D_WDONE, HOLD, V=FR, sleep=16)
    a.I('s_sub_u32 s%d, s%d, 176', sT, S_ROLE)
    a.I('s_mov_b32 s%d, 0', sSeg)
    for k in range(2):
        a.I('s_cmp_ge_u32 s%d, 14', sT)
        a.I('s_cselect_b32 s%d, 14, 0', sT + 1)
        a.I('s_sub_u32 s%d, s%d, s%d', sT, sT, sT + 1)
        a.I('s_lshr_b32 s%d, s%d, 3', sT + 1, sT + 1)
        a.I('s_add_u32 s%d, s%d, s%d', sSeg, sSeg, sT + 1)
    a.I('s_add_u32 s%d, s%d, 48', sSlice, sT)
    a.I('s_mov_b32 s%d, 3', sStride)
    a.I('s_lshl_b32 s%d, s%d, 2', sT, sT)
    a.I('s_add_u32 s%d, s%d, 0x%x', sFlagBase, sT, WS_FLAGS + FL_H)
    a.I('s_add_u32 s%d, s%d, s%d', sT, sT, S_WAVE)
    a.I('s_lshl_b32 s%d, s%d, 6', sCol, sT)
    a.I('s_lshl_b32 s%d, s%d, 10', sOut, sT)
    a.I('s_add_u32 s%d, s%d, 0x%x', sOut, sOut, WS_H)
    srd(a, S_W, P_WG, 512 * 3584)
    srd(a, S_W2, P_WU, 512 * 3584)
    gemm_weights(a, True)
    bstamp(a, 2)
    wait_xn(a)
    bstamp(a, 3)
    gemm_loop(a, 'h')
    a.label('A_done')
    bstamp(a, 4)


def poll_flags(a, vaddr, soff, nlanes, smin, V, sleep=2, far=None):
    lab = a.newlabel('PF')
    done = a.newlabel('PFd')
    a.I('s_mov_b32 s%d, 0', sSpin)
    a.I('s_mov_b64 exec, 0x%x', (1 << nlanes) - 1)
    a.label(lab)
    a.I('buffer_load_dword v%d, v%d, %s, s%d offen sc1', V, vaddr, WS, soff)
    spin(a)
    a.I('s_waitcnt vmcnt(0)')
    if smin is None:
        a.I('v_cmp_eq_u32 vcc, 0, v%d', V)
    else:
        a.I('v_cmp_gt_u32 vcc, s%d, v%d', smin, V)
    a.I('s_cbranch_vccz %s', done)
    a.I('s_sleep %d', sleep)
    if far:
        a.I('v_readfirstlane_b32 s%d, v%d', sT, V)
        a.I('s_add_u32 s%d, s%d, %d', sT, sT, far[0])
        a.I('s_cmp_ge_u32 s%d, s%d', sT, smin)
        a.I('s_cbranch_scc1 %s', lab)
        a.I('s_sleep %d', far[1])
    a.I('s_branch %s', lab)
    a.label(done)
    a.I('s_mov_b64 exec, -1')


NT1 = 96


def gen_t1(a):
    a.c('================ T1: token attention ================')
    sTask, sSegT, sHead, sBase, sB2, sNeed, sC = 64, 65, 66, 67, 68, 69, 70
    sMask = 72
    sLo = 80
    vKm, vVm, vF64, vF128, vNeg = 5, 6, 7, 8, 9
    TM = 10
    QF, KF, VF, KM, VM, S, P, O = 16, 48, 80, 112, 128, 144, 164, 176
    lane_consts(a)
    a.I('s_mov_b32 s%d, 0x%x', sC, f32bits(128 ** -0.5 * 1.4426950408889634))
    a.I('v_mov_b32 v%d, 0x%x', vNeg, f32bits(-3.0e38))
    a.I('v_lshlrev_b32 v%d, 2, v%d', TM, vG)
    for i in range(4):
        a.I('v_add_u32 v%d, %d, v%d', TM + 1, i, TM)
        a.I('v_cmp_le_u32 s[%d:%d], v%d, v%d', sMask + 2 * i, sMask + 2 * i + 1, TM + 1, vN)
    a.I('s_mov_b32 s%d, -1', sLo)
    a.I('s_mov_b32 s%d, 0', sLo + 1)
    a.I('v_lshlrev_b32 v%d, 3, v%d', vF64, vLane)
    a.I('v_lshlrev_b32 v%d, 7, v%d', vF128, vLane)
    a.I('v_lshrrev_b32 v%d, 1, v%d', TM, vG)
    a.I('v_lshlrev_b32 v%d, 10, v%d', vKm, TM)
    a.I('v_and_b32 v%d, 1, v%d', TM, vG)
    a.I('v_lshl_add_u32 v%d, v%d, 7, v%d', vKm, TM, vKm)
    a.I('v_bfe_u32 v%d, v%d, 1, 2', TM, vN)
    a.I('v_lshl_add_u32 v%d, v%d, 8, v%d', vKm, TM, vKm)
    a.I('v_and_b32 v%d, 1, v%d', TM, vN)
    a.I('v_lshl_add_u32 v%d, v%d, 2, v%d', vKm, TM, vKm)
    a.I('v_add_u32 v%d, 4, v%d', vKm, vKm)
    a.I('v_lshrrev_b32 v%d, 3, v%d', TM, vN)
    a.I('v_lshlrev_b32 v%d, 10, v%d', vVm, TM)
    a.I('v_and_b32 v%d, 1, v%d', TM, vG)
    a.I('v_lshl_add_u32 v%d, v%d, 9, v%d', vVm, TM, vVm)
    a.I('v_and_b32 v%d, 7, v%d', TM, vN)
    a.I('v_lshl_add_u32 v%d, v%d, 5, v%d', vVm, TM, vVm)
    a.I('s_lshl_b32 s%d, s%d, 12', sT, S_WAVE)
    a.I('v_add_u32 v%d, s%d, v%d', vKm, sT, vKm)
    a.I('v_add_u32 v%d, s%d, v%d', vVm, sT, vVm)
    a.I('s_lshl_b32 s%d, s%d, 2', sTask, S_ROLE)
    a.I('s_add_u32 s%d, s%d, s%d', sTask, sTask, S_WAVE)
    sDone, sFlO = 71, 82
    a.I('s_mov_b32 s%d, 0', sDone)
    a.I('s_lshl_b32 s%d, s%d, 7', sFlO, S_ROLE)
    a.I('s_lshl_b32 s%d, s%d, 2', sT, S_WAVE)
    a.I('s_add_u32 s%d, s%d, s%d', sFlO, sFlO, sT)
    a.I('s_add_u32 s%d, s%d, 0x%x', sFlO, sFlO, WS_FLAGS + FL_O)
    bstamp(a, 5)
    a.label('T1_loop')
    a.I('s_lshr_b32 s%d, s%d, 5', sSegT, sTask)
    a.I('s_and_b32 s%d, s%d, 31', sHead, sTask)
    a.I('s_lshl_b32 s%d, s%d, 5', sT + 1, sSegT)
    a.I('s_lshr_b32 s%d, s%d, 1', sT + 2, sHead)
    a.I('s_lshl_b32 s%d, s%d, 11', sT + 2, sT + 2)
    a.I('s_add_u32 s%d, s%d, s%d', sT + 1, sT + 1, sT + 2)
    a.I('s_add_u32 s%d, s%d, 0x%x', sT + 1, sT + 1, WS_FLAGS + FL_KV)
    poll_flags(a, vF64, sT + 1, 3, None, TM, sleep=8)
    a.I('s_lshl_b32 s%d, s%d, 13', sBase, sTask)
    tk = {}
    for nm, R, W0 in (('k', KF, WS_K), ('q', QF, WS_Q), ('v', VF, WS_V)):
        a.I('s_add_u32 s%d, s%d, 0x%x', sT + 1, sBase, W0)
        a.I('s_add_u32 s%d, s%d, 0x%x', sT + 2, sBase, W0 + 4096)
        for f in range(8):
            tk[nm, f] = a.I('buffer_load_dwordx4 v[%d:%d], v%d, %s, s%d offen offset:%d sc1', R + 4 * f, R + 4 * f + 3, vL16, WS,
                            sT + 1 + f // 4, (f % 4) * 1024)
    a.wait(tk['q', 7])
    for (D, Tk, Tq) in ((S, 0, 0), (S + 8, 0, 1), (S + 12, 1, 1)):
        for f in range(4):
            a.I('v_mfma_f32_16x16x32_bf16 v[%d:%d], %s, %s, %s', D, D + 3, vr(KF + 16 * Tk + 4 * f, 4), vr(QF + 16 * Tq + 4 * f, 4),
                '0' if f == 0 else vr(D, 4))
    a.I('s_add_u32 s%d, s%d, 1', sNeed, sSegT)
    a.I('s_lshl_b32 s%d, s%d, 9', sT + 1, sHead)
    a.I('s_add_u32 s%d, s%d, 0x%x', sT + 1, sT + 1, WS_FLAGS + FL_KM)
    for i in range(4):
        a.I('v_cndmask_b32 v%d, v%d, v%d, s[%d:%d]', S + i, vNeg, S + i, sMask + 2 * i, sMask + 2 * i + 1)
        a.I('v_cndmask_b32 v%d, v%d, v%d, s[%d:%d]', S + 12 + i, vNeg, S + 12 + i, sMask + 2 * i, sMask + 2 * i + 1)
    a.I('v_max3_f32 v%d, v%d, v%d, v%d', TM + 2, S, S + 1, S + 2)
    a.I('v_max_f32 v%d, v%d, v%d', TM + 2, TM + 2, S + 3)
    a.I('v_max3_f32 v%d, v%d, v%d, v%d', TM + 3, S + 8, S + 9, S + 10)
    a.I('v_max3_f32 v%d, v%d, v%d, v%d', TM + 3, TM + 3, S + 11, S + 12)
    a.I('v_max3_f32 v%d, v%d, v%d, v%d', TM + 3, TM + 3, S + 13, S + 14)
    a.I('v_max_f32 v%d, v%d, v%d', TM + 3, TM + 3, S + 15)
    poll_flags(a, vF128, sT + 1, 4, sNeed, TM, sleep=2, far=(3, 60))
    bstamp(a, 2, V=250)
    a.I('s_lshl_b32 s%d, s%d, 12', sB2, sTask)
    a.I('s_add_u32 s%d, s%d, 0x%x', sB2, sB2, WS_VM)
    a.I('s_lshl_b32 m0, s%d, 12', S_WAVE)
    for k in range(4):
        a.I('buffer_load_dwordx4 v%d, %s, s%d offen offset:%d sc1 lds', vL16, WS, sB2, k * 1024)
    a.I('s_waitcnt vmcnt(0)')
    for f in range(4):
        o = ((f // 2) * 2048 + (f % 2) * 64) // 4
        if f == 2:
            a.I('v_add_u32 v%d, 2048, v%d', TM, vKm)
        for c in range(0, 4, 2):
            t = a.I('ds_read2_b32 v[%d:%d], v%d offset0:%d offset1:%d', KM + 4 * f + c, KM + 4 * f + c + 1, vKm if f < 2 else TM,
                    (f % 2) * 16 + c * 4, (f % 2) * 16 + c * 4 + 4)
        tk['km', f] = t
    a.I('v_add_u32 v%d, 2048, v%d', TM + 1, vVm)

    def rvm(tau):
        G, t = tau // 4, tau % 4
        o = (t // 2) * 4 + (t % 2) * 3
        tk['vm'] = a.I('ds_read2_b32 v[%d:%d], v%d offset0:%d offset1:%d', VM + 2 * tau, VM + 2 * tau + 1, vVm if G == 0 else TM + 1, o, o + 64)
    for f in range(4):
        a.wait(tk['km', f])
        for Tq, D in ((0, S + 4), (1, S + 16)):
            a.I('v_mfma_f32_16x16x32_bf16 v[%d:%d], %s, %s, %s', D, D + 3, vr(KM + 4 * f, 4), vr(QF + 16 * Tq + 4 * f, 4), '0' if f == 0 else vr(D, 4))
    for tau in range(8):
        rvm(tau)
    MX = [TM + 2, TM + 3]
    MT = [TM + 4, TM + 5]
    for Tq, D in ((0, S + 4), (1, S + 16)):
        a.I('v_max3_f32 v%d, v%d, v%d, v%d', MX[Tq], MX[Tq], D, D + 1)
        a.I('v_max3_f32 v%d, v%d, v%d, v%d', MX[Tq], MX[Tq], D + 2, D + 3)
    for op in ('v_permlane32_swap_b32', 'v_permlane16_swap_b32'):
        for Tq in range(2):
            a.I('v_mov_b32 v%d, v%d', MT[Tq], MX[Tq])
        for Tq in range(2):
            a.I('%s v%d, v%d', op, MX[Tq], MT[Tq])
        for Tq in range(2):
            a.I('v_max_f32 v%d, v%d, v%d', MX[Tq], MX[Tq], MT[Tq])
    for Tq, D in ((0, S + 4), (1, S + 16)):
        a.I('v_mul_f32 v%d, s%d, v%d', MX[Tq], sC, MX[Tq])
        for i in range(4):
            a.I('v_cndmask_b32 v%d, v%d, v%d, s[%d:%d]', D + i, vNeg, D + i, sLo, sLo + 1)
    rng = {0: range(S, S + 8), 1: range(S + 8, S + 20)}
    for Tq in range(2):
        for r in rng[Tq]:
            a.I('v_fma_f32 v%d, v%d, s%d, -v%d', r, r, sC, MX[Tq])
        for r in rng[Tq]:
            a.I('v_exp_f32 v%d, v%d', r, r)
    a.I('v_cvt_pk_bf16_f32 v%d, v%d, v%d', P, S, S + 1)
    a.I('v_cvt_pk_bf16_f32 v%d, v%d, v%d', P + 1, S + 2, S + 3)
    a.I('v_mov_b32 v%d, 0', P + 2)
    a.I('v_mov_b32 v%d, 0', P + 3)
    for k in range(4):
        a.I('v_cvt_pk_bf16_f32 v%d, v%d, v%d', P + 4 + k, S + 8 + 2 * k, S + 9 + 2 * k)
    for Tq, D in ((0, S + 4), (1, S + 16)):
        a.I('v_cvt_pk_bf16_f32 v%d, v%d, v%d', P + 8 + 2 * Tq, D, D + 1)
        a.I('v_cvt_pk_bf16_f32 v%d, v%d, v%d', P + 9 + 2 * Tq, D + 2, D + 3)
    for Tq in range(2):
        for tau in range(8):
            D = O + 32 * Tq + 4 * tau
            a.I('v_mfma_f32_16x16x32_bf16 v[%d:%d], %s, %s, 0', D, D + 3, vr(VF + 4 * tau, 4), vr(P + 4 * Tq, 4))
            if Tq == 0:
                k = tau
                if k == 0:
                    a.I('v_add_f32 v%d, v%d, v%d', MX[0], S, S + 1)
                    a.I('v_add_f32 v%d, v%d, v%d', MX[1], S + 8, S + 9)
                elif k < 7:
                    a.I('v_add_f32 v%d, v%d, v%d', MX[0], MX[0], S + 1 + k)
                    a.I('v_add_f32 v%d, v%d, v%d', MX[1], MX[1], S + 9 + k)
                else:
                    a.I('v_add_f32 v%d, v%d, v%d', MX[1], MX[1], S + 16)
                    a.I('v_add_f32 v%d, v%d, v%d', MX[1], MX[1], S + 17)
            elif tau == 0:
                a.I('v_add_f32 v%d, v%d, v%d', MX[1], MX[1], S + 18)
                a.I('v_add_f32 v%d, v%d, v%d', MX[1], MX[1], S + 19)
    a.wait(tk['vm'])
    for Tq in range(2):
        for tau in range(8):
            D = O + 32 * Tq + 4 * tau
            a.I('v_mfma_f32_16x16x16_bf16 v[%d:%d], %s, %s, %s', D, D + 3, vr(VM + 2 * tau, 2), vr(P + 8 + 2 * Tq, 2), vr(D, 4))
    for op in ('v_permlane32_swap_b32', 'v_permlane16_swap_b32'):
        for Tq in range(2):
            a.I('v_mov_b32 v%d, v%d', MT[Tq], MX[Tq])
        for Tq in range(2):
            a.I('%s v%d, v%d', op, MX[Tq], MT[Tq])
        for Tq in range(2):
            a.I('v_add_f32 v%d, v%d, v%d', MX[Tq], MX[Tq], MT[Tq])
    for Tq in range(2):
        a.I('v_rcp_f32 v%d, v%d', MX[Tq], MX[Tq])
    bstamp(a, 3, V=250)
    a.I('s_add_u32 s%d, s%d, 0x%x', sT + 1, sBase, WS_O)
    a.I('s_add_u32 s%d, s%d, 0x%x', sT + 2, sBase, WS_O + 4096)
    for Tq in range(2):
        for G in range(2):
            B = O + 32 * Tq + 16 * G
            for r in range(16):
                a.I('v_mul_f32 v%d, v%d, v%d', B + r, B + r, MX[Tq])
            PK = KF + 16 * Tq + 8 * G
            for i in range(4):
                for tp in range(2):
                    a.I('v_cvt_pk_bf16_f32 v%d, v%d, v%d', PK + 2 * i + tp, B + 8 * tp + i, B + 8 * tp + 4 + i)
            for hf in range(2):
                a.I('buffer_store_dwordx4 v[%d:%d], v%d, %s, s%d offen offset:%d sc1', PK + 4 * hf, PK + 4 * hf + 3, vL16, WS, sT + 1 + Tq,
                    G * 2048 + hf * 1024)
    a.I('s_add_u32 s%d, s%d, 1', sDone, sDone)
    a.I('s_waitcnt vmcnt(0)')
    flag_store(a, sFlO, V=TM, val='s%d' % sDone)
    a.I('s_add_u32 s%d, s%d, %d', sTask, sTask, NT1 * 4)
    a.I('s_cmp_lt_u32 s%d, 2048', sTask)
    a.I('s_cbranch_scc1 T1_loop')
    bstamp(a, 6)
    a.I('s_endpgm')


def gen_t2(a):
    a.c('================ T2: output projection + FFN down + final ================')
    sTile, sSl, sSegT, sPar, sOB, sXO, sL2e = 64, 65, 66, 67, 68, 69, 70
    vW1, vW2, vF4, vLw, vLr, vXo = 5, 6, 7, 8, 9, 10
    TM = 12
    SA, FA = 20, 28
    BUF = 36
    XR = 132
    HW = 144
    lane_consts(a)
    a.I('s_and_b32 s%d, s%d, 15', sSl, S_ROLE)
    a.I('s_lshr_b32 s%d, s%d, 4', sTile, S_ROLE)
    a.I('s_mov_b32 s%d, 0x%x', sL2e, f32bits(-1.4426950408889634))
    a.I('v_lshlrev_b32 v%d, 14, v%d', vW1, vG)
    a.I('v_lshl_add_u32 v%d, v%d, 2, v%d', vW1, vN, vW1)
    a.I('v_lshlrev_b32 v%d, 13, v%d', vW2, vG)
    a.I('v_lshl_add_u32 v%d, v%d, 2, v%d', vW2, vN, vW2)
    a.I('v_lshlrev_b32 v%d, 2, v%d', vF4, vLane)
    vFO, sNeedO = 11, 71
    a.I('v_lshrrev_b32 v%d, 2, v%d', vFO, vLane)
    a.I('v_lshlrev_b32 v%d, 7, v%d', vFO, vFO)
    a.I('v_and_b32 v%d, 3, v%d', TM, vLane)
    a.I('v_lshl_add_u32 v%d, v%d, 2, v%d', vFO, TM, vFO)
    a.I('s_lshl_b32 s%d, s%d, 12', sT, S_WAVE)
    a.I('v_add_u32 v%d, s%d, v%d', vLw, sT, vL16)
    a.I('s_lshl_b32 s%d, s%d, 10', sT, S_WAVE)
    a.I('v_add_u32 v%d, s%d, v%d', vLr, sT, vL16)
    a.I('v_lshlrev_b32 v%d, 10, v%d', vXo, vN)
    a.I('v_lshl_add_u32 v%d, v%d, 4, v%d', vXo, vG, vXo)
    a.I('s_lshl_b32 s%d, s%d, 6', sT, sSl)
    a.I('s_lshl_b32 s%d, s%d, 2', sT + 1, S_WAVE)
    a.I('s_add_u32 s%d, s%d, s%d', sT, sT, sT + 1)
    a.I('v_add_u32 v%d, s%d, v%d', vXo, sT, vXo)
    srd(a, S_W, P_WO, 4194304)
    srd(a, S_W2, P_WD, 1792 * 1024)
    sWo, sWd = sT + 2, sT + 3
    a.I('s_lshl_b32 s%d, s%d, 6', sT, sSl)
    a.I('s_lshl_b32 s%d, s%d, 20', sWo, S_WAVE)
    a.I('s_add_u32 s%d, s%d, s%d', sWo, sWo, sT)
    a.I('s_mul_i32 s%d, s%d, %d', sWd, S_WAVE, 14 * 32 * 1024)
    a.I('s_add_u32 s%d, s%d, s%d', sWd, sWd, sT)
    frs = [('d', j) for j in range(14)] + [('o', j) for j in range(32)]
    GS = 2
    groups = [frs[i:i + GS] for i in range(0, len(frs), GS)]
    NB = 3
    toks = {}

    def issue(gi):
        b = BUF + 16 * (gi % (NB + 1))
        for q, (kind, j) in enumerate(groups[gi]):
            for e in range(8):
                if kind == 'o':
                    row = (j // 4) * 128 + 64 * ((j % 4) // 2) + 8 * (j % 2) + e
                    a.I('s_add_u32 s%d, s%d, %d', sT, sWo, row * 1024)
                    t = a.I('buffer_load_dword v%d, v%d, s[%d:%d], s%d offen', b + 8 * q + e, vW1, S_W, S_W + 3, sT)
                else:
                    a.I('s_add_u32 s%d, s%d, %d', sT, sWd, (32 * j + e) * 1024)
                    t = a.I('buffer_load_dword v%d, v%d, s[%d:%d], s%d offen', b + 8 * q + e, vW2, S_W2, S_W2 + 3, sT)
        toks[gi] = t

    def consume(gi):
        b = BUF + 16 * (gi % (NB + 1))
        a.wait(toks[gi])
        for q, (kind, j) in enumerate(groups[gi]):
            for t in range(2):
                for p in range(4):
                    dst = HW + 8 * j + 4 * t + p if kind == 'd' else TM + 4 * t + p
                    a.I('v_perm_b32 v%d, v%d, v%d, s%d', dst, b + 8 * q + 2 * p + 1, b + 8 * q + 2 * p, sPermLo if t == 0 else sPermHi)
            if kind == 'o':
                for k in range(8):
                    a.I('v_accvgpr_write_b32 a%d, v%d', 8 * j + k, TM + k)
    for gi in range(NB):
        issue(gi)
    for gi in range(len(groups)):
        if gi + NB < len(groups):
            issue(gi + NB)
        consume(gi)
    srd(a, S_W, P_X, 2097152)
    srd(a, S_W2, P_OUT, 2097152)
    a.I('s_mov_b32 s%d, 0', sPar)
    bstamp(a, 5)
    a.label('T2_loop')
    a.I('s_lshr_b32 s%d, s%d, 1', sSegT, sTile)
    a.I('s_lshl_b32 s%d, s%d, 6', sT + 1, sSegT)
    a.I('s_add_u32 s%d, s%d, 0x%x', sT + 1, sT + 1, WS_FLAGS + FL_H)
    poll_flags(a, vF4, sT + 1, 14, None, TM, sleep=8)
    a.I('s_mul_i32 s%d, s%d, %d', sT + 1, sTile, 56 * 1024)
    a.I('s_mul_i32 s%d, s%d, %d', sT + 2, S_WAVE, 14 * 1024)
    a.I('s_add_u32 s%d, s%d, s%d', sT + 1, sT + 1, sT + 2)
    a.I('s_add_u32 s%d, s%d, 0x%x', sT + 1, sT + 1, WS_H)
    ht = []
    for j in range(14):
        if j and j % 4 == 0:
            a.I('s_add_u32 s%d, s%d, 4096', sT + 1, sT + 1)
        ht.append(a.I('buffer_load_dwordx4 v[%d:%d], v%d, %s, s%d offen offset:%d sc1', BUF + 4 * j, BUF + 4 * j + 3, vL16, WS, sT + 1, (j % 4) * 1024))
    a.I('s_lshl_b32 s%d, s%d, 14', sXO, sTile)
    a.I('buffer_load_dword v%d, v%d, s[%d:%d], s%d offen', XR, vXo, S_W, S_W + 3, sXO)
    for j in range(14):
        a.wait(ht[j])
        for t in range(2):
            a.I('v_mfma_f32_16x16x32_bf16 v[%d:%d], %s, %s, %s', FA + 4 * t, FA + 4 * t + 3, vr(HW + 8 * j + 4 * t, 4), vr(BUF + 4 * j, 4),
                '0' if j == 0 else vr(FA + 4 * t, 4))
    assert NT1 == 96
    a.I('s_mul_i32 s%d, s%d, 43', sNeedO, sSegT)
    a.I('s_lshr_b32 s%d, s%d, 9', sNeedO, sNeedO)
    a.I('s_mul_i32 s%d, s%d, 12', sT + 1, sNeedO)
    a.I('s_sub_u32 s%d, s%d, s%d', sT + 1, sSegT, sT + 1)
    a.I('s_lshl_b32 s%d, s%d, 10', sT + 1, sT + 1)
    a.I('s_lshl_b32 s%d, s%d, 8', sT + 2, S_WAVE)
    a.I('s_add_u32 s%d, s%d, s%d', sT + 1, sT + 1, sT + 2)
    a.I('s_add_u32 s%d, s%d, 0x%x', sT + 1, sT + 1, WS_FLAGS + FL_O)
    a.I('s_add_u32 s%d, s%d, 1', sNeedO, sNeedO)
    a.I('s_lshl_b32 s%d, s%d, 18', sOB, sSegT)
    a.I('s_lshl_b32 s%d, s%d, 16', sT + 2, S_WAVE)
    a.I('s_add_u32 s%d, s%d, s%d', sOB, sOB, sT + 2)
    a.I('s_and_b32 s%d, s%d, 1', sT + 2, sTile)
    a.I('s_lshl_b32 s%d, s%d, 12', sT + 2, sT + 2)
    a.I('s_add_u32 s%d, s%d, s%d', sOB, sOB, sT + 2)
    a.I('s_add_u32 s%d, s%d, 0x%x', sOB, sOB, WS_O)
    for t in range(2):
        for i in range(4):
            a.I('ds_write_b32 v%d, v%d offset:%d', vLw, FA + 4 * t + i, i * 1024 + 8 + 4 * t)
    poll_flags(a, vFO, sT + 1, 8, sNeedO, TM, sleep=2)
    bstamp(a, 2, V=134)
    ot = {}

    def oload(j):
        if j % 4 == 0:
            a.I('s_add_u32 s%d, s%d, %d', sT + 1, sOB, (j // 4) * 8192)
        r = BUF + 4 * (j % 24)
        ot[j] = a.I('buffer_load_dwordx4 v[%d:%d], v%d, %s, s%d offen offset:%d sc1', r, r + 3, vL16, WS, sT + 1, (j % 4) * 1024)
    for j in range(24):
        oload(j)
    for j in range(32):
        a.wait(ot[j])
        r = BUF + 4 * (j % 24)
        for t in range(2):
            a.I('v_mfma_f32_16x16x32_bf16 v[%d:%d], %s, %s, %s', SA + 4 * t, SA + 4 * t + 3, ar(8 * j + 4 * t, 4), vr(r, 4),
                '0' if j == 0 else vr(SA + 4 * t, 4))
        if j + 24 < 32:
            oload(j + 24)
    bstamp(a, 3, V=134)
    if BST:
        a.I('s_nop 7')
    for t in range(2):
        for i in range(4):
            a.I('ds_write_b32 v%d, v%d offset:%d', vLw, SA + 4 * t + i, i * 1024 + 4 * t)
    a.I('s_waitcnt lgkmcnt(0)')
    a.I('s_barrier')
    R = BUF
    for w in range(4):
        a.I('ds_read_b128 v[%d:%d], v%d offset:%d', R + 4 * w, R + 4 * w + 3, vLr, w * 4096)
    a.I('v_xor_b32 v%d, 16384, v%d', vLw, vLw)
    a.I('v_xor_b32 v%d, 16384, v%d', vLr, vLr)
    a.I('s_waitcnt lgkmcnt(0)')
    for k in range(4):
        a.I('v_add_f32 v%d, v%d, v%d', R + k, R + k, R + 4 + k)
        a.I('v_add_f32 v%d, v%d, v%d', R + 8 + k, R + 8 + k, R + 12 + k)
    for k in range(4):
        a.I('v_add_f32 v%d, v%d, v%d', R + k, R + k, R + 8 + k)

    def unpack(dst, src):
        a.I('v_and_b32 v%d, 0xffff0000, v%d', dst + 1, src)
        a.I('v_lshlrev_b32 v%d, 16, v%d', dst, src)
    a.I('v_cvt_pk_bf16_f32 v%d, v%d, v%d', R, R, R + 1)
    a.I('v_cvt_pk_bf16_f32 v%d, v%d, v%d', R + 2, R + 2, R + 3)
    unpack(R, R)
    unpack(R + 2, R + 2)
    for k in range(2):
        a.I('v_mul_f32 v%d, s%d, v%d', R + 4 + k, sL2e, R + 2 + k)
    for k in range(2):
        a.I('v_exp_f32 v%d, v%d', R + 4 + k, R + 4 + k)
    for k in range(2):
        a.I('v_add_f32 v%d, 1.0, v%d', R + 4 + k, R + 4 + k)
    for k in range(2):
        a.I('v_rcp_f32 v%d, v%d', R + 4 + k, R + 4 + k)
    for k in range(2):
        a.I('v_mul_f32 v%d, v%d, v%d', R + 2 + k, R + 2 + k, R + 4 + k)
    a.I('v_cvt_pk_bf16_f32 v%d, v%d, v%d', R + 2, R + 2, R + 3)
    unpack(R + 2, R + 2)
    for k in range(2):
        a.I('v_mul_f32 v%d, v%d, v%d', R + k, R + k, R + 2 + k)
    a.I('v_cvt_pk_bf16_f32 v%d, v%d, v%d', R, R, R + 1)
    unpack(R, R)
    unpack(R + 2, XR)
    for k in range(2):
        a.I('v_add_f32 v%d, v%d, v%d', R + k, R + k, R + 2 + k)
    a.I('v_cvt_pk_bf16_f32 v%d, v%d, v%d', TM + 1, R, R + 1)
    a.I('buffer_store_dword v%d, v%d, s[%d:%d], s%d offen', TM + 1, vXo, S_W2, S_W2 + 3, sXO)
    a.I('s_add_u32 s%d, s%d, 8', sTile, sTile)
    a.I('s_cmp_lt_u32 s%d, 128', sTile)
    a.I('s_cbranch_scc1 T2_loop')
    bstamp(a, 7)
    a.I('s_endpgm')
```

```python
import struct
from asmlib import *
from common import *

LKX, LX1, LX2, LMISC, LW = 0, 8192, 12288, 14336, 16384
LM = 8192
LWSTRIDE = 18 * 2048

vM0, vIdx, vBias, vL16, vLW, vInSt, vM1, vMxSt = 0, 1, 2, 3, 4, 5, 6, 7
vVld, vKxSrc, vX1w, vX1rq, vX1rk, vX2w, vM2, vM3 = 8, 9, 10, 11, 12, 13, 14, 15
vWarm, vDummy, vSaveV, vT0 = 16, 17, 18, 20
MEM, ACC, VT, STG, WV = 24, 56, 80, 96, 144

sStep, sTag, sMxRd = 64, 65, 66
sRing = 88
sMxWr, sMxRst = 88, 90
sW10, sStampAddr = 68, 69
sRetry = 67
sIn = 70
sInLd, sInLd2 = 72, 73
sMxW = 74
sKx, sV, sKm, sVm, sVmPrev = 75, 76, 77, 78, 79
sHalf = 80
sC = 82
sSpin = 83
sT = 84
sM0a, sM0b = 92, 93
sFl = 94
sPermLo, sPermHi = 95, 96
sWarm = 97
sMxRd2 = 98
sKvf, sKvfMax = 73, 77
sPiece = 99
sMode = 63
sC2, sNC = 30, 82
sSel = 24


def f32bits(x):
    return struct.unpack('<I', struct.pack('<f', x))[0]


def mem(k):
    return MEM + 4 * k


def acc(i):
    return ACC + 4 * i


def slot(j):
    return STG + 8 * j


WO_ORDER = [('o', b, t, ks) for b in range(2) for t in range(4) for ks in range(2)]


def placement():
    P = {}
    lds = [('q', 0, 0), ('q', 1, 0), ('k', 0, 0), ('k', 1, 0), ('v', 0, 0), ('v', 1, 0)]
    lds += WO_ORDER[0:6] + WO_ORDER[10:16]
    for i, k in enumerate(lds):
        P[k] = ('l', i)
    rest = []
    for X in 'qkv':
        for kp in range(8):
            for t in range(2):
                if (X, t, kp) not in P:
                    rest.append((X, t, kp))
    rest += WO_ORDER[6:10]
    assert len(rest) == 46
    for n, k in enumerate(rest):
        P[k] = ('v', WV + 8 * n) if n < 14 else ('a', 8 * (n - 14))
    return P


PL = placement()


def breg(key):
    kind, r = PL[key]
    if kind == 'v':
        return vr(r, 8)
    if kind == 'a':
        return ar(r, 8)
    return vr(slot(r % 6), 8)


def d0_instr(m):
    return 32 * (m // 4) + 8 * (m % 2) + 2 * ((m % 4) // 2)


def srd(a, s, ptr, size):
    a.I('s_mov_b32 s%d, s%d', s, ptr)
    a.I('s_and_b32 s%d, s%d, 0xffff', s + 1, ptr + 1)
    a.I('s_mov_b32 s%d, 0x%x', s + 2, size)
    a.I('s_mov_b32 s%d, 0x20000', s + 3)


def stamp(a, cfg, idx):
    if not cfg.get('stamps'):
        return
    if cfg['stamps'] >= 2 and idx != 0:
        return
    if cfg['stamps'] == 4:
        return
    a.I('s_memtime s[%d:%d]', 32 + 2 * idx, 33 + 2 * idx)


def gen_rec(a, cfg):
    if cfg.get('stamps') == 3:
        orig_emit = a.emit
        cnt = dict(n=0, on=False)

        def emit(line):
            if line.startswith('R_goA:'):
                cnt['on'] = True
            if cnt['on'] and (line.startswith('v_smfmac') or line.startswith('v_mfma')):
                k = cnt['n'] - cfg['st0']
                if cnt['n'] >= 12 and k >= 0 and k % cfg['stp'] == 0 and k // cfg['stp'] < 9:
                    orig_emit('s_memtime s[%d:%d]' % (34 + 2 * (k // cfg['stp']), 35 + 2 * (k // cfg['stp'])))
                cnt['n'] += 1
            return orig_emit(line)
        a.emit = emit
    fast = cfg.get('fast', True)
    stf = '' if fast else ' sc1'
    nsteps = cfg.get('nsteps', 64)
    T0, T1, T2, T3 = vT0, vT0 + 1, vT0 + 2, vT0 + 3
    WS = 's[%d:%d]' % (S_WS, S_WS + 3)
    vLane = VT + 15
    vN, vG = T0, T1
    a.c('================ recurrence role: s%d = head ================' % S_ROLE)
    if cfg.get('hxor'):
        a.I('s_xor_b32 s%d, s%d, %d', S_ROLE, S_ROLE, cfg['hxor'])
    a.I('v_and_b32 v%d, 63, v0', vLane)
    a.I('v_lshlrev_b32 v%d, 4, v%d', vL16, vLane)
    a.I('v_and_b32 v%d, 15, v%d', vN, vLane)
    a.I('v_lshrrev_b32 v%d, 4, v%d', vG, vLane)
    a.I('s_mov_b32 s%d, 0xcccccccc', sHalf)
    a.I('s_mov_b32 s%d, 0xcccccccc', sHalf + 1)
    a.I('v_mov_b32 v%d, 0x4444', vIdx)
    a.I('v_mov_b32 v%d, 0xeeee', T2)
    a.I('v_cndmask_b32 v%d, v%d, v%d, s[%d:%d]', vIdx, vIdx, T2, sHalf, sHalf + 1)
    a.I('s_mov_b32 s%d, 0', sT)
    a.I('s_mov_b32 s%d, 0x33333333', sT + 1)
    a.I('v_mov_b32 v%d, 0', vBias)
    a.I('v_mov_b32 v%d, 0x%x', T2, f32bits(3.0e38))
    a.I('v_cndmask_b32 v%d, v%d, v%d, s[%d:%d]', vBias, vBias, T2, sT, sT + 1)
    a.I('s_mov_b32 s%d, 0x%x', sC2, f32bits(128 ** -0.5 * 1.4426950408889634))
    a.I('s_mov_b32 s%d, 0x%x', sC2 + 1, f32bits(128 ** -0.5 * 1.4426950408889634))
    a.I('s_mov_b32 s%d, 0x%x', sNC, f32bits(-128 ** -0.5 * 1.4426950408889634))
    a.I('s_mov_b32 s%d, 0x05040100', sPermLo)
    a.I('s_mov_b32 s%d, 0x07060302', sPermHi)
    for k, m in enumerate((0x000f000f, 0x00f000f0, 0xaaaaaaaa)):
        a.I('s_mov_b32 s%d, 0x%x', sSel + 2 * k, m)
        a.I('s_mov_b32 s%d, 0x%x', sSel + 2 * k + 1, m)
    a.I('s_mul_i32 s%d, s%d, %d', sT, S_WAVE, LWSTRIDE)
    a.I('s_add_u32 s%d, s%d, %d', sT, sT, LW)
    a.I('v_add_u32 v%d, s%d, v%d', vLW, sT, vL16)
    a.I('s_lshl_b32 s%d, s%d, 10', sT, S_WAVE)
    a.I('s_add_u32 s%d, s%d, 0x%x', sMxW, sT, WS_MEMX)
    a.I('s_add_u32 s%d, s%d, %d', sT, sT, LM)
    a.I('v_add_u32 v%d, s%d, v%d', vM0, sT, vL16)
    a.I('v_xor_b32 v%d, 1024, v%d', vM1, vM0)
    a.I('v_xor_b32 v%d, 2048, v%d', vM2, vM0)
    a.I('v_xor_b32 v%d, 3072, v%d', vM3, vM0)
    a.I('v_lshlrev_b32 v%d, 13, v%d', vInSt, vG)
    a.I('v_lshrrev_b32 v%d, 2, v%d', T2, vN)
    a.I('v_lshl_add_u32 v%d, v%d, 11, v%d', vInSt, T2, vInSt)
    a.I('v_and_b32 v%d, 3, v%d', T2, vN)
    a.I('v_lshl_add_u32 v%d, v%d, 4, v%d', vInSt, T2, vInSt)
    a.I('s_lshl_b32 s%d, s%d, 15', sT, S_WAVE)
    a.I('s_lshl_b32 s%d, s%d, 6', sT + 1, S_ROLE)
    a.I('s_add_u32 s%d, s%d, s%d', sT, sT, sT + 1)
    a.I('s_add_u32 s%d, s%d, 0x%x', sIn, sT, WS_INBOX)
    a.I('s_add_u32 s%d, s%d, 0x%x', sIn + 1, sT, WS_INBOX + 131072)
    sPi = sT + 4
    a.I('s_lshl_b32 s%d, s%d, 1', sPi, S_ROLE)
    a.I('s_and_b32 s%d, s%d, 1', sT, S_WAVE)
    a.I('s_add_u32 s%d, s%d, s%d', sPi, sPi, sT)
    a.I('s_lshr_b32 s%d, s%d, 1', sT, S_WAVE)
    a.I('s_lshl_b32 s%d, s%d, 6', sT, sT)
    a.I('s_add_u32 s%d, s%d, s%d', sPi, sPi, sT)
    a.I('s_mov_b32 s%d, s%d', sPiece, sPi)
    a.I('s_lshl_b32 s%d, s%d, 11', sT, sPi)
    a.I('s_add_u32 s%d, s%d, 0x%x', sInLd, sT, WS_INBOX)
    a.I('s_lshr_b32 s%d, s%d, 4', sT, sPi)
    a.I('s_lshl_b32 s%d, s%d, 10', sT, sT)
    a.I('s_bfe_u32 s%d, s%d, 0x20002', sT + 1, sPi)
    a.I('s_lshl_b32 s%d, s%d, 6', sT + 1, sT + 1)
    a.I('s_add_u32 s%d, s%d, s%d', sT, sT, sT + 1)
    a.I('s_and_b32 s%d, s%d, 3', sT + 1, sPi)
    a.I('s_lshl_b32 s%d, s%d, 8', sT + 1, sT + 1)
    a.I('s_add_u32 s%d, s%d, s%d', sT, sT, sT + 1)
    a.I('v_and_b32 v%d, 1, v%d', T2, vG)
    a.I('v_lshlrev_b32 v%d, 4, v%d', vMxSt, T2)
    a.I('v_bfe_u32 v%d, v%d, 1, 1', T2, vN)
    a.I('v_lshl_add_u32 v%d, v%d, 5, v%d', vMxSt, T2, vMxSt)
    a.I('v_and_b32 v%d, 1, v%d', T2, vN)
    a.I('v_lshl_add_u32 v%d, v%d, 3, v%d', vMxSt, T2, vMxSt)
    a.I('v_add_u32 v%d, s%d, v%d', vMxSt, sT, vMxSt)
    a.I('v_and_b32 v%d, 1, v%d', T2, vN)
    a.I('v_lshlrev_b32 v%d, 11, v%d', vVld, T2)
    a.I('v_lshrrev_b32 v%d, 1, v%d', T2, vG)
    a.I('v_lshl_add_u32 v%d, v%d, 8, v%d', vVld, T2, vVld)
    a.I('v_lshrrev_b32 v%d, 1, v%d', T2, vN)
    a.I('v_lshl_add_u32 v%d, v%d, 4, v%d', vVld, T2, vVld)
    a.I('v_and_b32 v%d, 1, v%d', T2, vG)
    a.I('v_lshlrev_b32 v%d, 2, v%d', T2, T2)
    a.I('v_sub_u32 v%d, v%d, v%d', vVld, vVld, T2)
    a.I('s_lshr_b32 s%d, s%d, 1', sT, S_WAVE)
    a.I('s_lshl_b32 s%d, s%d, 12', sT, sT)
    a.I('s_and_b32 s%d, s%d, 1', sT + 1, S_WAVE)
    a.I('s_lshl_b32 s%d, s%d, 7', sT + 1, sT + 1)
    a.I('s_add_u32 s%d, s%d, s%d', sT, sT, sT + 1)
    a.I('s_add_u32 s%d, s%d, 4', sT, sT)
    a.I('v_add_u32 v%d, s%d, v%d', vVld, sT, vVld)
    a.I('v_and_b32 v%d, 1, v%d', T2, vG)
    a.I('v_lshlrev_b32 v%d, 10, v%d', vKxSrc, T2)
    a.I('v_lshrrev_b32 v%d, 1, v%d', T2, vG)
    a.I('v_lshl_add_u32 v%d, v%d, 8, v%d', vKxSrc, T2, vKxSrc)
    a.I('v_lshl_add_u32 v%d, v%d, 4, v%d', vKxSrc, vN, vKxSrc)
    a.I('s_lshl_b32 s%d, s%d, 11', sM0a, S_WAVE)
    a.I('v_add_u32 v%d, s%d, v%d', vKxSrc, sM0a, vKxSrc)
    a.I('s_add_u32 s%d, s%d, %d', sM0a, sM0a, LKX)
    a.I('s_add_u32 s%d, s%d, %d', sM0b, sM0a, 1024 - 512)
    a.I('v_lshrrev_b32 v%d, 2, v%d', T2, vN)
    a.I('v_lshlrev_b32 v%d, 8, v%d', vX1w, T2)
    a.I('v_lshl_add_u32 v%d, v%d, 5, v%d', vX1w, vG, vX1w)
    a.I('v_and_b32 v%d, 3, v%d', T2, vN)
    a.I('v_lshl_add_u32 v%d, v%d, 2, v%d', vX1w, T2, vX1w)
    a.I('s_lshl_b32 s%d, s%d, 10', sT, S_WAVE)
    a.I('s_add_u32 s%d, s%d, %d', sT, sT, LX1)
    a.I('v_add_u32 v%d, s%d, v%d', vX1w, sT, vX1w)
    a.I('v_lshrrev_b32 v%d, 2, v%d', T2, vN)
    a.I('v_lshlrev_b32 v%d, 5, v%d', T2, T2)
    a.I('v_and_b32 v%d, 1, v%d', T3, vN)
    a.I('v_lshl_add_u32 v%d, v%d, 4, v%d', T2, T3, T2)
    a.I('v_lshl_add_u32 v%d, v%d, 8, v%d', vX1rq, vG, T2)
    a.I('v_add_u32 v%d, %d, v%d', vX1rq, LX1, vX1rq)
    a.I('v_and_b32 v%d, 7, v%d', T2, vN)
    a.I('v_lshlrev_b32 v%d, 4, v%d', T2, T2)
    a.I('v_lshl_add_u32 v%d, v%d, 8, v%d', vX1rk, vG, T2)
    a.I('v_add_u32 v%d, %d, v%d', vX1rk, LX1 + 128, vX1rk)
    a.I('v_lshrrev_b32 v%d, 3, v%d', T2, vN)
    a.I('v_lshlrev_b32 v%d, 8, v%d', vX2w, T2)
    a.I('v_lshl_add_u32 v%d, v%d, 6, v%d', vX2w, vG, vX2w)
    a.I('v_bfe_u32 v%d, v%d, 2, 1', T2, vN)
    a.I('v_lshl_add_u32 v%d, v%d, 5, v%d', vX2w, T2, vX2w)
    a.I('v_and_b32 v%d, 3, v%d', T2, vN)
    a.I('v_lshl_add_u32 v%d, v%d, 2, v%d', vX2w, T2, vX2w)
    a.I('s_lshl_b32 s%d, s%d, 9', sT, S_WAVE)
    a.I('s_add_u32 s%d, s%d, %d', sT, sT, LX2)
    a.I('v_add_u32 v%d, s%d, v%d', vX2w, sT, vX2w)
    if cfg.get('warm128'):
        a.I('v_lshrrev_b32 v%d, 1, v%d', vWarm, vLane)
        a.I('v_lshlrev_b32 v%d, 7, v%d', vWarm, vWarm)
    else:
        a.I('v_lshlrev_b32 v%d, 6, v%d', vWarm, vLane)
    a.I('s_lshl_b32 s%d, s%d, 13', sT, S_ROLE)
    a.I('s_and_b32 s%d, s%d, 1', sT + 1, S_WAVE)
    a.I('s_lshl_b32 s%d, s%d, 12', sT + 1, sT + 1)
    a.I('s_add_u32 s%d, s%d, s%d', sT, sT, sT + 1)
    a.I('s_lshr_b32 s%d, s%d, 1', sT + 1, S_WAVE)
    a.I('s_mul_i32 s%d, s%d, 0x%x', sT + 1, sT + 1, WS_V - WS_K)
    a.I('s_add_u32 s%d, s%d, s%d', sT, sT, sT + 1)
    a.I('v_add_u32 v%d, s%d, v%d', vWarm, sT, vWarm)
    a.I('s_lshl_b32 s%d, s%d, 13', sT, S_ROLE)
    a.I('s_add_u32 s%d, s%d, 0x%x', sKx, sT, WS_K)
    a.I('s_add_u32 s%d, s%d, 0x%x', sV, sT, WS_V - 4)
    a.I('s_lshl_b32 s%d, s%d, 12', sT, S_ROLE)
    a.I('s_lshl_b32 s%d, s%d, 10', sT + 1, S_WAVE)
    a.I('s_add_u32 s%d, s%d, s%d', sT, sT, sT + 1)
    a.I('s_add_u32 s%d, s%d, 0x%x', sStampAddr, sT, WS_VM)
    a.I('s_lshl_b32 s%d, s%d, 9', sT, S_ROLE)
    a.I('s_lshl_b32 s%d, s%d, 7', sT + 1, S_WAVE)
    a.I('s_add_u32 s%d, s%d, s%d', sT, sT, sT + 1)
    a.I('s_add_u32 s%d, s%d, 0x%x', sFl, sT, WS_FLAGS + FL_KM)
    a.I('s_mov_b32 s%d, 0x%x', sWarm, WS_K + 2 * 262144)

    a.c('init exchange buffers')
    for k in range(4):
        a.I('v_mov_b32 v%d, -1', ACC + k)
    for k in range(2):
        a.I('buffer_store_dwordx4 v[%d:%d], v%d, %s, s%d offen offset:%d sc1', ACC, ACC + 3, vL16, WS, sInLd, 1024 * k)
    for k in range(1, 4):
        a.I('s_mov_b32 s%d, 0x%x', sT, WS_MEMX + k * 8192)
        a.I('buffer_store_dwordx2 v[%d:%d], v%d, %s, s%d offen sc1', ACC, ACC + 1, vMxSt, WS, sT)
    srd(a, S_W, P_MEM0, 8192)
    a.I('v_and_b32 v%d, 1, v%d', T2, vG)
    a.I('v_lshlrev_b32 v%d, 10, v%d', T2, T2)
    a.I('v_and_b32 v%d, 3, v%d', T3, vN)
    a.I('v_lshl_add_u32 v%d, v%d, 3, v%d', T2, T3, T2)
    a.I('s_and_b32 s%d, s%d, 3', sT, sPiece)
    a.I('s_lshl_b32 s%d, s%d, 5', sT, sT)
    a.I('v_add_u32 v%d, s%d, v%d', T2, sT, T2)
    a.I('s_bfe_u32 s%d, s%d, 0x20002', sT, sPiece)
    a.I('s_lshl_b32 s%d, s%d, 11', sT, sT)
    a.I('s_lshr_b32 s%d, s%d, 4', sT + 1, sPiece)
    a.I('s_lshl_b32 s%d, s%d, 7', sT + 1, sT + 1)
    a.I('s_add_u32 s%d, s%d, s%d', sT, sT, sT + 1)
    a.I('buffer_load_dwordx2 v[%d:%d], v%d, s[%d:%d], s%d offen', vSaveV, vSaveV + 1, T2, S_W, S_W + 3, sT)

    a.c('weights')
    vRow, vWo, vDs = VT + 13, VT + 14, VT + 12
    GA = [VT + 8, VT + 9, VT + 10, VT + 11]
    a.I('v_lshrrev_b32 v%d, 1, v%d', vRow, vG)
    a.I('v_lshlrev_b32 v%d, 4, v%d', vRow, vRow)
    a.I('v_and_b32 v%d, 1, v%d', vWo, vG)
    a.I('v_lshl_add_u32 v%d, v%d, 2, v%d', vRow, vWo, vRow)
    a.I('v_lshlrev_b32 v%d, 10, v%d', vWo, vRow)
    a.I('v_lshl_add_u32 v%d, v%d, 3, v%d', vWo, vN, vWo)
    a.I('v_lshlrev_b32 v%d, 8, v%d', vRow, vRow)
    a.I('v_lshl_add_u32 v%d, v%d, 2, v%d', vRow, vN, vRow)
    for kp in range(4):
        a.I('s_xor_b32 s%d, s%d, %d', sT, S_WAVE, kp)
        a.I('s_lshl_b32 s%d, s%d, 14', sT, sT)
        a.I('s_lshl_b32 s%d, s%d, 6', sT + 1, S_WAVE)
        a.I('s_add_u32 s%d, s%d, s%d', sT, sT, sT + 1)
        a.I('s_add_u32 s%d, s%d, %d', sT, sT, LW)
        a.I('v_add_u32 v%d, s%d, v%d', GA[kp], sT, vRow)
    a.I('v_lshlrev_b32 v%d, 13, v%d', vDs, vG)
    a.I('v_lshl_add_u32 v%d, v%d, 4, v%d', vDs, vN, vDs)
    sSrc, sDst, sOb = sT + 2, sT + 3, sT + 6
    a.I('s_lshl_b32 s%d, s%d, 8', sSrc, S_ROLE)
    a.I('s_lshl_b32 s%d, s%d, 19', sT, S_WAVE)
    a.I('s_add_u32 s%d, s%d, s%d', sSrc, sSrc, sT)
    a.I('s_lshl_b32 s%d, s%d, 14', sDst, S_WAVE)
    a.I('s_add_u32 s%d, s%d, %d', sDst, sDst, LW)
    a.I('s_lshl_b32 s%d, s%d, 17', sOb, S_ROLE)
    a.I('s_lshl_b32 s%d, s%d, 7', sT, S_WAVE)
    a.I('s_add_u32 s%d, s%d, s%d', sOb, sOb, sT)
    outb = MEM
    utok = {}

    def dma_unit(u):
        sr_ = S_W if (u // 2) % 2 == 0 else S_W2
        if u % 2 == 0:
            srd(a, sr_, (P_WQ, P_WK, P_WV)[u // 2], 4194304)
        for j in range(16):
            a.I('s_add_u32 m0, s%d, %d', sDst, (u % 2) * 65536 + j * 1024)
            a.I('s_add_u32 s%d, s%d, %d', sT, sSrc, ((u % 2) * 256 + 4 * j) * 8192)
            utok[u] = a.I('buffer_load_dwordx4 v%d, s[%d:%d], s%d offen lds', vDs, sr_, sr_ + 3, sT)

    late_lds = []

    def put(key, m0, nm, srcs, hold=False):
        kind, r = PL[key]
        ob = outb + (put.n % 2) * 8
        put.n += 1
        for k, (rh, rl, sel) in enumerate(srcs):
            if kind == 'v':
                dst = r + m0 + k
            elif kind == 'l' and hold:
                dst = slot(r) + m0 + k
            else:
                dst = ob + k
            a.I('v_perm_b32 v%d, v%d, v%d, s%d', dst, rh, rl, sel)
        if kind == 'a':
            for k in range(nm):
                a.I('v_accvgpr_write_b32 a%d, v%d', r + m0 + k, ob + k)
        elif kind == 'l' and hold:
            late_lds.append(r)
        elif kind == 'l':
            for q in range(nm // 4):
                a.I('ds_write_b128 v%d, v[%d:%d] offset:%d', vLW, ob + 4 * q, ob + 4 * q + 3, r * 2048 + ((m0 // 4) + q) * 1024)
    put.n = 0
    gb = [40, 56]

    def gather_unit(u):
        X = 'qkv'[u // 2]
        gt = {}

        def rd(k):
            b = gb[k % 2]
            for m in range(8):
                gt[k] = a.I('ds_read2st64_b32 v[%d:%d], v%d offset0:%d offset1:%d', b + 2 * m, b + 2 * m + 1, GA[k], d0_instr(m), d0_instr(m) + 1)
        rd(0)
        for k in range(4):
            if k + 1 < 4:
                rd(k + 1)
            a.wait(gt[k])
            b = gb[k % 2]
            for t in range(2):
                put((X, t, 4 * (u % 2) + k), 0, 8, [(b + 2 * m + 1, b + 2 * m, sPermLo if t == 0 else sPermHi) for m in range(8)], hold=True)
        for k in range(4):
            a.I('v_xor_b32 v%d, 0x%x, v%d', GA[k], (LW ^ (LW + 65536)) if False else 0, GA[k]) if False else None
        for k in range(4):
            if u % 2 == 0:
                a.I('v_add_u32 v%d, 65536, v%d', GA[k], GA[k])
            else:
                a.I('v_subrev_u32 v%d, 65536, v%d', GA[k], GA[k])

    wgroups = [(ks, b, mh) for b in range(2) for ks in range(2) for mh in range(2)]
    wbufs = [40, 56, 72]
    wtok = {}

    def wissue(gi, bufs):
        ks, b_, mh = wgroups[gi]
        b = bufs[gi % len(bufs)]
        for mm in range(4):
            m = 4 * mh + mm
            for j in range(2):
                row = 64 * ks + d0_instr(m) + j
                a.I('s_add_u32 s%d, s%d, %d', sT, sOb, row * 1024 + 512 * b_)
                r = b + 4 * mm + 2 * j
                wtok[gi] = a.I('buffer_load_dwordx2 v[%d:%d], v%d, s[%d:%d], s%d offen', r, r + 1, vWo, S_W2, S_W2 + 3, sT)

    def wconsume(gi, bufs):
        ks, b_, mh = wgroups[gi]
        b = bufs[gi % len(bufs)]
        a.wait(wtok[gi])
        for t in range(4):
            a.I('s_waitcnt lgkmcnt(1)')
            sel = sPermLo if t % 2 == 0 else sPermHi
            put(('o', b_, t, ks), 4 * mh, 4, [(b + 4 * mm + 2 + t // 2, b + 4 * mm + t // 2, sel) for mm in range(4)])

    dma_unit(0)
    dma_unit(1)
    for u in range(6):
        a.wait(utok[u])
        a.I('s_barrier')
        if u == 0:
            a.I('v_min_u32 v%d, -2, v%d', vSaveV, vSaveV)
            a.I('s_mov_b32 s%d, 0x%x', sT, WS_MEMX)
            a.I('buffer_store_dwordx2 v[%d:%d], v%d, %s, s%d offen sc1', vSaveV, vSaveV + 1, vMxSt, WS, sT)
        if u == 2:
            lab = a.newlabel('R_sig')
            a.I('s_cmp_lg_u32 s%d, 0', S_WAVE)
            a.I('s_cbranch_scc1 %s', lab)
            a.I('s_mov_b64 exec, 1')
            a.I('v_mov_b32 v%d, 1', VT)
            a.I('v_mov_b32 v%d, %d', VT + 1, D_INIT * 4)
            a.I('buffer_atomic_add v%d, v%d, s[%d:%d], 0 offen', VT, VT + 1, S_DBG, S_DBG + 3)
            a.I('s_mov_b64 exec, -1')
            a.label(lab)
            a.vm_n -= 1
        if u == 4:
            srd(a, S_W2, P_WO, 4194304)
            a.I('v_lshlrev_b32 v%d, 7, v%d', VT + 2, vLane)
            a.I('s_lshl_b32 s%d, s%d, 17', sT, S_ROLE)
            a.I('s_lshl_b32 s%d, s%d, 15', sT + 1, S_WAVE)
            a.I('s_add_u32 s%d, s%d, s%d', sT, sT, sT + 1)
            for k in range(4):
                a.I('buffer_load_dword v%d, v%d, s[%d:%d], s%d offen', VT + 3, VT + 2, S_W2, S_W2 + 3, sT)
                a.I('s_add_u32 s%d, s%d, 8192', sT, sT)
        gather_unit(u)
        if cfg.get('stamps') and u == cfg.get('wst', -1):
            a.I('s_memrealtime s[100:101]')
            a.I('s_waitcnt lgkmcnt(0)')
            a.I('s_mov_b32 s3, s100')
        a.I('s_barrier')
        if u + 2 < 6:
            dma_unit(u + 2)
    def gspin():
        a.I('s_add_u32 s%d, s%d, 1', sSpin, sSpin)
        a.I('s_cmp_gt_u32 s%d, 0x100000', sSpin)
        a.I('s_cbranch_scc1 R_fail')

    def dbg_load():
        return a.I('buffer_load_dwordx4 v[%d:%d], v%d, s[%d:%d], 0 offen offset:%d sc1', T0, T3, vSaveV, S_DBG, S_DBG + 3, D_CNT_OTH * 4)

    def kv_load():
        return a.I('buffer_load_dword v%d, v%d, %s, s%d offen sc1', vDummy, vL16, WS, sKvf)
    assert D_INIT == D_CNT_OTH + 1 and D_FINIT == D_CNT_OTH + 3
    a.I('v_mov_b32 v%d, 0', vSaveV)
    a.I('s_mov_b32 s%d, 0', sSpin)
    a.I('s_mov_b32 s%d, 0', sStep)
    dt = dbg_load()
    for gi in range(3):
        wissue(gi, wbufs)
    for r in late_lds:
        for q in range(2):
            a.I('ds_write_b128 v%d, v[%d:%d] offset:%d', vLW, slot(r) + 4 * q, slot(r) + 4 * q + 3, r * 2048 + q * 1024)
    a.I('s_lshr_b32 s%d, s%d, 1', sKvf, S_ROLE)
    a.I('s_lshl_b32 s%d, s%d, 11', sKvf, sKvf)
    a.I('s_add_u32 s%d, s%d, 0x%x', sKvf, sKvf, WS_FLAGS + FL_KV)
    a.I('s_add_u32 s%d, s%d, %d', sKvfMax, sKvf, 63 * 32)
    for gi in range(8):
        wconsume(gi, wbufs)
        if gi + 3 < 8:
            wissue(gi + 3, wbufs)
        if gi == 4:
            a.c('all 32 inits done, flag area zeroed?')
            a.label('R_dchk')
            a.I('v_readfirstlane_b32 s%d, v%d', sT, T1)
            a.I('v_readfirstlane_b32 s%d, v%d', sT + 1, T3)
            a.I('v_readfirstlane_b32 s%d, v%d', sMode, T0)
            a.I('s_cmp_lt_u32 s%d, 32', sT)
            a.I('s_cbranch_scc1 R_dwait')
            if cfg.get('both_modes'):
                a.I('s_cmp_lt_u32 s%d, 1', sT + 1)
                a.I('s_cbranch_scc1 R_dwait')
            if cfg.get('kvflags'):
                kv_load()
    if cfg.get('stamps') and 'wst' not in cfg:
        a.I('s_memrealtime s[100:101]')
        a.I('s_waitcnt lgkmcnt(0)')
        a.I('s_mov_b32 s3, s100')
    a.I('s_mov_b32 s%d, s%d', sVm, sStampAddr)
    a.I('s_mov_b32 s%d, s%d', sVmPrev, sStampAddr)
    a.I('s_mov_b32 s%d, 0', sTag)
    a.I('s_mov_b32 s%d, 0', sRetry)
    a.I('s_mov_b32 s%d, s%d', sMxRd, sMxW)
    for k in range(4):
        a.I('s_mov_b32 s%d, 0x%x', sRing + k, WS_MEMX + k * 8192)
    a.I('s_lshl_b32 s%d, s%d, 10', sW10, S_WAVE)
    if cfg.get('kvflags'):
        a.label('R_kvfirst')
        a.I('s_waitcnt vmcnt(0)')
        a.I('v_cmp_eq_u32 vcc, 0, v%d', vDummy)
        a.I('s_nop 1')
        a.I('s_and_b32 s%d, vcc_lo, 15', sT)
        a.I('s_cbranch_scc0 R_kvgo')
        kv_load()
        gspin()
        a.I('s_branch R_kvfirst')
        a.label('R_kvgo')
        a.I('s_add_u32 s%d, s%d, 64', sKvf, sKvf)

    def rest(PFX, stf):
        def load_kx():
            a.I('s_mov_b32 m0, s%d', sM0a)
            a.I('buffer_load_dwordx4 v%d, %s, s%d offen sc1 lds', vKxSrc, WS, sKx)
            a.I('s_mov_b32 m0, s%d', sM0b)
            a.I('buffer_load_dwordx4 v%d, %s, s%d offen offset:512 sc1 lds', vKxSrc, WS, sKx)

        def load_v():
            for t in range(2):
                for hf in range(2):
                    a.I('buffer_load_dwordx4 v[%d:%d], v%d, %s, s%d offen offset:%d sc1', VT + 8 * t + 4 * hf, VT + 8 * t + 4 * hf + 3,
                        vVld, WS, sV, 1024 * t + 512 * hf)

        def backoff(cyc):
            if cfg.get('sleep'):
                if cyc >= 64:
                    a.I('s_sleep %d', cyc // 64)
                if cyc % 64 >= 32:
                    a.I('s_nop 7')
            else:
                for k in range(cyc // 32):
                    a.I('s_nop 7')
                if cyc % 32 >= 16:
                    a.I('s_nop 3')

        def lds_half(j, hf):
            sl = j % 6
            return a.I('ds_read_b128 v[%d:%d], v%d offset:%d', slot(sl) + 4 * hf, slot(sl) + 4 * hf + 3, vLW, j * 2048 + 1024 * hf)

        def lds_set(j):
            lds_half(j, 0)
            return lds_half(j, 1)

        def zero(r, n):
            for k in range(0, n, 2):
                a.I('v_mov_b64 v[%d:%d], 0', r + k, r + k + 1)

        def spin():
            a.I('s_add_u32 s%d, s%d, 1', sSpin, sSpin)
            a.I('s_cmp_gt_u32 s%d, 0x100000', sSpin)
            a.I('s_cbranch_scc1 ' + PFX + 'fail')

        a.I('s_waitcnt lgkmcnt(0)')
        a.I('s_barrier')
        load_kx()
        if cfg.get('kvflags'):
            kv_load()
        a.I('s_add_u32 s%d, s%d, 262144', sKx, sKx)
        zero(T0, 4)
        C0, C1 = vSaveV, vSaveV + 1
        zero(ACC, 24)
        a.I('s_mov_b32 s%d, 0', sSpin)

        accidx = {('q', 0): 0, ('q', 1): 1, ('k', 0): 2, ('k', 1): 3, ('v', 0): 4, ('v', 1): 5}

        def M(X, t, kp, src=None):
            d = acc(accidx[(X, t)])
            r = mem(kp) if src is None else src
            a.I('v_smfmac_f32_16x16x64_bf16 v[%d:%d], v[%d:%d], %s, v%d', d, d + 3, r, r + 3, breg((X, t, kp)), vIdx)

        def ldv(i):
            if cfg.get('no_kv'):
                return None
            t, hf = i // 2, i % 2
            return a.I('buffer_load_dwordx4 v[%d:%d], v%d, %s, s%d offen offset:%d sc1', VT + 8 * t + 4 * hf, VT + 8 * t + 4 * hf + 3,
                       vVld, WS, sV, 1024 * t + 512 * hf)

        def poll(r0, r1):
            a.I('buffer_load_dwordx4 v[%d:%d], v%d, %s, s%d offen sc1', r0, r0 + 3, vL16, WS, sMxRd)
            a.I('buffer_load_dwordx4 v[%d:%d], v%d, %s, s%d offen sc1', r1, r1 + 3, vL16, WS, sMxRd2)

        kx, mt = {}, {}

        def rkx(f):
            kx[f] = a.I('ds_read_b128 v[%d:%d], v%d offset:%d', STG + 4 * f, STG + 4 * f + 3, vL16, LKX + f * 1024)

        def rm(k):
            mt[k] = a.I('ds_read_b128 v[%d:%d], v%d offset:%d', mem(k), mem(k) + 3, (vM0, vM1, vM2, vM3)[k & 3], 4096 * (k // 4))

        vSaveK = vSaveV

        def savepub():
            a.I('v_mov_b32 v%d, v%d', T0, VT)
            a.I('v_mov_b32 v%d, v%d', T1, vSaveK)
            a.I('v_mov_b32 v%d, v%d', T2, vSaveK + 1)
            a.I('v_mov_b32 v%d, v%d', T3, VT + 8)

        if cfg.get('stamps'):
            a.I('s_memrealtime s[6:7]')
            a.I('s_waitcnt lgkmcnt(0)')
        a.I('s_add_u32 s%d, s%d, 4096', sMxRd2, sMxRd)
        a.c('================ step loop ================')
        a.label(PFX + 'loop')
        stamp(a, cfg, 0)
        PA, PB = (mem(0), mem(4)), (VT, VT + 4)
        poll(*PA)
        if cfg.get('stamps') and cfg['stamps'] != 4:
            a.I('s_waitcnt lgkmcnt(0)')
            a.I('v_mov_b32 v%d, 0', VT + 12)
            a.I('v_writelane_b32 v%d, s%d, 0', VT + 12, 52)
            for k in range(1, 10):
                a.I('v_writelane_b32 v%d, s%d, %d', VT + 12, 32 + 2 * k, k)
            a.I('v_writelane_b32 v%d, s%d, 10', VT + 12, sRetry)
            a.I('s_mov_b32 s52, s32')
            a.I('s_lshl_b32 s%d, s%d, 6', sT, S_ROLE)
            a.I('s_add_u32 s%d, s%d, s%d', sT, sT, sStep)
            a.I('s_lshl_b32 s%d, s%d, 2', sT, sT)
            a.I('s_add_u32 s%d, s%d, s%d', sT, sT, S_WAVE)
            a.I('s_lshl_b32 s%d, s%d, 6', sT, sT)
            a.I('s_add_u32 s%d, s%d, 0x%x', sStampAddr, sT, WS_DBG)
        else:
            backoff(cfg.get('pgap', 2) * 48)
        poll(*PB)

        def head(src, bad):
            s0, s1 = src
            a.I('s_waitcnt vmcnt(2)')
            a.I('v_max3_u32 v%d, v%d, v%d, v%d', C0, s0, s0 + 2, s1)
            a.I('v_max_u32 v%d, v%d, v%d', C0, C0, s1 + 2)
            a.I('v_cmp_eq_u32 vcc, -1, v%d', C0)
            a.I('ds_write_b128 v%d, v[%d:%d]', vM0, s0, s0 + 3)
            wA = a.I('ds_write_b128 v%d, v[%d:%d] offset:4096', vM0, s1, s1 + 3)
            M('q', 0, 0, s0)
            M('q', 1, 0, s0)
            a.I('s_cbranch_vccnz %s', bad)
            stamp(a, cfg, 1)
            M('q', 0, 4, s1)
            M('q', 1, 4, s1)
            M('k', 0, 0, s0)
            M('k', 1, 0, s0)
            a.wait(wA)
            a.I('s_barrier')
            rm(1)
            M('k', 0, 4, s1); rm(2)
            M('k', 1, 4, s1); rm(3)
            M('v', 0, 0, s0); rm(5)
            M('v', 1, 0, s0); rm(6)
            M('v', 0, 4, s1); rm(7)
            M('v', 1, 4, s1)
        a.I('s_branch ' + PFX + 'goA')
        a.label(PFX + 'badA')
        poll(*PA)
        spin()
        a.I('s_add_u32 s%d, s%d, 0x10000', sRetry, sRetry)
        a.I('s_nop 1')
        zero(ACC, 8)
        head(PB, PFX + 'badB')
        a.I('s_branch ' + PFX + 'join')
        a.label(PFX + 'badB')
        poll(*PB)
        a.I('s_add_u32 s%d, s%d, 0x10000', sRetry, sRetry)
        a.I('s_nop 4')
        zero(ACC, 8)
        a.label(PFX + 'goA')
        head(PA, PFX + 'badA')
        a.label(PFX + 'join')
        a.I('s_cmp_eq_u32 s%d, %d', sStep, nsteps - 1)
        a.I('s_cbranch_scc1 ' + PFX + 'done')
        rkx(0)
        a.wait(mt[2])
        M('q', 0, 1); rkx(1)
        M('q', 1, 1); ldv(0)
        M('q', 0, 2); rkx(2)
        M('q', 1, 2); ldv(1); a.wait(mt[5])
        M('q', 0, 3); rkx(3)
        M('q', 1, 3); ldv(2)
        M('q', 0, 5); rkx(4)
        if cfg.get('stamps') and cfg['stamps'] != 4:
            a.I('v_lshrrev_b32 v%d, 2, v%d', C0, vL16)
            a.I('s_mov_b64 exec, 0xffff')
            a.I('buffer_store_dword v%d, v%d, %s, s%d offen', VT + 12, C0, WS, sStampAddr)
            a.I('s_mov_b64 exec, -1')
        M('q', 1, 5); tv = ldv(3); a.wait(mt[7])
        M('q', 0, 6); rkx(5)
        a.I('s_barrier')
        M('q', 1, 6)
        if cfg.get('pubpos', 1) == 0 and not cfg.get('no_pub'):
            a.I('buffer_store_dwordx4 v[%d:%d], v%d, %s, s%d offen sc1', T0, T0 + 3, vL16, WS, sVmPrev)
        M('q', 0, 7); rkx(6)
        a.I('s_sub_u32 s%d, s%d, 1', sT, sStep)
        M('q', 1, 7); rkx(7)
        a.I('s_max_i32 s%d, s%d, 0', sT, sT)
        a.I('v_mov_b32 v%d, s%d', C1, sT)
        stamp(a, cfg, 2)
        q0, q1, k0, k1, v0_, v1_ = [acc(i) for i in range(6)]
        QT = mem(0)

        def add(d, x, y):
            a.I('v_add_f32 v%d, v%d, v%d', d, x, y)

        def cvt(d, x, y):
            a.I('v_cvt_pk_bf16_f32 v%d, v%d, v%d', d, x, y)

        def pkadd(d, x, y):
            a.I('v_pk_add_f32 v[%d:%d], v[%d:%d], v[%d:%d]', d, d + 1, x, x + 1, y, y + 1)

        def sel(d, x, y):
            a.I('v_cndmask_b32 v%d, v%d, v%d, s[%d:%d]', d, x, y, sHalf, sHalf + 1)
        M('k', 0, 1)
        a.I('s_add_u32 s%d, s%d, 262144', sV, sV)
        a.I('s_and_b32 s%d, s%d, 1', sTag, sStep)
        a.I('s_waitcnt vmcnt(%d)' % ((0 if cfg.get('no_kv') else 4) + (0 if cfg.get('no_pub') or cfg.get('pubpos', 1) else 1)))
        M('k', 1, 1)
        a.I('s_mov_b32 s%d, s%d', sT, sRing)
        a.I('s_mov_b32 s%d, s%d', sRing, sRing + 1)
        add(QT, q0, q0 + 2)
        M('k', 0, 2)
        add(QT + 1, q0 + 1, q0 + 3)
        add(QT + 2, q1, q1 + 2)
        add(QT + 3, q1 + 1, q1 + 3)
        cvt(QT, QT, QT + 2)
        cvt(QT + 1, QT + 1, QT + 3)
        wq = a.I('ds_write2_b32 v%d, v%d, v%d offset0:0 offset1:4', vX1w, QT, QT + 1)
        M('k', 1, 2)
        a.I('s_mov_b32 s%d, s%d', sRing + 1, sRing + 2)
        a.I('s_mov_b32 s%d, s%d', sRing + 2, sRing + 3)
        if cfg.get('kvflags'):
            a.I('v_cmp_eq_u32 vcc, 0, v%d', vDummy)
        M('k', 0, 3)
        a.I('s_mov_b32 s%d, s%d', sRing + 3, sT)
        a.I('s_add_u32 s%d, s%d, s%d', sMxRd, sRing, sW10)
        M('k', 1, 3)
        if cfg.get('kvflags'):
            a.I('s_and_b32 s%d, vcc_lo, 3', sT)
            a.I('s_cbranch_scc1 ' + PFX + 'kvwait')
            a.label(PFX + 'kvok')
        M('k', 0, 5)
        if not cfg.get('no_warm'):
            a.I('buffer_load_dword v%d, v%d, %s, s%d offen sc1', vDummy, vWarm, WS, sWarm)
        M('k', 1, 5)
        a.wait(wq)
        a.I('s_barrier')
        qt = {}

        def rq(ks):
            qt[ks] = a.I('ds_read_b128 v[%d:%d], v%d offset:%d', slot(4) + 4 * ks, slot(4) + 4 * ks + 3, vX1rq, ks * 1024)
        rq(0)
        M('k', 0, 6); rq(1)
        if cfg.get('kvflags'):
            a.I('s_add_u32 s%d, s%d, 32', sKvf, sKvf)
        M('k', 1, 6); rq(2)
        if cfg.get('kvflags'):
            a.I('s_min_u32 s%d, s%d, s%d', sKvf, sKvf, sKvfMax)
        M('k', 0, 7); rq(3)
        a.I('s_mov_b32 m0, s%d', sM0a)
        M('k', 1, 7)
        a.I('s_add_u32 s%d, s%d, 4096', sMxRd2, sMxRd)
        stamp(a, cfg, 3)
        S0, S1, S2, Pm = acc(0), acc(1), acc(2), acc(3)
        X0, X1 = S1 + 2, S1 + 3
        ON = T0
        PV0, PV1, LS = mem(4), mem(0), mem(1)
        KMR = [STG, STG + 4, STG + 8, STG + 12]

        def SM(D, A, ks):
            a.I('v_mfma_f32_16x16x32_bf16 v[%d:%d], v[%d:%d], v[%d:%d], %s', D, D + 3, A, A + 3,
                slot(4) + 4 * ks, slot(4) + 4 * ks + 3, '0' if ks == 0 else vr(D, 4))
        km = {}

        def rkm(k):
            km[k] = a.I('ds_read_b128 v[%d:%d], v%d offset:%d', KMR[k], KMR[k] + 3, vX1rk, k * 1024)
        M('v', 0, 1)
        if not cfg.get('no_kv'):
            a.I('buffer_load_dwordx4 v%d, %s, s%d offen sc1 lds', vKxSrc, WS, sKx)
        a.I('s_mov_b32 m0, s%d', sM0b)
        M('v', 1, 1)
        a.wait(qt[3])
        add(QT, k0, k0 + 2)
        SM(S0, STG, 0)
        add(QT + 1, k0 + 1, k0 + 3)
        add(QT + 2, k1, k1 + 2)
        SM(S0, STG + 4, 1)
        add(QT + 3, k1 + 1, k1 + 3)
        cvt(vSaveK, QT, QT + 2)
        SM(S0, STG + 8, 2)
        cvt(QT + 1, QT + 1, QT + 3)
        wk = a.I('ds_write2_b32 v%d, v%d, v%d offset0:32 offset1:36', vX1w, vSaveK, QT + 1)
        SM(S0, STG + 12, 3)
        if not cfg.get('no_kv'):
            a.I('buffer_load_dwordx4 v%d, %s, s%d offen offset:512 sc1 lds', vKxSrc, WS, sKx)
        a.I('v_mov_b32 v%d, 0', Pm + 3)
        SM(S1, STG + 16, 0)
        a.I('s_mov_b64 exec, 3')
        if cfg.get('kvflags'):
            kv_load()
        if not cfg.get('no_pub') and not cfg.get('no_flag'):
            a.I('buffer_store_dword v%d, v%d, %s, s%d offen sc1', C1, vL16, WS, sFl)
        a.I('s_mov_b64 exec, -1')
        SM(S1, STG + 20, 1)
        if cfg.get('pubpos', 1) == 1 and not cfg.get('no_pub'):
            a.I('buffer_store_dwordx4 v[%d:%d], v%d, %s, s%d offen sc1', T0, T0 + 3, vL16, WS, sVmPrev)
        vm_mark = a.vm_n
        zero(PV0, 4)
        SM(S1, STG + 24, 2)
        a.I('s_add_u32 s%d, s%d, 262144', sKx, sKx)
        a.I('v_mov_b32 v%d, v%d', vSaveK + 1, QT + 1)
        a.I('v_mov_b32 v%d, 0x3f803f80', ON)
        SM(S1, STG + 28, 3)
        a.wait(wk)
        a.I('s_barrier')
        rkm(0)
        M('v', 0, 2); rkm(1)
        a.I('v_max3_f32 v%d, v%d, v%d, v%d', Pm, S0, S0 + 1, S0 + 2)
        M('v', 1, 2); rkm(2)
        a.I('s_add_u32 s%d, s%d, 262144', sWarm, sWarm)
        a.I('v_mov_b32 v%d, 0x3f803f80', ON + 1)
        M('v', 0, 3); rkm(3)
        a.I('v_max3_f32 v%d, v%d, v%d, v%d', Pm, Pm, S0 + 3, S1)
        M('v', 1, 3); lds_half(8, 0)
        a.I('v_max3_f32 v%d, v%d, v%d, v%d', Pm + 1, S1 + 1, S1 + 2, S1 + 3)
        M('v', 0, 5); lds_half(8, 1)
        a.wait(km[1])
        sel(S1, S1, S1 + 2)
        SM(S2, KMR[0], 0); lds_half(9, 0)
        sel(S1 + 1, S1 + 1, S1 + 3)
        a.I('v_max_f32 v%d, v%d, v%d', X0, Pm, Pm + 1)
        SM(S2, KMR[1], 1)
        a.wait(km[3])
        zero(PV1, 4)
        SM(S2, KMR[2], 2); lds_half(9, 1)
        a.I('v_mov_b32 v%d, 0x3f803f80', ON + 2)
        a.I('v_mov_b32 v%d, 0x3f803f80', ON + 3)
        SM(S2, KMR[3], 3); lds_half(6, 0)
        stamp(a, cfg, 4)
        M('v', 1, 5); lds_half(6, 1)
        M('v', 0, 6); lds_half(7, 0)
        M('v', 1, 6); lds_half(7, 1)
        a.I('v_max3_f32 v%d, v%d, v%d, v%d', X0, X0, S2, S2 + 1)
        a.I('v_max3_f32 v%d, v%d, v%d, v%d', X0, X0, S2 + 2, S2 + 3)
        a.I('v_mov_b32 v%d, v%d', X1, X0)
        M('v', 0, 7); lds_half(10, 0)
        a.I('v_permlane32_swap_b32 v%d, v%d', X0, X1)
        a.I('v_max_f32 v%d, v%d, v%d', X0, X0, X1)
        a.I('v_mov_b32 v%d, v%d', X1, X0)
        M('v', 1, 7); lds_half(10, 1)
        a.I('v_permlane16_swap_b32 v%d, v%d', X0, X1)
        sel(S2, S2, S0 + 2)
        sel(S2 + 1, S2 + 1, S0 + 3)
        a.I('v_max_f32 v%d, v%d, v%d', X0, X0, X1)
        sel(S2 + 2, S2 + 2, S0)
        a.I('v_mul_f32 v%d, s%d, v%d', X0, sNC, X0)
        sel(S2 + 3, S2 + 3, S0 + 1)
        a.I('v_sub_f32 v%d, v%d, v%d', X1, X0, vBias)

        def pkfma(d, hi):
            a.I('v_pk_fma_f32 v[%d:%d], v[%d:%d], s[%d:%d], v[%d:%d] op_sel:[0,0,%d] op_sel_hi:[1,1,%d]', d, d + 1, d, d + 1, sC2, sC2 + 1, X0, X1, hi, hi)
        pkfma(S1, 0)
        pkfma(S2, 1)
        a.I('v_exp_f32 v%d, v%d', S1, S1)
        pkfma(S2 + 2, 1)
        a.I('v_exp_f32 v%d, v%d', S1 + 1, S1 + 1)
        pkadd(S0, v0_, v0_ + 2)
        a.I('v_exp_f32 v%d, v%d', S2, S2)
        pkadd(S0 + 2, v1_, v1_ + 2)
        a.I('v_exp_f32 v%d, v%d', S2 + 1, S2 + 1)
        cvt(Pm + 1, S1, S1 + 1)
        a.I('v_exp_f32 v%d, v%d', S2 + 2, S2 + 2)
        if tv:
            a.I('s_waitcnt vmcnt(%d)' % (vm_mark - tv[1]))
        cvt(VT, S0, S0 + 1)
        a.I('v_exp_f32 v%d, v%d', S2 + 3, S2 + 3)
        cvt(Pm, S2, S2 + 1)
        cvt(VT + 8, S0 + 2, S0 + 3)
        cvt(Pm + 2, S2 + 2, S2 + 3)
        lds_half(11, 0)
        stamp(a, cfg, 5)
        a.I('v_mfma_f32_16x16x32_bf16 v[%d:%d], v[%d:%d], v[%d:%d], 0', LS, LS + 3, Pm, Pm + 3, ON, ON + 3)
        lds_half(11, 1)
        a.I('v_smfmac_f32_16x16x64_bf16 v[%d:%d], v[%d:%d], v[%d:%d], v%d', PV0, PV0 + 3, Pm, Pm + 3, VT, VT + 7, vIdx)
        a.I('v_mov_b32 v%d, v%d', T0, VT)
        a.I('v_smfmac_f32_16x16x64_bf16 v[%d:%d], v[%d:%d], v[%d:%d], v%d', PV1, PV1 + 3, Pm, Pm + 3, VT + 8, VT + 15, vIdx)
        a.I('v_mov_b32 v%d, v%d', T1, vSaveK)
        a.I('v_mov_b32 v%d, v%d', T2, vSaveK + 1)
        a.I('v_mov_b32 v%d, v%d', T3, VT + 8)
        pkadd(X0, LS, LS + 2)
        a.I('v_rcp_f32 v%d, v%d', X0, X0)
        a.I('v_rcp_f32 v%d, v%d', X1, X1)
        pkadd(PV0, PV0, PV0 + 2)
        pkadd(PV1, PV1, PV1 + 2)
        a.I('v_pk_mul_f32 v[%d:%d], v[%d:%d], v[%d:%d]', PV0, PV0 + 1, PV0, PV0 + 1, X0, X1)
        a.I('v_pk_mul_f32 v[%d:%d], v[%d:%d], v[%d:%d]', PV1, PV1 + 1, PV1, PV1 + 1, X0, X1)
        cvt(S0, PV0, PV1)
        cvt(S0 + 1, PV0 + 1, PV1 + 1)
        wo = a.I('ds_write2_b32 v%d, v%d, v%d offset0:0 offset1:4', vX2w, S0, S0 + 1)
        zero(MEM, 16)
        a.wait(wo)
        a.I('s_barrier')
        OF = acc(4)
        of0 = a.I('ds_read_b128 v[%d:%d], v%d offset:%d', OF, OF + 3, vL16, LX2)
        of1 = a.I('ds_read_b128 v[%d:%d], v%d offset:%d', OF + 4, OF + 7, vL16, LX2 + 1024)
        zero(MEM + 16, 16)
        SEL, RD = ACC + 8, ACC + 12
        stamp(a, cfg, 6)

        def wt(b, t):
            return MEM + 16 * b + 4 * t

        def W(n):
            key = WO_ORDER[n]
            _, b, t, ks = key
            a.I('v_smfmac_f32_16x16x64_bf16 v[%d:%d], v[%d:%d], %s, v%d', wt(b, t), wt(b, t) + 3, OF + 4 * ks, OF + 4 * ks + 3, breg(key), vIdx)

        def ha(b, t, h):
            D = wt(b, t) + h
            add(D, D, D + 2)

        def hp(b, t):
            D = wt(b, t)
            pkadd(D, D, D + 2)

        G = [ACC, ACC + 4]

        def pk(b, h, tok):
            cvt(G[b] + 2 * tok + h, wt(b, 2 * h) + tok, wt(b, 2 * h + 1) + tok)

        def send(b):
            a.I('buffer_store_dwordx4 v[%d:%d], v%d, %s, s%d offen%s', G[b], G[b] + 3, vInSt, WS, sIn + b, stf)

        def tag(b):
            a.I('v_bfi_b32 v%d, 1, s%d, v%d', G[b], sTag, G[b])

        def selgen(k):
            if k == 0:
                a.I('v_mov_b32 v%d, 0x3f80', RD)
            elif k == 1:
                a.I('v_cndmask_b32 v%d, v%d, 1.0, s[%d:%d]', RD, RD, sSel + 4, sSel + 5)
            else:
                a.I('v_cndmask_b32 v%d, 0, v%d, s[%d:%d]', SEL + k - 2, RD, sSel + 2 * (k % 2), sSel + 2 * (k % 2) + 1)

        def rload(i):
            return a.I('buffer_load_dwordx4 v[%d:%d], v%d, %s, s%d offen offset:%d sc1', VT + 4 * i, VT + 4 * i + 3, vL16, WS, sInLd, i * 1024)

        lt = {}
        a.wait(of0)
        W(0); lds_half(12, 0); a.wait(of1)
        W(1); lt[12] = lds_half(12, 1)
        W(2); lds_half(13, 0)
        W(3); lt[13] = lds_half(13, 1)
        W(4); lds_half(14, 0); ha(0, 0, 0)
        W(5); lt[14] = lds_half(14, 1); ha(0, 0, 1)
        W(6); lds_half(15, 0); ha(0, 1, 0)
        W(7); lt[15] = lds_half(15, 1); ha(0, 1, 1)
        pk(0, 0, 0); pk(0, 0, 1)
        tag(0)
        hp(0, 2)
        lds_half(16, 0)
        lt[16] = lds_half(16, 1)
        hp(0, 3)
        pk(0, 1, 0); pk(0, 1, 1)
        send(0)
        W(8); lds_half(17, 0)
        W(9); lt[17] = lds_half(17, 1); a.wait(lt[13])
        W(10)
        a.I('s_mov_b32 s%d, s%d', sVmPrev, sVm)
        a.I('s_add_u32 s%d, s%d, 131072', sVm, sVm)
        a.I('s_mov_b32 s%d, 0', sSpin)
        W(11); a.wait(lt[15])
        a.I('s_add_u32 s%d, s%d, 1', sStep, sStep)
        W(12); lds_half(0, 0); ha(1, 0, 0)
        W(13); a.wait(lt[17]); ha(1, 0, 1)
        W(14); lds_half(0, 1); ha(1, 1, 0)
        W(15); lds_half(1, 0); ha(1, 1, 1)
        pk(1, 0, 0); pk(1, 0, 1)
        tag(1)
        hp(1, 2)
        lds_half(1, 1)
        a.I('s_cmp_ge_u32 s%d, 2', S_WAVE)
        hp(1, 3)
        pk(1, 1, 0); pk(1, 1, 1)
        send(1)
        stamp(a, cfg, 7)
        U0, U1, U2, U3 = ACC + 16, ACC + 17, ACC + 18, ACC + 19
        npre = cfg.get('npre', 3)
        a.I('s_cbranch_scc1 ' + PFX + 'late')
        backoff(cfg.get('d0', 0) * 32)
        rload(0); rload(1)
        a.label(PFX + 'late')
        for j in range(2, 1 + npre):
            lds_set(j)
        for k in range(6):
            selgen(k)
        zero(RD, 4)
        a.I('s_cbranch_scc0 ' + PFX + 'early')
        backoff(cfg.get('d1', 0) * 32)
        rload(0); rload(1)
        a.label(PFX + 'early')
        for j in range(1 + npre, 6):
            lds_set(j)
        zero(ACC + 20, 4)
        zero(ACC, 8)
        a.I('v_mov_b32 v%d, -1', U2)
        a.I('v_mov_b32 v%d, -1', U3)
        a.I('s_waitcnt vmcnt(0) lgkmcnt(0)')
        a.label(PFX + 'chk1')
        a.I('v_smfmac_f32_16x16x64_bf16 v[%d:%d], v[%d:%d], v[%d:%d], v%d', RD, RD + 3, SEL, SEL + 3, VT, VT + 7, vIdx)
        a.I('v_bitop3_b32 v%d, v%d, v%d, s%d bitop3:0x7e', U0, VT, VT + 4, sTag)
        a.I('v_and_b32 v%d, 1, v%d', U0, U0)
        a.I('v_cmp_ne_u32 vcc, 0, v%d', U0)
        DP = ' row_mask:0xf bank_mask:0xf'
        Z = VT + 8
        for k in range(4):
            a.I('v_add_f32_dpp v%d, v%d, v%d row_ror:4' + DP, Z + k, RD + k, RD + k)
        a.I('s_cbranch_vccnz ' + PFX + 'slow1')
        for k in range(4):
            a.I('v_add_f32_dpp v%d, v%d, v%d row_ror:8' + DP, Z + 4 + k, Z + k, Z + k)
        stamp(a, cfg, 8)
        a.I('s_mov_b64 exec, 0x000f000f')
        a.I('v_cvt_pk_bf16_f32 v%d, v%d, v%d', U0, Z + 4, Z + 5)
        a.I('v_cvt_pk_bf16_f32 v%d, v%d, v%d', U1, Z + 6, Z + 7)
        a.I('v_min_u32 v%d, -2, v%d', U0, U0)
        a.I('buffer_store_dwordx2 v[%d:%d], v%d, %s, s%d offen%s', U0, U1, vMxSt, WS, sMxWr, stf)
        a.I('buffer_store_dwordx2 v[%d:%d], v%d, %s, s%d offen%s', U2, U3, vMxSt, WS, sMxRst, stf)
        a.I('s_mov_b64 exec, -1')
        stamp(a, cfg, 9)
        a.I('s_add_u32 s%d, s%d, s%d', sRetry, sRetry, sSpin)
        a.I('s_mov_b32 s%d, 0', sSpin)
        zero(ACC + 8, 12)
        backoff(cfg.get('d2', 0) * 32)
        if cfg.get('b3'):
            a.I('s_barrier')
        a.I('s_branch ' + PFX + 'loop')

        a.label(PFX + 'slow1')
        rload(0); rload(1)
        spin()
        zero(RD, 4)
        a.I('s_waitcnt vmcnt(0)')
        a.I('s_branch ' + PFX + 'chk1')

        if cfg.get('kvflags'):
            a.label(PFX + 'kvwait')
            kv_load()
            spin()
            a.I('s_waitcnt vmcnt(0)')
            a.I('v_cmp_eq_u32 vcc, 0, v%d', vDummy)
            a.I('s_nop 1')
            a.I('s_and_b32 s%d, vcc_lo, 3', sT)
            a.I('s_cbranch_scc1 ' + PFX + 'kvwait')
            a.I('s_branch ' + PFX + 'kvok')

        a.label(PFX + 'done')
        a.c('last segment: only k and v of the memory rows are needed')
        a.I('buffer_store_dwordx4 v[%d:%d], v%d, %s, s%d offen sc1', T0, T0 + 3, vL16, WS, sVmPrev)
        a.I('s_waitcnt lgkmcnt(0)')
        for kp in (1, 2, 3, 5, 6, 7):
            M('k', 0, kp); M('k', 1, kp); M('v', 0, kp); M('v', 1, kp)
        L = STG
        pkadd(L, k0, k0 + 2)
        pkadd(L + 2, k1, k1 + 2)
        pkadd(L + 4, v0_, v0_ + 2)
        pkadd(L + 6, v1_, v1_ + 2)
        cvt(L + 9, L, L + 2)
        cvt(L + 10, L + 1, L + 3)
        cvt(L + 8, L + 4, L + 5)
        cvt(L + 11, L + 6, L + 7)
        a.I('buffer_store_dwordx4 v[%d:%d], v%d, %s, s%d offen sc1', L + 8, L + 11, vL16, WS, sVm)
        a.I('s_waitcnt vmcnt(0)')
        a.I('v_mov_b32 v%d, %d', T1, nsteps)
        a.I('s_mov_b64 exec, 1')
        a.I('buffer_store_dword v%d, v%d, %s, s%d offen sc1', T1, vL16, WS, sFl)
        if cfg.get('stamps'):
            a.I('s_memrealtime s[100:101]')
            a.I('s_waitcnt lgkmcnt(0)')
            a.I('v_mov_b32 v%d, s4', T0)
            if cfg.get('hwid'):
                a.I('s_getreg_b32 s6, hwreg(HW_REG_HW_ID)')
            a.I('v_mov_b32 v%d, s6', T1)
            a.I('v_mov_b32 v%d, s100', T2)
            a.I('v_mov_b32 v%d, s%d', T3, sRetry if cfg.get('cnt') else 3)
            a.I('s_lshl_b32 s%d, s%d, 2', sT, S_ROLE)
            a.I('s_add_u32 s%d, s%d, s%d', sT, sT, S_WAVE)
            a.I('s_lshl_b32 s%d, s%d, 4', sT, sT)
            a.I('s_add_u32 s%d, s%d, 0x%x', sT, sT, WS_DBG + 0x80000)
            a.I('buffer_store_dwordx4 v[%d:%d], v%d, %s, s%d offen', T0, T3, vL16, WS, sT)
        a.I('s_endpgm')
        a.label(PFX + 'fail')
        a.I('s_mov_b64 exec, 1')
        a.I('v_mov_b32 v%d, %d', T2, D_ERR * 4)
        a.I('v_mov_b32 v%d, s%d', T3, sStep)
        a.I('v_or_b32 v%d, 0x40000000, v%d', T3, T3)
        a.I('buffer_store_dword v%d, v%d, s[%d:%d], 0 offen sc1', T3, T2, S_DBG, S_DBG + 3)
        a.I('s_endpgm')

    if cfg.get('both_modes'):
        a.c('mode: plain stores only if all 32 recurrence workgroups sit on the chosen XCD')
        a.I('s_cmp_lg_u32 s%d, 0', sMode)
        a.I('s_cbranch_scc1 R_safe')
        rest('R_', '')
        a.label('R_safe')
        rest('RS_', ' sc1')
    else:
        rest('R_', stf)
    a.label('R_dwait')
    dbg_load()
    gspin()
    a.I('s_waitcnt vmcnt(0)')
    a.I('s_branch R_dchk')
```

```python
import sys
from asmlib import *
from common import *
import rec, bulk
from bulk import sT, WS, DBG

LDS_TK = 14336


def ticket(a, dword, sdst, pre=None):
    lab = a.newlabel('TK')
    a.I('v_mov_b32 v253, %d', LDS_TK)
    a.I('s_cmp_lg_u32 s%d, 0', S_WAVE)
    a.I('s_cbranch_scc1 %s', lab)
    a.I('s_mov_b64 exec, 1')
    a.I('v_mov_b32 v251, 1')
    a.I('v_mov_b32 v252, %d', dword * 4)
    if pre is not None:
        sk = a.newlabel('TKs')
        a.I('v_mov_b32 v251, 32')
        a.I('s_cmp_lt_u32 s%d, 256', pre)
        a.I('s_cbranch_scc1 %s', sk)
        a.I('v_mov_b32 v251, 1')
    a.I('buffer_atomic_add v251, v252, %s, 0 offen sc0', DBG)
    a.I('s_waitcnt vmcnt(0)')
    if pre is not None:
        a.label(sk)
    a.I('ds_write_b32 v253, v251')
    a.I('s_waitcnt lgkmcnt(0)')
    a.I('s_mov_b64 exec, -1')
    a.label(lab)
    a.I('s_barrier')
    a.I('ds_read_b32 v251, v253')
    a.I('s_waitcnt lgkmcnt(0)')
    a.I('v_readfirstlane_b32 s%d, v251', sdst)
    a.I('s_barrier')


def dbg_add(a, dword):
    lab = a.newlabel('DA')
    a.I('s_cmp_lg_u32 s%d, 0', S_WAVE)
    a.I('s_cbranch_scc1 %s', lab)
    a.I('s_mov_b64 exec, 1')
    a.I('v_mov_b32 v251, 1')
    a.I('v_mov_b32 v252, %d', dword * 4)
    a.I('buffer_atomic_add v251, v252, %s, 0 offen', DBG)
    a.I('s_waitcnt vmcnt(0)')
    a.I('s_mov_b64 exec, -1')
    a.label(lab)


def build(cfg):
    a = Asm()
    bulk.BST = bool(cfg.get('stamps'))
    a.I('s_cmp_ge_u32 s2, 256')
    a.I('s_cbranch_scc1 K_exit')
    if cfg.get('stamps'):
        a.I('s_memrealtime s[4:5]')
    a.I('s_load_dwordx16 s[32:47], s[0:1], 0')
    a.I('s_load_dwordx8 s[48:55], s[0:1], 64')
    a.I('s_load_dwordx4 s[56:59], s[0:1], 96')
    a.I('s_getreg_b32 s%d, hwreg(HW_REG_XCC_ID)', S_XCC)
    a.I('s_and_b32 s%d, s%d, 15', S_XCC, S_XCC)
    a.I('v_lshrrev_b32 v1, 6, v0')
    a.I('v_readfirstlane_b32 s%d, v1', S_WAVE)
    a.I('s_waitcnt lgkmcnt(0)')
    rec.srd(a, S_WS, P_WS, WS_SIZE)
    rec.srd(a, S_DBG, P_DBG, 256)
    if cfg.get('dbgt'):
        bulk.DBGT = True
        bulk.dbg_time(a, 12, invert=True)
    if cfg.get('codepf', 1):
        a.I('s_getpc_b64 s[4:5]' if not cfg.get('stamps') else 's_getpc_b64 s[6:7]')
        a.label('K_pc')
        pc = 6 if cfg.get('stamps') else 4
        a.I('v_lshlrev_b32 v254, 7, v0')
        for k in range(cfg.get('codekb', 96) // 32):
            a.I('v_min_u32 v255, K_end-K_pc-4, v254')
            a.I('global_load_dword v%d, v255, s[%d:%d]', 240 + k, pc, pc + 1)
            a.I('v_add_u32 v254, 0x8000, v254')
    a.I('s_cmp_lg_u32 s%d, %d', S_XCC, cfg.get('xcd', 0))
    a.I('s_cbranch_scc1 K_bulk_t')
    ticket(a, D_TICK_REC, S_ROLE)
    a.I('s_cmp_lt_u32 s%d, 32', S_ROLE)
    a.I('s_cbranch_scc1 K_rec')
    a.label('K_bulk_t')
    ticket(a, D_TICK_A, S_ROLE)
    bulk.bstamp(a, 0)
    a.I('s_cmp_lg_u32 s%d, 218', S_ROLE)
    a.I('s_cbranch_scc1 K_nz')
    for k in range(4):
        a.I('v_mov_b32 v%d, 0', 240 + k)
    a.I('v_and_b32 v244, 63, v0')
    a.I('v_lshlrev_b32 v244, 4, v244')
    a.I('s_mul_i32 s%d, s%d, %d', sT, S_WAVE, FL_SIZE // 4)
    a.I('s_add_u32 s%d, s%d, 0x%x', sT, sT, WS_FLAGS)
    assert FL_SIZE % 4096 == 0
    for k in range(FL_SIZE // 4096):
        if k and k % 4 == 0:
            a.I('s_add_u32 s%d, s%d, 4096', sT, sT)
        a.I('buffer_store_dwordx4 v[240:243], v244, %s, s%d offen offset:%d sc1', WS, sT, (k % 4) * 1024)
    a.I('s_waitcnt vmcnt(0)')
    a.I('s_barrier')
    dbg_add(a, D_FINIT)
    a.label('K_nz')
    LN0 = cfg.get('ln0', 90)
    a.I('s_sub_u32 s%d, s%d, %d', sT + 5, S_ROLE, LN0)
    a.I('s_cmp_ge_u32 s%d, 128', sT + 5)
    a.I('s_cbranch_scc1 K_a')
    rec.srd(a, S_W, P_X, 2097152)
    a.I('s_lshl_b32 s%d, s%d, 14', sT + 6, sT + 5)
    a.I('s_lshl_b32 s%d, s%d, 12', sT, S_WAVE)
    a.I('s_add_u32 s%d, s%d, s%d', sT + 6, sT + 6, sT)
    a.I('s_add_u32 s%d, s%d, 2048', sT + 7, sT + 6)
    t0 = bulk.ln_issue(a, sT + 6, B=200)
    t1 = bulk.ln_issue(a, sT + 7, B=150)
    if cfg.get('wopf', 1):
        rec.srd(a, S_W2, P_WO, 4194304)
        a.I('s_lshl_b32 s%d, s%d, 1', sT + 4, sT + 6)
        for k in range(8):
            if k == 4:
                a.I('s_add_u32 s%d, s%d, 4096', sT + 4, sT + 4)
            a.I('buffer_load_dwordx4 v[%d:%d], v208, s[%d:%d], s%d offen offset:%d', 100 + 4 * k, 103 + 4 * k, S_W2, S_W2 + 3, sT + 4, (k % 4) * 1024)
    bulk.ln_compute(a, t0, sT + 6, B=200)
    bulk.ln_compute(a, t1, sT + 7, B=150)
    bulk.wait_dbg(a, D_FINIT, 1)
    a.I('s_barrier')
    lab = a.newlabel('LNF')
    a.I('s_cmp_lg_u32 s%d, 0', S_WAVE)
    a.I('s_cbranch_scc1 %s', lab)
    a.I('s_lshl_b32 s%d, s%d, 2', sT + 1, sT + 5)
    a.I('s_add_u32 s%d, s%d, 0x%x', sT + 1, sT + 1, WS_FLAGS + FL_XN)
    bulk.flag_store(a, sT + 1)
    a.label(lab)
    bulk.bstamp(a, 1)
    a.label('K_a')
    bulk.gen_phase_a(a)
    bulk.wait_dbg(a, D_FINIT, 1)
    a.I('s_mov_b32 s%d, 0', bulk.sSpin)
    a.I('v_mov_b32 v250, 0')
    a.label('K_arr')
    a.I('buffer_load_dword v251, v250, %s, 0 offen offset:%d sc1', DBG, D_TICK_REC * 4)
    a.I('buffer_load_dword v252, v250, %s, 0 offen offset:%d sc1', DBG, D_TICK_A * 4)
    bulk.spin(a)
    a.I('s_waitcnt vmcnt(0)')
    a.I('v_readfirstlane_b32 s%d, v251', sT)
    a.I('v_readfirstlane_b32 s%d, v252', sT + 1)
    a.I('s_cmp_ge_u32 s%d, 32', sT)
    a.I('s_cbranch_scc1 K_arr2')
    a.I('s_add_u32 s%d, s%d, s%d', sT, sT, sT + 1)
    a.I('s_cmp_lt_u32 s%d, 256', sT)
    a.I('s_cbranch_scc1 K_arr')
    a.label('K_arr2')
    ticket(a, D_TICK_REC, S_ROLE, pre=sT)
    a.I('s_cmp_ge_u32 s%d, 32', S_ROLE)
    a.I('s_cbranch_scc1 K_b')
    dbg_add(a, D_CNT_OTH)
    a.I('s_branch K_rec')
    a.label('K_b')
    ticket(a, D_TICK_B, S_ROLE)
    a.I('s_cmp_lt_u32 s%d, %d', S_ROLE, bulk.NT1)
    a.I('s_cbranch_scc1 K_t1')
    a.I('s_sub_u32 s%d, s%d, %d', S_ROLE, S_ROLE, bulk.NT1)
    a.I('s_cmp_ge_u32 s%d, 128', S_ROLE)
    a.I('s_cbranch_scc1 K_exit')
    bulk.gen_t2(a)
    a.label('K_t1')
    bulk.gen_t1(a)
    a.label('B_fail')
    a.I('s_mov_b64 exec, 1')
    a.I('v_mov_b32 v252, %d', (D_ERR + 2) * 4)
    a.I('v_mov_b32 v251, s%d', S_ROLE)
    a.I('v_or_b32 v251, 0x20000000, v251')
    a.I('buffer_store_dword v251, v252, %s, 0 offen sc1', DBG)
    a.label('K_exit')
    a.I('s_endpgm')
    a.label('K_rec')
    rec.gen_rec(a, cfg)
    a.label('K_end')
    errs = a.verify_edges()
    for e in errs:
        print('HAZARD', e, file=sys.stderr)
    k = KNAME + '_kernel'
    ref = open('cdna_kernels/%s.s.ref' % KNAME).read().split('\n')
    hdr = '\n'.join(l for l in ref[:17] if l.startswith(';') and '@launch' not in l) + '\n'
    hdr += '; @launch grid=(256,1,1) block=(256,1,1) lds=163840\n.amdgcn_target "amdgcn-amd-amdhsa--gfx950"\n.text\n.globl %s\n.p2align 8\n.type %s,@function\n%s:\n' % (k, k, k)
    ftr = '''.section .rodata,"a"
.p2align 6
.amdhsa_kernel %s
  .amdhsa_next_free_vgpr 512
  .amdhsa_next_free_sgpr 102
  .amdhsa_accum_offset 256
  .amdhsa_group_segment_fixed_size 0
  .amdhsa_kernarg_size 112
  .amdhsa_user_sgpr_count 2
  .amdhsa_user_sgpr_kernarg_segment_ptr 1
  .amdhsa_system_sgpr_workgroup_id_x 1
  .amdhsa_float_denorm_mode_32 3
.end_amdhsa_kernel
''' % k
    return hdr + a.text() + ftr


if __name__ == '__main__':
    cfg = dict(fast=True, kvflags=1, both_modes=1, npre=5, d0=5, d1=7, d2=2, pgap=4, b3=1, warm128=1, pubpos=0)
    for arg in sys.argv[2:]:
        k, v = arg.split('=')
        cfg[k] = int(v)
    open(sys.argv[1], 'w').write(build(cfg))
```

```python
from asmlib import *
from common import *
from rec import srd, f32bits

WS = 's[%d:%d]' % (S_WS, S_WS + 3)
DBG = 's[%d:%d]' % (S_DBG, S_DBG + 3)
DP = ' row_mask:0xf bank_mask:0xf'
sT = 84
sSpin = 83
SPIN_MAX = 0x400000


BST = False
SL1, SL2 = 2, 2
DBGT = False


def dbg_time(a, dword, invert=False, V=248):
    if not DBGT:
        return
    a.I('s_memrealtime s[100:101]')
    a.I('s_waitcnt lgkmcnt(0)')
    if invert:
        a.I('s_not_b32 s100, s100')
    a.I('s_mov_b64 exec, 1')
    a.I('v_mov_b32 v%d, %d', V, dword * 4)
    a.I('v_mov_b32 v%d, s100', V + 1)
    a.I('buffer_atomic_umax v%d, v%d, %s, 0 offen', V + 1, V, DBG)
    a.I('s_mov_b64 exec, -1')

HOLD = 0


def bstamp(a, idx, V=14):
    if not BST:
        return
    lab = a.newlabel('BS')
    a.I('s_cmp_lg_u32 s%d, 0', S_WAVE)
    a.I('s_cbranch_scc1 %s', lab)
    a.I('s_memrealtime s[100:101]')
    a.I('s_lshl_b32 s99, s2, 6')
    a.I('s_add_u32 s99, s99, 0x%x', WS_DBG + 0x90000 + idx * 4)
    a.I('s_waitcnt lgkmcnt(0)')
    a.I('s_mov_b64 exec, 1')
    a.I('v_mov_b32 v%d, 0', V)
    a.I('v_mov_b32 v%d, s100', V + 1)
    a.I('buffer_store_dword v%d, v%d, %s, s99 offen', V + 1, V, WS)
    a.I('v_mov_b32 v%d, s%d', V + 1, S_ROLE)
    a.I('buffer_store_dword v%d, v%d, %s, s99 offen offset:32', V + 1, V, WS)
    a.I('s_mov_b64 exec, -1')
    a.label(lab)
    a.vm_n -= 2


def spin(a, fail='B_fail'):
    a.I('s_add_u32 s%d, s%d, 1', sSpin, sSpin)
    a.I('s_cmp_gt_u32 s%d, 0x%x', sSpin, SPIN_MAX)
    a.I('s_cbranch_scc1 %s', fail)


def wave_allsum(a, regs, tmp):
    for sh in (1, 2, 4, 8):
        for r in regs:
            a.I('v_add_f32_dpp v%d, v%d, v%d row_ror:%d' + DP, r, r, r, sh)
    for op in ('v_permlane16_swap_b32', 'v_permlane32_swap_b32'):
        for r, t in zip(regs, tmp):
            a.I('v_mov_b32 v%d, v%d', t, r)
        for r, t in zip(regs, tmp):
            a.I('%s v%d, v%d', op, r, t)
        for r, t in zip(regs, tmp):
            a.I('v_add_f32 v%d, v%d, v%d', r, r, t)


def rnd_bf16(a, r):
    a.I('v_cvt_pk_bf16_f32 v%d, v%d, v%d', r, r, r)
    a.I('v_and_b32 v%d, 0xffff0000, v%d', r, r)


def ln_issue(a, srow, B=200):
    a.I('v_and_b32 v%d, 63, v0', B + 8)
    a.I('v_lshlrev_b32 v%d, 4, v%d', B + 8, B + 8)
    a.I('buffer_load_dwordx4 v[%d:%d], v%d, s[%d:%d], s%d offen', B, B + 3, B + 8, S_W, S_W + 3, srow)
    return a.I('buffer_load_dwordx4 v[%d:%d], v%d, s[%d:%d], s%d offen offset:1024', B + 4, B + 7, B + 8, S_W, S_W + 3, srow)


def ln_compute(a, tok, srow, B=200):
    X = [B + 10, B + 18]
    S = [B + 26, B + 27]
    TM = [B + 28, B + 29]
    MB = [B + 30, B + 31]
    D = [B + 32, B + 40]
    if tok:
        a.wait(tok)
    for r in range(2):
        for k in range(4):
            a.I('v_lshlrev_b32 v%d, 16, v%d', X[r] + 2 * k, B + 4 * r + k)
            a.I('v_and_b32 v%d, 0xffff0000, v%d', X[r] + 2 * k + 1, B + 4 * r + k)
    for r in range(2):
        a.I('v_add_f32 v%d, v%d, v%d', S[r], X[r], X[r] + 1)
        for k in range(2, 8):
            a.I('v_add_f32 v%d, v%d, v%d', S[r], S[r], X[r] + k)
    wave_allsum(a, S, TM)
    for r in range(2):
        a.I('v_mul_f32 v%d, 0x%x, v%d', MB[r], f32bits(1.0 / 512), S[r])
    for r in range(2):
        for k in range(8):
            a.I('v_sub_f32 v%d, v%d, v%d', D[r] + k, X[r] + k, MB[r])
        a.I('v_mul_f32 v%d, v%d, v%d', S[r], D[r], D[r])
        for k in range(1, 8):
            a.I('v_fmac_f32 v%d, v%d, v%d', S[r], D[r] + k, D[r] + k)
    wave_allsum(a, S, TM)
    for r in range(2):
        a.I('v_mul_f32 v%d, 0x%x, v%d', S[r], f32bits(1.0 / 512), S[r])
        rnd_bf16(a, S[r])
        a.I('v_add_f32 v%d, 0x%x, v%d', S[r], f32bits(1e-5), S[r])
        rnd_bf16(a, S[r])
        a.I('v_sqrt_f32 v%d, v%d', S[r], S[r])
        rnd_bf16(a, S[r])
        a.I('v_rcp_f32 v%d, v%d', S[r], S[r])
        rnd_bf16(a, MB[r])
    for r in range(2):
        for k in range(4):
            a.I('v_sub_f32 v%d, v%d, v%d', D[r] + 2 * k, X[r] + 2 * k, MB[r])
            a.I('v_sub_f32 v%d, v%d, v%d', D[r] + 2 * k + 1, X[r] + 2 * k + 1, MB[r])
            a.I('v_cvt_pk_bf16_f32 v%d, v%d, v%d', TM[r], D[r] + 2 * k, D[r] + 2 * k + 1)
            a.I('v_lshlrev_b32 v%d, 16, v%d', D[r] + 2 * k, TM[r])
            a.I('v_and_b32 v%d, 0xffff0000, v%d', D[r] + 2 * k + 1, TM[r])
            a.I('v_mul_f32 v%d, v%d, v%d', D[r] + 2 * k, D[r] + 2 * k, S[r])
            a.I('v_mul_f32 v%d, v%d, v%d', D[r] + 2 * k + 1, D[r] + 2 * k + 1, S[r])
            a.I('v_cvt_pk_bf16_f32 v%d, v%d, v%d', B + 4 * r + k, D[r] + 2 * k, D[r] + 2 * k + 1)
    a.I('buffer_store_dwordx4 v[%d:%d], v%d, %s, s%d offen sc1', B, B + 3, B + 8, WS, srow)
    return a.I('buffer_store_dwordx4 v[%d:%d], v%d, %s, s%d offen offset:1024 sc1', B + 4, B + 7, B + 8, WS, srow)


def wait_dbg(a, dword, minval, V=250, fail='B_fail', sleep=2):
    lab = a.newlabel('WD')
    a.I('v_mov_b32 v%d, %d', V, dword * 4)
    a.I('s_mov_b32 s%d, 0', sSpin)
    a.label(lab)
    a.I('buffer_load_dword v%d, v%d, %s, 0 offen sc1', V + 1, V, DBG)
    spin(a, fail)
    a.I('s_waitcnt vmcnt(0)')
    a.I('v_readfirstlane_b32 s%d, v%d', sT, V + 1)
    a.I('s_cmp_ge_u32 s%d, %d', sT, minval)
    done = a.newlabel('WDd')
    a.I('s_cbranch_scc1 %s', done)
    a.I('s_sleep %d', sleep)
    a.I('s_branch %s', lab)
    a.label(done)


def flag_store(a, soff, V=250, val=1):
    a.I('s_mov_b64 exec, 1')
    a.I('v_mov_b32 v%d, 0', V)
    a.I('v_mov_b32 v%d, %s', V + 1, str(val))
    a.I('buffer_store_dword v%d, v%d, %s, s%d offen sc1', V + 1, V, WS, soff)
    a.I('s_mov_b64 exec, -1')


sSeg, sStride, sSlice, sCol, sOut, sSrc, sBuf, sFlagPrev, sHave = 64, 65, 66, 67, 68, 69, 70, 71, 72
sFlagBase = 73
sPermLo, sPermHi = 95, 96
vLane, vN, vG, vL16, vSrc, vWa, vWb = 1, 2, 3, 4, 5, 6, 7
FR = 16
ACC = 48
OUT = 80
WB = 100


def lane_consts(a):
    a.I('v_and_b32 v%d, 63, v0', vLane)
    a.I('v_and_b32 v%d, 15, v%d', vN, vLane)
    a.I('v_lshrrev_b32 v%d, 4, v%d', vG, vLane)
    a.I('v_lshlrev_b32 v%d, 4, v%d', vL16, vLane)
    a.I('s_mov_b32 s%d, 0x05040100', sPermLo)
    a.I('s_mov_b32 s%d, 0x07060302', sPermHi)


def gemm_weights(a, ffn):
    stride = 3584 if ffn else 8192
    a.I('s_mov_b32 s%d, %d', sT, stride * 8)
    a.I('v_mul_lo_u32 v%d, v%d, s%d', vWa, vG, sT)
    a.I('v_lshl_add_u32 v%d, v%d, %d, v%d', vWa, vN, 2 if ffn else 3, vWa)
    NB = 3
    toks = {}

    def issue(g):
        b = WB + 32 * (g % NB)
        for h in range(2):
            ks = 2 * g + h
            for kk in range(8):
                r = b + 16 * h + 2 * kk
                a.I('s_add_u32 s%d, s%d, %d', sT, sCol, (32 * ks + kk) * stride)
                if ffn:
                    a.I('buffer_load_dword v%d, v%d, s[%d:%d], s%d offen', r, vWa, S_W, S_W + 3, sT)
                    t = a.I('buffer_load_dword v%d, v%d, s[%d:%d], s%d offen', r + 1, vWa, S_W2, S_W2 + 3, sT)
                else:
                    t = a.I('buffer_load_dwordx2 v[%d:%d], v%d, s[%d:%d], s%d offen', r, r + 1, vWa, S_W, S_W + 3, sT)
        toks[g] = t

    def consume(g):
        b = WB + 32 * (g % NB)
        a.wait(toks[g])
        for h in range(2):
            ks = 2 * g + h
            for t in range(4):
                for p in range(4):
                    r0 = b + 16 * h + 4 * p + t // 2
                    a.I('v_perm_b32 v%d, v%d, v%d, s%d', OUT + 4 * t + p, r0 + 2, r0, sPermLo if t % 2 == 0 else sPermHi)
            for k in range(16):
                a.I('v_accvgpr_write_b32 a%d, v%d', 16 * ks + k, OUT + k)
    depth = 1 if ffn else 3
    for g in range(depth):
        issue(g)
    for g in range(8):
        if ffn and g + 1 < 8:
            issue(g + 1)
        consume(g)
        if not ffn and g + depth < 8:
            issue(g + depth)


def gemm_loop(a, kind):
    L = 'A%s_' % kind

    def dma():
        for j in range(8):
            a.I('s_add_u32 m0, s%d, %d', sBuf, j * (1024 - 64))
            a.I('buffer_load_dwordx4 v%d, %s, s%d offen offset:%d sc1 lds', vSrc, WS, sSrc, j * 64)

    a.I('s_lshl_b32 s%d, s%d, 13', sBuf, S_WAVE)
    a.I('s_lshl_b32 s%d, s%d, 15', sSrc, sSeg)
    dma()
    a.I('s_mov_b32 s%d, 0', sHave)
    a.I('v_mov_b32 v%d, v%d', vWb, vL16)
    a.I('s_waitcnt vmcnt(0)')
    a.I('s_barrier')
    a.label(L + 'loop')
    a.I('s_add_u32 s%d, s%d, s%d', sT + 1, sSeg, sStride)
    a.I('s_min_u32 s%d, s%d, 63', sT + 1, sT + 1)
    a.I('s_lshl_b32 s%d, s%d, 15', sSrc, sT + 1)
    a.I('s_xor_b32 s%d, s%d, 32768', sBuf, sBuf)
    ft = {}

    def rd(ks):
        st = ks % 3
        a.I('ds_read_b128 v[%d:%d], v%d offset:%d', FR + 8 * st, FR + 8 * st + 3, vWb, ks * 1024)
        ft[ks] = a.I('ds_read_b128 v[%d:%d], v%d offset:%d', FR + 8 * st + 4, FR + 8 * st + 7, vWb, 16384 + ks * 1024)
    rd(0)
    rd(1)
    dma()
    for ks in range(16):
        if ks + 2 < 16:
            rd(ks + 2)
        a.wait(ft[ks])
        st = ks % 3
        for T in range(2):
            for t in range(4):
                d = ACC + 16 * T + 4 * t
                x = vr(FR + 8 * st + 4 * T, 4)
                w = ar(16 * ks + 4 * t, 4)
                A, B = (x, w) if kind == 'v' else (w, x)
                a.I('v_mfma_f32_16x16x32_bf16 v[%d:%d], %s, %s, %s', d, d + 3, A, B, '0' if ks == 0 else vr(d, 4))
        if ks == 8:
            a.I('s_waitcnt vmcnt(8)')
            a.I('s_barrier')
            sk = a.newlabel(L + 'nf')
            a.I('s_or_b32 s%d, s%d, s%d', sT, S_WAVE, sHave)
            a.I('s_cmp_lg_u32 s%d, 0x100', sT)
            a.I('s_cbranch_scc1 %s', sk)
            flag_store(a, sFlagPrev)
            a.label(sk)
            a.vm_n -= 1
    a.I('s_waitcnt vmcnt(0)')
    a.I('s_barrier')
    if kind == 'qk':
        a.I('s_lshl_b32 s%d, s%d, 18', sT, sSeg)
        a.I('s_add_u32 s%d, s%d, s%d', sT, sT, sOut)
        a.I('s_add_u32 s%d, s%d, 4096', sT + 1, sT)
        for T in range(2):
            for i in range(4):
                for tp in range(2):
                    a.I('v_cvt_pk_bf16_f32 v%d, v%d, v%d', OUT + 8 * T + 2 * i + tp, ACC + 16 * T + 8 * tp + i, ACC + 16 * T + 8 * tp + 4 + i)
            for hf in range(2):
                a.I('buffer_store_dwordx4 v[%d:%d], v%d, %s, s%d offen offset:%d sc1', OUT + 8 * T + 4 * hf, OUT + 8 * T + 4 * hf + 3,
                    vL16, WS, sT + T, 1024 * hf)
    elif kind == 'v':
        a.I('s_lshl_b32 s%d, s%d, 18', sT, sSeg)
        a.I('s_add_u32 s%d, s%d, s%d', sT, sT, sOut)
        for t in range(4):
            for T in range(2):
                for i2 in range(2):
                    a.I('v_cvt_pk_bf16_f32 v%d, v%d, v%d', OUT + 4 * t + 2 * T + i2, ACC + 16 * T + 4 * t + 2 * i2, ACC + 16 * T + 4 * t + 2 * i2 + 1)
            a.I('buffer_store_dwordx4 v[%d:%d], v%d, %s, s%d offen offset:%d sc1', OUT + 4 * t, OUT + 4 * t + 3, vL16, WS, sT, 1024 * t)
    else:
        a.I('s_mul_i32 s%d, s%d, %d', sT, sSeg, 2 * 56 * 1024)
        a.I('s_add_u32 s%d, s%d, s%d', sT, sT, sOut)
        a.I('s_add_u32 s%d, s%d, %d', sT + 1, sT, 56 * 1024)
        for T in range(2):
            for i in range(4):
                g0, g1, u0, u1 = [ACC + 16 * T + 4 * t + i for t in range(4)]
                a.I('v_cvt_pk_bf16_f32 v%d, v%d, v%d', g0, g0, g1)
                a.I('v_cvt_pk_bf16_f32 v%d, v%d, v%d', u0, u0, u1)
                a.I('v_and_b32 v%d, 0xffff0000, v%d', g1, g0)
                a.I('v_and_b32 v%d, 0xffff0000, v%d', u1, u0)
                a.I('v_lshlrev_b32 v%d, 16, v%d', g0, g0)
                a.I('v_lshlrev_b32 v%d, 16, v%d', u0, u0)
                a.I('v_mul_f32 v%d, v%d, v%d', g0, g0, u0)
                a.I('v_mul_f32 v%d, v%d, v%d', g1, g1, u1)
                a.I('v_cvt_pk_bf16_f32 v%d, v%d, v%d', OUT + 4 * T + i, g0, g1)
            a.I('buffer_store_dwordx4 v[%d:%d], v%d, %s, s%d offen sc1', OUT + 4 * T, OUT + 4 * T + 3, vL16, WS, sT + T)
    a.I('s_lshl_b32 s%d, s%d, %d', sT, sSeg, 6 if kind == 'h' else 5)
    a.I('s_add_u32 s%d, s%d, s%d', sFlagPrev, sT, sFlagBase)
    a.I('s_mov_b32 s%d, 0x100', sHave)
    a.I('v_xor_b32 v%d, 32768, v%d', vWb, vWb)
    a.I('s_add_u32 s%d, s%d, s%d', sSeg, sSeg, sStride)
    a.I('s_cmp_lt_u32 s%d, 64', sSeg)
    a.I('s_cbranch_scc1 %sloop', L)
    a.I('s_waitcnt vmcnt(0)')
    a.I('s_barrier')
    sk = a.newlabel(L + 'nf')
    a.I('s_cmp_lg_u32 s%d, 0', S_WAVE)
    a.I('s_cbranch_scc1 %s', sk)
    flag_store(a, sFlagPrev)
    a.label(sk)
    a.I('s_branch A_done')


def wait_xn(a):
    wait_dbg(a, D_FINIT, NZERO, V=FR)
    lab = a.newlabel('WX')
    a.I('v_lshrrev_b32 v%d, 1, v%d', FR + 2, vL16)
    a.I('s_mov_b32 s%d, 0x%x', sT + 1, WS_FLAGS + FL_XN)
    a.I('s_mov_b32 s%d, 0', sSpin)
    a.label(lab)
    a.I('buffer_load_dwordx2 v[%d:%d], v%d, %s, s%d offen sc1', FR, FR + 1, FR + 2, WS, sT + 1)
    spin(a)
    a.I('s_waitcnt vmcnt(0)')
    a.I('v_min_u32 v%d, v%d, v%d', FR, FR, FR + 1)
    a.I('v_cmp_eq_u32 vcc, 0, v%d', FR)
    done = a.newlabel('WXd')
    a.I('s_cbranch_vccz %s', done)
    a.I('s_sleep 2')
    a.I('s_branch %s', lab)
    a.label(done)


def gen_phase_a(a):
    a.c('================ phase A: projections, ticket in s%d ================' % S_ROLE)
    lane_consts(a)
    a.I('v_lshlrev_b32 v%d, 10, v%d', vSrc, vN)
    a.I('v_lshl_add_u32 v%d, v%d, 4, v%d', vSrc, vG, vSrc)
    a.I('s_lshr_b32 s%d, s%d, 1', sT, S_WAVE)
    a.I('s_lshl_b32 s%d, s%d, 14', sT, sT)
    a.I('s_and_b32 s%d, s%d, 1', sT + 1, S_WAVE)
    a.I('s_lshl_b32 s%d, s%d, 9', sT + 1, sT + 1)
    a.I('s_add_u32 s%d, s%d, s%d', sT, sT, sT + 1)
    a.I('v_add_u32 v%d, s%d, v%d', vSrc, sT, vSrc)
    a.I('s_cmp_ge_u32 s%d, 218', S_ROLE)
    a.I('s_cbranch_scc1 A_done')
    a.I('s_cmp_ge_u32 s%d, 176', S_ROLE)
    a.I('s_cbranch_scc1 A_h')
    a.I('s_and_b32 s%d, s%d, 31', sSlice, S_ROLE)
    a.I('s_lshr_b32 s%d, s%d, 5', sSeg, S_ROLE)
    a.I('s_mov_b32 s%d, 4', sStride)
    a.I('s_cmp_lt_u32 s%d, 128', S_ROLE)
    a.I('s_cbranch_scc1 A_kv')
    a.I('s_sub_u32 s%d, s%d, 128', sT, S_ROLE)
    a.I('s_and_b32 s%d, s%d, 15', sSlice, sT)
    a.I('s_add_u32 s%d, s%d, 32', sSlice, sSlice)
    a.I('s_lshr_b32 s%d, s%d, 4', sSeg, sT)
    a.I('s_mov_b32 s%d, 3', sStride)
    if HOLD:
        wait_dbg(a, D_WDONE, HOLD, V=FR, sleep=16)
    a.label('A_kv')
    a.I('s_and_b32 s%d, s%d, 15', sT, sSlice)
    a.I('s_lshl_b32 s%d, s%d, 9', sCol, sT)
    a.I('s_lshl_b32 s%d, s%d, 7', sT + 1, S_WAVE)
    a.I('s_add_u32 s%d, s%d, s%d', sCol, sCol, sT + 1)
    a.I('s_lshl_b32 s%d, s%d, 14', sOut, sT)
    a.I('s_lshr_b32 s%d, s%d, 1', sT + 1, S_WAVE)
    a.I('s_lshl_b32 s%d, s%d, 13', sT + 1, sT + 1)
    a.I('s_add_u32 s%d, s%d, s%d', sOut, sOut, sT + 1)
    a.I('s_and_b32 s%d, s%d, 1', sT + 2, S_WAVE)
    a.I('s_lshr_b32 s%d, s%d, 4', sT + 3, sSlice)
    a.I('s_lshl_b32 s%d, s%d, 11', sFlagBase, sT)
    a.I('s_add_u32 s%d, s%d, 0x%x', sFlagBase, sFlagBase, WS_FLAGS + FL_KV)
    a.I('s_cmp_eq_u32 s%d, 1', sT + 3)
    a.I('s_cbranch_scc1 A_v')
    a.I('s_lshl_b32 s%d, s%d, 11', sT + 2, sT + 2)
    a.I('s_add_u32 s%d, s%d, s%d', sOut, sOut, sT + 2)
    a.I('s_cmp_eq_u32 s%d, 0', sT + 3)
    a.I('s_cselect_b32 s%d, s%d, s%d', S_W, P_WK, P_WQ)
    a.I('s_cselect_b32 s%d, s%d, s%d', S_W + 1, P_WK + 1, P_WQ + 1)
    a.I('s_cselect_b32 s%d, 0, 8', sT + 1)
    a.I('s_cselect_b32 s%d, 0x%x, 0x%x' % (sT, WS_K >> 20, WS_Q >> 20))
    a.I('s_add_u32 s%d, s%d, s%d', sFlagBase, sFlagBase, sT + 1)
    a.I('s_lshl_b32 s%d, s%d, 20', sT, sT)
    a.I('s_add_u32 s%d, s%d, s%d', sOut, sOut, sT)
    a.I('s_and_b32 s%d, s%d, 0xffff', S_W + 1, S_W + 1)
    a.I('s_mov_b32 s%d, 4194304', S_W + 2)
    a.I('s_mov_b32 s%d, 0x20000', S_W + 3)
    a.I('s_branch A_w')
    a.label('A_v')
    a.I('s_lshl_b32 s%d, s%d, 12', sT + 2, sT + 2)
    a.I('s_add_u32 s%d, s%d, s%d', sOut, sOut, sT + 2)
    a.I('s_add_u32 s%d, s%d, 0x%x', sOut, sOut, WS_V)
    a.I('s_add_u32 s%d, s%d, 16', sFlagBase, sFlagBase)
    srd(a, S_W, P_WV, 4194304)
    a.label('A_w')
    gemm_weights(a, False)
    bstamp(a, 2)
    wait_xn(a)
    bstamp(a, 3)
    a.I('s_lshr_b32 s%d, s%d, 4', sT + 3, sSlice)
    a.I('s_cmp_eq_u32 s%d, 1', sT + 3)
    a.I('s_cbranch_scc1 A_vloop')
    gemm_loop(a, 'qk')
    a.label('A_vloop')
    gemm_loop(a, 'v')
    a.label('A_h')
    if HOLD:
        wait_dbg(a, D_WDONE, HOLD, V=FR, sleep=16)
    a.I('s_sub_u32 s%d, s%d, 176', sT, S_ROLE)
    a.I('s_mov_b32 s%d, 0', sSeg)
    for k in range(2):
        a.I('s_cmp_ge_u32 s%d, 14', sT)
        a.I('s_cselect_b32 s%d, 14, 0', sT + 1)
        a.I('s_sub_u32 s%d, s%d, s%d', sT, sT, sT + 1)
        a.I('s_lshr_b32 s%d, s%d, 3', sT + 1, sT + 1)
        a.I('s_add_u32 s%d, s%d, s%d', sSeg, sSeg, sT + 1)
    a.I('s_add_u32 s%d, s%d, 48', sSlice, sT)
    a.I('s_mov_b32 s%d, 3', sStride)
    a.I('s_lshl_b32 s%d, s%d, 2', sT, sT)
    a.I('s_add_u32 s%d, s%d, 0x%x', sFlagBase, sT, WS_FLAGS + FL_H)
    a.I('s_add_u32 s%d, s%d, s%d', sT, sT, S_WAVE)
    a.I('s_lshl_b32 s%d, s%d, 6', sCol, sT)
    a.I('s_lshl_b32 s%d, s%d, 10', sOut, sT)
    a.I('s_add_u32 s%d, s%d, 0x%x', sOut, sOut, WS_H)
    srd(a, S_W, P_WG, 512 * 3584)
    srd(a, S_W2, P_WU, 512 * 3584)
    gemm_weights(a, True)
    bstamp(a, 2)
    wait_xn(a)
    bstamp(a, 3)
    gemm_loop(a, 'h')
    a.label('A_done')
    bstamp(a, 4)


def poll_flags(a, vaddr, soff, nlanes, smin, V, sleep=2, far=None):
    lab = a.newlabel('PF')
    done = a.newlabel('PFd')
    a.I('s_mov_b32 s%d, 0', sSpin)
    a.I('s_mov_b64 exec, 0x%x', (1 << nlanes) - 1)
    a.label(lab)
    a.I('buffer_load_dword v%d, v%d, %s, s%d offen sc1', V, vaddr, WS, soff)
    spin(a)
    a.I('s_waitcnt vmcnt(0)')
    if smin is None:
        a.I('v_cmp_eq_u32 vcc, 0, v%d', V)
    else:
        a.I('v_cmp_gt_u32 vcc, s%d, v%d', smin, V)
    a.I('s_cbranch_vccz %s', done)
    a.I('s_sleep %d', sleep)
    if far:
        a.I('v_readfirstlane_b32 s%d, v%d', sT, V)
        a.I('s_add_u32 s%d, s%d, %d', sT, sT, far[0])
        a.I('s_cmp_ge_u32 s%d, s%d', sT, smin)
        a.I('s_cbranch_scc1 %s', lab)
        a.I('s_sleep %d', far[1])
    a.I('s_branch %s', lab)
    a.label(done)
    a.I('s_mov_b64 exec, -1')


NT1 = 96


def gen_t1(a):
    a.c('================ T1: token attention ================')
    sTask, sSegT, sHead, sBase, sB2, sNeed, sC = 64, 65, 66, 67, 68, 69, 70
    sMask = 72
    sLo = 80
    vKm, vVm, vF64, vF128, vNeg = 5, 6, 7, 8, 9
    TM = 10
    QF, KF, VF, KM, VM, S, P, O = 16, 48, 80, 112, 128, 144, 164, 176
    lane_consts(a)
    a.I('s_mov_b32 s%d, 0x%x', sC, f32bits(128 ** -0.5 * 1.4426950408889634))
    a.I('v_mov_b32 v%d, 0x%x', vNeg, f32bits(-3.0e38))
    a.I('v_lshlrev_b32 v%d, 2, v%d', TM, vG)
    for i in range(4):
        a.I('v_add_u32 v%d, %d, v%d', TM + 1, i, TM)
        a.I('v_cmp_le_u32 s[%d:%d], v%d, v%d', sMask + 2 * i, sMask + 2 * i + 1, TM + 1, vN)
    a.I('s_mov_b32 s%d, -1', sLo)
    a.I('s_mov_b32 s%d, 0', sLo + 1)
    a.I('v_lshlrev_b32 v%d, 3, v%d', vF64, vLane)
    a.I('v_lshlrev_b32 v%d, 7, v%d', vF128, vLane)
    a.I('v_lshrrev_b32 v%d, 1, v%d', TM, vG)
    a.I('v_lshlrev_b32 v%d, 10, v%d', vKm, TM)
    a.I('v_and_b32 v%d, 1, v%d', TM, vG)
    a.I('v_lshl_add_u32 v%d, v%d, 7, v%d', vKm, TM, vKm)
    a.I('v_bfe_u32 v%d, v%d, 1, 2', TM, vN)
    a.I('v_lshl_add_u32 v%d, v%d, 8, v%d', vKm, TM, vKm)
    a.I('v_and_b32 v%d, 1, v%d', TM, vN)
    a.I('v_lshl_add_u32 v%d, v%d, 2, v%d', vKm, TM, vKm)
    a.I('v_add_u32 v%d, 4, v%d', vKm, vKm)
    a.I('v_lshrrev_b32 v%d, 3, v%d', TM, vN)
    a.I('v_lshlrev_b32 v%d, 10, v%d', vVm, TM)
    a.I('v_and_b32 v%d, 1, v%d', TM, vG)
    a.I('v_lshl_add_u32 v%d, v%d, 9, v%d', vVm, TM, vVm)
    a.I('v_and_b32 v%d, 7, v%d', TM, vN)
    a.I('v_lshl_add_u32 v%d, v%d, 5, v%d', vVm, TM, vVm)
    a.I('s_lshl_b32 s%d, s%d, 12', sT, S_WAVE)
    a.I('v_add_u32 v%d, s%d, v%d', vKm, sT, vKm)
    a.I('v_add_u32 v%d, s%d, v%d', vVm, sT, vVm)
    a.I('s_lshl_b32 s%d, s%d, 2', sTask, S_ROLE)
    a.I('s_add_u32 s%d, s%d, s%d', sTask, sTask, S_WAVE)
    sDone, sFlO = 71, 82
    a.I('s_mov_b32 s%d, 0', sDone)
    a.I('s_lshl_b32 s%d, s%d, 7', sFlO, S_ROLE)
    a.I('s_lshl_b32 s%d, s%d, 2', sT, S_WAVE)
    a.I('s_add_u32 s%d, s%d, s%d', sFlO, sFlO, sT)
    a.I('s_add_u32 s%d, s%d, 0x%x', sFlO, sFlO, WS_FLAGS + FL_O)
    bstamp(a, 5)
    a.label('T1_loop')
    a.I('s_lshr_b32 s%d, s%d, 5', sSegT, sTask)
    a.I('s_and_b32 s%d, s%d, 31', sHead, sTask)
    a.I('s_lshl_b32 s%d, s%d, 5', sT + 1, sSegT)
    a.I('s_lshr_b32 s%d, s%d, 1', sT + 2, sHead)
    a.I('s_lshl_b32 s%d, s%d, 11', sT + 2, sT + 2)
    a.I('s_add_u32 s%d, s%d, s%d', sT + 1, sT + 1, sT + 2)
    a.I('s_add_u32 s%d, s%d, 0x%x', sT + 1, sT + 1, WS_FLAGS + FL_KV)
    poll_flags(a, vF64, sT + 1, 3, None, TM, sleep=8)
    a.I('s_lshl_b32 s%d, s%d, 13', sBase, sTask)
    tk = {}
    for nm, R, W0 in (('k', KF, WS_K), ('q', QF, WS_Q), ('v', VF, WS_V)):
        a.I('s_add_u32 s%d, s%d, 0x%x', sT + 1, sBase, W0)
        a.I('s_add_u32 s%d, s%d, 0x%x', sT + 2, sBase, W0 + 4096)
        for f in range(8):
            tk[nm, f] = a.I('buffer_load_dwordx4 v[%d:%d], v%d, %s, s%d offen offset:%d sc1', R + 4 * f, R + 4 * f + 3, vL16, WS,
                            sT + 1 + f // 4, (f % 4) * 1024)
    a.wait(tk['q', 7])
    for (D, Tk, Tq) in ((S, 0, 0), (S + 8, 0, 1), (S + 12, 1, 1)):
        for f in range(4):
            a.I('v_mfma_f32_16x16x32_bf16 v[%d:%d], %s, %s, %s', D, D + 3, vr(KF + 16 * Tk + 4 * f, 4), vr(QF + 16 * Tq + 4 * f, 4),
                '0' if f == 0 else vr(D, 4))
    a.I('s_add_u32 s%d, s%d, 1', sNeed, sSegT)
    a.I('s_lshl_b32 s%d, s%d, 9', sT + 1, sHead)
    a.I('s_add_u32 s%d, s%d, 0x%x', sT + 1, sT + 1, WS_FLAGS + FL_KM)
    for i in range(4):
        a.I('v_cndmask_b32 v%d, v%d, v%d, s[%d:%d]', S + i, vNeg, S + i, sMask + 2 * i, sMask + 2 * i + 1)
        a.I('v_cndmask_b32 v%d, v%d, v%d, s[%d:%d]', S + 12 + i, vNeg, S + 12 + i, sMask + 2 * i, sMask + 2 * i + 1)
    a.I('v_max3_f32 v%d, v%d, v%d, v%d', TM + 2, S, S + 1, S + 2)
    a.I('v_max_f32 v%d, v%d, v%d', TM + 2, TM + 2, S + 3)
    a.I('v_max3_f32 v%d, v%d, v%d, v%d', TM + 3, S + 8, S + 9, S + 10)
    a.I('v_max3_f32 v%d, v%d, v%d, v%d', TM + 3, TM + 3, S + 11, S + 12)
    a.I('v_max3_f32 v%d, v%d, v%d, v%d', TM + 3, TM + 3, S + 13, S + 14)
    a.I('v_max_f32 v%d, v%d, v%d', TM + 3, TM + 3, S + 15)
    poll_flags(a, vF128, sT + 1, 4, sNeed, TM, sleep=SL1, far=(3, 60))
    bstamp(a, 2, V=250)
    a.I('s_lshl_b32 s%d, s%d, 12', sB2, sTask)
    a.I('s_add_u32 s%d, s%d, 0x%x', sB2, sB2, WS_VM)
    a.I('s_lshl_b32 m0, s%d, 12', S_WAVE)
    for k in range(4):
        a.I('buffer_load_dwordx4 v%d, %s, s%d offen offset:%d sc1 lds', vL16, WS, sB2, k * 1024)
    a.I('s_waitcnt vmcnt(0)')
    for f in range(4):
        o = ((f // 2) * 2048 + (f % 2) * 64) // 4
        if f == 2:
            a.I('v_add_u32 v%d, 2048, v%d', TM, vKm)
        for c in range(0, 4, 2):
            t = a.I('ds_read2_b32 v[%d:%d], v%d offset0:%d offset1:%d', KM + 4 * f + c, KM + 4 * f + c + 1, vKm if f < 2 else TM,
                    (f % 2) * 16 + c * 4, (f % 2) * 16 + c * 4 + 4)
        tk['km', f] = t
    a.I('v_add_u32 v%d, 2048, v%d', TM + 1, vVm)

    def rvm(tau):
        G, t = tau // 4, tau % 4
        o = (t // 2) * 4 + (t % 2) * 3
        tk['vm'] = a.I('ds_read2_b32 v[%d:%d], v%d offset0:%d offset1:%d', VM + 2 * tau, VM + 2 * tau + 1, vVm if G == 0 else TM + 1, o, o + 64)
    for f in range(4):
        a.wait(tk['km', f])
        for Tq, D in ((0, S + 4), (1, S + 16)):
            a.I('v_mfma_f32_16x16x32_bf16 v[%d:%d], %s, %s, %s', D, D + 3, vr(KM + 4 * f, 4), vr(QF + 16 * Tq + 4 * f, 4), '0' if f == 0 else vr(D, 4))
    for tau in range(8):
        rvm(tau)
    MX = [TM + 2, TM + 3]
    MT = [TM + 4, TM + 5]
    for Tq, D in ((0, S + 4), (1, S + 16)):
        a.I('v_max3_f32 v%d, v%d, v%d, v%d', MX[Tq], MX[Tq], D, D + 1)
        a.I('v_max3_f32 v%d, v%d, v%d, v%d', MX[Tq], MX[Tq], D + 2, D + 3)
    for op in ('v_permlane32_swap_b32', 'v_permlane16_swap_b32'):
        for Tq in range(2):
            a.I('v_mov_b32 v%d, v%d', MT[Tq], MX[Tq])
        for Tq in range(2):
            a.I('%s v%d, v%d', op, MX[Tq], MT[Tq])
        for Tq in range(2):
            a.I('v_max_f32 v%d, v%d, v%d', MX[Tq], MX[Tq], MT[Tq])
    for Tq, D in ((0, S + 4), (1, S + 16)):
        a.I('v_mul_f32 v%d, s%d, v%d', MX[Tq], sC, MX[Tq])
        for i in range(4):
            a.I('v_cndmask_b32 v%d, v%d, v%d, s[%d:%d]', D + i, vNeg, D + i, sLo, sLo + 1)
    rng = {0: range(S, S + 8), 1: range(S + 8, S + 20)}
    for Tq in range(2):
        for r in rng[Tq]:
            a.I('v_fma_f32 v%d, v%d, s%d, -v%d', r, r, sC, MX[Tq])
        for r in rng[Tq]:
            a.I('v_exp_f32 v%d, v%d', r, r)
    a.I('v_cvt_pk_bf16_f32 v%d, v%d, v%d', P, S, S + 1)
    a.I('v_cvt_pk_bf16_f32 v%d, v%d, v%d', P + 1, S + 2, S + 3)
    a.I('v_mov_b32 v%d, 0', P + 2)
    a.I('v_mov_b32 v%d, 0', P + 3)
    for k in range(4):
        a.I('v_cvt_pk_bf16_f32 v%d, v%d, v%d', P + 4 + k, S + 8 + 2 * k, S + 9 + 2 * k)
    for Tq, D in ((0, S + 4), (1, S + 16)):
        a.I('v_cvt_pk_bf16_f32 v%d, v%d, v%d', P + 8 + 2 * Tq, D, D + 1)
        a.I('v_cvt_pk_bf16_f32 v%d, v%d, v%d', P + 9 + 2 * Tq, D + 2, D + 3)
    for Tq in range(2):
        for tau in range(8):
            D = O + 32 * Tq + 4 * tau
            a.I('v_mfma_f32_16x16x32_bf16 v[%d:%d], %s, %s, 0', D, D + 3, vr(VF + 4 * tau, 4), vr(P + 4 * Tq, 4))
            if Tq == 0:
                k = tau
                if k == 0:
                    a.I('v_add_f32 v%d, v%d, v%d', MX[0], S, S + 1)
                    a.I('v_add_f32 v%d, v%d, v%d', MX[1], S + 8, S + 9)
                elif k < 7:
                    a.I('v_add_f32 v%d, v%d, v%d', MX[0], MX[0], S + 1 + k)
                    a.I('v_add_f32 v%d, v%d, v%d', MX[1], MX[1], S + 9 + k)
                else:
                    a.I('v_add_f32 v%d, v%d, v%d', MX[1], MX[1], S + 16)
                    a.I('v_add_f32 v%d, v%d, v%d', MX[1], MX[1], S + 17)
            elif tau == 0:
                a.I('v_add_f32 v%d, v%d, v%d', MX[1], MX[1], S + 18)
                a.I('v_add_f32 v%d, v%d, v%d', MX[1], MX[1], S + 19)
    a.wait(tk['vm'])
    for Tq in range(2):
        for tau in range(8):
            D = O + 32 * Tq + 4 * tau
            a.I('v_mfma_f32_16x16x16_bf16 v[%d:%d], %s, %s, %s', D, D + 3, vr(VM + 2 * tau, 2), vr(P + 8 + 2 * Tq, 2), vr(D, 4))
    for op in ('v_permlane32_swap_b32', 'v_permlane16_swap_b32'):
        for Tq in range(2):
            a.I('v_mov_b32 v%d, v%d', MT[Tq], MX[Tq])
        for Tq in range(2):
            a.I('%s v%d, v%d', op, MX[Tq], MT[Tq])
        for Tq in range(2):
            a.I('v_add_f32 v%d, v%d, v%d', MX[Tq], MX[Tq], MT[Tq])
    for Tq in range(2):
        a.I('v_rcp_f32 v%d, v%d', MX[Tq], MX[Tq])
    bstamp(a, 3, V=250)
    a.I('s_add_u32 s%d, s%d, 0x%x', sT + 1, sBase, WS_O)
    a.I('s_add_u32 s%d, s%d, 0x%x', sT + 2, sBase, WS_O + 4096)
    for Tq in range(2):
        for G in range(2):
            B = O + 32 * Tq + 16 * G
            for r in range(16):
                a.I('v_mul_f32 v%d, v%d, v%d', B + r, B + r, MX[Tq])
            PK = KF + 16 * Tq + 8 * G
            for i in range(4):
                for tp in range(2):
                    a.I('v_cvt_pk_bf16_f32 v%d, v%d, v%d', PK + 2 * i + tp, B + 8 * tp + i, B + 8 * tp + 4 + i)
            for hf in range(2):
                a.I('buffer_store_dwordx4 v[%d:%d], v%d, %s, s%d offen offset:%d sc1', PK + 4 * hf, PK + 4 * hf + 3, vL16, WS, sT + 1 + Tq,
                    G * 2048 + hf * 1024)
    a.I('s_add_u32 s%d, s%d, 1', sDone, sDone)
    a.I('s_waitcnt vmcnt(0)')
    flag_store(a, sFlO, V=TM, val='s%d' % sDone)
    a.I('s_add_u32 s%d, s%d, %d', sTask, sTask, NT1 * 4)
    a.I('s_cmp_lt_u32 s%d, 2048', sTask)
    a.I('s_cbranch_scc1 T1_loop')
    bstamp(a, 6)
    a.I('s_endpgm')


def gen_t2(a):
    a.c('================ T2: output projection + FFN down + final ================')
    sTile, sSl, sSegT, sPar, sOB, sXO, sL2e = 64, 65, 66, 67, 68, 69, 70
    vW1, vW2, vF4, vLw, vLr, vXo = 5, 6, 7, 8, 9, 10
    TM = 12
    SA, FA = 20, 28
    BUF = 36
    XR = 132
    HW = 144
    lane_consts(a)
    a.I('s_and_b32 s%d, s%d, 15', sSl, S_ROLE)
    a.I('s_lshr_b32 s%d, s%d, 4', sTile, S_ROLE)
    a.I('s_mov_b32 s%d, 0x%x', sL2e, f32bits(-1.4426950408889634))
    a.I('v_lshlrev_b32 v%d, 14, v%d', vW1, vG)
    a.I('v_lshl_add_u32 v%d, v%d, 2, v%d', vW1, vN, vW1)
    a.I('v_lshlrev_b32 v%d, 13, v%d', vW2, vG)
    a.I('v_lshl_add_u32 v%d, v%d, 2, v%d', vW2, vN, vW2)
    a.I('v_lshlrev_b32 v%d, 2, v%d', vF4, vLane)
    vFO, sNeedO = 11, 71
    a.I('v_lshrrev_b32 v%d, 2, v%d', vFO, vLane)
    a.I('v_lshlrev_b32 v%d, 7, v%d', vFO, vFO)
    a.I('v_and_b32 v%d, 3, v%d', TM, vLane)
    a.I('v_lshl_add_u32 v%d, v%d, 2, v%d', vFO, TM, vFO)
    a.I('s_lshl_b32 s%d, s%d, 12', sT, S_WAVE)
    a.I('v_add_u32 v%d, s%d, v%d', vLw, sT, vL16)
    a.I('s_lshl_b32 s%d, s%d, 10', sT, S_WAVE)
    a.I('v_add_u32 v%d, s%d, v%d', vLr, sT, vL16)
    a.I('v_lshlrev_b32 v%d, 10, v%d', vXo, vN)
    a.I('v_lshl_add_u32 v%d, v%d, 4, v%d', vXo, vG, vXo)
    a.I('s_lshl_b32 s%d, s%d, 6', sT, sSl)
    a.I('s_lshl_b32 s%d, s%d, 2', sT + 1, S_WAVE)
    a.I('s_add_u32 s%d, s%d, s%d', sT, sT, sT + 1)
    a.I('v_add_u32 v%d, s%d, v%d', vXo, sT, vXo)
    srd(a, S_W, P_WO, 4194304)
    srd(a, S_W2, P_WD, 1792 * 1024)
    sWo, sWd = sT + 2, sT + 3
    a.I('s_lshl_b32 s%d, s%d, 6', sT, sSl)
    a.I('s_lshl_b32 s%d, s%d, 20', sWo, S_WAVE)
    a.I('s_add_u32 s%d, s%d, s%d', sWo, sWo, sT)
    a.I('s_mul_i32 s%d, s%d, %d', sWd, S_WAVE, 14 * 32 * 1024)
    a.I('s_add_u32 s%d, s%d, s%d', sWd, sWd, sT)
    frs = [('d', j) for j in range(14)] + [('o', j) for j in range(32)]
    GS = 2
    groups = [frs[i:i + GS] for i in range(0, len(frs), GS)]
    NB = 3
    toks = {}

    def issue(gi):
        b = BUF + 16 * (gi % (NB + 1))
        for q, (kind, j) in enumerate(groups[gi]):
            for e in range(8):
                if kind == 'o':
                    row = (j // 4) * 128 + 64 * ((j % 4) // 2) + 8 * (j % 2) + e
                    a.I('s_add_u32 s%d, s%d, %d', sT, sWo, row * 1024)
                    t = a.I('buffer_load_dword v%d, v%d, s[%d:%d], s%d offen', b + 8 * q + e, vW1, S_W, S_W + 3, sT)
                else:
                    a.I('s_add_u32 s%d, s%d, %d', sT, sWd, (32 * j + e) * 1024)
                    t = a.I('buffer_load_dword v%d, v%d, s[%d:%d], s%d offen', b + 8 * q + e, vW2, S_W2, S_W2 + 3, sT)
        toks[gi] = t

    def consume(gi):
        b = BUF + 16 * (gi % (NB + 1))
        a.wait(toks[gi])
        for q, (kind, j) in enumerate(groups[gi]):
            for t in range(2):
                for p in range(4):
                    dst = HW + 8 * j + 4 * t + p if kind == 'd' else TM + 4 * t + p
                    a.I('v_perm_b32 v%d, v%d, v%d, s%d', dst, b + 8 * q + 2 * p + 1, b + 8 * q + 2 * p, sPermLo if t == 0 else sPermHi)
            if kind == 'o':
                for k in range(8):
                    a.I('v_accvgpr_write_b32 a%d, v%d', 8 * j + k, TM + k)
    for gi in range(NB):
        issue(gi)
    for gi in range(len(groups)):
        if gi + NB < len(groups):
            issue(gi + NB)
        consume(gi)
    srd(a, S_W, P_X, 2097152)
    srd(a, S_W2, P_OUT, 2097152)
    a.I('s_mov_b32 s%d, 0', sPar)
    bstamp(a, 5)
    a.label('T2_loop')
    a.I('s_lshr_b32 s%d, s%d, 1', sSegT, sTile)
    a.I('s_lshl_b32 s%d, s%d, 6', sT + 1, sSegT)
    a.I('s_add_u32 s%d, s%d, 0x%x', sT + 1, sT + 1, WS_FLAGS + FL_H)
    poll_flags(a, vF4, sT + 1, 14, None, TM, sleep=8)
    a.I('s_mul_i32 s%d, s%d, %d', sT + 1, sTile, 56 * 1024)
    a.I('s_mul_i32 s%d, s%d, %d', sT + 2, S_WAVE, 14 * 1024)
    a.I('s_add_u32 s%d, s%d, s%d', sT + 1, sT + 1, sT + 2)
    a.I('s_add_u32 s%d, s%d, 0x%x', sT + 1, sT + 1, WS_H)
    ht = []
    for j in range(14):
        if j and j % 4 == 0:
            a.I('s_add_u32 s%d, s%d, 4096', sT + 1, sT + 1)
        ht.append(a.I('buffer_load_dwordx4 v[%d:%d], v%d, %s, s%d offen offset:%d sc1', BUF + 4 * j, BUF + 4 * j + 3, vL16, WS, sT + 1, (j % 4) * 1024))
    a.I('s_lshl_b32 s%d, s%d, 14', sXO, sTile)
    a.I('buffer_load_dword v%d, v%d, s[%d:%d], s%d offen', XR, vXo, S_W, S_W + 3, sXO)
    for j in range(14):
        a.wait(ht[j])
        for t in range(2):
            a.I('v_mfma_f32_16x16x32_bf16 v[%d:%d], %s, %s, %s', FA + 4 * t, FA + 4 * t + 3, vr(HW + 8 * j + 4 * t, 4), vr(BUF + 4 * j, 4),
                '0' if j == 0 else vr(FA + 4 * t, 4))
    assert NT1 == 96
    a.I('s_mul_i32 s%d, s%d, 43', sNeedO, sSegT)
    a.I('s_lshr_b32 s%d, s%d, 9', sNeedO, sNeedO)
    a.I('s_mul_i32 s%d, s%d, 12', sT + 1, sNeedO)
    a.I('s_sub_u32 s%d, s%d, s%d', sT + 1, sSegT, sT + 1)
    a.I('s_lshl_b32 s%d, s%d, 10', sT + 1, sT + 1)
    a.I('s_lshl_b32 s%d, s%d, 8', sT + 2, S_WAVE)
    a.I('s_add_u32 s%d, s%d, s%d', sT + 1, sT + 1, sT + 2)
    a.I('s_add_u32 s%d, s%d, 0x%x', sT + 1, sT + 1, WS_FLAGS + FL_O)
    a.I('s_add_u32 s%d, s%d, 1', sNeedO, sNeedO)
    a.I('s_lshl_b32 s%d, s%d, 18', sOB, sSegT)
    a.I('s_lshl_b32 s%d, s%d, 16', sT + 2, S_WAVE)
    a.I('s_add_u32 s%d, s%d, s%d', sOB, sOB, sT + 2)
    a.I('s_and_b32 s%d, s%d, 1', sT + 2, sTile)
    a.I('s_lshl_b32 s%d, s%d, 12', sT + 2, sT + 2)
    a.I('s_add_u32 s%d, s%d, s%d', sOB, sOB, sT + 2)
    a.I('s_add_u32 s%d, s%d, 0x%x', sOB, sOB, WS_O)
    for t in range(2):
        for i in range(4):
            a.I('ds_write_b32 v%d, v%d offset:%d', vLw, FA + 4 * t + i, i * 1024 + 8 + 4 * t)
    poll_flags(a, vFO, sT + 1, 8, sNeedO, TM, sleep=SL2)
    bstamp(a, 2, V=134)
    ot = {}

    def oload(j):
        if j % 4 == 0:
            a.I('s_add_u32 s%d, s%d, %d', sT + 1, sOB, (j // 4) * 8192)
        r = BUF + 4 * (j % 24)
        ot[j] = a.I('buffer_load_dwordx4 v[%d:%d], v%d, %s, s%d offen offset:%d sc1', r, r + 3, vL16, WS, sT + 1, (j % 4) * 1024)
    for j in range(24):
        oload(j)
    for j in range(32):
        a.wait(ot[j])
        r = BUF + 4 * (j % 24)
        for t in range(2):
            a.I('v_mfma_f32_16x16x32_bf16 v[%d:%d], %s, %s, %s', SA + 4 * t, SA + 4 * t + 3, ar(8 * j + 4 * t, 4), vr(r, 4),
                '0' if j == 0 else vr(SA + 4 * t, 4))
        if j + 24 < 32:
            oload(j + 24)
    bstamp(a, 3, V=134)
    if BST:
        a.I('s_nop 7')
    for t in range(2):
        for i in range(4):
            a.I('ds_write_b32 v%d, v%d offset:%d', vLw, SA + 4 * t + i, i * 1024 + 4 * t)
    a.I('s_waitcnt lgkmcnt(0)')
    a.I('s_barrier')
    R = BUF
    for w in range(4):
        a.I('ds_read_b128 v[%d:%d], v%d offset:%d', R + 4 * w, R + 4 * w + 3, vLr, w * 4096)
    a.I('v_xor_b32 v%d, 16384, v%d', vLw, vLw)
    a.I('v_xor_b32 v%d, 16384, v%d', vLr, vLr)
    a.I('s_waitcnt lgkmcnt(0)')
    for k in range(4):
        a.I('v_add_f32 v%d, v%d, v%d', R + k, R + k, R + 4 + k)
        a.I('v_add_f32 v%d, v%d, v%d', R + 8 + k, R + 8 + k, R + 12 + k)
    for k in range(4):
        a.I('v_add_f32 v%d, v%d, v%d', R + k, R + k, R + 8 + k)

    def unpack(dst, src):
        a.I('v_and_b32 v%d, 0xffff0000, v%d', dst + 1, src)
        a.I('v_lshlrev_b32 v%d, 16, v%d', dst, src)
    a.I('v_cvt_pk_bf16_f32 v%d, v%d, v%d', R, R, R + 1)
    a.I('v_cvt_pk_bf16_f32 v%d, v%d, v%d', R + 2, R + 2, R + 3)
    unpack(R, R)
    unpack(R + 2, R + 2)
    for k in range(2):
        a.I('v_mul_f32 v%d, s%d, v%d', R + 4 + k, sL2e, R + 2 + k)
    for k in range(2):
        a.I('v_exp_f32 v%d, v%d', R + 4 + k, R + 4 + k)
    for k in range(2):
        a.I('v_add_f32 v%d, 1.0, v%d', R + 4 + k, R + 4 + k)
    for k in range(2):
        a.I('v_rcp_f32 v%d, v%d', R + 4 + k, R + 4 + k)
    for k in range(2):
        a.I('v_mul_f32 v%d, v%d, v%d', R + 2 + k, R + 2 + k, R + 4 + k)
    a.I('v_cvt_pk_bf16_f32 v%d, v%d, v%d', R + 2, R + 2, R + 3)
    unpack(R + 2, R + 2)
    for k in range(2):
        a.I('v_mul_f32 v%d, v%d, v%d', R + k, R + k, R + 2 + k)
    a.I('v_cvt_pk_bf16_f32 v%d, v%d, v%d', R, R, R + 1)
    unpack(R, R)
    unpack(R + 2, XR)
    for k in range(2):
        a.I('v_add_f32 v%d, v%d, v%d', R + k, R + k, R + 2 + k)
    a.I('v_cvt_pk_bf16_f32 v%d, v%d, v%d', TM + 1, R, R + 1)
    a.I('buffer_store_dword v%d, v%d, s[%d:%d], s%d offen', TM + 1, vXo, S_W2, S_W2 + 3, sXO)
    a.I('s_add_u32 s%d, s%d, 8', sTile, sTile)
    a.I('s_cmp_lt_u32 s%d, 128', sTile)
    a.I('s_cbranch_scc1 T2_loop')
    dbg_time(a, 11, V=134)
    bstamp(a, 7)
    a.I('s_endpgm')
```

```python
import struct
from asmlib import *
from common import *

LKX, LX1, LX2, LMISC, LW = 0, 8192, 12288, 14336, 16384
LM = 8192
LWSTRIDE = 18 * 2048

vM0, vIdx, vBias, vL16, vLW, vInSt, vM1, vMxSt = 0, 1, 2, 3, 4, 5, 6, 7
vVld, vKxSrc, vX1w, vX1rq, vX1rk, vX2w, vM2, vM3 = 8, 9, 10, 11, 12, 13, 14, 15
vWarm, vDummy, vSaveV, vT0 = 16, 17, 18, 20
MEM, ACC, VT, STG, WV = 24, 56, 80, 96, 144

sStep, sTag, sMxRd = 64, 65, 66
sRing = 88
sMxWr, sMxRst = 88, 90
sW10, sStampAddr = 68, 69
sRetry = 67
sIn = 70
sInLd, sInLd2 = 72, 73
sMxW = 74
sKx, sV, sKm, sVm, sVmPrev = 75, 76, 77, 78, 79
sHalf = 80
sC = 82
sSpin = 83
sT = 84
sM0a, sM0b = 92, 93
sFl = 94
sPermLo, sPermHi = 95, 96
sWarm = 97
sMxRd2 = 98
sKvf, sKvfMax = 73, 77
sPiece = 99
sMode = 63
sC2, sNC = 30, 82
sSel = 24


def f32bits(x):
    return struct.unpack('<I', struct.pack('<f', x))[0]


def mem(k):
    return MEM + 4 * k


def acc(i):
    return ACC + 4 * i


def slot(j):
    return STG + 8 * j


WO_ORDER = [('o', b, t, ks) for b in range(2) for t in range(4) for ks in range(2)]


def placement():
    P = {}
    lds = [('q', 0, 0), ('q', 1, 0), ('k', 0, 0), ('k', 1, 0), ('v', 0, 0), ('v', 1, 0)]
    lds += WO_ORDER[0:6] + WO_ORDER[10:16]
    for i, k in enumerate(lds):
        P[k] = ('l', i)
    rest = []
    for X in 'qkv':
        for kp in range(8):
            for t in range(2):
                if (X, t, kp) not in P:
                    rest.append((X, t, kp))
    rest += WO_ORDER[6:10]
    assert len(rest) == 46
    for n, k in enumerate(rest):
        P[k] = ('v', WV + 8 * n) if n < 14 else ('a', 8 * (n - 14))
    return P


PL = placement()


def breg(key):
    kind, r = PL[key]
    if kind == 'v':
        return vr(r, 8)
    if kind == 'a':
        return ar(r, 8)
    return vr(slot(r % 6), 8)


def d0_instr(m):
    return 32 * (m // 4) + 8 * (m % 2) + 2 * ((m % 4) // 2)


def srd(a, s, ptr, size):
    a.I('s_mov_b32 s%d, s%d', s, ptr)
    a.I('s_and_b32 s%d, s%d, 0xffff', s + 1, ptr + 1)
    a.I('s_mov_b32 s%d, 0x%x', s + 2, size)
    a.I('s_mov_b32 s%d, 0x20000', s + 3)


def stamp(a, cfg, idx):
    if not cfg.get('stamps'):
        return
    if cfg['stamps'] >= 2 and idx != 0:
        return
    if cfg['stamps'] == 4:
        return
    a.I('s_memtime s[%d:%d]', 32 + 2 * idx, 33 + 2 * idx)


def gen_rec(a, cfg):
    if cfg.get('stamps') == 3:
        orig_emit = a.emit
        cnt = dict(n=0, on=False)

        def emit(line):
            if line.startswith('R_goA:'):
                cnt['on'] = True
            if cnt['on'] and (line.startswith('v_smfmac') or line.startswith('v_mfma')):
                k = cnt['n'] - cfg['st0']
                if cnt['n'] >= 12 and k >= 0 and k % cfg['stp'] == 0 and k // cfg['stp'] < 9:
                    orig_emit('s_memtime s[%d:%d]' % (34 + 2 * (k // cfg['stp']), 35 + 2 * (k // cfg['stp'])))
                cnt['n'] += 1
            return orig_emit(line)
        a.emit = emit
    fast = cfg.get('fast', True)
    stf = '' if fast else ' sc1'
    nsteps = cfg.get('nsteps', 64)
    T0, T1, T2, T3 = vT0, vT0 + 1, vT0 + 2, vT0 + 3
    WS = 's[%d:%d]' % (S_WS, S_WS + 3)
    vLane = VT + 15
    vN, vG = T0, T1
    a.c('================ recurrence role: s%d = head ================' % S_ROLE)
    if cfg.get('hxor'):
        a.I('s_xor_b32 s%d, s%d, %d', S_ROLE, S_ROLE, cfg['hxor'])
    a.I('v_and_b32 v%d, 63, v0', vLane)
    a.I('v_lshlrev_b32 v%d, 4, v%d', vL16, vLane)
    a.I('v_and_b32 v%d, 15, v%d', vN, vLane)
    a.I('v_lshrrev_b32 v%d, 4, v%d', vG, vLane)
    a.I('s_mov_b32 s%d, 0xcccccccc', sHalf)
    a.I('s_mov_b32 s%d, 0xcccccccc', sHalf + 1)
    a.I('v_mov_b32 v%d, 0x4444', vIdx)
    a.I('v_mov_b32 v%d, 0xeeee', T2)
    a.I('v_cndmask_b32 v%d, v%d, v%d, s[%d:%d]', vIdx, vIdx, T2, sHalf, sHalf + 1)
    a.I('s_mov_b32 s%d, 0', sT)
    a.I('s_mov_b32 s%d, 0x33333333', sT + 1)
    a.I('v_mov_b32 v%d, 0', vBias)
    a.I('v_mov_b32 v%d, 0x%x', T2, f32bits(3.0e38))
    a.I('v_cndmask_b32 v%d, v%d, v%d, s[%d:%d]', vBias, vBias, T2, sT, sT + 1)
    a.I('s_mov_b32 s%d, 0x%x', sC2, f32bits(128 ** -0.5 * 1.4426950408889634))
    a.I('s_mov_b32 s%d, 0x%x', sC2 + 1, f32bits(128 ** -0.5 * 1.4426950408889634))
    a.I('s_mov_b32 s%d, 0x%x', sNC, f32bits(-128 ** -0.5 * 1.4426950408889634))
    a.I('s_mov_b32 s%d, 0x05040100', sPermLo)
    a.I('s_mov_b32 s%d, 0x07060302', sPermHi)
    for k, m in enumerate((0x000f000f, 0x00f000f0, 0xaaaaaaaa)):
        a.I('s_mov_b32 s%d, 0x%x', sSel + 2 * k, m)
        a.I('s_mov_b32 s%d, 0x%x', sSel + 2 * k + 1, m)
    a.I('s_mul_i32 s%d, s%d, %d', sT, S_WAVE, LWSTRIDE)
    a.I('s_add_u32 s%d, s%d, %d', sT, sT, LW)
    a.I('v_add_u32 v%d, s%d, v%d', vLW, sT, vL16)
    a.I('s_lshl_b32 s%d, s%d, 10', sT, S_WAVE)
    a.I('s_add_u32 s%d, s%d, 0x%x', sMxW, sT, WS_MEMX)
    a.I('s_add_u32 s%d, s%d, %d', sT, sT, LM)
    a.I('v_add_u32 v%d, s%d, v%d', vM0, sT, vL16)
    a.I('v_xor_b32 v%d, 1024, v%d', vM1, vM0)
    a.I('v_xor_b32 v%d, 2048, v%d', vM2, vM0)
    a.I('v_xor_b32 v%d, 3072, v%d', vM3, vM0)
    a.I('v_lshlrev_b32 v%d, 13, v%d', vInSt, vG)
    a.I('v_lshrrev_b32 v%d, 2, v%d', T2, vN)
    a.I('v_lshl_add_u32 v%d, v%d, 11, v%d', vInSt, T2, vInSt)
    a.I('v_and_b32 v%d, 3, v%d', T2, vN)
    a.I('v_lshl_add_u32 v%d, v%d, 4, v%d', vInSt, T2, vInSt)
    a.I('s_lshl_b32 s%d, s%d, 15', sT, S_WAVE)
    a.I('s_lshl_b32 s%d, s%d, 6', sT + 1, S_ROLE)
    a.I('s_add_u32 s%d, s%d, s%d', sT, sT, sT + 1)
    a.I('s_add_u32 s%d, s%d, 0x%x', sIn, sT, WS_INBOX)
    a.I('s_add_u32 s%d, s%d, 0x%x', sIn + 1, sT, WS_INBOX + 131072)
    sPi = sT + 4
    a.I('s_lshl_b32 s%d, s%d, 1', sPi, S_ROLE)
    a.I('s_and_b32 s%d, s%d, 1', sT, S_WAVE)
    a.I('s_add_u32 s%d, s%d, s%d', sPi, sPi, sT)
    a.I('s_lshr_b32 s%d, s%d, 1', sT, S_WAVE)
    a.I('s_lshl_b32 s%d, s%d, 6', sT, sT)
    a.I('s_add_u32 s%d, s%d, s%d', sPi, sPi, sT)
    a.I('s_mov_b32 s%d, s%d', sPiece, sPi)
    a.I('s_lshl_b32 s%d, s%d, 11', sT, sPi)
    a.I('s_add_u32 s%d, s%d, 0x%x', sInLd, sT, WS_INBOX)
    a.I('s_lshr_b32 s%d, s%d, 4', sT, sPi)
    a.I('s_lshl_b32 s%d, s%d, 10', sT, sT)
    a.I('s_bfe_u32 s%d, s%d, 0x20002', sT + 1, sPi)
    a.I('s_lshl_b32 s%d, s%d, 6', sT + 1, sT + 1)
    a.I('s_add_u32 s%d, s%d, s%d', sT, sT, sT + 1)
    a.I('s_and_b32 s%d, s%d, 3', sT + 1, sPi)
    a.I('s_lshl_b32 s%d, s%d, 8', sT + 1, sT + 1)
    a.I('s_add_u32 s%d, s%d, s%d', sT, sT, sT + 1)
    a.I('v_and_b32 v%d, 1, v%d', T2, vG)
    a.I('v_lshlrev_b32 v%d, 4, v%d', vMxSt, T2)
    a.I('v_bfe_u32 v%d, v%d, 1, 1', T2, vN)
    a.I('v_lshl_add_u32 v%d, v%d, 5, v%d', vMxSt, T2, vMxSt)
    a.I('v_and_b32 v%d, 1, v%d', T2, vN)
    a.I('v_lshl_add_u32 v%d, v%d, 3, v%d', vMxSt, T2, vMxSt)
    a.I('v_add_u32 v%d, s%d, v%d', vMxSt, sT, vMxSt)
    a.I('v_and_b32 v%d, 1, v%d', T2, vN)
    a.I('v_lshlrev_b32 v%d, 11, v%d', vVld, T2)
    a.I('v_lshrrev_b32 v%d, 1, v%d', T2, vG)
    a.I('v_lshl_add_u32 v%d, v%d, 8, v%d', vVld, T2, vVld)
    a.I('v_lshrrev_b32 v%d, 1, v%d', T2, vN)
    a.I('v_lshl_add_u32 v%d, v%d, 4, v%d', vVld, T2, vVld)
    a.I('v_and_b32 v%d, 1, v%d', T2, vG)
    a.I('v_lshlrev_b32 v%d, 2, v%d', T2, T2)
    a.I('v_sub_u32 v%d, v%d, v%d', vVld, vVld, T2)
    a.I('s_lshr_b32 s%d, s%d, 1', sT, S_WAVE)
    a.I('s_lshl_b32 s%d, s%d, 12', sT, sT)
    a.I('s_and_b32 s%d, s%d, 1', sT + 1, S_WAVE)
    a.I('s_lshl_b32 s%d, s%d, 7', sT + 1, sT + 1)
    a.I('s_add_u32 s%d, s%d, s%d', sT, sT, sT + 1)
    a.I('s_add_u32 s%d, s%d, 4', sT, sT)
    a.I('v_add_u32 v%d, s%d, v%d', vVld, sT, vVld)
    a.I('v_and_b32 v%d, 1, v%d', T2, vG)
    a.I('v_lshlrev_b32 v%d, 10, v%d', vKxSrc, T2)
    a.I('v_lshrrev_b32 v%d, 1, v%d', T2, vG)
    a.I('v_lshl_add_u32 v%d, v%d, 8, v%d', vKxSrc, T2, vKxSrc)
    a.I('v_lshl_add_u32 v%d, v%d, 4, v%d', vKxSrc, vN, vKxSrc)
    a.I('s_lshl_b32 s%d, s%d, 11', sM0a, S_WAVE)
    a.I('v_add_u32 v%d, s%d, v%d', vKxSrc, sM0a, vKxSrc)
    a.I('s_add_u32 s%d, s%d, %d', sM0a, sM0a, LKX)
    a.I('s_add_u32 s%d, s%d, %d', sM0b, sM0a, 1024 - 512)
    a.I('v_lshrrev_b32 v%d, 2, v%d', T2, vN)
    a.I('v_lshlrev_b32 v%d, 8, v%d', vX1w, T2)
    a.I('v_lshl_add_u32 v%d, v%d, 5, v%d', vX1w, vG, vX1w)
    a.I('v_and_b32 v%d, 3, v%d', T2, vN)
    a.I('v_lshl_add_u32 v%d, v%d, 2, v%d', vX1w, T2, vX1w)
    a.I('s_lshl_b32 s%d, s%d, 10', sT, S_WAVE)
    a.I('s_add_u32 s%d, s%d, %d', sT, sT, LX1)
    a.I('v_add_u32 v%d, s%d, v%d', vX1w, sT, vX1w)
    a.I('v_lshrrev_b32 v%d, 2, v%d', T2, vN)
    a.I('v_lshlrev_b32 v%d, 5, v%d', T2, T2)
    a.I('v_and_b32 v%d, 1, v%d', T3, vN)
    a.I('v_lshl_add_u32 v%d, v%d, 4, v%d', T2, T3, T2)
    a.I('v_lshl_add_u32 v%d, v%d, 8, v%d', vX1rq, vG, T2)
    a.I('v_add_u32 v%d, %d, v%d', vX1rq, LX1, vX1rq)
    a.I('v_and_b32 v%d, 7, v%d', T2, vN)
    a.I('v_lshlrev_b32 v%d, 4, v%d', T2, T2)
    a.I('v_lshl_add_u32 v%d, v%d, 8, v%d', vX1rk, vG, T2)
    a.I('v_add_u32 v%d, %d, v%d', vX1rk, LX1 + 128, vX1rk)
    a.I('v_lshrrev_b32 v%d, 3, v%d', T2, vN)
    a.I('v_lshlrev_b32 v%d, 8, v%d', vX2w, T2)
    a.I('v_lshl_add_u32 v%d, v%d, 6, v%d', vX2w, vG, vX2w)
    a.I('v_bfe_u32 v%d, v%d, 2, 1', T2, vN)
    a.I('v_lshl_add_u32 v%d, v%d, 5, v%d', vX2w, T2, vX2w)
    a.I('v_and_b32 v%d, 3, v%d', T2, vN)
    a.I('v_lshl_add_u32 v%d, v%d, 2, v%d', vX2w, T2, vX2w)
    a.I('s_lshl_b32 s%d, s%d, 9', sT, S_WAVE)
    a.I('s_add_u32 s%d, s%d, %d', sT, sT, LX2)
    a.I('v_add_u32 v%d, s%d, v%d', vX2w, sT, vX2w)
    if cfg.get('warm128'):
        a.I('v_lshrrev_b32 v%d, 1, v%d', vWarm, vLane)
        a.I('v_lshlrev_b32 v%d, 7, v%d', vWarm, vWarm)
    else:
        a.I('v_lshlrev_b32 v%d, 6, v%d', vWarm, vLane)
    a.I('s_lshl_b32 s%d, s%d, 13', sT, S_ROLE)
    a.I('s_and_b32 s%d, s%d, 1', sT + 1, S_WAVE)
    a.I('s_lshl_b32 s%d, s%d, 12', sT + 1, sT + 1)
    a.I('s_add_u32 s%d, s%d, s%d', sT, sT, sT + 1)
    a.I('s_lshr_b32 s%d, s%d, 1', sT + 1, S_WAVE)
    a.I('s_mul_i32 s%d, s%d, 0x%x', sT + 1, sT + 1, WS_V - WS_K)
    a.I('s_add_u32 s%d, s%d, s%d', sT, sT, sT + 1)
    a.I('v_add_u32 v%d, s%d, v%d', vWarm, sT, vWarm)
    a.I('s_lshl_b32 s%d, s%d, 13', sT, S_ROLE)
    a.I('s_add_u32 s%d, s%d, 0x%x', sKx, sT, WS_K)
    a.I('s_add_u32 s%d, s%d, 0x%x', sV, sT, WS_V - 4)
    a.I('s_lshl_b32 s%d, s%d, 12', sT, S_ROLE)
    a.I('s_lshl_b32 s%d, s%d, 10', sT + 1, S_WAVE)
    a.I('s_add_u32 s%d, s%d, s%d', sT, sT, sT + 1)
    a.I('s_add_u32 s%d, s%d, 0x%x', sStampAddr, sT, WS_VM)
    a.I('s_lshl_b32 s%d, s%d, 9', sT, S_ROLE)
    a.I('s_lshl_b32 s%d, s%d, 7', sT + 1, S_WAVE)
    a.I('s_add_u32 s%d, s%d, s%d', sT, sT, sT + 1)
    a.I('s_add_u32 s%d, s%d, 0x%x', sFl, sT, WS_FLAGS + FL_KM)
    a.I('s_mov_b32 s%d, 0x%x', sWarm, WS_K + 2 * 262144)

    a.c('init exchange buffers')
    for k in range(4):
        a.I('v_mov_b32 v%d, -1', ACC + k)
    for k in range(2):
        a.I('buffer_store_dwordx4 v[%d:%d], v%d, %s, s%d offen offset:%d sc1', ACC, ACC + 3, vL16, WS, sInLd, 1024 * k)
    for k in range(1, 4):
        a.I('s_mov_b32 s%d, 0x%x', sT, WS_MEMX + k * 8192)
        a.I('buffer_store_dwordx2 v[%d:%d], v%d, %s, s%d offen sc1', ACC, ACC + 1, vMxSt, WS, sT)
    srd(a, S_W, P_MEM0, 8192)
    a.I('v_and_b32 v%d, 1, v%d', T2, vG)
    a.I('v_lshlrev_b32 v%d, 10, v%d', T2, T2)
    a.I('v_and_b32 v%d, 3, v%d', T3, vN)
    a.I('v_lshl_add_u32 v%d, v%d, 3, v%d', T2, T3, T2)
    a.I('s_and_b32 s%d, s%d, 3', sT, sPiece)
    a.I('s_lshl_b32 s%d, s%d, 5', sT, sT)
    a.I('v_add_u32 v%d, s%d, v%d', T2, sT, T2)
    a.I('s_bfe_u32 s%d, s%d, 0x20002', sT, sPiece)
    a.I('s_lshl_b32 s%d, s%d, 11', sT, sT)
    a.I('s_lshr_b32 s%d, s%d, 4', sT + 1, sPiece)
    a.I('s_lshl_b32 s%d, s%d, 7', sT + 1, sT + 1)
    a.I('s_add_u32 s%d, s%d, s%d', sT, sT, sT + 1)
    a.I('buffer_load_dwordx2 v[%d:%d], v%d, s[%d:%d], s%d offen', vSaveV, vSaveV + 1, T2, S_W, S_W + 3, sT)

    a.c('weights')
    vRow, vWo, vDs = VT + 13, VT + 14, VT + 12
    GA = [VT + 8, VT + 9, VT + 10, VT + 11]
    a.I('v_lshrrev_b32 v%d, 1, v%d', vRow, vG)
    a.I('v_lshlrev_b32 v%d, 4, v%d', vRow, vRow)
    a.I('v_and_b32 v%d, 1, v%d', vWo, vG)
    a.I('v_lshl_add_u32 v%d, v%d, 2, v%d', vRow, vWo, vRow)
    a.I('v_lshlrev_b32 v%d, 10, v%d', vWo, vRow)
    a.I('v_lshl_add_u32 v%d, v%d, 3, v%d', vWo, vN, vWo)
    a.I('v_lshlrev_b32 v%d, 8, v%d', vRow, vRow)
    a.I('v_lshl_add_u32 v%d, v%d, 2, v%d', vRow, vN, vRow)
    for kp in range(4):
        a.I('s_xor_b32 s%d, s%d, %d', sT, S_WAVE, kp)
        a.I('s_lshl_b32 s%d, s%d, 14', sT, sT)
        a.I('s_lshl_b32 s%d, s%d, 6', sT + 1, S_WAVE)
        a.I('s_add_u32 s%d, s%d, s%d', sT, sT, sT + 1)
        a.I('s_add_u32 s%d, s%d, %d', sT, sT, LW)
        a.I('v_add_u32 v%d, s%d, v%d', GA[kp], sT, vRow)
    a.I('v_lshlrev_b32 v%d, 13, v%d', vDs, vG)
    a.I('v_lshl_add_u32 v%d, v%d, 4, v%d', vDs, vN, vDs)
    sSrc, sDst, sOb = sT + 2, sT + 3, sT + 6
    a.I('s_lshl_b32 s%d, s%d, 8', sSrc, S_ROLE)
    a.I('s_lshl_b32 s%d, s%d, 19', sT, S_WAVE)
    a.I('s_add_u32 s%d, s%d, s%d', sSrc, sSrc, sT)
    a.I('s_lshl_b32 s%d, s%d, 14', sDst, S_WAVE)
    a.I('s_add_u32 s%d, s%d, %d', sDst, sDst, LW)
    a.I('s_lshl_b32 s%d, s%d, 17', sOb, S_ROLE)
    a.I('s_lshl_b32 s%d, s%d, 7', sT, S_WAVE)
    a.I('s_add_u32 s%d, s%d, s%d', sOb, sOb, sT)
    outb = MEM
    utok = {}

    def dma_unit(u):
        sr_ = S_W if (u // 2) % 2 == 0 else S_W2
        if u % 2 == 0:
            srd(a, sr_, (P_WQ, P_WK, P_WV)[u // 2], 4194304)
        for j in range(16):
            a.I('s_add_u32 m0, s%d, %d', sDst, (u % 2) * 65536 + j * 1024)
            a.I('s_add_u32 s%d, s%d, %d', sT, sSrc, ((u % 2) * 256 + 4 * j) * 8192)
            utok[u] = a.I('buffer_load_dwordx4 v%d, s[%d:%d], s%d offen lds', vDs, sr_, sr_ + 3, sT)

    late_lds = []

    def put(key, m0, nm, srcs, hold=False):
        kind, r = PL[key]
        ob = outb + (put.n % 2) * 8
        put.n += 1
        for k, (rh, rl, sel) in enumerate(srcs):
            if kind == 'v':
                dst = r + m0 + k
            elif kind == 'l' and hold:
                dst = slot(r) + m0 + k
            else:
                dst = ob + k
            a.I('v_perm_b32 v%d, v%d, v%d, s%d', dst, rh, rl, sel)
        if kind == 'a':
            for k in range(nm):
                a.I('v_accvgpr_write_b32 a%d, v%d', r + m0 + k, ob + k)
        elif kind == 'l' and hold:
            late_lds.append(r)
        elif kind == 'l':
            for q in range(nm // 4):
                a.I('ds_write_b128 v%d, v[%d:%d] offset:%d', vLW, ob + 4 * q, ob + 4 * q + 3, r * 2048 + ((m0 // 4) + q) * 1024)
    put.n = 0
    gb = [40, 56]

    def gather_unit(u):
        X = 'qkv'[u // 2]
        gt = {}

        def rd(k):
            b = gb[k % 2]
            for m in range(8):
                gt[k] = a.I('ds_read2st64_b32 v[%d:%d], v%d offset0:%d offset1:%d', b + 2 * m, b + 2 * m + 1, GA[k], d0_instr(m), d0_instr(m) + 1)
        rd(0)
        for k in range(4):
            if k + 1 < 4:
                rd(k + 1)
            a.wait(gt[k])
            b = gb[k % 2]
            for t in range(2):
                put((X, t, 4 * (u % 2) + k), 0, 8, [(b + 2 * m + 1, b + 2 * m, sPermLo if t == 0 else sPermHi) for m in range(8)], hold=True)
        for k in range(4):
            a.I('v_xor_b32 v%d, 0x%x, v%d', GA[k], (LW ^ (LW + 65536)) if False else 0, GA[k]) if False else None
        for k in range(4):
            if u % 2 == 0:
                a.I('v_add_u32 v%d, 65536, v%d', GA[k], GA[k])
            else:
                a.I('v_subrev_u32 v%d, 65536, v%d', GA[k], GA[k])

    wgroups = [(ks, b, mh) for b in range(2) for ks in range(2) for mh in range(2)]
    wbufs = [40, 56, 72]
    wtok = {}

    def wissue(gi, bufs):
        ks, b_, mh = wgroups[gi]
        b = bufs[gi % len(bufs)]
        for mm in range(4):
            m = 4 * mh + mm
            for j in range(2):
                row = 64 * ks + d0_instr(m) + j
                a.I('s_add_u32 s%d, s%d, %d', sT, sOb, row * 1024 + 512 * b_)
                r = b + 4 * mm + 2 * j
                wtok[gi] = a.I('buffer_load_dwordx2 v[%d:%d], v%d, s[%d:%d], s%d offen', r, r + 1, vWo, S_W2, S_W2 + 3, sT)

    def wconsume(gi, bufs):
        ks, b_, mh = wgroups[gi]
        b = bufs[gi % len(bufs)]
        a.wait(wtok[gi])
        for t in range(4):
            a.I('s_waitcnt lgkmcnt(1)')
            sel = sPermLo if t % 2 == 0 else sPermHi
            put(('o', b_, t, ks), 4 * mh, 4, [(b + 4 * mm + 2 + t // 2, b + 4 * mm + t // 2, sel) for mm in range(4)])

    dma_unit(0)
    dma_unit(1)
    for u in range(6):
        a.wait(utok[u])
        a.I('s_barrier')
        if u == 0:
            a.I('v_min_u32 v%d, -2, v%d', vSaveV, vSaveV)
            a.I('s_mov_b32 s%d, 0x%x', sT, WS_MEMX)
            a.I('buffer_store_dwordx2 v[%d:%d], v%d, %s, s%d offen sc1', vSaveV, vSaveV + 1, vMxSt, WS, sT)
        if u == 2:
            lab = a.newlabel('R_sig')
            a.I('s_cmp_lg_u32 s%d, 0', S_WAVE)
            a.I('s_cbranch_scc1 %s', lab)
            a.I('s_mov_b64 exec, 1')
            a.I('v_mov_b32 v%d, 1', VT)
            a.I('v_mov_b32 v%d, %d', VT + 1, D_INIT * 4)
            a.I('buffer_atomic_add v%d, v%d, s[%d:%d], 0 offen', VT, VT + 1, S_DBG, S_DBG + 3)
            a.I('s_mov_b64 exec, -1')
            a.label(lab)
            a.vm_n -= 1
        if u == 4:
            srd(a, S_W2, P_WO, 4194304)
            a.I('v_lshlrev_b32 v%d, 7, v%d', VT + 2, vLane)
            a.I('s_lshl_b32 s%d, s%d, 17', sT, S_ROLE)
            a.I('s_lshl_b32 s%d, s%d, 15', sT + 1, S_WAVE)
            a.I('s_add_u32 s%d, s%d, s%d', sT, sT, sT + 1)
            for k in range(4):
                a.I('buffer_load_dword v%d, v%d, s[%d:%d], s%d offen', VT + 3, VT + 2, S_W2, S_W2 + 3, sT)
                a.I('s_add_u32 s%d, s%d, 8192', sT, sT)
        gather_unit(u)
        if cfg.get('stamps') and u == cfg.get('wst', -1):
            a.I('s_memrealtime s[100:101]')
            a.I('s_waitcnt lgkmcnt(0)')
            a.I('s_mov_b32 s3, s100')
        a.I('s_barrier')
        if u + 2 < 6:
            dma_unit(u + 2)
    def gspin():
        a.I('s_add_u32 s%d, s%d, 1', sSpin, sSpin)
        a.I('s_cmp_gt_u32 s%d, 0x100000', sSpin)
        a.I('s_cbranch_scc1 R_fail')

    def dbg_load():
        return a.I('buffer_load_dwordx4 v[%d:%d], v%d, s[%d:%d], 0 offen offset:%d sc1', T0, T3, vSaveV, S_DBG, S_DBG + 3, D_CNT_OTH * 4)

    def kv_load():
        return a.I('buffer_load_dword v%d, v%d, %s, s%d offen sc1', vDummy, vL16, WS, sKvf)
    assert D_INIT == D_CNT_OTH + 1 and D_FINIT == D_CNT_OTH + 3
    a.I('v_mov_b32 v%d, 0', vSaveV)
    a.I('s_mov_b32 s%d, 0', sSpin)
    a.I('s_mov_b32 s%d, 0', sStep)
    dt = dbg_load()
    for gi in range(3):
        wissue(gi, wbufs)
    for r in late_lds:
        for q in range(2):
            a.I('ds_write_b128 v%d, v[%d:%d] offset:%d', vLW, slot(r) + 4 * q, slot(r) + 4 * q + 3, r * 2048 + q * 1024)
    a.I('s_lshr_b32 s%d, s%d, 1', sKvf, S_ROLE)
    a.I('s_lshl_b32 s%d, s%d, 11', sKvf, sKvf)
    a.I('s_add_u32 s%d, s%d, 0x%x', sKvf, sKvf, WS_FLAGS + FL_KV)
    a.I('s_add_u32 s%d, s%d, %d', sKvfMax, sKvf, 63 * 32)
    for gi in range(8):
        wconsume(gi, wbufs)
        if gi + 3 < 8:
            wissue(gi + 3, wbufs)
        if gi == 4:
            a.c('all 32 inits done, flag area zeroed?')
            a.label('R_dchk')
            a.I('v_readfirstlane_b32 s%d, v%d', sT, T1)
            a.I('v_readfirstlane_b32 s%d, v%d', sT + 1, T3)
            a.I('v_readfirstlane_b32 s%d, v%d', sMode, T0)
            a.I('s_cmp_lt_u32 s%d, 32', sT)
            a.I('s_cbranch_scc1 R_dwait')
            if cfg.get('both_modes'):
                a.I('s_cmp_lt_u32 s%d, 1', sT + 1)
                a.I('s_cbranch_scc1 R_dwait')
            if cfg.get('kvflags'):
                kv_load()
    if cfg.get('stamps') and 'wst' not in cfg:
        a.I('s_memrealtime s[100:101]')
        a.I('s_waitcnt lgkmcnt(0)')
        a.I('s_mov_b32 s3, s100')
    a.I('s_mov_b32 s%d, s%d', sVm, sStampAddr)
    a.I('s_mov_b32 s%d, s%d', sVmPrev, sStampAddr)
    a.I('s_mov_b32 s%d, 0', sTag)
    a.I('s_mov_b32 s%d, 0', sRetry)
    a.I('s_mov_b32 s%d, s%d', sMxRd, sMxW)
    for k in range(4):
        a.I('s_mov_b32 s%d, 0x%x', sRing + k, WS_MEMX + k * 8192)
    a.I('s_lshl_b32 s%d, s%d, 10', sW10, S_WAVE)
    if cfg.get('kvflags'):
        a.label('R_kvfirst')
        a.I('s_waitcnt vmcnt(0)')
        a.I('v_cmp_eq_u32 vcc, 0, v%d', vDummy)
        a.I('s_nop 1')
        a.I('s_and_b32 s%d, vcc_lo, 15', sT)
        a.I('s_cbranch_scc0 R_kvgo')
        kv_load()
        gspin()
        a.I('s_branch R_kvfirst')
        a.label('R_kvgo')
        a.I('s_add_u32 s%d, s%d, 64', sKvf, sKvf)

    def rest(PFX, stf):
        def load_kx():
            a.I('s_mov_b32 m0, s%d', sM0a)
            a.I('buffer_load_dwordx4 v%d, %s, s%d offen sc1 lds', vKxSrc, WS, sKx)
            a.I('s_mov_b32 m0, s%d', sM0b)
            a.I('buffer_load_dwordx4 v%d, %s, s%d offen offset:512 sc1 lds', vKxSrc, WS, sKx)

        def load_v():
            for t in range(2):
                for hf in range(2):
                    a.I('buffer_load_dwordx4 v[%d:%d], v%d, %s, s%d offen offset:%d sc1', VT + 8 * t + 4 * hf, VT + 8 * t + 4 * hf + 3,
                        vVld, WS, sV, 1024 * t + 512 * hf)

        def backoff(cyc):
            if cfg.get('sleep'):
                if cyc >= 64:
                    a.I('s_sleep %d', cyc // 64)
                if cyc % 64 >= 32:
                    a.I('s_nop 7')
            else:
                for k in range(cyc // 32):
                    a.I('s_nop 7')
                if cyc % 32 >= 16:
                    a.I('s_nop 3')

        def lds_half(j, hf):
            sl = j % 6
            return a.I('ds_read_b128 v[%d:%d], v%d offset:%d', slot(sl) + 4 * hf, slot(sl) + 4 * hf + 3, vLW, j * 2048 + 1024 * hf)

        def lds_set(j):
            lds_half(j, 0)
            return lds_half(j, 1)

        def zero(r, n):
            for k in range(0, n, 2):
                a.I('v_mov_b64 v[%d:%d], 0', r + k, r + k + 1)

        def spin():
            a.I('s_add_u32 s%d, s%d, 1', sSpin, sSpin)
            a.I('s_cmp_gt_u32 s%d, 0x100000', sSpin)
            a.I('s_cbranch_scc1 ' + PFX + 'fail')

        a.I('s_waitcnt lgkmcnt(0)')
        a.I('s_barrier')
        load_kx()
        if cfg.get('kvflags'):
            kv_load()
        a.I('s_add_u32 s%d, s%d, 262144', sKx, sKx)
        zero(T0, 4)
        C0, C1 = vSaveV, vSaveV + 1
        zero(ACC, 24)
        a.I('s_mov_b32 s%d, 0', sSpin)

        accidx = {('q', 0): 0, ('q', 1): 1, ('k', 0): 2, ('k', 1): 3, ('v', 0): 4, ('v', 1): 5}

        def M(X, t, kp, src=None):
            d = acc(accidx[(X, t)])
            r = mem(kp) if src is None else src
            a.I('v_smfmac_f32_16x16x64_bf16 v[%d:%d], v[%d:%d], %s, v%d', d, d + 3, r, r + 3, breg((X, t, kp)), vIdx)

        def ldv(i):
            if cfg.get('no_kv'):
                return None
            t, hf = i // 2, i % 2
            return a.I('buffer_load_dwordx4 v[%d:%d], v%d, %s, s%d offen offset:%d sc1', VT + 8 * t + 4 * hf, VT + 8 * t + 4 * hf + 3,
                       vVld, WS, sV, 1024 * t + 512 * hf)

        def poll(r0, r1):
            a.I('buffer_load_dwordx4 v[%d:%d], v%d, %s, s%d offen sc1', r0, r0 + 3, vL16, WS, sMxRd)
            a.I('buffer_load_dwordx4 v[%d:%d], v%d, %s, s%d offen sc1', r1, r1 + 3, vL16, WS, sMxRd2)

        kx, mt = {}, {}

        def rkx(f):
            kx[f] = a.I('ds_read_b128 v[%d:%d], v%d offset:%d', STG + 4 * f, STG + 4 * f + 3, vL16, LKX + f * 1024)

        def rm(k):
            mt[k] = a.I('ds_read_b128 v[%d:%d], v%d offset:%d', mem(k), mem(k) + 3, (vM0, vM1, vM2, vM3)[k & 3], 4096 * (k // 4))

        vSaveK = vSaveV

        def savepub():
            a.I('v_mov_b32 v%d, v%d', T0, VT)
            a.I('v_mov_b32 v%d, v%d', T1, vSaveK)
            a.I('v_mov_b32 v%d, v%d', T2, vSaveK + 1)
            a.I('v_mov_b32 v%d, v%d', T3, VT + 8)

        if cfg.get('stamps'):
            a.I('s_memrealtime s[6:7]')
            a.I('s_waitcnt lgkmcnt(0)')
        if cfg.get('dbgt'):
            import bulk
            bulk.dbg_time(a, 9, V=MEM)
        a.I('s_add_u32 s%d, s%d, 4096', sMxRd2, sMxRd)
        a.c('================ step loop ================')
        a.label(PFX + 'loop')
        stamp(a, cfg, 0)
        PA, PB = (mem(0), mem(4)), (VT, VT + 4)
        poll(*PA)
        if cfg.get('stamps') and cfg['stamps'] != 4:
            a.I('s_waitcnt lgkmcnt(0)')
            a.I('v_mov_b32 v%d, 0', VT + 12)
            a.I('v_writelane_b32 v%d, s%d, 0', VT + 12, 52)
            for k in range(1, 10):
                a.I('v_writelane_b32 v%d, s%d, %d', VT + 12, 32 + 2 * k, k)
            a.I('v_writelane_b32 v%d, s%d, 10', VT + 12, sRetry)
            a.I('s_mov_b32 s52, s32')
            a.I('s_lshl_b32 s%d, s%d, 6', sT, S_ROLE)
            a.I('s_add_u32 s%d, s%d, s%d', sT, sT, sStep)
            a.I('s_lshl_b32 s%d, s%d, 2', sT, sT)
            a.I('s_add_u32 s%d, s%d, s%d', sT, sT, S_WAVE)
            a.I('s_lshl_b32 s%d, s%d, 6', sT, sT)
            a.I('s_add_u32 s%d, s%d, 0x%x', sStampAddr, sT, WS_DBG)
        else:
            backoff(cfg.get('pgap', 2) * 48)
        poll(*PB)

        def head(src, bad):
            s0, s1 = src
            a.I('s_waitcnt vmcnt(2)')
            a.I('v_max3_u32 v%d, v%d, v%d, v%d', C0, s0, s0 + 2, s1)
            a.I('v_max_u32 v%d, v%d, v%d', C0, C0, s1 + 2)
            a.I('v_cmp_eq_u32 vcc, -1, v%d', C0)
            a.I('ds_write_b128 v%d, v[%d:%d]', vM0, s0, s0 + 3)
            wA = a.I('ds_write_b128 v%d, v[%d:%d] offset:4096', vM0, s1, s1 + 3)
            M('q', 0, 0, s0)
            M('q', 1, 0, s0)
            a.I('s_cbranch_vccnz %s', bad)
            stamp(a, cfg, 1)
            M('q', 0, 4, s1)
            M('q', 1, 4, s1)
            M('k', 0, 0, s0)
            M('k', 1, 0, s0)
            a.wait(wA)
            a.I('s_barrier')
            rm(1)
            M('k', 0, 4, s1); rm(2)
            M('k', 1, 4, s1); rm(3)
            M('v', 0, 0, s0); rm(5)
            M('v', 1, 0, s0); rm(6)
            M('v', 0, 4, s1); rm(7)
            M('v', 1, 4, s1)
        a.I('s_branch ' + PFX + 'goA')
        a.label(PFX + 'badA')
        poll(*PA)
        spin()
        a.I('s_add_u32 s%d, s%d, 0x10000', sRetry, sRetry)
        a.I('s_nop 1')
        zero(ACC, 8)
        head(PB, PFX + 'badB')
        a.I('s_branch ' + PFX + 'join')
        a.label(PFX + 'badB')
        poll(*PB)
        a.I('s_add_u32 s%d, s%d, 0x10000', sRetry, sRetry)
        a.I('s_nop 4')
        zero(ACC, 8)
        a.label(PFX + 'goA')
        head(PA, PFX + 'badA')
        a.label(PFX + 'join')
        a.I('s_cmp_eq_u32 s%d, %d', sStep, nsteps - 1)
        a.I('s_cbranch_scc1 ' + PFX + 'done')
        rkx(0)
        a.wait(mt[2])
        M('q', 0, 1); rkx(1)
        M('q', 1, 1); ldv(0)
        M('q', 0, 2); rkx(2)
        M('q', 1, 2); ldv(1); a.wait(mt[5])
        M('q', 0, 3); rkx(3)
        M('q', 1, 3); ldv(2)
        M('q', 0, 5); rkx(4)
        if cfg.get('stamps') and cfg['stamps'] != 4:
            a.I('v_lshrrev_b32 v%d, 2, v%d', C0, vL16)
            a.I('s_mov_b64 exec, 0xffff')
            a.I('buffer_store_dword v%d, v%d, %s, s%d offen', VT + 12, C0, WS, sStampAddr)
            a.I('s_mov_b64 exec, -1')
        M('q', 1, 5); tv = ldv(3); a.wait(mt[7])
        M('q', 0, 6); rkx(5)
        a.I('s_barrier')
        M('q', 1, 6)
        if cfg.get('pubpos', 1) == 0 and not cfg.get('no_pub'):
            a.I('buffer_store_dwordx4 v[%d:%d], v%d, %s, s%d offen sc1', T0, T0 + 3, vL16, WS, sVmPrev)
        M('q', 0, 7); rkx(6)
        a.I('s_sub_u32 s%d, s%d, 1', sT, sStep)
        M('q', 1, 7); rkx(7)
        a.I('s_max_i32 s%d, s%d, 0', sT, sT)
        a.I('v_mov_b32 v%d, s%d', C1, sT)
        stamp(a, cfg, 2)
        q0, q1, k0, k1, v0_, v1_ = [acc(i) for i in range(6)]
        QT = mem(0)

        def add(d, x, y):
            a.I('v_add_f32 v%d, v%d, v%d', d, x, y)

        def cvt(d, x, y):
            a.I('v_cvt_pk_bf16_f32 v%d, v%d, v%d', d, x, y)

        def pkadd(d, x, y):
            a.I('v_pk_add_f32 v[%d:%d], v[%d:%d], v[%d:%d]', d, d + 1, x, x + 1, y, y + 1)

        def sel(d, x, y):
            a.I('v_cndmask_b32 v%d, v%d, v%d, s[%d:%d]', d, x, y, sHalf, sHalf + 1)
        M('k', 0, 1)
        a.I('s_add_u32 s%d, s%d, 262144', sV, sV)
        a.I('s_and_b32 s%d, s%d, 1', sTag, sStep)
        a.I('s_waitcnt vmcnt(%d)' % ((0 if cfg.get('no_kv') else 4) + (0 if cfg.get('no_pub') or cfg.get('pubpos', 1) else 1)))
        M('k', 1, 1)
        a.I('s_mov_b32 s%d, s%d', sT, sRing)
        a.I('s_mov_b32 s%d, s%d', sRing, sRing + 1)
        add(QT, q0, q0 + 2)
        M('k', 0, 2)
        add(QT + 1, q0 + 1, q0 + 3)
        add(QT + 2, q1, q1 + 2)
        add(QT + 3, q1 + 1, q1 + 3)
        cvt(QT, QT, QT + 2)
        cvt(QT + 1, QT + 1, QT + 3)
        wq = a.I('ds_write2_b32 v%d, v%d, v%d offset0:0 offset1:4', vX1w, QT, QT + 1)
        M('k', 1, 2)
        a.I('s_mov_b32 s%d, s%d', sRing + 1, sRing + 2)
        a.I('s_mov_b32 s%d, s%d', sRing + 2, sRing + 3)
        if cfg.get('kvflags'):
            a.I('v_cmp_eq_u32 vcc, 0, v%d', vDummy)
        M('k', 0, 3)
        a.I('s_mov_b32 s%d, s%d', sRing + 3, sT)
        a.I('s_add_u32 s%d, s%d, s%d', sMxRd, sRing, sW10)
        M('k', 1, 3)
        if cfg.get('kvflags'):
            a.I('s_and_b32 s%d, vcc_lo, 3', sT)
            a.I('s_cbranch_scc1 ' + PFX + 'kvwait')
            a.label(PFX + 'kvok')
        M('k', 0, 5)
        if not cfg.get('no_warm'):
            a.I('buffer_load_dword v%d, v%d, %s, s%d offen sc1', vDummy, vWarm, WS, sWarm)
        M('k', 1, 5)
        a.wait(wq)
        a.I('s_barrier')
        qt = {}

        def rq(ks):
            qt[ks] = a.I('ds_read_b128 v[%d:%d], v%d offset:%d', slot(4) + 4 * ks, slot(4) + 4 * ks + 3, vX1rq, ks * 1024)
        rq(0)
        M('k', 0, 6); rq(1)
        if cfg.get('kvflags'):
            a.I('s_add_u32 s%d, s%d, 32', sKvf, sKvf)
        M('k', 1, 6); rq(2)
        if cfg.get('kvflags'):
            a.I('s_min_u32 s%d, s%d, s%d', sKvf, sKvf, sKvfMax)
        M('k', 0, 7); rq(3)
        a.I('s_mov_b32 m0, s%d', sM0a)
        M('k', 1, 7)
        a.I('s_add_u32 s%d, s%d, 4096', sMxRd2, sMxRd)
        stamp(a, cfg, 3)
        S0, S1, S2, Pm = acc(0), acc(1), acc(2), acc(3)
        X0, X1 = S1 + 2, S1 + 3
        ON = T0
        PV0, PV1, LS = mem(4), mem(0), mem(1)
        KMR = [STG, STG + 4, STG + 8, STG + 12]

        def SM(D, A, ks):
            a.I('v_mfma_f32_16x16x32_bf16 v[%d:%d], v[%d:%d], v[%d:%d], %s', D, D + 3, A, A + 3,
                slot(4) + 4 * ks, slot(4) + 4 * ks + 3, '0' if ks == 0 else vr(D, 4))
        km = {}

        def rkm(k):
            km[k] = a.I('ds_read_b128 v[%d:%d], v%d offset:%d', KMR[k], KMR[k] + 3, vX1rk, k * 1024)
        M('v', 0, 1)
        if not cfg.get('no_kv'):
            a.I('buffer_load_dwordx4 v%d, %s, s%d offen sc1 lds', vKxSrc, WS, sKx)
        a.I('s_mov_b32 m0, s%d', sM0b)
        M('v', 1, 1)
        a.wait(qt[3])
        add(QT, k0, k0 + 2)
        SM(S0, STG, 0)
        add(QT + 1, k0 + 1, k0 + 3)
        add(QT + 2, k1, k1 + 2)
        SM(S0, STG + 4, 1)
        add(QT + 3, k1 + 1, k1 + 3)
        cvt(vSaveK, QT, QT + 2)
        SM(S0, STG + 8, 2)
        cvt(QT + 1, QT + 1, QT + 3)
        wk = a.I('ds_write2_b32 v%d, v%d, v%d offset0:32 offset1:36', vX1w, vSaveK, QT + 1)
        SM(S0, STG + 12, 3)
        if not cfg.get('no_kv'):
            a.I('buffer_load_dwordx4 v%d, %s, s%d offen offset:512 sc1 lds', vKxSrc, WS, sKx)
        a.I('v_mov_b32 v%d, 0', Pm + 3)
        SM(S1, STG + 16, 0)
        a.I('s_mov_b64 exec, 3')
        if cfg.get('kvflags'):
            kv_load()
        if not cfg.get('no_pub') and not cfg.get('no_flag'):
            a.I('buffer_store_dword v%d, v%d, %s, s%d offen sc1', C1, vL16, WS, sFl)
        a.I('s_mov_b64 exec, -1')
        SM(S1, STG + 20, 1)
        if cfg.get('pubpos', 1) == 1 and not cfg.get('no_pub'):
            a.I('buffer_store_dwordx4 v[%d:%d], v%d, %s, s%d offen sc1', T0, T0 + 3, vL16, WS, sVmPrev)
        vm_mark = a.vm_n
        zero(PV0, 4)
        SM(S1, STG + 24, 2)
        a.I('s_add_u32 s%d, s%d, 262144', sKx, sKx)
        a.I('v_mov_b32 v%d, v%d', vSaveK + 1, QT + 1)
        a.I('v_mov_b32 v%d, 0x3f803f80', ON)
        SM(S1, STG + 28, 3)
        a.wait(wk)
        a.I('s_barrier')
        rkm(0)
        M('v', 0, 2); rkm(1)
        a.I('v_max3_f32 v%d, v%d, v%d, v%d', Pm, S0, S0 + 1, S0 + 2)
        M('v', 1, 2); rkm(2)
        a.I('s_add_u32 s%d, s%d, 262144', sWarm, sWarm)
        a.I('v_mov_b32 v%d, 0x3f803f80', ON + 1)
        M('v', 0, 3); rkm(3)
        a.I('v_max3_f32 v%d, v%d, v%d, v%d', Pm, Pm, S0 + 3, S1)
        M('v', 1, 3); lds_half(8, 0)
        a.I('v_max3_f32 v%d, v%d, v%d, v%d', Pm + 1, S1 + 1, S1 + 2, S1 + 3)
        M('v', 0, 5); lds_half(8, 1)
        a.wait(km[1])
        sel(S1, S1, S1 + 2)
        SM(S2, KMR[0], 0); lds_half(9, 0)
        sel(S1 + 1, S1 + 1, S1 + 3)
        a.I('v_max_f32 v%d, v%d, v%d', X0, Pm, Pm + 1)
        SM(S2, KMR[1], 1)
        a.wait(km[3])
        zero(PV1, 4)
        SM(S2, KMR[2], 2); lds_half(9, 1)
        a.I('v_mov_b32 v%d, 0x3f803f80', ON + 2)
        a.I('v_mov_b32 v%d, 0x3f803f80', ON + 3)
        SM(S2, KMR[3], 3); lds_half(6, 0)
        stamp(a, cfg, 4)
        M('v', 1, 5); lds_half(6, 1)
        M('v', 0, 6); lds_half(7, 0)
        M('v', 1, 6); lds_half(7, 1)
        a.I('v_max3_f32 v%d, v%d, v%d, v%d', X0, X0, S2, S2 + 1)
        a.I('v_max3_f32 v%d, v%d, v%d, v%d', X0, X0, S2 + 2, S2 + 3)
        a.I('v_mov_b32 v%d, v%d', X1, X0)
        M('v', 0, 7); lds_half(10, 0)
        a.I('v_permlane32_swap_b32 v%d, v%d', X0, X1)
        a.I('v_max_f32 v%d, v%d, v%d', X0, X0, X1)
        a.I('v_mov_b32 v%d, v%d', X1, X0)
        M('v', 1, 7); lds_half(10, 1)
        a.I('v_permlane16_swap_b32 v%d, v%d', X0, X1)
        sel(S2, S2, S0 + 2)
        sel(S2 + 1, S2 + 1, S0 + 3)
        a.I('v_max_f32 v%d, v%d, v%d', X0, X0, X1)
        sel(S2 + 2, S2 + 2, S0)
        a.I('v_mul_f32 v%d, s%d, v%d', X0, sNC, X0)
        sel(S2 + 3, S2 + 3, S0 + 1)
        a.I('v_sub_f32 v%d, v%d, v%d', X1, X0, vBias)

        def pkfma(d, hi):
            a.I('v_pk_fma_f32 v[%d:%d], v[%d:%d], s[%d:%d], v[%d:%d] op_sel:[0,0,%d] op_sel_hi:[1,1,%d]', d, d + 1, d, d + 1, sC2, sC2 + 1, X0, X1, hi, hi)
        pkfma(S1, 0)
        pkfma(S2, 1)
        a.I('v_exp_f32 v%d, v%d', S1, S1)
        pkfma(S2 + 2, 1)
        a.I('v_exp_f32 v%d, v%d', S1 + 1, S1 + 1)
        pkadd(S0, v0_, v0_ + 2)
        a.I('v_exp_f32 v%d, v%d', S2, S2)
        pkadd(S0 + 2, v1_, v1_ + 2)
        a.I('v_exp_f32 v%d, v%d', S2 + 1, S2 + 1)
        cvt(Pm + 1, S1, S1 + 1)
        a.I('v_exp_f32 v%d, v%d', S2 + 2, S2 + 2)
        if tv:
            a.I('s_waitcnt vmcnt(%d)' % (vm_mark - tv[1]))
        cvt(VT, S0, S0 + 1)
        a.I('v_exp_f32 v%d, v%d', S2 + 3, S2 + 3)
        cvt(Pm, S2, S2 + 1)
        cvt(VT + 8, S0 + 2, S0 + 3)
        cvt(Pm + 2, S2 + 2, S2 + 3)
        lds_half(11, 0)
        stamp(a, cfg, 5)
        a.I('v_mfma_f32_16x16x32_bf16 v[%d:%d], v[%d:%d], v[%d:%d], 0', LS, LS + 3, Pm, Pm + 3, ON, ON + 3)
        lds_half(11, 1)
        a.I('v_smfmac_f32_16x16x64_bf16 v[%d:%d], v[%d:%d], v[%d:%d], v%d', PV0, PV0 + 3, Pm, Pm + 3, VT, VT + 7, vIdx)
        a.I('v_mov_b32 v%d, v%d', T0, VT)
        a.I('v_smfmac_f32_16x16x64_bf16 v[%d:%d], v[%d:%d], v[%d:%d], v%d', PV1, PV1 + 3, Pm, Pm + 3, VT + 8, VT + 15, vIdx)
        a.I('v_mov_b32 v%d, v%d', T1, vSaveK)
        a.I('v_mov_b32 v%d, v%d', T2, vSaveK + 1)
        a.I('v_mov_b32 v%d, v%d', T3, VT + 8)
        pkadd(X0, LS, LS + 2)
        a.I('v_rcp_f32 v%d, v%d', X0, X0)
        a.I('v_rcp_f32 v%d, v%d', X1, X1)
        pkadd(PV0, PV0, PV0 + 2)
        pkadd(PV1, PV1, PV1 + 2)
        a.I('v_pk_mul_f32 v[%d:%d], v[%d:%d], v[%d:%d]', PV0, PV0 + 1, PV0, PV0 + 1, X0, X1)
        a.I('v_pk_mul_f32 v[%d:%d], v[%d:%d], v[%d:%d]', PV1, PV1 + 1, PV1, PV1 + 1, X0, X1)
        cvt(S0, PV0, PV1)
        cvt(S0 + 1, PV0 + 1, PV1 + 1)
        wo = a.I('ds_write2_b32 v%d, v%d, v%d offset0:0 offset1:4', vX2w, S0, S0 + 1)
        zero(MEM, 16)
        a.wait(wo)
        a.I('s_barrier')
        OF = acc(4)
        of0 = a.I('ds_read_b128 v[%d:%d], v%d offset:%d', OF, OF + 3, vL16, LX2)
        of1 = a.I('ds_read_b128 v[%d:%d], v%d offset:%d', OF + 4, OF + 7, vL16, LX2 + 1024)
        zero(MEM + 16, 16)
        SEL, RD = ACC + 8, ACC + 12
        stamp(a, cfg, 6)

        def wt(b, t):
            return MEM + 16 * b + 4 * t

        def W(n):
            key = WO_ORDER[n]
            _, b, t, ks = key
            a.I('v_smfmac_f32_16x16x64_bf16 v[%d:%d], v[%d:%d], %s, v%d', wt(b, t), wt(b, t) + 3, OF + 4 * ks, OF + 4 * ks + 3, breg(key), vIdx)

        def ha(b, t, h):
            D = wt(b, t) + h
            add(D, D, D + 2)

        def hp(b, t):
            D = wt(b, t)
            pkadd(D, D, D + 2)

        G = [ACC, ACC + 4]

        def pk(b, h, tok):
            cvt(G[b] + 2 * tok + h, wt(b, 2 * h) + tok, wt(b, 2 * h + 1) + tok)

        def send(b):
            a.I('buffer_store_dwordx4 v[%d:%d], v%d, %s, s%d offen%s', G[b], G[b] + 3, vInSt, WS, sIn + b, stf)

        def tag(b):
            a.I('v_bfi_b32 v%d, 1, s%d, v%d', G[b], sTag, G[b])

        def selgen(k):
            if k == 0:
                a.I('v_mov_b32 v%d, 0x3f80', RD)
            elif k == 1:
                a.I('v_cndmask_b32 v%d, v%d, 1.0, s[%d:%d]', RD, RD, sSel + 4, sSel + 5)
            else:
                a.I('v_cndmask_b32 v%d, 0, v%d, s[%d:%d]', SEL + k - 2, RD, sSel + 2 * (k % 2), sSel + 2 * (k % 2) + 1)

        def rload(i):
            return a.I('buffer_load_dwordx4 v[%d:%d], v%d, %s, s%d offen offset:%d sc1', VT + 4 * i, VT + 4 * i + 3, vL16, WS, sInLd, i * 1024)

        lt = {}
        a.wait(of0)
        W(0); lds_half(12, 0); a.wait(of1)
        W(1); lt[12] = lds_half(12, 1)
        W(2); lds_half(13, 0)
        W(3); lt[13] = lds_half(13, 1)
        W(4); lds_half(14, 0); ha(0, 0, 0)
        W(5); lt[14] = lds_half(14, 1); ha(0, 0, 1)
        W(6); lds_half(15, 0); ha(0, 1, 0)
        W(7); lt[15] = lds_half(15, 1); ha(0, 1, 1)
        pk(0, 0, 0); pk(0, 0, 1)
        tag(0)
        hp(0, 2)
        lds_half(16, 0)
        lt[16] = lds_half(16, 1)
        hp(0, 3)
        pk(0, 1, 0); pk(0, 1, 1)
        send(0)
        W(8); lds_half(17, 0)
        W(9); lt[17] = lds_half(17, 1); a.wait(lt[13])
        W(10)
        a.I('s_mov_b32 s%d, s%d', sVmPrev, sVm)
        a.I('s_add_u32 s%d, s%d, 131072', sVm, sVm)
        a.I('s_mov_b32 s%d, 0', sSpin)
        W(11); a.wait(lt[15])
        a.I('s_add_u32 s%d, s%d, 1', sStep, sStep)
        W(12); lds_half(0, 0); ha(1, 0, 0)
        W(13); a.wait(lt[17]); ha(1, 0, 1)
        W(14); lds_half(0, 1); ha(1, 1, 0)
        W(15); lds_half(1, 0); ha(1, 1, 1)
        pk(1, 0, 0); pk(1, 0, 1)
        tag(1)
        hp(1, 2)
        lds_half(1, 1)
        a.I('s_cmp_ge_u32 s%d, 2', S_WAVE)
        hp(1, 3)
        pk(1, 1, 0); pk(1, 1, 1)
        send(1)
        stamp(a, cfg, 7)
        U0, U1, U2, U3 = ACC + 16, ACC + 17, ACC + 18, ACC + 19
        npre = cfg.get('npre', 3)
        a.I('s_cbranch_scc1 ' + PFX + 'late')
        backoff(cfg.get('d0', 0) * 32)
        rload(0); rload(1)
        a.label(PFX + 'late')
        for j in range(2, 1 + npre):
            lds_set(j)
        for k in range(6):
            selgen(k)
        zero(RD, 4)
        a.I('s_cbranch_scc0 ' + PFX + 'early')
        backoff(cfg.get('d1', 0) * 32)
        rload(0); rload(1)
        a.label(PFX + 'early')
        for j in range(1 + npre, 6):
            lds_set(j)
        zero(ACC + 20, 4)
        zero(ACC, 8)
        a.I('v_mov_b32 v%d, -1', U2)
        a.I('v_mov_b32 v%d, -1', U3)
        a.I('s_waitcnt vmcnt(0) lgkmcnt(0)')
        a.label(PFX + 'chk1')
        a.I('v_smfmac_f32_16x16x64_bf16 v[%d:%d], v[%d:%d], v[%d:%d], v%d', RD, RD + 3, SEL, SEL + 3, VT, VT + 7, vIdx)
        a.I('v_bitop3_b32 v%d, v%d, v%d, s%d bitop3:0x7e', U0, VT, VT + 4, sTag)
        a.I('v_and_b32 v%d, 1, v%d', U0, U0)
        a.I('v_cmp_ne_u32 vcc, 0, v%d', U0)
        DP = ' row_mask:0xf bank_mask:0xf'
        Z = VT + 8
        for k in range(4):
            a.I('v_add_f32_dpp v%d, v%d, v%d row_ror:4' + DP, Z + k, RD + k, RD + k)
        a.I('s_cbranch_vccnz ' + PFX + 'slow1')
        for k in range(4):
            a.I('v_add_f32_dpp v%d, v%d, v%d row_ror:8' + DP, Z + 4 + k, Z + k, Z + k)
        stamp(a, cfg, 8)
        a.I('s_mov_b64 exec, 0x000f000f')
        a.I('v_cvt_pk_bf16_f32 v%d, v%d, v%d', U0, Z + 4, Z + 5)
        a.I('v_cvt_pk_bf16_f32 v%d, v%d, v%d', U1, Z + 6, Z + 7)
        a.I('v_min_u32 v%d, -2, v%d', U0, U0)
        a.I('buffer_store_dwordx2 v[%d:%d], v%d, %s, s%d offen%s', U0, U1, vMxSt, WS, sMxWr, stf)
        a.I('buffer_store_dwordx2 v[%d:%d], v%d, %s, s%d offen%s', U2, U3, vMxSt, WS, sMxRst, stf)
        a.I('s_mov_b64 exec, -1')
        stamp(a, cfg, 9)
        a.I('s_add_u32 s%d, s%d, s%d', sRetry, sRetry, sSpin)
        a.I('s_mov_b32 s%d, 0', sSpin)
        zero(ACC + 8, 12)
        backoff(cfg.get('d2', 0) * 32)
        if cfg.get('b3'):
            a.I('s_barrier')
        a.I('s_branch ' + PFX + 'loop')

        a.label(PFX + 'slow1')
        rload(0); rload(1)
        spin()
        zero(RD, 4)
        a.I('s_waitcnt vmcnt(0)')
        a.I('s_branch ' + PFX + 'chk1')

        if cfg.get('kvflags'):
            a.label(PFX + 'kvwait')
            kv_load()
            spin()
            a.I('s_waitcnt vmcnt(0)')
            a.I('v_cmp_eq_u32 vcc, 0, v%d', vDummy)
            a.I('s_nop 1')
            a.I('s_and_b32 s%d, vcc_lo, 3', sT)
            a.I('s_cbranch_scc1 ' + PFX + 'kvwait')
            a.I('s_branch ' + PFX + 'kvok')

        a.label(PFX + 'done')
        a.c('last segment: only k and v of the memory rows are needed')
        a.I('buffer_store_dwordx4 v[%d:%d], v%d, %s, s%d offen sc1', T0, T0 + 3, vL16, WS, sVmPrev)
        a.I('s_waitcnt lgkmcnt(0)')
        for kp in (1, 2, 3, 5, 6, 7):
            M('k', 0, kp); M('k', 1, kp); M('v', 0, kp); M('v', 1, kp)
        L = STG
        pkadd(L, k0, k0 + 2)
        pkadd(L + 2, k1, k1 + 2)
        pkadd(L + 4, v0_, v0_ + 2)
        pkadd(L + 6, v1_, v1_ + 2)
        cvt(L + 9, L, L + 2)
        cvt(L + 10, L + 1, L + 3)
        cvt(L + 8, L + 4, L + 5)
        cvt(L + 11, L + 6, L + 7)
        a.I('buffer_store_dwordx4 v[%d:%d], v%d, %s, s%d offen sc1', L + 8, L + 11, vL16, WS, sVm)
        a.I('s_waitcnt vmcnt(0)')
        if cfg.get('dbgt'):
            bulk.dbg_time(a, 10, V=MEM)
        a.I('v_mov_b32 v%d, %d', T1, nsteps)
        a.I('s_mov_b64 exec, 1')
        a.I('buffer_store_dword v%d, v%d, %s, s%d offen sc1', T1, vL16, WS, sFl)
        if cfg.get('stamps'):
            a.I('s_memrealtime s[100:101]')
            a.I('s_waitcnt lgkmcnt(0)')
            a.I('v_mov_b32 v%d, s4', T0)
            if cfg.get('hwid'):
                a.I('s_getreg_b32 s6, hwreg(HW_REG_HW_ID)')
            a.I('v_mov_b32 v%d, s6', T1)
            a.I('v_mov_b32 v%d, s100', T2)
            a.I('v_mov_b32 v%d, s%d', T3, sRetry if cfg.get('cnt') else 3)
            a.I('s_lshl_b32 s%d, s%d, 2', sT, S_ROLE)
            a.I('s_add_u32 s%d, s%d, s%d', sT, sT, S_WAVE)
            a.I('s_lshl_b32 s%d, s%d, 4', sT, sT)
            a.I('s_add_u32 s%d, s%d, 0x%x', sT, sT, WS_DBG + 0x80000)
            a.I('buffer_store_dwordx4 v[%d:%d], v%d, %s, s%d offen', T0, T3, vL16, WS, sT)
        a.I('s_endpgm')
        a.label(PFX + 'fail')
        a.I('s_mov_b64 exec, 1')
        a.I('v_mov_b32 v%d, %d', T2, D_ERR * 4)
        a.I('v_mov_b32 v%d, s%d', T3, sStep)
        a.I('v_or_b32 v%d, 0x40000000, v%d', T3, T3)
        a.I('buffer_store_dword v%d, v%d, s[%d:%d], 0 offen sc1', T3, T2, S_DBG, S_DBG + 3)
        a.I('s_endpgm')

    if cfg.get('both_modes'):
        a.c('mode: plain stores only if all 32 recurrence workgroups sit on the chosen XCD')
        a.I('s_cmp_lg_u32 s%d, 0', sMode)
        a.I('s_cbranch_scc1 R_safe')
        rest('R_', '')
        a.label('R_safe')
        rest('RS_', ' sc1')
    else:
        rest('R_', stf)
    a.label('R_dwait')
    dbg_load()
    gspin()
    a.I('s_waitcnt vmcnt(0)')
    a.I('s_branch R_dchk')
```

```python
import struct
from asmlib import *
from common import *

LKX, LX1, LX2, LMISC, LW = 0, 8192, 12288, 14336, 16384
LM = 8192
LWSTRIDE = 18 * 2048

vM0, vIdx, vBias, vL16, vLW, vInSt, vM1, vMxSt = 0, 1, 2, 3, 4, 5, 6, 7
vVld, vKxSrc, vX1w, vX1rq, vX1rk, vX2w, vM2, vM3 = 8, 9, 10, 11, 12, 13, 14, 15
vWarm, vDummy, vSaveV, vT0 = 16, 17, 18, 20
MEM, ACC, VT, STG, WV = 24, 56, 80, 96, 144

sStep, sTag, sMxRd = 64, 65, 66
sRing = 88
sMxWr, sMxRst = 88, 90
sW10, sStampAddr = 68, 69
sRetry = 67
sIn = 70
sInLd, sInLd2 = 72, 73
sMxW = 74
sKx, sV, sKm, sVm, sVmPrev = 75, 76, 77, 78, 79
sHalf = 80
sC = 82
sSpin = 83
sT = 84
sM0a, sM0b = 92, 93
sFl = 94
sPermLo, sPermHi = 95, 96
sWarm = 97
sMxRd2 = 98
sKvf, sKvfMax = 73, 77
sPiece = 99
sMode = 63
sC2, sNC = 30, 82
sSel = 24


def f32bits(x):
    return struct.unpack('<I', struct.pack('<f', x))[0]


def mem(k):
    return MEM + 4 * k


def acc(i):
    return ACC + 4 * i


def slot(j):
    return STG + 8 * j


WO_ORDER = [('o', b, t, ks) for b in range(2) for t in range(4) for ks in range(2)]


def placement():
    P = {}
    lds = [('q', 0, 0), ('q', 1, 0), ('k', 0, 0), ('k', 1, 0), ('v', 0, 0), ('v', 1, 0)]
    lds += WO_ORDER[0:6] + WO_ORDER[10:16]
    for i, k in enumerate(lds):
        P[k] = ('l', i)
    rest = []
    for X in 'qkv':
        for kp in range(8):
            for t in range(2):
                if (X, t, kp) not in P:
                    rest.append((X, t, kp))
    rest += WO_ORDER[6:10]
    assert len(rest) == 46
    for n, k in enumerate(rest):
        P[k] = ('v', WV + 8 * n) if n < 14 else ('a', 8 * (n - 14))
    return P


PL = placement()


def breg(key):
    kind, r = PL[key]
    if kind == 'v':
        return vr(r, 8)
    if kind == 'a':
        return ar(r, 8)
    return vr(slot(r % 6), 8)


def d0_instr(m):
    return 32 * (m // 4) + 8 * (m % 2) + 2 * ((m % 4) // 2)


def srd(a, s, ptr, size):
    a.I('s_mov_b32 s%d, s%d', s, ptr)
    a.I('s_and_b32 s%d, s%d, 0xffff', s + 1, ptr + 1)
    a.I('s_mov_b32 s%d, 0x%x', s + 2, size)
    a.I('s_mov_b32 s%d, 0x20000', s + 3)


def stamp(a, cfg, idx):
    if not cfg.get('stamps'):
        return
    if cfg['stamps'] >= 2 and idx != 0:
        return
    if cfg['stamps'] == 4:
        return
    a.I('%s s[%d:%d]', 's_memrealtime' if cfg.get('rt') else 's_memtime', 32 + 2 * idx, 33 + 2 * idx)


def gen_rec(a, cfg):
    if cfg.get('stamps') == 3:
        orig_emit = a.emit
        cnt = dict(n=0, on=False)

        def emit(line):
            if line.startswith('R_goA:'):
                cnt['on'] = True
            if cnt['on'] and (line.startswith('v_smfmac') or line.startswith('v_mfma')):
                k = cnt['n'] - cfg['st0']
                if cnt['n'] >= 12 and k >= 0 and k % cfg['stp'] == 0 and k // cfg['stp'] < 9:
                    orig_emit('s_memtime s[%d:%d]' % (34 + 2 * (k // cfg['stp']), 35 + 2 * (k // cfg['stp'])))
                cnt['n'] += 1
            return orig_emit(line)
        a.emit = emit
    fast = cfg.get('fast', True)
    stf = '' if fast else ' sc1'
    nsteps = cfg.get('nsteps', 64)
    T0, T1, T2, T3 = vT0, vT0 + 1, vT0 + 2, vT0 + 3
    WS = 's[%d:%d]' % (S_WS, S_WS + 3)
    vLane = VT + 15
    vN, vG = T0, T1
    a.c('================ recurrence role: s%d = head ================' % S_ROLE)
    if cfg.get('hxor'):
        a.I('s_xor_b32 s%d, s%d, %d', S_ROLE, S_ROLE, cfg['hxor'])
    a.I('v_and_b32 v%d, 63, v0', vLane)
    a.I('v_lshlrev_b32 v%d, 4, v%d', vL16, vLane)
    a.I('v_and_b32 v%d, 15, v%d', vN, vLane)
    a.I('v_lshrrev_b32 v%d, 4, v%d', vG, vLane)
    a.I('s_mov_b32 s%d, 0xcccccccc', sHalf)
    a.I('s_mov_b32 s%d, 0xcccccccc', sHalf + 1)
    a.I('v_mov_b32 v%d, 0x4444', vIdx)
    a.I('v_mov_b32 v%d, 0xeeee', T2)
    a.I('v_cndmask_b32 v%d, v%d, v%d, s[%d:%d]', vIdx, vIdx, T2, sHalf, sHalf + 1)
    a.I('s_mov_b32 s%d, 0', sT)
    a.I('s_mov_b32 s%d, 0x33333333', sT + 1)
    a.I('v_mov_b32 v%d, 0', vBias)
    a.I('v_mov_b32 v%d, 0x%x', T2, f32bits(3.0e38))
    a.I('v_cndmask_b32 v%d, v%d, v%d, s[%d:%d]', vBias, vBias, T2, sT, sT + 1)
    a.I('s_mov_b32 s%d, 0x%x', sC2, f32bits(128 ** -0.5 * 1.4426950408889634))
    a.I('s_mov_b32 s%d, 0x%x', sC2 + 1, f32bits(128 ** -0.5 * 1.4426950408889634))
    a.I('s_mov_b32 s%d, 0x%x', sNC, f32bits(-128 ** -0.5 * 1.4426950408889634))
    a.I('s_mov_b32 s%d, 0x05040100', sPermLo)
    a.I('s_mov_b32 s%d, 0x07060302', sPermHi)
    for k, m in enumerate((0x000f000f, 0x00f000f0, 0xaaaaaaaa)):
        a.I('s_mov_b32 s%d, 0x%x', sSel + 2 * k, m)
        a.I('s_mov_b32 s%d, 0x%x', sSel + 2 * k + 1, m)
    a.I('s_mul_i32 s%d, s%d, %d', sT, S_WAVE, LWSTRIDE)
    a.I('s_add_u32 s%d, s%d, %d', sT, sT, LW)
    a.I('v_add_u32 v%d, s%d, v%d', vLW, sT, vL16)
    a.I('s_lshl_b32 s%d, s%d, 10', sT, S_WAVE)
    a.I('s_add_u32 s%d, s%d, 0x%x', sMxW, sT, WS_MEMX)
    a.I('s_add_u32 s%d, s%d, %d', sT, sT, LM)
    a.I('v_add_u32 v%d, s%d, v%d', vM0, sT, vL16)
    a.I('v_xor_b32 v%d, 1024, v%d', vM1, vM0)
    a.I('v_xor_b32 v%d, 2048, v%d', vM2, vM0)
    a.I('v_xor_b32 v%d, 3072, v%d', vM3, vM0)
    a.I('v_lshlrev_b32 v%d, 13, v%d', vInSt, vG)
    a.I('v_lshrrev_b32 v%d, 2, v%d', T2, vN)
    a.I('v_lshl_add_u32 v%d, v%d, 11, v%d', vInSt, T2, vInSt)
    a.I('v_and_b32 v%d, 3, v%d', T2, vN)
    a.I('v_lshl_add_u32 v%d, v%d, 4, v%d', vInSt, T2, vInSt)
    a.I('s_lshl_b32 s%d, s%d, 15', sT, S_WAVE)
    a.I('s_lshl_b32 s%d, s%d, 6', sT + 1, S_ROLE)
    a.I('s_add_u32 s%d, s%d, s%d', sT, sT, sT + 1)
    a.I('s_add_u32 s%d, s%d, 0x%x', sIn, sT, WS_INBOX)
    a.I('s_add_u32 s%d, s%d, 0x%x', sIn + 1, sT, WS_INBOX + 131072)
    sPi = sT + 4
    a.I('s_lshl_b32 s%d, s%d, 1', sPi, S_ROLE)
    a.I('s_and_b32 s%d, s%d, 1', sT, S_WAVE)
    a.I('s_add_u32 s%d, s%d, s%d', sPi, sPi, sT)
    a.I('s_lshr_b32 s%d, s%d, 1', sT, S_WAVE)
    a.I('s_lshl_b32 s%d, s%d, 6', sT, sT)
    a.I('s_add_u32 s%d, s%d, s%d', sPi, sPi, sT)
    a.I('s_mov_b32 s%d, s%d', sPiece, sPi)
    a.I('s_lshl_b32 s%d, s%d, 11', sT, sPi)
    a.I('s_add_u32 s%d, s%d, 0x%x', sInLd, sT, WS_INBOX)
    a.I('s_lshr_b32 s%d, s%d, 4', sT, sPi)
    a.I('s_lshl_b32 s%d, s%d, 10', sT, sT)
    a.I('s_bfe_u32 s%d, s%d, 0x20002', sT + 1, sPi)
    a.I('s_lshl_b32 s%d, s%d, 6', sT + 1, sT + 1)
    a.I('s_add_u32 s%d, s%d, s%d', sT, sT, sT + 1)
    a.I('s_and_b32 s%d, s%d, 3', sT + 1, sPi)
    a.I('s_lshl_b32 s%d, s%d, 8', sT + 1, sT + 1)
    a.I('s_add_u32 s%d, s%d, s%d', sT, sT, sT + 1)
    a.I('v_and_b32 v%d, 1, v%d', T2, vG)
    a.I('v_lshlrev_b32 v%d, 4, v%d', vMxSt, T2)
    a.I('v_bfe_u32 v%d, v%d, 1, 1', T2, vN)
    a.I('v_lshl_add_u32 v%d, v%d, 5, v%d', vMxSt, T2, vMxSt)
    a.I('v_and_b32 v%d, 1, v%d', T2, vN)
    a.I('v_lshl_add_u32 v%d, v%d, 3, v%d', vMxSt, T2, vMxSt)
    a.I('v_add_u32 v%d, s%d, v%d', vMxSt, sT, vMxSt)
    a.I('v_and_b32 v%d, 1, v%d', T2, vN)
    a.I('v_lshlrev_b32 v%d, 11, v%d', vVld, T2)
    a.I('v_lshrrev_b32 v%d, 1, v%d', T2, vG)
    a.I('v_lshl_add_u32 v%d, v%d, 8, v%d', vVld, T2, vVld)
    a.I('v_lshrrev_b32 v%d, 1, v%d', T2, vN)
    a.I('v_lshl_add_u32 v%d, v%d, 4, v%d', vVld, T2, vVld)
    a.I('v_and_b32 v%d, 1, v%d', T2, vG)
    a.I('v_lshlrev_b32 v%d, 2, v%d', T2, T2)
    a.I('v_sub_u32 v%d, v%d, v%d', vVld, vVld, T2)
    a.I('s_lshr_b32 s%d, s%d, 1', sT, S_WAVE)
    a.I('s_lshl_b32 s%d, s%d, 12', sT, sT)
    a.I('s_and_b32 s%d, s%d, 1', sT + 1, S_WAVE)
    a.I('s_lshl_b32 s%d, s%d, 7', sT + 1, sT + 1)
    a.I('s_add_u32 s%d, s%d, s%d', sT, sT, sT + 1)
    a.I('s_add_u32 s%d, s%d, 4', sT, sT)
    a.I('v_add_u32 v%d, s%d, v%d', vVld, sT, vVld)
    a.I('v_and_b32 v%d, 1, v%d', T2, vG)
    a.I('v_lshlrev_b32 v%d, 10, v%d', vKxSrc, T2)
    a.I('v_lshrrev_b32 v%d, 1, v%d', T2, vG)
    a.I('v_lshl_add_u32 v%d, v%d, 8, v%d', vKxSrc, T2, vKxSrc)
    a.I('v_lshl_add_u32 v%d, v%d, 4, v%d', vKxSrc, vN, vKxSrc)
    a.I('s_lshl_b32 s%d, s%d, 11', sM0a, S_WAVE)
    a.I('v_add_u32 v%d, s%d, v%d', vKxSrc, sM0a, vKxSrc)
    a.I('s_add_u32 s%d, s%d, %d', sM0a, sM0a, LKX)
    a.I('s_add_u32 s%d, s%d, %d', sM0b, sM0a, 1024 - 512)
    a.I('v_lshrrev_b32 v%d, 2, v%d', T2, vN)
    a.I('v_lshlrev_b32 v%d, 8, v%d', vX1w, T2)
    a.I('v_lshl_add_u32 v%d, v%d, 5, v%d', vX1w, vG, vX1w)
    a.I('v_and_b32 v%d, 3, v%d', T2, vN)
    a.I('v_lshl_add_u32 v%d, v%d, 2, v%d', vX1w, T2, vX1w)
    a.I('s_lshl_b32 s%d, s%d, 10', sT, S_WAVE)
    a.I('s_add_u32 s%d, s%d, %d', sT, sT, LX1)
    a.I('v_add_u32 v%d, s%d, v%d', vX1w, sT, vX1w)
    a.I('v_lshrrev_b32 v%d, 2, v%d', T2, vN)
    a.I('v_lshlrev_b32 v%d, 5, v%d', T2, T2)
    a.I('v_and_b32 v%d, 1, v%d', T3, vN)
    a.I('v_lshl_add_u32 v%d, v%d, 4, v%d', T2, T3, T2)
    a.I('v_lshl_add_u32 v%d, v%d, 8, v%d', vX1rq, vG, T2)
    a.I('v_add_u32 v%d, %d, v%d', vX1rq, LX1, vX1rq)
    a.I('v_and_b32 v%d, 7, v%d', T2, vN)
    a.I('v_lshlrev_b32 v%d, 4, v%d', T2, T2)
    a.I('v_lshl_add_u32 v%d, v%d, 8, v%d', vX1rk, vG, T2)
    a.I('v_add_u32 v%d, %d, v%d', vX1rk, LX1 + 128, vX1rk)
    a.I('v_lshrrev_b32 v%d, 3, v%d', T2, vN)
    a.I('v_lshlrev_b32 v%d, 8, v%d', vX2w, T2)
    a.I('v_lshl_add_u32 v%d, v%d, 6, v%d', vX2w, vG, vX2w)
    a.I('v_bfe_u32 v%d, v%d, 2, 1', T2, vN)
    a.I('v_lshl_add_u32 v%d, v%d, 5, v%d', vX2w, T2, vX2w)
    a.I('v_and_b32 v%d, 3, v%d', T2, vN)
    a.I('v_lshl_add_u32 v%d, v%d, 2, v%d', vX2w, T2, vX2w)
    a.I('s_lshl_b32 s%d, s%d, 9', sT, S_WAVE)
    a.I('s_add_u32 s%d, s%d, %d', sT, sT, LX2)
    a.I('v_add_u32 v%d, s%d, v%d', vX2w, sT, vX2w)
    if cfg.get('warm128'):
        a.I('v_lshrrev_b32 v%d, 1, v%d', vWarm, vLane)
        a.I('v_lshlrev_b32 v%d, 7, v%d', vWarm, vWarm)
    else:
        a.I('v_lshlrev_b32 v%d, 6, v%d', vWarm, vLane)
    a.I('s_lshl_b32 s%d, s%d, 13', sT, S_ROLE)
    a.I('s_and_b32 s%d, s%d, 1', sT + 1, S_WAVE)
    a.I('s_lshl_b32 s%d, s%d, 12', sT + 1, sT + 1)
    a.I('s_add_u32 s%d, s%d, s%d', sT, sT, sT + 1)
    a.I('s_lshr_b32 s%d, s%d, 1', sT + 1, S_WAVE)
    a.I('s_mul_i32 s%d, s%d, 0x%x', sT + 1, sT + 1, WS_V - WS_K)
    a.I('s_add_u32 s%d, s%d, s%d', sT, sT, sT + 1)
    a.I('v_add_u32 v%d, s%d, v%d', vWarm, sT, vWarm)
    a.I('s_lshl_b32 s%d, s%d, 13', sT, S_ROLE)
    a.I('s_add_u32 s%d, s%d, 0x%x', sKx, sT, WS_K)
    a.I('s_add_u32 s%d, s%d, 0x%x', sV, sT, WS_V - 4)
    a.I('s_lshl_b32 s%d, s%d, 12', sT, S_ROLE)
    a.I('s_lshl_b32 s%d, s%d, 10', sT + 1, S_WAVE)
    a.I('s_add_u32 s%d, s%d, s%d', sT, sT, sT + 1)
    a.I('s_add_u32 s%d, s%d, 0x%x', sStampAddr, sT, WS_VM)
    a.I('s_lshl_b32 s%d, s%d, 9', sT, S_ROLE)
    a.I('s_lshl_b32 s%d, s%d, 7', sT + 1, S_WAVE)
    a.I('s_add_u32 s%d, s%d, s%d', sT, sT, sT + 1)
    a.I('s_add_u32 s%d, s%d, 0x%x', sFl, sT, WS_FLAGS + FL_KM)
    a.I('s_mov_b32 s%d, 0x%x', sWarm, WS_K + 2 * 262144)

    a.c('init exchange buffers')
    for k in range(4):
        a.I('v_mov_b32 v%d, -1', ACC + k)
    for k in range(2):
        a.I('buffer_store_dwordx4 v[%d:%d], v%d, %s, s%d offen offset:%d sc1', ACC, ACC + 3, vL16, WS, sInLd, 1024 * k)
    for k in range(1, 4):
        a.I('s_mov_b32 s%d, 0x%x', sT, WS_MEMX + k * 8192)
        a.I('buffer_store_dwordx2 v[%d:%d], v%d, %s, s%d offen sc1', ACC, ACC + 1, vMxSt, WS, sT)
    srd(a, S_W, P_MEM0, 8192)
    a.I('v_and_b32 v%d, 1, v%d', T2, vG)
    a.I('v_lshlrev_b32 v%d, 10, v%d', T2, T2)
    a.I('v_and_b32 v%d, 3, v%d', T3, vN)
    a.I('v_lshl_add_u32 v%d, v%d, 3, v%d', T2, T3, T2)
    a.I('s_and_b32 s%d, s%d, 3', sT, sPiece)
    a.I('s_lshl_b32 s%d, s%d, 5', sT, sT)
    a.I('v_add_u32 v%d, s%d, v%d', T2, sT, T2)
    a.I('s_bfe_u32 s%d, s%d, 0x20002', sT, sPiece)
    a.I('s_lshl_b32 s%d, s%d, 11', sT, sT)
    a.I('s_lshr_b32 s%d, s%d, 4', sT + 1, sPiece)
    a.I('s_lshl_b32 s%d, s%d, 7', sT + 1, sT + 1)
    a.I('s_add_u32 s%d, s%d, s%d', sT, sT, sT + 1)
    a.I('buffer_load_dwordx2 v[%d:%d], v%d, s[%d:%d], s%d offen', vSaveV, vSaveV + 1, T2, S_W, S_W + 3, sT)

    a.c('weights')
    vRow, vWo, vDs = VT + 13, VT + 14, VT + 12
    GA = [VT + 8, VT + 9, VT + 10, VT + 11]
    a.I('v_lshrrev_b32 v%d, 1, v%d', vRow, vG)
    a.I('v_lshlrev_b32 v%d, 4, v%d', vRow, vRow)
    a.I('v_and_b32 v%d, 1, v%d', vWo, vG)
    a.I('v_lshl_add_u32 v%d, v%d, 2, v%d', vRow, vWo, vRow)
    a.I('v_lshlrev_b32 v%d, 10, v%d', vWo, vRow)
    a.I('v_lshl_add_u32 v%d, v%d, 3, v%d', vWo, vN, vWo)
    a.I('v_lshlrev_b32 v%d, 8, v%d', vRow, vRow)
    a.I('v_lshl_add_u32 v%d, v%d, 2, v%d', vRow, vN, vRow)
    for kp in range(4):
        a.I('s_xor_b32 s%d, s%d, %d', sT, S_WAVE, kp)
        a.I('s_lshl_b32 s%d, s%d, 14', sT, sT)
        a.I('s_lshl_b32 s%d, s%d, 6', sT + 1, S_WAVE)
        a.I('s_add_u32 s%d, s%d, s%d', sT, sT, sT + 1)
        a.I('s_add_u32 s%d, s%d, %d', sT, sT, LW)
        a.I('v_add_u32 v%d, s%d, v%d', GA[kp], sT, vRow)
    a.I('v_lshlrev_b32 v%d, 13, v%d', vDs, vG)
    a.I('v_lshl_add_u32 v%d, v%d, 4, v%d', vDs, vN, vDs)
    sSrc, sDst, sOb = sT + 2, sT + 3, sT + 6
    a.I('s_lshl_b32 s%d, s%d, 8', sSrc, S_ROLE)
    a.I('s_lshl_b32 s%d, s%d, 19', sT, S_WAVE)
    a.I('s_add_u32 s%d, s%d, s%d', sSrc, sSrc, sT)
    a.I('s_lshl_b32 s%d, s%d, 14', sDst, S_WAVE)
    a.I('s_add_u32 s%d, s%d, %d', sDst, sDst, LW)
    a.I('s_lshl_b32 s%d, s%d, 17', sOb, S_ROLE)
    a.I('s_lshl_b32 s%d, s%d, 7', sT, S_WAVE)
    a.I('s_add_u32 s%d, s%d, s%d', sOb, sOb, sT)
    outb = MEM
    utok = {}

    def dma_unit(u):
        sr_ = S_W if (u // 2) % 2 == 0 else S_W2
        if u % 2 == 0:
            srd(a, sr_, (P_WQ, P_WK, P_WV)[u // 2], 4194304)
        for j in range(16):
            a.I('s_add_u32 m0, s%d, %d', sDst, (u % 2) * 65536 + j * 1024)
            a.I('s_add_u32 s%d, s%d, %d', sT, sSrc, ((u % 2) * 256 + 4 * j) * 8192)
            utok[u] = a.I('buffer_load_dwordx4 v%d, s[%d:%d], s%d offen%s lds', vDs, sr_, sr_ + 3, sT, ' nt' if cfg.get('wnt') else '')

    late_lds = []

    def put(key, m0, nm, srcs, hold=False):
        kind, r = PL[key]
        ob = outb + (put.n % 2) * 8
        put.n += 1
        for k, (rh, rl, sel) in enumerate(srcs):
            if kind == 'v':
                dst = r + m0 + k
            elif kind == 'l' and hold:
                dst = slot(r) + m0 + k
            else:
                dst = ob + k
            a.I('v_perm_b32 v%d, v%d, v%d, s%d', dst, rh, rl, sel)
        if kind == 'a':
            for k in range(nm):
                a.I('v_accvgpr_write_b32 a%d, v%d', r + m0 + k, ob + k)
        elif kind == 'l' and hold:
            late_lds.append(r)
        elif kind == 'l':
            for q in range(nm // 4):
                a.I('ds_write_b128 v%d, v[%d:%d] offset:%d', vLW, ob + 4 * q, ob + 4 * q + 3, r * 2048 + ((m0 // 4) + q) * 1024)
    put.n = 0
    gb = [40, 56]

    def gather_unit(u):
        X = 'qkv'[u // 2]
        gt = {}

        def rd(k):
            b = gb[k % 2]
            for m in range(8):
                gt[k] = a.I('ds_read2st64_b32 v[%d:%d], v%d offset0:%d offset1:%d', b + 2 * m, b + 2 * m + 1, GA[k], d0_instr(m), d0_instr(m) + 1)
        rd(0)
        for k in range(4):
            if k + 1 < 4:
                rd(k + 1)
            a.wait(gt[k])
            b = gb[k % 2]
            for t in range(2):
                put((X, t, 4 * (u % 2) + k), 0, 8, [(b + 2 * m + 1, b + 2 * m, sPermLo if t == 0 else sPermHi) for m in range(8)], hold=True)
        for k in range(4):
            a.I('v_xor_b32 v%d, 0x%x, v%d', GA[k], (LW ^ (LW + 65536)) if False else 0, GA[k]) if False else None
        for k in range(4):
            if u % 2 == 0:
                a.I('v_add_u32 v%d, 65536, v%d', GA[k], GA[k])
            else:
                a.I('v_subrev_u32 v%d, 65536, v%d', GA[k], GA[k])

    wgroups = [(ks, b, mh) for b in range(2) for ks in range(2) for mh in range(2)]
    wbufs = [40, 56, 72]
    wtok = {}

    def wissue(gi, bufs):
        ks, b_, mh = wgroups[gi]
        b = bufs[gi % len(bufs)]
        for mm in range(4):
            m = 4 * mh + mm
            for j in range(2):
                row = 64 * ks + d0_instr(m) + j
                a.I('s_add_u32 s%d, s%d, %d', sT, sOb, row * 1024 + 512 * b_)
                r = b + 4 * mm + 2 * j
                wtok[gi] = a.I('buffer_load_dwordx2 v[%d:%d], v%d, s[%d:%d], s%d offen', r, r + 1, vWo, S_W2, S_W2 + 3, sT)

    def wconsume(gi, bufs):
        ks, b_, mh = wgroups[gi]
        b = bufs[gi % len(bufs)]
        a.wait(wtok[gi])
        for t in range(4):
            a.I('s_waitcnt lgkmcnt(1)')
            sel = sPermLo if t % 2 == 0 else sPermHi
            put(('o', b_, t, ks), 4 * mh, 4, [(b + 4 * mm + 2 + t // 2, b + 4 * mm + t // 2, sel) for mm in range(4)])

    dma_unit(0)
    dma_unit(1)
    for u in range(6):
        a.wait(utok[u])
        a.I('s_barrier')
        if u == 0:
            a.I('v_min_u32 v%d, -2, v%d', vSaveV, vSaveV)
            a.I('s_mov_b32 s%d, 0x%x', sT, WS_MEMX)
            a.I('buffer_store_dwordx2 v[%d:%d], v%d, %s, s%d offen sc1', vSaveV, vSaveV + 1, vMxSt, WS, sT)
        if u == 2:
            lab = a.newlabel('R_sig')
            a.I('s_cmp_lg_u32 s%d, 0', S_WAVE)
            a.I('s_cbranch_scc1 %s', lab)
            a.I('s_mov_b64 exec, 1')
            a.I('v_mov_b32 v%d, 1', VT)
            a.I('v_mov_b32 v%d, %d', VT + 1, D_INIT * 4)
            a.I('buffer_atomic_add v%d, v%d, s[%d:%d], 0 offen', VT, VT + 1, S_DBG, S_DBG + 3)
            a.I('s_mov_b64 exec, -1')
            a.label(lab)
            a.vm_n -= 1
        if u == cfg.get('wou', 4):
            srd(a, S_W2, P_WO, 4194304)
            a.I('v_lshlrev_b32 v%d, 7, v%d', VT + 2, vLane)
            a.I('s_lshl_b32 s%d, s%d, 17', sT, S_ROLE)
            a.I('s_lshl_b32 s%d, s%d, 15', sT + 1, S_WAVE)
            a.I('s_add_u32 s%d, s%d, s%d', sT, sT, sT + 1)
            for k in range(4):
                a.I('buffer_load_dword v%d, v%d, s[%d:%d], s%d offen', VT + 3, VT + 2, S_W2, S_W2 + 3, sT)
                a.I('s_add_u32 s%d, s%d, 8192', sT, sT)
        gather_unit(u)
        if cfg.get('stamps') and u == cfg.get('wst', -1):
            a.I('s_memrealtime s[100:101]')
            a.I('s_waitcnt lgkmcnt(0)')
            a.I('s_mov_b32 s3, s100')
        a.I('s_barrier')
        if u + 2 < 6:
            dma_unit(u + 2)
    def gspin():
        a.I('s_add_u32 s%d, s%d, 1', sSpin, sSpin)
        a.I('s_cmp_gt_u32 s%d, 0x100000', sSpin)
        a.I('s_cbranch_scc1 R_fail')

    def dbg_load():
        return a.I('buffer_load_dwordx4 v[%d:%d], v%d, s[%d:%d], 0 offen offset:%d sc1', T0, T3, vSaveV, S_DBG, S_DBG + 3, D_CNT_OTH * 4)

    def kv_load():
        return a.I('buffer_load_dword v%d, v%d, %s, s%d offen sc1', vDummy, vL16, WS, sKvf)
    assert D_INIT == D_CNT_OTH + 1 and D_FINIT == D_CNT_OTH + 3
    a.I('v_mov_b32 v%d, 0', vSaveV)
    a.I('s_mov_b32 s%d, 0', sSpin)
    a.I('s_mov_b32 s%d, 0', sStep)
    dt = dbg_load()
    for gi in range(3):
        wissue(gi, wbufs)
    for r in late_lds:
        for q in range(2):
            a.I('ds_write_b128 v%d, v[%d:%d] offset:%d', vLW, slot(r) + 4 * q, slot(r) + 4 * q + 3, r * 2048 + q * 1024)
    a.I('s_lshr_b32 s%d, s%d, 1', sKvf, S_ROLE)
    a.I('s_lshl_b32 s%d, s%d, 11', sKvf, sKvf)
    a.I('s_add_u32 s%d, s%d, 0x%x', sKvf, sKvf, WS_FLAGS + FL_KV)
    a.I('s_add_u32 s%d, s%d, %d', sKvfMax, sKvf, 63 * 32)
    for gi in range(8):
        wconsume(gi, wbufs)
        if gi + 3 < 8:
            wissue(gi + 3, wbufs)
        if gi == 4:
            a.c('all 32 inits done, flag area zeroed?')
            a.label('R_dchk')
            a.I('v_readfirstlane_b32 s%d, v%d', sT, T1)
            a.I('v_readfirstlane_b32 s%d, v%d', sT + 1, T3)
            a.I('v_readfirstlane_b32 s%d, v%d', sMode, T0)
            a.I('s_cmp_lt_u32 s%d, 32', sT)
            a.I('s_cbranch_scc1 R_dwait')
            if cfg.get('both_modes'):
                a.I('s_cmp_lt_u32 s%d, %d', sT + 1, NZERO)
                a.I('s_cbranch_scc1 R_dwait')
            if cfg.get('pretouch', 1):
                a.I('v_lshlrev_b32 v%d, 1, v%d', T0, vL16)
                a.I('buffer_load_dword v%d, v%d, %s, s%d offen sc1', T1, T0, WS, sInLd)
                a.I('v_lshlrev_b32 v%d, 3, v%d', T0, vL16)
                a.I('s_lshl_b32 s%d, s%d, 13', sT, S_WAVE)
                a.I('s_add_u32 s%d, s%d, 0x%x', sT, sT, WS_MEMX)
                a.I('buffer_load_dword v%d, v%d, %s, s%d offen sc1', T1, T0, WS, sT)
            if cfg.get('kvflags'):
                kv_load()
    if cfg.get('stamps') and 'wst' not in cfg:
        a.I('s_memrealtime s[100:101]')
        a.I('s_waitcnt lgkmcnt(0)')
        a.I('s_mov_b32 s3, s100')
    a.I('s_mov_b32 s%d, s%d', sVm, sStampAddr)
    a.I('s_mov_b32 s%d, s%d', sVmPrev, sStampAddr)
    a.I('s_mov_b32 s%d, 0', sTag)
    a.I('s_mov_b32 s%d, 0', sRetry)
    a.I('s_mov_b32 s%d, s%d', sMxRd, sMxW)
    for k in range(4):
        a.I('s_mov_b32 s%d, 0x%x', sRing + k, WS_MEMX + k * 8192)
    a.I('s_lshl_b32 s%d, s%d, 10', sW10, S_WAVE)
    if cfg.get('kvflags'):
        a.label('R_kvfirst')
        a.I('s_waitcnt vmcnt(0)')
        a.I('v_cmp_eq_u32 vcc, 0, v%d', vDummy)
        a.I('s_nop 1')
        a.I('s_and_b32 s%d, vcc_lo, 15', sT)
        a.I('s_cbranch_scc0 R_kvgo')
        kv_load()
        gspin()
        a.I('s_branch R_kvfirst')
        a.label('R_kvgo')
        if cfg.get('pretouch', 1):
            a.I('v_xor_b32 v%d, 8192, v%d', T0, vWarm)
            for sg in range(2):
                a.I('s_mov_b32 s%d, 0x%x', sT, WS_K + sg * 262144)
                a.I('buffer_load_dword v%d, v%d, %s, s%d offen sc1', vDummy, T0, WS, sT)
                a.I('buffer_load_dword v%d, v%d, %s, s%d offen sc1', vDummy, vWarm, WS, sT)
        a.I('s_add_u32 s%d, s%d, 64', sKvf, sKvf)

    def rest(PFX, stf):
        def load_kx():
            a.I('s_mov_b32 m0, s%d', sM0a)
            a.I('buffer_load_dwordx4 v%d, %s, s%d offen sc1 lds', vKxSrc, WS, sKx)
            a.I('s_mov_b32 m0, s%d', sM0b)
            a.I('buffer_load_dwordx4 v%d, %s, s%d offen offset:512 sc1 lds', vKxSrc, WS, sKx)

        def load_v():
            for t in range(2):
                for hf in range(2):
                    a.I('buffer_load_dwordx4 v[%d:%d], v%d, %s, s%d offen offset:%d sc1', VT + 8 * t + 4 * hf, VT + 8 * t + 4 * hf + 3,
                        vVld, WS, sV, 1024 * t + 512 * hf)

        def backoff(cyc):
            if cfg.get('sleep'):
                if cyc >= 64:
                    a.I('s_sleep %d', cyc // 64)
                if cyc % 64 >= 32:
                    a.I('s_nop 7')
            else:
                for k in range(cyc // 32):
                    a.I('s_nop 7')
                if cyc % 32 >= 16:
                    a.I('s_nop 3')

        def lds_half(j, hf):
            sl = j % 6
            return a.I('ds_read_b128 v[%d:%d], v%d offset:%d', slot(sl) + 4 * hf, slot(sl) + 4 * hf + 3, vLW, j * 2048 + 1024 * hf)

        def lds_set(j):
            lds_half(j, 0)
            return lds_half(j, 1)

        def zero(r, n):
            for k in range(0, n, 2):
                a.I('v_mov_b64 v[%d:%d], 0', r + k, r + k + 1)

        def spin():
            a.I('s_add_u32 s%d, s%d, 1', sSpin, sSpin)
            a.I('s_cmp_gt_u32 s%d, 0x100000', sSpin)
            a.I('s_cbranch_scc1 ' + PFX + 'fail')

        a.I('s_waitcnt lgkmcnt(0)')
        a.I('s_barrier')
        load_kx()
        if cfg.get('kvflags'):
            kv_load()
        a.I('s_add_u32 s%d, s%d, 262144', sKx, sKx)
        zero(T0, 4)
        C0, C1 = vSaveV, vSaveV + 1
        zero(ACC, 24)
        a.I('s_mov_b32 s%d, 0', sSpin)

        accidx = {('q', 0): 0, ('q', 1): 1, ('k', 0): 2, ('k', 1): 3, ('v', 0): 4, ('v', 1): 5}

        def M(X, t, kp, src=None):
            d = acc(accidx[(X, t)])
            r = mem(kp) if src is None else src
            a.I('v_smfmac_f32_16x16x64_bf16 v[%d:%d], v[%d:%d], %s, v%d', d, d + 3, r, r + 3, breg((X, t, kp)), vIdx)

        def ldv(i):
            if cfg.get('no_kv'):
                return None
            t, hf = i // 2, i % 2
            return a.I('buffer_load_dwordx4 v[%d:%d], v%d, %s, s%d offen offset:%d sc1', VT + 8 * t + 4 * hf, VT + 8 * t + 4 * hf + 3,
                       vVld, WS, sV, 1024 * t + 512 * hf)

        def poll(r0, r1):
            a.I('buffer_load_dwordx4 v[%d:%d], v%d, %s, s%d offen sc1', r0, r0 + 3, vL16, WS, sMxRd)
            a.I('buffer_load_dwordx4 v[%d:%d], v%d, %s, s%d offen sc1', r1, r1 + 3, vL16, WS, sMxRd2)

        kx, mt = {}, {}

        def rkx(f):
            kx[f] = a.I('ds_read_b128 v[%d:%d], v%d offset:%d', STG + 4 * f, STG + 4 * f + 3, vL16, LKX + f * 1024)

        def rm(k):
            mt[k] = a.I('ds_read_b128 v[%d:%d], v%d offset:%d', mem(k), mem(k) + 3, (vM0, vM1, vM2, vM3)[k & 3], 4096 * (k // 4))

        vSaveK = vSaveV

        def savepub():
            a.I('v_mov_b32 v%d, v%d', T0, VT)
            a.I('v_mov_b32 v%d, v%d', T1, vSaveK)
            a.I('v_mov_b32 v%d, v%d', T2, vSaveK + 1)
            a.I('v_mov_b32 v%d, v%d', T3, VT + 8)

        if cfg.get('stamps'):
            a.I('s_memrealtime s[6:7]')
            a.I('s_waitcnt lgkmcnt(0)')
        if cfg.get('dbgt'):
            import bulk
            bulk.dbg_time(a, 9, V=MEM)
        a.I('s_add_u32 s%d, s%d, 4096', sMxRd2, sMxRd)
        a.c('================ step loop ================')
        a.label(PFX + 'loop')
        stamp(a, cfg, 0)
        PA, PB = (mem(0), mem(4)), (VT, VT + 4)
        light = cfg.get('light', 0)
        a.label(PFX + 'repoll')
        poll(*PA)
        if cfg.get('stamps') and cfg['stamps'] != 4:
            a.I('s_waitcnt lgkmcnt(0)')
            a.I('v_mov_b32 v%d, 0', VT + 12)
            a.I('v_writelane_b32 v%d, s%d, 0', VT + 12, 52)
            for k in range(1, 10):
                a.I('v_writelane_b32 v%d, s%d, %d', VT + 12, 32 + 2 * k, k)
            a.I('v_writelane_b32 v%d, s%d, 10', VT + 12, sRetry)
            a.I('s_mov_b32 s52, s32')
            a.I('s_lshl_b32 s%d, s%d, 6', sT, S_ROLE)
            a.I('s_add_u32 s%d, s%d, s%d', sT, sT, sStep)
            a.I('s_lshl_b32 s%d, s%d, 2', sT, sT)
            a.I('s_add_u32 s%d, s%d, s%d', sT, sT, S_WAVE)
            a.I('s_lshl_b32 s%d, s%d, 6', sT, sT)
            a.I('s_add_u32 s%d, s%d, 0x%x', sStampAddr, sT, WS_DBG)
        else:
            backoff(cfg.get('pgap', 2) * (16 if light else 48))
        if light:
            a.I('buffer_load_dwordx4 v[%d:%d], v%d, %s, s%d offen sc1', VT, VT + 3, vL16, WS, sMxRd2)
        else:
            poll(*PB)

        def head(src, bad, n=2):
            s0, s1 = src
            a.I('s_waitcnt vmcnt(%d)' % n)
            a.I('v_max3_u32 v%d, v%d, v%d, v%d', C0, s0, s0 + 2, s1)
            a.I('v_max_u32 v%d, v%d, v%d', C0, C0, s1 + 2)
            a.I('v_cmp_eq_u32 vcc, -1, v%d', C0)
            a.I('ds_write_b128 v%d, v[%d:%d]', vM0, s0, s0 + 3)
            wA = a.I('ds_write_b128 v%d, v[%d:%d] offset:4096', vM0, s1, s1 + 3)
            M('q', 0, 0, s0)
            M('q', 1, 0, s0)
            a.I('s_cbranch_vccnz %s', bad)
            stamp(a, cfg, 1)
            M('q', 0, 4, s1)
            M('q', 1, 4, s1)
            M('k', 0, 0, s0)
            M('k', 1, 0, s0)
            a.wait(wA)
            a.I('s_barrier')
            rm(1)
            M('k', 0, 4, s1); rm(2)
            M('k', 1, 4, s1); rm(3)
            M('v', 0, 0, s0); rm(5)
            M('v', 1, 0, s0); rm(6)
            M('v', 0, 4, s1); rm(7)
            M('v', 1, 4, s1)
        a.I('s_branch ' + PFX + 'goA')
        if light:
            a.label(PFX + 'badB')
            spin()
            a.I('s_add_u32 s%d, s%d, 0x1000000', sRetry, sRetry)
            a.I('s_nop 2')
            zero(ACC, 8)
            a.I('s_branch ' + PFX + 'repoll')
            a.label(PFX + 'badA')
            a.I('s_add_u32 s%d, s%d, 0x10000', sRetry, sRetry)
            a.I('s_nop 5')
            zero(ACC, 8)
            head((mem(0), VT), PFX + 'badB', 0)
            a.I('s_branch ' + PFX + 'join')
            a.label(PFX + 'goA')
            head(PA, PFX + 'badA', 1)
        else:
            a.label(PFX + 'badA')
            poll(*PA)
            spin()
            a.I('s_add_u32 s%d, s%d, 0x10000', sRetry, sRetry)
            a.I('s_nop 1')
            zero(ACC, 8)
            head(PB, PFX + 'badB')
            a.I('s_branch ' + PFX + 'join')
            a.label(PFX + 'badB')
            poll(*PB)
            a.I('s_add_u32 s%d, s%d, 0x10000', sRetry, sRetry)
            a.I('s_nop 4')
            zero(ACC, 8)
            a.label(PFX + 'goA')
            head(PA, PFX + 'badA')
        a.label(PFX + 'join')
        a.I('s_cmp_eq_u32 s%d, %d', sStep, nsteps - 1)
        a.I('s_cbranch_scc1 ' + PFX + 'done')
        rkx(0)
        a.wait(mt[2])
        M('q', 0, 1); rkx(1)
        M('q', 1, 1); ldv(0)
        M('q', 0, 2); rkx(2)
        M('q', 1, 2); ldv(1); a.wait(mt[5])
        M('q', 0, 3); rkx(3)
        M('q', 1, 3); ldv(2)
        M('q', 0, 5); rkx(4)
        if cfg.get('stamps') and cfg['stamps'] != 4:
            a.I('v_lshrrev_b32 v%d, 2, v%d', C0, vL16)
            a.I('s_mov_b64 exec, 0xffff')
            a.I('buffer_store_dword v%d, v%d, %s, s%d offen', VT + 12, C0, WS, sStampAddr)
            a.I('s_mov_b64 exec, -1')
        M('q', 1, 5); tv = ldv(3); a.wait(mt[7])
        M('q', 0, 6); rkx(5)
        a.I('s_barrier')
        M('q', 1, 6)
        if cfg.get('pubpos', 1) == 0 and not cfg.get('no_pub'):
            a.I('buffer_store_dwordx4 v[%d:%d], v%d, %s, s%d offen sc1', T0, T0 + 3, vL16, WS, sVmPrev)
        M('q', 0, 7); rkx(6)
        a.I('s_sub_u32 s%d, s%d, 1', sT, sStep)
        M('q', 1, 7); rkx(7)
        a.I('s_max_i32 s%d, s%d, 0', sT, sT)
        a.I('v_mov_b32 v%d, s%d', C1, sT)
        stamp(a, cfg, 2)
        q0, q1, k0, k1, v0_, v1_ = [acc(i) for i in range(6)]
        QT = mem(0)

        def add(d, x, y):
            a.I('v_add_f32 v%d, v%d, v%d', d, x, y)

        def cvt(d, x, y):
            a.I('v_cvt_pk_bf16_f32 v%d, v%d, v%d', d, x, y)

        def pkadd(d, x, y):
            a.I('v_pk_add_f32 v[%d:%d], v[%d:%d], v[%d:%d]', d, d + 1, x, x + 1, y, y + 1)

        def sel(d, x, y):
            a.I('v_cndmask_b32 v%d, v%d, v%d, s[%d:%d]', d, x, y, sHalf, sHalf + 1)
        M('k', 0, 1)
        a.I('s_add_u32 s%d, s%d, 262144', sV, sV)
        a.I('s_and_b32 s%d, s%d, 1', sTag, sStep)
        a.I('s_waitcnt vmcnt(%d)' % ((0 if cfg.get('no_kv') else 4) + (0 if cfg.get('no_pub') or cfg.get('pubpos', 1) else 1)))
        M('k', 1, 1)
        a.I('s_mov_b32 s%d, s%d', sT, sRing)
        a.I('s_mov_b32 s%d, s%d', sRing, sRing + 1)
        add(QT, q0, q0 + 2)
        M('k', 0, 2)
        add(QT + 1, q0 + 1, q0 + 3)
        add(QT + 2, q1, q1 + 2)
        add(QT + 3, q1 + 1, q1 + 3)
        cvt(QT, QT, QT + 2)
        cvt(QT + 1, QT + 1, QT + 3)
        wq = a.I('ds_write2_b32 v%d, v%d, v%d offset0:0 offset1:4', vX1w, QT, QT + 1)
        M('k', 1, 2)
        a.I('s_mov_b32 s%d, s%d', sRing + 1, sRing + 2)
        a.I('s_mov_b32 s%d, s%d', sRing + 2, sRing + 3)
        if cfg.get('kvflags'):
            a.I('v_cmp_eq_u32 vcc, 0, v%d', vDummy)
        M('k', 0, 3)
        a.I('s_mov_b32 s%d, s%d', sRing + 3, sT)
        a.I('s_add_u32 s%d, s%d, s%d', sMxRd, sRing, sW10)
        M('k', 1, 3)
        if cfg.get('kvflags'):
            a.I('s_and_b32 s%d, vcc_lo, 3', sT)
            a.I('s_cbranch_scc1 ' + PFX + 'kvwait')
            a.label(PFX + 'kvok')
        M('k', 0, 5)
        if not cfg.get('no_warm'):
            a.I('buffer_load_dword v%d, v%d, %s, s%d offen sc1', vDummy, vWarm, WS, sWarm)
        M('k', 1, 5)
        a.wait(wq)
        a.I('s_barrier')
        qt = {}

        def rq(ks):
            qt[ks] = a.I('ds_read_b128 v[%d:%d], v%d offset:%d', slot(4) + 4 * ks, slot(4) + 4 * ks + 3, vX1rq, ks * 1024)
        rq(0)
        M('k', 0, 6); rq(1)
        if cfg.get('kvflags'):
            a.I('s_add_u32 s%d, s%d, 32', sKvf, sKvf)
        M('k', 1, 6); rq(2)
        if cfg.get('kvflags'):
            a.I('s_min_u32 s%d, s%d, s%d', sKvf, sKvf, sKvfMax)
        M('k', 0, 7); rq(3)
        a.I('s_mov_b32 m0, s%d', sM0a)
        M('k', 1, 7)
        a.I('s_add_u32 s%d, s%d, 4096', sMxRd2, sMxRd)
        stamp(a, cfg, 3)
        S0, S1, S2, Pm = acc(0), acc(1), acc(2), acc(3)
        X0, X1 = S1 + 2, S1 + 3
        ON = T0
        PV0, PV1, LS = mem(4), mem(0), mem(1)
        KMR = [STG, STG + 4, STG + 8, STG + 12]

        def SM(D, A, ks):
            a.I('v_mfma_f32_16x16x32_bf16 v[%d:%d], v[%d:%d], v[%d:%d], %s', D, D + 3, A, A + 3,
                slot(4) + 4 * ks, slot(4) + 4 * ks + 3, '0' if ks == 0 else vr(D, 4))
        km = {}

        def rkm(k):
            km[k] = a.I('ds_read_b128 v[%d:%d], v%d offset:%d', KMR[k], KMR[k] + 3, vX1rk, k * 1024)
        M('v', 0, 1)
        if not cfg.get('no_kv'):
            a.I('buffer_load_dwordx4 v%d, %s, s%d offen sc1 lds', vKxSrc, WS, sKx)
        a.I('s_mov_b32 m0, s%d', sM0b)
        M('v', 1, 1)
        a.wait(qt[3])
        add(QT, k0, k0 + 2)
        SM(S0, STG, 0)
        add(QT + 1, k0 + 1, k0 + 3)
        add(QT + 2, k1, k1 + 2)
        SM(S0, STG + 4, 1)
        add(QT + 3, k1 + 1, k1 + 3)
        cvt(vSaveK, QT, QT + 2)
        SM(S0, STG + 8, 2)
        cvt(QT + 1, QT + 1, QT + 3)
        wk = a.I('ds_write2_b32 v%d, v%d, v%d offset0:32 offset1:36', vX1w, vSaveK, QT + 1)
        SM(S0, STG + 12, 3)
        if not cfg.get('no_kv'):
            a.I('buffer_load_dwordx4 v%d, %s, s%d offen offset:512 sc1 lds', vKxSrc, WS, sKx)
        a.I('v_mov_b32 v%d, 0', Pm + 3)
        SM(S1, STG + 16, 0)
        a.I('s_mov_b64 exec, 3')
        if cfg.get('kvflags'):
            kv_load()
        if not cfg.get('no_pub') and not cfg.get('no_flag'):
            a.I('buffer_store_dword v%d, v%d, %s, s%d offen sc1', C1, vL16, WS, sFl)
        a.I('s_mov_b64 exec, -1')
        SM(S1, STG + 20, 1)
        if cfg.get('pubpos', 1) == 1 and not cfg.get('no_pub'):
            a.I('buffer_store_dwordx4 v[%d:%d], v%d, %s, s%d offen sc1', T0, T0 + 3, vL16, WS, sVmPrev)
        vm_mark = a.vm_n
        zero(PV0, 4)
        SM(S1, STG + 24, 2)
        a.I('s_add_u32 s%d, s%d, 262144', sKx, sKx)
        a.I('v_mov_b32 v%d, v%d', vSaveK + 1, QT + 1)
        a.I('v_mov_b32 v%d, 0x3f803f80', ON)
        SM(S1, STG + 28, 3)
        a.wait(wk)
        a.I('s_barrier')
        rkm(0)
        M('v', 0, 2); rkm(1)
        a.I('v_max3_f32 v%d, v%d, v%d, v%d', Pm, S0, S0 + 1, S0 + 2)
        M('v', 1, 2); rkm(2)
        a.I('s_add_u32 s%d, s%d, 262144', sWarm, sWarm)
        a.I('v_mov_b32 v%d, 0x3f803f80', ON + 1)
        M('v', 0, 3); rkm(3)
        a.I('v_max3_f32 v%d, v%d, v%d, v%d', Pm, Pm, S0 + 3, S1)
        M('v', 1, 3); lds_half(8, 0)
        a.I('v_max3_f32 v%d, v%d, v%d, v%d', Pm + 1, S1 + 1, S1 + 2, S1 + 3)
        M('v', 0, 5); lds_half(8, 1)
        a.wait(km[1])
        sel(S1, S1, S1 + 2)
        SM(S2, KMR[0], 0); lds_half(9, 0)
        sel(S1 + 1, S1 + 1, S1 + 3)
        a.I('v_max_f32 v%d, v%d, v%d', X0, Pm, Pm + 1)
        SM(S2, KMR[1], 1)
        a.wait(km[3])
        zero(PV1, 4)
        SM(S2, KMR[2], 2); lds_half(9, 1)
        a.I('v_mov_b32 v%d, 0x3f803f80', ON + 2)
        a.I('v_mov_b32 v%d, 0x3f803f80', ON + 3)
        SM(S2, KMR[3], 3); lds_half(6, 0)
        stamp(a, cfg, 4)
        M('v', 1, 5); lds_half(6, 1)
        M('v', 0, 6); lds_half(7, 0)
        M('v', 1, 6); lds_half(7, 1)
        a.I('v_max3_f32 v%d, v%d, v%d, v%d', X0, X0, S2, S2 + 1)
        a.I('v_max3_f32 v%d, v%d, v%d, v%d', X0, X0, S2 + 2, S2 + 3)
        a.I('v_mov_b32 v%d, v%d', X1, X0)
        M('v', 0, 7); lds_half(10, 0)
        a.I('v_permlane32_swap_b32 v%d, v%d', X0, X1)
        a.I('v_max_f32 v%d, v%d, v%d', X0, X0, X1)
        a.I('v_mov_b32 v%d, v%d', X1, X0)
        M('v', 1, 7); lds_half(10, 1)
        a.I('v_permlane16_swap_b32 v%d, v%d', X0, X1)
        sel(S2, S2, S0 + 2)
        sel(S2 + 1, S2 + 1, S0 + 3)
        a.I('v_max_f32 v%d, v%d, v%d', X0, X0, X1)
        sel(S2 + 2, S2 + 2, S0)
        a.I('v_mul_f32 v%d, s%d, v%d', X0, sNC, X0)
        sel(S2 + 3, S2 + 3, S0 + 1)
        a.I('v_sub_f32 v%d, v%d, v%d', X1, X0, vBias)

        def pkfma(d, hi):
            a.I('v_pk_fma_f32 v[%d:%d], v[%d:%d], s[%d:%d], v[%d:%d] op_sel:[0,0,%d] op_sel_hi:[1,1,%d]', d, d + 1, d, d + 1, sC2, sC2 + 1, X0, X1, hi, hi)
        pkfma(S1, 0)
        pkfma(S2, 1)
        a.I('v_exp_f32 v%d, v%d', S1, S1)
        pkfma(S2 + 2, 1)
        a.I('v_exp_f32 v%d, v%d', S1 + 1, S1 + 1)
        pkadd(S0, v0_, v0_ + 2)
        a.I('v_exp_f32 v%d, v%d', S2, S2)
        pkadd(S0 + 2, v1_, v1_ + 2)
        a.I('v_exp_f32 v%d, v%d', S2 + 1, S2 + 1)
        cvt(Pm + 1, S1, S1 + 1)
        a.I('v_exp_f32 v%d, v%d', S2 + 2, S2 + 2)
        if tv:
            a.I('s_waitcnt vmcnt(%d)' % (vm_mark - tv[1]))
        cvt(VT, S0, S0 + 1)
        a.I('v_exp_f32 v%d, v%d', S2 + 3, S2 + 3)
        cvt(Pm, S2, S2 + 1)
        cvt(VT + 8, S0 + 2, S0 + 3)
        cvt(Pm + 2, S2 + 2, S2 + 3)
        lds_half(11, 0)
        stamp(a, cfg, 5)
        a.I('v_mfma_f32_16x16x32_bf16 v[%d:%d], v[%d:%d], v[%d:%d], 0', LS, LS + 3, Pm, Pm + 3, ON, ON + 3)
        lds_half(11, 1)
        a.I('v_smfmac_f32_16x16x64_bf16 v[%d:%d], v[%d:%d], v[%d:%d], v%d', PV0, PV0 + 3, Pm, Pm + 3, VT, VT + 7, vIdx)
        a.I('v_mov_b32 v%d, v%d', T0, VT)
        a.I('v_smfmac_f32_16x16x64_bf16 v[%d:%d], v[%d:%d], v[%d:%d], v%d', PV1, PV1 + 3, Pm, Pm + 3, VT + 8, VT + 15, vIdx)
        a.I('v_mov_b32 v%d, v%d', T1, vSaveK)
        a.I('v_mov_b32 v%d, v%d', T2, vSaveK + 1)
        a.I('v_mov_b32 v%d, v%d', T3, VT + 8)
        pkadd(X0, LS, LS + 2)
        a.I('v_rcp_f32 v%d, v%d', X0, X0)
        a.I('v_rcp_f32 v%d, v%d', X1, X1)
        pkadd(PV0, PV0, PV0 + 2)
        pkadd(PV1, PV1, PV1 + 2)
        a.I('v_pk_mul_f32 v[%d:%d], v[%d:%d], v[%d:%d]', PV0, PV0 + 1, PV0, PV0 + 1, X0, X1)
        a.I('v_pk_mul_f32 v[%d:%d], v[%d:%d], v[%d:%d]', PV1, PV1 + 1, PV1, PV1 + 1, X0, X1)
        cvt(S0, PV0, PV1)
        cvt(S0 + 1, PV0 + 1, PV1 + 1)
        wo = a.I('ds_write2_b32 v%d, v%d, v%d offset0:0 offset1:4', vX2w, S0, S0 + 1)
        zero(MEM, 16)
        a.wait(wo)
        a.I('s_barrier')
        OF = acc(4)
        of0 = a.I('ds_read_b128 v[%d:%d], v%d offset:%d', OF, OF + 3, vL16, LX2)
        of1 = a.I('ds_read_b128 v[%d:%d], v%d offset:%d', OF + 4, OF + 7, vL16, LX2 + 1024)
        zero(MEM + 16, 16)
        SEL, RD = ACC + 8, ACC + 12
        stamp(a, cfg, 6)

        def wt(b, t):
            return MEM + 16 * b + 4 * t

        def W(n):
            key = WO_ORDER[n]
            _, b, t, ks = key
            a.I('v_smfmac_f32_16x16x64_bf16 v[%d:%d], v[%d:%d], %s, v%d', wt(b, t), wt(b, t) + 3, OF + 4 * ks, OF + 4 * ks + 3, breg(key), vIdx)

        def ha(b, t, h):
            D = wt(b, t) + h
            add(D, D, D + 2)

        def hp(b, t):
            D = wt(b, t)
            pkadd(D, D, D + 2)

        G = [ACC, ACC + 4]

        def pk(b, h, tok):
            cvt(G[b] + 2 * tok + h, wt(b, 2 * h) + tok, wt(b, 2 * h + 1) + tok)

        def send(b):
            a.I('buffer_store_dwordx4 v[%d:%d], v%d, %s, s%d offen%s', G[b], G[b] + 3, vInSt, WS, sIn + b, stf)

        def tag(b):
            a.I('v_bfi_b32 v%d, 1, s%d, v%d', G[b], sTag, G[b])

        def selgen(k):
            if k == 0:
                a.I('v_mov_b32 v%d, 0x3f80', RD)
            elif k == 1:
                a.I('v_cndmask_b32 v%d, v%d, 1.0, s[%d:%d]', RD, RD, sSel + 4, sSel + 5)
            else:
                a.I('v_cndmask_b32 v%d, 0, v%d, s[%d:%d]', SEL + k - 2, RD, sSel + 2 * (k % 2), sSel + 2 * (k % 2) + 1)

        def rload(i):
            return a.I('buffer_load_dwordx4 v[%d:%d], v%d, %s, s%d offen offset:%d sc1', VT + 4 * i, VT + 4 * i + 3, vL16, WS, sInLd, i * 1024)

        lt = {}
        a.wait(of0)
        W(0); lds_half(12, 0); a.wait(of1)
        W(1); lt[12] = lds_half(12, 1)
        W(2); lds_half(13, 0)
        W(3); lt[13] = lds_half(13, 1)
        W(4); lds_half(14, 0); ha(0, 0, 0)
        W(5); lt[14] = lds_half(14, 1); ha(0, 0, 1)
        W(6); lds_half(15, 0); ha(0, 1, 0)
        W(7); lt[15] = lds_half(15, 1); ha(0, 1, 1)
        pk(0, 0, 0); pk(0, 0, 1)
        tag(0)
        hp(0, 2)
        lds_half(16, 0)
        lt[16] = lds_half(16, 1)
        hp(0, 3)
        pk(0, 1, 0); pk(0, 1, 1)
        send(0)
        W(8); lds_half(17, 0)
        W(9); lt[17] = lds_half(17, 1); a.wait(lt[13])
        W(10)
        a.I('s_mov_b32 s%d, s%d', sVmPrev, sVm)
        a.I('s_add_u32 s%d, s%d, 131072', sVm, sVm)
        a.I('s_mov_b32 s%d, 0', sSpin)
        W(11); a.wait(lt[15])
        a.I('s_add_u32 s%d, s%d, 1', sStep, sStep)
        W(12); lds_half(0, 0); ha(1, 0, 0)
        W(13); a.wait(lt[17]); ha(1, 0, 1)
        W(14); lds_half(0, 1); ha(1, 1, 0)
        W(15); lds_half(1, 0); ha(1, 1, 1)
        pk(1, 0, 0); pk(1, 0, 1)
        tag(1)
        hp(1, 2)
        lds_half(1, 1)
        a.I('s_cmp_ge_u32 s%d, 2', S_WAVE)
        hp(1, 3)
        pk(1, 1, 0); pk(1, 1, 1)
        send(1)
        stamp(a, cfg, 7)
        U0, U1, U2, U3 = ACC + 16, ACC + 17, ACC + 18, ACC + 19
        npre = cfg.get('npre', 3)
        a.I('s_cbranch_scc1 ' + PFX + 'late')
        backoff(cfg.get('d0', 0) * 32)
        rload(0); rload(1)
        a.label(PFX + 'late')
        for j in range(2, 1 + npre):
            lds_set(j)
        for k in range(6):
            selgen(k)
        zero(RD, 4)
        a.I('s_cbranch_scc0 ' + PFX + 'early')
        backoff(cfg.get('d1', 0) * 32)
        rload(0); rload(1)
        a.label(PFX + 'early')
        for j in range(1 + npre, 6):
            lds_set(j)
        zero(ACC + 20, 4)
        zero(ACC, 8)
        a.I('v_mov_b32 v%d, -1', U2)
        a.I('v_mov_b32 v%d, -1', U3)
        DP = ' row_mask:0xf bank_mask:0xf'
        Z = VT + 8
        dbl = cfg.get('dbl1', 0)
        R2 = MEM + 8

        def rl(R):
            for i in range(2):
                a.I('buffer_load_dwordx4 v[%d:%d], v%d, %s, s%d offen offset:%d sc1', R + 4 * i, R + 4 * i + 3, vL16, WS, sInLd, i * 1024)

        def red1(R, bad):
            a.I('v_smfmac_f32_16x16x64_bf16 v[%d:%d], v[%d:%d], v[%d:%d], v%d', RD, RD + 3, SEL, SEL + 3, R, R + 7, vIdx)
            a.I('v_bitop3_b32 v%d, v%d, v%d, s%d bitop3:0x7e', U0, R, R + 4, sTag)
            a.I('v_and_b32 v%d, 1, v%d', U0, U0)
            a.I('v_cmp_ne_u32 vcc, 0, v%d', U0)
            for k in range(4):
                a.I('v_add_f32_dpp v%d, v%d, v%d row_ror:4' + DP, Z + k, RD + k, RD + k)
            a.I('s_cbranch_vccnz ' + bad)
        if dbl:
            backoff(cfg.get('rgap', 2) * 32)
            rl(R2)
            a.I('s_waitcnt vmcnt(2) lgkmcnt(0)')
            a.label(PFX + 'chk1')
            red1(VT, PFX + 'slow1')
            a.label(PFX + 'ok1')
        else:
            a.I('s_waitcnt vmcnt(0) lgkmcnt(0)')
            a.label(PFX + 'chk1')
            red1(VT, PFX + 'slow1')
        for k in range(4):
            a.I('v_add_f32_dpp v%d, v%d, v%d row_ror:8' + DP, Z + 4 + k, Z + k, Z + k)
        stamp(a, cfg, 8)
        a.I('s_mov_b64 exec, 0x000f000f')
        a.I('v_cvt_pk_bf16_f32 v%d, v%d, v%d', U0, Z + 4, Z + 5)
        a.I('v_cvt_pk_bf16_f32 v%d, v%d, v%d', U1, Z + 6, Z + 7)
        a.I('v_min_u32 v%d, -2, v%d', U0, U0)
        a.I('buffer_store_dwordx2 v[%d:%d], v%d, %s, s%d offen%s', U0, U1, vMxSt, WS, sMxWr, stf)
        a.I('buffer_store_dwordx2 v[%d:%d], v%d, %s, s%d offen%s', U2, U3, vMxSt, WS, sMxRst, stf)
        a.I('s_mov_b64 exec, -1')
        stamp(a, cfg, 9)
        a.I('s_add_u32 s%d, s%d, s%d', sRetry, sRetry, sSpin)
        a.I('s_mov_b32 s%d, 0', sSpin)
        zero(ACC + 8, 12)
        backoff(cfg.get('d2', 0) * 32)
        if cfg.get('b3'):
            a.I('s_barrier')
        a.I('s_branch ' + PFX + 'loop')

        a.label(PFX + 'slow1')
        rload(0); rload(1)
        spin()
        zero(RD, 4)
        if dbl:
            a.I('s_waitcnt vmcnt(2)')
            red1(R2, PFX + 'slow2')
            a.I('s_branch ' + PFX + 'ok1')
            a.label(PFX + 'slow2')
            rl(R2)
            spin()
            zero(RD, 4)
            a.I('s_waitcnt vmcnt(2)')
        else:
            a.I('s_waitcnt vmcnt(0)')
        a.I('s_branch ' + PFX + 'chk1')

        if cfg.get('kvflags'):
            a.label(PFX + 'kvwait')
            kv_load()
            spin()
            a.I('s_waitcnt vmcnt(0)')
            a.I('v_cmp_eq_u32 vcc, 0, v%d', vDummy)
            a.I('s_nop 1')
            a.I('s_and_b32 s%d, vcc_lo, 3', sT)
            a.I('s_cbranch_scc1 ' + PFX + 'kvwait')
            a.I('s_branch ' + PFX + 'kvok')

        a.label(PFX + 'done')
        a.c('last segment: only k and v of the memory rows are needed')
        a.I('buffer_store_dwordx4 v[%d:%d], v%d, %s, s%d offen sc1', T0, T0 + 3, vL16, WS, sVmPrev)
        a.I('s_waitcnt lgkmcnt(0)')
        for kp in (1, 2, 3, 5, 6, 7):
            M('k', 0, kp); M('k', 1, kp); M('v', 0, kp); M('v', 1, kp)
        L = STG
        pkadd(L, k0, k0 + 2)
        pkadd(L + 2, k1, k1 + 2)
        pkadd(L + 4, v0_, v0_ + 2)
        pkadd(L + 6, v1_, v1_ + 2)
        cvt(L + 9, L, L + 2)
        cvt(L + 10, L + 1, L + 3)
        cvt(L + 8, L + 4, L + 5)
        cvt(L + 11, L + 6, L + 7)
        a.I('buffer_store_dwordx4 v[%d:%d], v%d, %s, s%d offen sc1', L + 8, L + 11, vL16, WS, sVm)
        a.I('s_waitcnt vmcnt(0)')
        if cfg.get('dbgt'):
            bulk.dbg_time(a, 10, V=MEM)
        a.I('v_mov_b32 v%d, %d', T1, nsteps)
        a.I('s_mov_b64 exec, 1')
        a.I('buffer_store_dword v%d, v%d, %s, s%d offen sc1', T1, vL16, WS, sFl)
        if cfg.get('stamps'):
            a.I('s_memrealtime s[100:101]')
            a.I('s_waitcnt lgkmcnt(0)')
            a.I('v_mov_b32 v%d, s4', T0)
            if cfg.get('hwid'):
                a.I('s_getreg_b32 s6, hwreg(HW_REG_HW_ID)')
            a.I('v_mov_b32 v%d, s6', T1)
            a.I('v_mov_b32 v%d, s100', T2)
            a.I('v_mov_b32 v%d, s%d', T3, sRetry if cfg.get('cnt') else 3)
            a.I('s_lshl_b32 s%d, s%d, 2', sT, S_ROLE)
            a.I('s_add_u32 s%d, s%d, s%d', sT, sT, S_WAVE)
            a.I('s_lshl_b32 s%d, s%d, 4', sT, sT)
            a.I('s_add_u32 s%d, s%d, 0x%x', sT, sT, WS_DBG + 0x80000)
            a.I('buffer_store_dwordx4 v[%d:%d], v%d, %s, s%d offen', T0, T3, vL16, WS, sT)
        a.I('s_endpgm')
        a.label(PFX + 'fail')
        a.I('s_mov_b64 exec, 1')
        a.I('v_mov_b32 v%d, %d', T2, D_ERR * 4)
        a.I('v_mov_b32 v%d, s%d', T3, sStep)
        a.I('v_or_b32 v%d, 0x40000000, v%d', T3, T3)
        a.I('buffer_store_dword v%d, v%d, s[%d:%d], 0 offen sc1', T3, T2, S_DBG, S_DBG + 3)
        a.I('s_endpgm')

    if cfg.get('both_modes'):
        a.c('mode: plain stores only if all 32 recurrence workgroups sit on the chosen XCD')
        a.I('s_cmp_lg_u32 s%d, 0', sMode)
        a.I('s_cbranch_scc1 R_safe')
        rest('R_', '')
        a.label('R_safe')
        rest('RS_', ' sc1')
    else:
        rest('R_', stf)
    a.label('R_dwait')
    dbg_load()
    gspin()
    a.I('s_waitcnt vmcnt(0)')
    a.I('s_branch R_dchk')
```

```python
import sys
from asmlib import *
from common import *
import rec, bulk
from bulk import sT, WS, DBG

LDS_TK = 14336


def ticket(a, dword, sdst, pre=None):
    lab = a.newlabel('TK')
    a.I('v_mov_b32 v253, %d', LDS_TK)
    a.I('s_cmp_lg_u32 s%d, 0', S_WAVE)
    a.I('s_cbranch_scc1 %s', lab)
    a.I('s_mov_b64 exec, 1')
    a.I('v_mov_b32 v251, 1')
    a.I('v_mov_b32 v252, %d', dword * 4)
    if pre is not None:
        sk = a.newlabel('TKs')
        a.I('v_mov_b32 v251, 32')
        a.I('s_cmp_lt_u32 s%d, 256', pre)
        a.I('s_cbranch_scc1 %s', sk)
        a.I('v_mov_b32 v251, 1')
    a.I('buffer_atomic_add v251, v252, %s, 0 offen sc0', DBG)
    a.I('s_waitcnt vmcnt(0)')
    if pre is not None:
        a.label(sk)
    a.I('ds_write_b32 v253, v251')
    a.I('s_waitcnt lgkmcnt(0)')
    a.I('s_mov_b64 exec, -1')
    a.label(lab)
    a.I('s_barrier')
    a.I('ds_read_b32 v251, v253')
    a.I('s_waitcnt lgkmcnt(0)')
    a.I('v_readfirstlane_b32 s%d, v251', sdst)
    a.I('s_barrier')


def dbg_add(a, dword):
    lab = a.newlabel('DA')
    a.I('s_cmp_lg_u32 s%d, 0', S_WAVE)
    a.I('s_cbranch_scc1 %s', lab)
    a.I('s_mov_b64 exec, 1')
    a.I('v_mov_b32 v251, 1')
    a.I('v_mov_b32 v252, %d', dword * 4)
    a.I('buffer_atomic_add v251, v252, %s, 0 offen', DBG)
    a.I('s_waitcnt vmcnt(0)')
    a.I('s_mov_b64 exec, -1')
    a.label(lab)


def build(cfg):
    a = Asm()
    bulk.BST = bool(cfg.get('stamps'))
    bulk.SL1, bulk.SL2 = cfg.get('sl1', 2), cfg.get('sl2', 2)
    a.I('s_cmp_ge_u32 s2, 256')
    a.I('s_cbranch_scc1 K_exit')
    if cfg.get('stamps'):
        a.I('s_memrealtime s[4:5]')
    a.I('s_load_dwordx16 s[32:47], s[0:1], 0')
    a.I('s_load_dwordx8 s[48:55], s[0:1], 64')
    a.I('s_load_dwordx4 s[56:59], s[0:1], 96')
    a.I('s_getreg_b32 s%d, hwreg(HW_REG_XCC_ID)', S_XCC)
    a.I('s_and_b32 s%d, s%d, 15', S_XCC, S_XCC)
    a.I('v_lshrrev_b32 v1, 6, v0')
    a.I('v_readfirstlane_b32 s%d, v1', S_WAVE)
    a.I('s_waitcnt lgkmcnt(0)')
    rec.srd(a, S_WS, P_WS, WS_SIZE)
    rec.srd(a, S_DBG, P_DBG, 256)
    if cfg.get('dbgt'):
        bulk.DBGT = True
        bulk.dbg_time(a, 12, invert=True)
    if cfg.get('codepf', 1):
        a.I('s_getpc_b64 s[4:5]' if not cfg.get('stamps') else 's_getpc_b64 s[6:7]')
        a.label('K_pc')
        pc = 6 if cfg.get('stamps') else 4
        a.I('v_lshlrev_b32 v254, 7, v0')
        for k in range(cfg.get('codekb', 96) // 32):
            a.I('v_min_u32 v255, K_end-K_pc-4, v254')
            a.I('global_load_dword v%d, v255, s[%d:%d]', 240 + k, pc, pc + 1)
            a.I('v_add_u32 v254, 0x8000, v254')
    a.I('s_cmp_lg_u32 s%d, %d', S_XCC, cfg.get('xcd', 0))
    a.I('s_cbranch_scc1 K_bulk_t')
    ticket(a, D_TICK_REC, S_ROLE)
    a.I('s_cmp_lt_u32 s%d, 32', S_ROLE)
    a.I('s_cbranch_scc1 K_rec')
    a.label('K_bulk_t')
    ticket(a, D_TICK_A, S_ROLE)
    bulk.bstamp(a, 0)
    a.I('s_sub_u32 s%d, s%d, 128', sT + 1, S_ROLE)
    a.I('s_cmp_ge_u32 s%d, %d', sT + 1, NZERO)
    a.I('s_cbranch_scc1 K_nz')
    for k in range(4):
        a.I('v_mov_b32 v%d, 0', 240 + k)
    a.I('v_and_b32 v244, 63, v0')
    a.I('v_lshlrev_b32 v244, 4, v244')
    per = FL_SIZE // (4 * NZERO)
    assert per % 1024 == 0
    a.I('s_lshl_b32 s%d, s%d, 2', sT + 1, sT + 1)
    a.I('s_add_u32 s%d, s%d, s%d', sT + 1, sT + 1, S_WAVE)
    a.I('s_mul_i32 s%d, s%d, %d', sT, sT + 1, per)
    a.I('s_add_u32 s%d, s%d, 0x%x', sT, sT, WS_FLAGS)
    for k in range(per // 1024):
        if k and k % 4 == 0:
            a.I('s_add_u32 s%d, s%d, 4096', sT, sT)
        a.I('buffer_store_dwordx4 v[240:243], v244, %s, s%d offen offset:%d sc1', WS, sT, (k % 4) * 1024)
    a.I('s_waitcnt vmcnt(0)')
    a.I('s_barrier')
    dbg_add(a, D_FINIT)
    a.label('K_nz')
    a.I('s_sub_u32 s%d, s%d, 128', sT + 5, S_ROLE)
    a.I('s_cmp_ge_u32 s%d, 96', sT + 5)
    a.I('s_cbranch_scc1 K_a')
    rec.srd(a, S_W, P_X, 2097152)
    a.label('K_ln')
    a.I('s_lshl_b32 s%d, s%d, 14', sT + 6, sT + 5)
    a.I('s_lshl_b32 s%d, s%d, 12', sT, S_WAVE)
    a.I('s_add_u32 s%d, s%d, s%d', sT + 6, sT + 6, sT)
    a.I('s_add_u32 s%d, s%d, 2048', sT + 7, sT + 6)
    t0 = bulk.ln_issue(a, sT + 6, B=200)
    t1 = bulk.ln_issue(a, sT + 7, B=150)
    if cfg.get('wopf', 1):
        rec.srd(a, S_W2, P_WO, 4194304)
        a.I('s_lshl_b32 s%d, s%d, 1', sT + 4, sT + 6)
        for k in range(8):
            if k == 4:
                a.I('s_add_u32 s%d, s%d, 4096', sT + 4, sT + 4)
            a.I('buffer_load_dwordx4 v[%d:%d], v208, s[%d:%d], s%d offen offset:%d', 100 + 4 * k, 103 + 4 * k, S_W2, S_W2 + 3, sT + 4, (k % 4) * 1024)
    bulk.ln_compute(a, t0, sT + 6, B=200)
    bulk.ln_compute(a, t1, sT + 7, B=150)
    bulk.wait_dbg(a, D_FINIT, NZERO)
    a.I('s_barrier')
    lab = a.newlabel('LNF')
    a.I('s_cmp_lg_u32 s%d, 0', S_WAVE)
    a.I('s_cbranch_scc1 %s', lab)
    a.I('s_lshl_b32 s%d, s%d, 2', sT + 1, sT + 5)
    a.I('s_add_u32 s%d, s%d, 0x%x', sT + 1, sT + 1, WS_FLAGS + FL_XN)
    bulk.flag_store(a, sT + 1)
    a.label(lab)
    a.I('s_add_u32 s%d, s%d, 96', sT + 5, sT + 5)
    a.I('s_cmp_lt_u32 s%d, 128', sT + 5)
    a.I('s_cbranch_scc1 K_ln')
    bulk.bstamp(a, 1)
    a.label('K_a')
    bulk.gen_phase_a(a)
    bulk.wait_dbg(a, D_FINIT, NZERO)
    a.I('s_mov_b32 s%d, 0', bulk.sSpin)
    a.I('v_mov_b32 v250, 0')
    a.label('K_arr')
    a.I('buffer_load_dword v251, v250, %s, 0 offen offset:%d sc1', DBG, D_TICK_REC * 4)
    a.I('buffer_load_dword v252, v250, %s, 0 offen offset:%d sc1', DBG, D_TICK_A * 4)
    bulk.spin(a)
    a.I('s_waitcnt vmcnt(0)')
    a.I('v_readfirstlane_b32 s%d, v251', sT)
    a.I('v_readfirstlane_b32 s%d, v252', sT + 1)
    a.I('s_cmp_ge_u32 s%d, 32', sT)
    a.I('s_cbranch_scc1 K_arr2')
    a.I('s_add_u32 s%d, s%d, s%d', sT, sT, sT + 1)
    a.I('s_cmp_lt_u32 s%d, 256', sT)
    a.I('s_cbranch_scc1 K_arr')
    a.label('K_arr2')
    ticket(a, D_TICK_REC, S_ROLE, pre=sT)
    a.I('s_cmp_ge_u32 s%d, 32', S_ROLE)
    a.I('s_cbranch_scc1 K_b')
    dbg_add(a, D_CNT_OTH)
    a.I('s_branch K_rec')
    a.label('K_b')
    ticket(a, D_TICK_B, S_ROLE)
    a.I('s_cmp_lt_u32 s%d, %d', S_ROLE, bulk.NT1)
    a.I('s_cbranch_scc1 K_t1')
    a.I('s_sub_u32 s%d, s%d, %d', S_ROLE, S_ROLE, bulk.NT1)
    a.I('s_cmp_ge_u32 s%d, 128', S_ROLE)
    a.I('s_cbranch_scc1 K_exit')
    bulk.gen_t2(a)
    a.label('K_t1')
    bulk.gen_t1(a)
    a.label('B_fail')
    a.I('s_mov_b64 exec, 1')
    a.I('v_mov_b32 v252, %d', (D_ERR + 2) * 4)
    a.I('v_mov_b32 v251, s%d', S_ROLE)
    a.I('v_or_b32 v251, 0x20000000, v251')
    a.I('buffer_store_dword v251, v252, %s, 0 offen sc1', DBG)
    a.label('K_exit')
    a.I('s_endpgm')
    a.label('K_rec')
    rec.gen_rec(a, cfg)
    a.label('K_end')
    errs = a.verify_edges()
    for e in errs:
        print('HAZARD', e, file=sys.stderr)
    k = KNAME + '_kernel'
    ref = open('cdna_kernels/%s.s.ref' % KNAME).read().split('\n')
    hdr = '\n'.join(l for l in ref[:17] if l.startswith(';') and '@launch' not in l) + '\n'
    hdr += '; @launch grid=(256,1,1) block=(256,1,1) lds=163840\n.amdgcn_target "amdgcn-amd-amdhsa--gfx950"\n.text\n.globl %s\n.p2align 8\n.type %s,@function\n%s:\n' % (k, k, k)
    ftr = '''.section .rodata,"a"
.p2align 6
.amdhsa_kernel %s
  .amdhsa_next_free_vgpr 512
  .amdhsa_next_free_sgpr 102
  .amdhsa_accum_offset 256
  .amdhsa_group_segment_fixed_size 0
  .amdhsa_kernarg_size 112
  .amdhsa_user_sgpr_count 2
  .amdhsa_user_sgpr_kernarg_segment_ptr 1
  .amdhsa_system_sgpr_workgroup_id_x 1
  .amdhsa_float_denorm_mode_32 3
.end_amdhsa_kernel
''' % k
    return hdr + a.text() + ftr


if __name__ == '__main__':
    cfg = dict(fast=True, kvflags=1, both_modes=1, npre=5, d0=4, d1=5, d2=2, pgap=3, b3=1, warm128=1, pubpos=0, dbl1=1, rgap=3, codepf=0, wnt=1)
    for arg in sys.argv[2:]:
        k, v = arg.split('=')
        cfg[k] = int(v)
    open(sys.argv[1], 'w').write(build(cfg))
```

```python
import struct
from asmlib import *
from common import *

LKX, LX1, LX2, LMISC, LW = 0, 8192, 13312, 14336, 16384
GS, KS = 256, 1024
LM = 8192
LWSTRIDE = 18 * 2048

vM0, vIdx, vBias, vL16, vLW, vInSt, vM1, vMxSt = 0, 1, 2, 3, 4, 5, 6, 7
vVld, vKxSrc, vX1w, vX1rq, vX1rk, vX2w, vM2, vM3 = 8, 9, 10, 11, 12, 13, 14, 15
vWarm, vDummy, vSaveV, vT0 = 16, 17, 18, 20
MEM, ACC, VT, STG, WV = 24, 56, 80, 96, 144

sStep, sTag, sMxRd = 64, 65, 66
sRing = 88
sMxWr, sMxRst = 88, 90
sW10, sStampAddr = 68, 69
sRetry = 67
sIn = 70
sInLd, sInLd2 = 72, 73
sMxW = 74
sKx, sV, sKm, sVm, sVmPrev = 75, 76, 77, 78, 79
sHalf = 80
sC = 82
sSpin = 83
sT = 84
sM0a, sM0b = 92, 93
sFl = 94
sPermLo, sPermHi = 95, 96
sWarm = 97
sMxRd2 = 98
sKvf, sKvfMax = 73, 77
sPiece = 99
sMode = 63
sC2, sNC = 30, 82
sSel = 24


def f32bits(x):
    return struct.unpack('<I', struct.pack('<f', x))[0]


def mem(k):
    return MEM + 4 * k


def acc(i):
    return ACC + 4 * i


def slot(j):
    return STG + 8 * j


WO_ORDER = [('o', b, t, ks) for b in range(2) for t in range(4) for ks in range(2)]
WO_ORDER[1], WO_ORDER[2] = WO_ORDER[2], WO_ORDER[1]


def placement():
    P = {}
    lds = [('q', 0, 0), ('q', 1, 0), ('k', 0, 0), ('k', 1, 0), ('v', 0, 0), ('v', 1, 0)]
    lds += WO_ORDER[0:6] + WO_ORDER[10:16]
    for i, k in enumerate(lds):
        P[k] = ('l', i)
    rest = []
    for X in 'qkv':
        for kp in range(8):
            for t in range(2):
                if (X, t, kp) not in P:
                    rest.append((X, t, kp))
    rest += WO_ORDER[6:10]
    assert len(rest) == 46
    for n, k in enumerate(rest):
        P[k] = ('v', WV + 8 * n) if n < 14 else ('a', 8 * (n - 14))
    return P


PL = placement()


def breg(key):
    kind, r = PL[key]
    if kind == 'v':
        return vr(r, 8)
    if kind == 'a':
        return ar(r, 8)
    return vr(slot(r % 6), 8)


def d0_instr(m):
    return 32 * (m // 4) + 8 * (m % 2) + 2 * ((m % 4) // 2)


def srd(a, s, ptr, size):
    a.I('s_mov_b32 s%d, s%d', s, ptr)
    a.I('s_and_b32 s%d, s%d, 0xffff', s + 1, ptr + 1)
    a.I('s_mov_b32 s%d, 0x%x', s + 2, size)
    a.I('s_mov_b32 s%d, 0x20000', s + 3)


def stamp(a, cfg, idx):
    if not cfg.get('stamps'):
        return
    if cfg['stamps'] >= 2 and idx != 0:
        return
    if cfg['stamps'] == 4:
        return
    a.I('%s s[%d:%d]', 's_memrealtime' if cfg.get('rt') else 's_memtime', 32 + 2 * idx, 33 + 2 * idx)


def gen_rec(a, cfg):
    if cfg.get('stamps') == 3:
        orig_emit = a.emit
        cnt = dict(n=0, on=False)

        def emit(line):
            if line.startswith('R_goA:'):
                cnt['on'] = True
            if cnt['on'] and (line.startswith('v_smfmac') or line.startswith('v_mfma')):
                k = cnt['n'] - cfg['st0']
                if cnt['n'] >= 12 and k >= 0 and k % cfg['stp'] == 0 and k // cfg['stp'] < 9:
                    orig_emit('s_memtime s[%d:%d]' % (34 + 2 * (k // cfg['stp']), 35 + 2 * (k // cfg['stp'])))
                cnt['n'] += 1
            return orig_emit(line)
        a.emit = emit
    fast = cfg.get('fast', True)
    stf = '' if fast else ' sc1'
    nsteps = cfg.get('nsteps', 64)
    T0, T1, T2, T3 = vT0, vT0 + 1, vT0 + 2, vT0 + 3
    WS = 's[%d:%d]' % (S_WS, S_WS + 3)
    vLane = VT + 15
    vN, vG = T0, T1
    a.c('================ recurrence role: s%d = head ================' % S_ROLE)
    if cfg.get('hxor'):
        a.I('s_xor_b32 s%d, s%d, %d', S_ROLE, S_ROLE, cfg['hxor'])
    a.I('v_and_b32 v%d, 63, v0', vLane)
    a.I('v_lshlrev_b32 v%d, 4, v%d', vL16, vLane)
    a.I('v_and_b32 v%d, 15, v%d', vN, vLane)
    a.I('v_lshrrev_b32 v%d, 4, v%d', vG, vLane)
    a.I('s_mov_b32 s%d, 0xcccccccc', sHalf)
    a.I('s_mov_b32 s%d, 0xcccccccc', sHalf + 1)
    a.I('v_mov_b32 v%d, 0x4444', vIdx)
    a.I('v_mov_b32 v%d, 0xeeee', T2)
    a.I('v_cndmask_b32 v%d, v%d, v%d, s[%d:%d]', vIdx, vIdx, T2, sHalf, sHalf + 1)
    a.I('s_mov_b32 s%d, 0', sT)
    a.I('s_mov_b32 s%d, 0x33333333', sT + 1)
    a.I('v_mov_b32 v%d, 0', vBias)
    a.I('v_mov_b32 v%d, 0x%x', T2, f32bits(3.0e38))
    a.I('v_cndmask_b32 v%d, v%d, v%d, s[%d:%d]', vBias, vBias, T2, sT, sT + 1)
    a.I('s_mov_b32 s%d, 0x%x', sC2, f32bits(128 ** -0.5 * 1.4426950408889634))
    a.I('s_mov_b32 s%d, 0x%x', sC2 + 1, f32bits(128 ** -0.5 * 1.4426950408889634))
    a.I('s_mov_b32 s%d, 0x%x', sNC, f32bits(-128 ** -0.5 * 1.4426950408889634))
    a.I('s_mov_b32 s%d, 0x05040100', sPermLo)
    a.I('s_mov_b32 s%d, 0x07060302', sPermHi)
    for k, m in enumerate((0x000f000f, 0x00f000f0, 0xaaaaaaaa)):
        a.I('s_mov_b32 s%d, 0x%x', sSel + 2 * k, m)
        a.I('s_mov_b32 s%d, 0x%x', sSel + 2 * k + 1, m)
    a.I('s_mul_i32 s%d, s%d, %d', sT, S_WAVE, LWSTRIDE)
    a.I('s_add_u32 s%d, s%d, %d', sT, sT, LW)
    a.I('v_add_u32 v%d, s%d, v%d', vLW, sT, vL16)
    a.I('s_lshl_b32 s%d, s%d, 10', sT, S_WAVE)
    a.I('s_add_u32 s%d, s%d, 0x%x', sMxW, sT, WS_MEMX)
    a.I('s_add_u32 s%d, s%d, %d', sT, sT, LM)
    a.I('v_add_u32 v%d, s%d, v%d', vM0, sT, vL16)
    a.I('v_xor_b32 v%d, 1024, v%d', vM1, vM0)
    a.I('v_xor_b32 v%d, 2048, v%d', vM2, vM0)
    a.I('v_xor_b32 v%d, 3072, v%d', vM3, vM0)
    a.I('v_lshlrev_b32 v%d, 13, v%d', vInSt, vG)
    a.I('v_lshrrev_b32 v%d, 2, v%d', T2, vN)
    a.I('v_lshl_add_u32 v%d, v%d, 11, v%d', vInSt, T2, vInSt)
    a.I('v_and_b32 v%d, 3, v%d', T2, vN)
    a.I('v_lshl_add_u32 v%d, v%d, 4, v%d', vInSt, T2, vInSt)
    a.I('s_lshl_b32 s%d, s%d, 15', sT, S_WAVE)
    a.I('s_lshl_b32 s%d, s%d, 6', sT + 1, S_ROLE)
    a.I('s_add_u32 s%d, s%d, s%d', sT, sT, sT + 1)
    a.I('s_add_u32 s%d, s%d, 0x%x', sIn, sT, WS_INBOX)
    a.I('s_add_u32 s%d, s%d, 0x%x', sIn + 1, sT, WS_INBOX + 131072)
    sPi = sT + 4
    a.I('s_lshl_b32 s%d, s%d, 1', sPi, S_ROLE)
    a.I('s_and_b32 s%d, s%d, 1', sT, S_WAVE)
    a.I('s_add_u32 s%d, s%d, s%d', sPi, sPi, sT)
    a.I('s_lshr_b32 s%d, s%d, 1', sT, S_WAVE)
    a.I('s_lshl_b32 s%d, s%d, 6', sT, sT)
    a.I('s_add_u32 s%d, s%d, s%d', sPi, sPi, sT)
    a.I('s_mov_b32 s%d, s%d', sPiece, sPi)
    a.I('s_lshl_b32 s%d, s%d, 11', sT, sPi)
    a.I('s_add_u32 s%d, s%d, 0x%x', sInLd, sT, WS_INBOX)
    a.I('s_lshr_b32 s%d, s%d, 4', sT, sPi)
    a.I('s_lshl_b32 s%d, s%d, 10', sT, sT)
    a.I('s_bfe_u32 s%d, s%d, 0x20002', sT + 1, sPi)
    a.I('s_lshl_b32 s%d, s%d, 6', sT + 1, sT + 1)
    a.I('s_add_u32 s%d, s%d, s%d', sT, sT, sT + 1)
    a.I('s_and_b32 s%d, s%d, 3', sT + 1, sPi)
    a.I('s_lshl_b32 s%d, s%d, 8', sT + 1, sT + 1)
    a.I('s_add_u32 s%d, s%d, s%d', sT, sT, sT + 1)
    a.I('v_and_b32 v%d, 1, v%d', T2, vG)
    a.I('v_lshlrev_b32 v%d, 4, v%d', vMxSt, T2)
    a.I('v_bfe_u32 v%d, v%d, 1, 1', T2, vN)
    a.I('v_lshl_add_u32 v%d, v%d, 5, v%d', vMxSt, T2, vMxSt)
    a.I('v_and_b32 v%d, 1, v%d', T2, vN)
    a.I('v_lshl_add_u32 v%d, v%d, 3, v%d', vMxSt, T2, vMxSt)
    a.I('v_add_u32 v%d, s%d, v%d', vMxSt, sT, vMxSt)
    a.I('v_and_b32 v%d, 1, v%d', T2, vN)
    a.I('v_lshlrev_b32 v%d, 11, v%d', vVld, T2)
    a.I('v_lshrrev_b32 v%d, 1, v%d', T2, vG)
    a.I('v_lshl_add_u32 v%d, v%d, 8, v%d', vVld, T2, vVld)
    a.I('v_lshrrev_b32 v%d, 1, v%d', T2, vN)
    a.I('v_lshl_add_u32 v%d, v%d, 4, v%d', vVld, T2, vVld)
    a.I('v_and_b32 v%d, 1, v%d', T2, vG)
    a.I('v_lshlrev_b32 v%d, 2, v%d', T2, T2)
    a.I('v_sub_u32 v%d, v%d, v%d', vVld, vVld, T2)
    a.I('s_lshr_b32 s%d, s%d, 1', sT, S_WAVE)
    a.I('s_lshl_b32 s%d, s%d, 12', sT, sT)
    a.I('s_and_b32 s%d, s%d, 1', sT + 1, S_WAVE)
    a.I('s_lshl_b32 s%d, s%d, 7', sT + 1, sT + 1)
    a.I('s_add_u32 s%d, s%d, s%d', sT, sT, sT + 1)
    a.I('s_add_u32 s%d, s%d, 4', sT, sT)
    a.I('v_add_u32 v%d, s%d, v%d', vVld, sT, vVld)
    a.I('v_and_b32 v%d, 1, v%d', T2, vG)
    a.I('v_lshlrev_b32 v%d, 10, v%d', vKxSrc, T2)
    a.I('v_lshrrev_b32 v%d, 1, v%d', T2, vG)
    a.I('v_lshl_add_u32 v%d, v%d, 8, v%d', vKxSrc, T2, vKxSrc)
    a.I('v_lshl_add_u32 v%d, v%d, 4, v%d', vKxSrc, vN, vKxSrc)
    a.I('s_lshl_b32 s%d, s%d, 11', sM0a, S_WAVE)
    a.I('v_add_u32 v%d, s%d, v%d', vKxSrc, sM0a, vKxSrc)
    a.I('s_add_u32 s%d, s%d, %d', sM0a, sM0a, LKX)
    a.I('s_add_u32 s%d, s%d, %d', sM0b, sM0a, 1024 - 512)
    a.I('s_mov_b32 s%d, %d', sT + 1, GS)
    a.I('v_lshrrev_b32 v%d, 2, v%d', T2, vN)
    a.I('v_mul_lo_u32 v%d, v%d, s%d', vX1w, T2, sT + 1)
    a.I('v_lshl_add_u32 v%d, v%d, 5, v%d', vX1w, vG, vX1w)
    a.I('v_and_b32 v%d, 3, v%d', T2, vN)
    a.I('v_lshl_add_u32 v%d, v%d, 2, v%d', vX1w, T2, vX1w)
    a.I('s_mul_i32 s%d, s%d, %d', sT, S_WAVE, KS)
    a.I('s_add_u32 s%d, s%d, %d', sT, sT, LX1)
    a.I('v_add_u32 v%d, s%d, v%d', vX1w, sT, vX1w)
    a.I('v_bfe_u32 v%d, v%d, 2, 1', T2, vN)
    a.I('v_mul_u32_u24 v%d, 192, v%d', T2, T2)
    a.I('v_xor_b32 v%d, v%d, v%d', vX1w, T2, vX1w)
    a.I('v_mul_lo_u32 v%d, v%d, s%d', vX1rk, vG, sT + 1)
    a.I('v_lshrrev_b32 v%d, 2, v%d', T2, vN)
    a.I('v_lshlrev_b32 v%d, 5, v%d', T2, T2)
    a.I('v_and_b32 v%d, 1, v%d', T3, vN)
    a.I('v_lshl_add_u32 v%d, v%d, 4, v%d', T2, T3, T2)
    a.I('v_add_u32 v%d, v%d, v%d', vX1rq, vX1rk, T2)
    a.I('v_add_u32 v%d, %d, v%d', vX1rq, LX1, vX1rq)
    a.I('v_and_b32 v%d, 7, v%d', T2, vN)
    a.I('v_lshl_add_u32 v%d, v%d, 4, v%d', vX1rk, T2, vX1rk)
    a.I('v_add_u32 v%d, %d, v%d', vX1rk, LX1 + 128, vX1rk)
    a.I('v_and_b32 v%d, 1, v%d', T2, vG)
    a.I('v_mul_u32_u24 v%d, 192, v%d', T2, T2)
    a.I('v_xor_b32 v%d, v%d, v%d', vX1rq, T2, vX1rq)
    a.I('v_xor_b32 v%d, v%d, v%d', vX1rk, T2, vX1rk)
    a.I('v_lshrrev_b32 v%d, 3, v%d', T2, vN)
    a.I('v_lshlrev_b32 v%d, 8, v%d', vX2w, T2)
    a.I('v_lshl_add_u32 v%d, v%d, 6, v%d', vX2w, vG, vX2w)
    a.I('v_bfe_u32 v%d, v%d, 2, 1', T2, vN)
    a.I('v_lshl_add_u32 v%d, v%d, 5, v%d', vX2w, T2, vX2w)
    a.I('v_and_b32 v%d, 3, v%d', T2, vN)
    a.I('v_lshl_add_u32 v%d, v%d, 2, v%d', vX2w, T2, vX2w)
    a.I('s_lshl_b32 s%d, s%d, 9', sT, S_WAVE)
    a.I('s_add_u32 s%d, s%d, %d', sT, sT, LX2)
    a.I('v_add_u32 v%d, s%d, v%d', vX2w, sT, vX2w)
    if cfg.get('warm128'):
        a.I('v_lshrrev_b32 v%d, 1, v%d', vWarm, vLane)
        a.I('v_lshlrev_b32 v%d, 7, v%d', vWarm, vWarm)
    else:
        a.I('v_lshlrev_b32 v%d, 6, v%d', vWarm, vLane)
    a.I('s_lshl_b32 s%d, s%d, 13', sT, S_ROLE)
    a.I('s_and_b32 s%d, s%d, 1', sT + 1, S_WAVE)
    a.I('s_lshl_b32 s%d, s%d, 12', sT + 1, sT + 1)
    a.I('s_add_u32 s%d, s%d, s%d', sT, sT, sT + 1)
    a.I('s_lshr_b32 s%d, s%d, 1', sT + 1, S_WAVE)
    a.I('s_mul_i32 s%d, s%d, 0x%x', sT + 1, sT + 1, WS_V - WS_K)
    a.I('s_add_u32 s%d, s%d, s%d', sT, sT, sT + 1)
    a.I('v_add_u32 v%d, s%d, v%d', vWarm, sT, vWarm)
    a.I('s_lshl_b32 s%d, s%d, 13', sT, S_ROLE)
    a.I('s_add_u32 s%d, s%d, 0x%x', sKx, sT, WS_K)
    a.I('s_add_u32 s%d, s%d, 0x%x', sV, sT, WS_V - 4)
    a.I('s_lshl_b32 s%d, s%d, 12', sT, S_ROLE)
    a.I('s_lshl_b32 s%d, s%d, 10', sT + 1, S_WAVE)
    a.I('s_add_u32 s%d, s%d, s%d', sT, sT, sT + 1)
    a.I('s_add_u32 s%d, s%d, 0x%x', sStampAddr, sT, WS_VM)
    a.I('s_lshl_b32 s%d, s%d, 9', sT, S_ROLE)
    a.I('s_lshl_b32 s%d, s%d, 7', sT + 1, S_WAVE)
    a.I('s_add_u32 s%d, s%d, s%d', sT, sT, sT + 1)
    a.I('s_add_u32 s%d, s%d, 0x%x', sFl, sT, WS_FLAGS + FL_KM)
    a.I('s_mov_b32 s%d, 0x%x', sWarm, WS_K + 2 * 262144)

    a.c('init exchange buffers')
    for k in range(4):
        a.I('v_mov_b32 v%d, -1', ACC + k)
    for k in range(2):
        a.I('buffer_store_dwordx4 v[%d:%d], v%d, %s, s%d offen offset:%d sc1', ACC, ACC + 3, vL16, WS, sInLd, 1024 * k)
    for k in range(1, 4):
        a.I('s_mov_b32 s%d, 0x%x', sT, WS_MEMX + k * 8192)
        a.I('buffer_store_dwordx2 v[%d:%d], v%d, %s, s%d offen sc1', ACC, ACC + 1, vMxSt, WS, sT)
    srd(a, S_W, P_MEM0, 8192)
    a.I('v_and_b32 v%d, 1, v%d', T2, vG)
    a.I('v_lshlrev_b32 v%d, 10, v%d', T2, T2)
    a.I('v_and_b32 v%d, 3, v%d', T3, vN)
    a.I('v_lshl_add_u32 v%d, v%d, 3, v%d', T2, T3, T2)
    a.I('s_and_b32 s%d, s%d, 3', sT, sPiece)
    a.I('s_lshl_b32 s%d, s%d, 5', sT, sT)
    a.I('v_add_u32 v%d, s%d, v%d', T2, sT, T2)
    a.I('s_bfe_u32 s%d, s%d, 0x20002', sT, sPiece)
    a.I('s_lshl_b32 s%d, s%d, 11', sT, sT)
    a.I('s_lshr_b32 s%d, s%d, 4', sT + 1, sPiece)
    a.I('s_lshl_b32 s%d, s%d, 7', sT + 1, sT + 1)
    a.I('s_add_u32 s%d, s%d, s%d', sT, sT, sT + 1)
    a.I('buffer_load_dwordx2 v[%d:%d], v%d, s[%d:%d], s%d offen', vSaveV, vSaveV + 1, T2, S_W, S_W + 3, sT)

    a.c('weights')
    vRow, vWo, vDs = VT + 13, VT + 14, VT + 12
    GA = [VT + 8, VT + 9, VT + 10, VT + 11]
    a.I('v_lshrrev_b32 v%d, 1, v%d', vRow, vG)
    a.I('v_lshlrev_b32 v%d, 4, v%d', vRow, vRow)
    a.I('v_and_b32 v%d, 1, v%d', vWo, vG)
    a.I('v_lshl_add_u32 v%d, v%d, 2, v%d', vRow, vWo, vRow)
    a.I('v_lshlrev_b32 v%d, 10, v%d', vWo, vRow)
    a.I('v_lshl_add_u32 v%d, v%d, 3, v%d', vWo, vN, vWo)
    a.I('v_lshlrev_b32 v%d, 8, v%d', vRow, vRow)
    a.I('v_lshl_add_u32 v%d, v%d, 2, v%d', vRow, vN, vRow)
    for kp in range(4):
        a.I('s_xor_b32 s%d, s%d, %d', sT, S_WAVE, kp)
        a.I('s_lshl_b32 s%d, s%d, 14', sT, sT)
        a.I('s_lshl_b32 s%d, s%d, 6', sT + 1, S_WAVE)
        a.I('s_add_u32 s%d, s%d, s%d', sT, sT, sT + 1)
        a.I('s_add_u32 s%d, s%d, %d', sT, sT, LW)
        a.I('v_add_u32 v%d, s%d, v%d', GA[kp], sT, vRow)
    a.I('v_lshlrev_b32 v%d, 13, v%d', vDs, vG)
    a.I('v_lshl_add_u32 v%d, v%d, 4, v%d', vDs, vN, vDs)
    sSrc, sDst, sOb = sT + 2, sT + 3, sT + 6
    a.I('s_lshl_b32 s%d, s%d, 8', sSrc, S_ROLE)
    a.I('s_lshl_b32 s%d, s%d, 19', sT, S_WAVE)
    a.I('s_add_u32 s%d, s%d, s%d', sSrc, sSrc, sT)
    a.I('s_lshl_b32 s%d, s%d, 14', sDst, S_WAVE)
    a.I('s_add_u32 s%d, s%d, %d', sDst, sDst, LW)
    a.I('s_lshl_b32 s%d, s%d, 17', sOb, S_ROLE)
    a.I('s_lshl_b32 s%d, s%d, 7', sT, S_WAVE)
    a.I('s_add_u32 s%d, s%d, s%d', sOb, sOb, sT)
    outb = MEM
    utok = {}

    def dma_unit(u):
        sr_ = S_W if (u // 2) % 2 == 0 else S_W2
        if u % 2 == 0:
            srd(a, sr_, (P_WQ, P_WK, P_WV)[u // 2], 4194304)
        for j in range(16):
            a.I('s_add_u32 m0, s%d, %d', sDst, (u % 2) * 65536 + j * 1024)
            a.I('s_add_u32 s%d, s%d, %d', sT, sSrc, ((u % 2) * 256 + 4 * j) * 8192)
            utok[u] = a.I('buffer_load_dwordx4 v%d, s[%d:%d], s%d offen%s lds', vDs, sr_, sr_ + 3, sT, ' nt' if cfg.get('wnt') else '')

    late_lds = []

    def put(key, m0, nm, srcs, hold=False):
        kind, r = PL[key]
        ob = outb + (put.n % 2) * 8
        put.n += 1
        for k, (rh, rl, sel) in enumerate(srcs):
            if kind == 'v':
                dst = r + m0 + k
            elif kind == 'l' and hold:
                dst = slot(r) + m0 + k
            else:
                dst = ob + k
            a.I('v_perm_b32 v%d, v%d, v%d, s%d', dst, rh, rl, sel)
        if kind == 'a':
            for k in range(nm):
                a.I('v_accvgpr_write_b32 a%d, v%d', r + m0 + k, ob + k)
        elif kind == 'l' and hold:
            late_lds.append(r)
        elif kind == 'l':
            for q in range(nm // 4):
                a.I('ds_write_b128 v%d, v[%d:%d] offset:%d', vLW, ob + 4 * q, ob + 4 * q + 3, r * 2048 + ((m0 // 4) + q) * 1024)
    put.n = 0
    gb = [40, 56]

    def gather_unit(u):
        X = 'qkv'[u // 2]
        gt = {}

        def rd(k):
            b = gb[k % 2]
            for m in range(8):
                gt[k] = a.I('ds_read2st64_b32 v[%d:%d], v%d offset0:%d offset1:%d', b + 2 * m, b + 2 * m + 1, GA[k], d0_instr(m), d0_instr(m) + 1)
        rd(0)
        for k in range(4):
            if k + 1 < 4:
                rd(k + 1)
            a.wait(gt[k])
            b = gb[k % 2]
            for t in range(2):
                put((X, t, 4 * (u % 2) + k), 0, 8, [(b + 2 * m + 1, b + 2 * m, sPermLo if t == 0 else sPermHi) for m in range(8)], hold=True)
        for k in range(4):
            a.I('v_xor_b32 v%d, 0x%x, v%d', GA[k], (LW ^ (LW + 65536)) if False else 0, GA[k]) if False else None
        for k in range(4):
            if u % 2 == 0:
                a.I('v_add_u32 v%d, 65536, v%d', GA[k], GA[k])
            else:
                a.I('v_subrev_u32 v%d, 65536, v%d', GA[k], GA[k])

    wgroups = [(ks, b, mh) for b in range(2) for ks in range(2) for mh in range(2)]
    wbufs = [40, 56, 72]
    wtok = {}

    def wissue(gi, bufs):
        ks, b_, mh = wgroups[gi]
        b = bufs[gi % len(bufs)]
        for mm in range(4):
            m = 4 * mh + mm
            for j in range(2):
                row = 64 * ks + d0_instr(m) + j
                a.I('s_add_u32 s%d, s%d, %d', sT, sOb, row * 1024 + 512 * b_)
                r = b + 4 * mm + 2 * j
                wtok[gi] = a.I('buffer_load_dwordx2 v[%d:%d], v%d, s[%d:%d], s%d offen', r, r + 1, vWo, S_W2, S_W2 + 3, sT)

    def wconsume(gi, bufs):
        ks, b_, mh = wgroups[gi]
        b = bufs[gi % len(bufs)]
        a.wait(wtok[gi])
        for t in range(4):
            a.I('s_waitcnt lgkmcnt(1)')
            sel = sPermLo if t % 2 == 0 else sPermHi
            put(('o', b_, t, ks), 4 * mh, 4, [(b + 4 * mm + 2 + t // 2, b + 4 * mm + t // 2, sel) for mm in range(4)])

    dma_unit(0)
    dma_unit(1)
    for u in range(6):
        a.wait(utok[u])
        a.I('s_barrier')
        if u == 0:
            a.I('v_min_u32 v%d, -2, v%d', vSaveV, vSaveV)
            a.I('s_mov_b32 s%d, 0x%x', sT, WS_MEMX)
            a.I('buffer_store_dwordx2 v[%d:%d], v%d, %s, s%d offen sc1', vSaveV, vSaveV + 1, vMxSt, WS, sT)
        if u == 2:
            lab = a.newlabel('R_sig')
            a.I('s_cmp_lg_u32 s%d, 0', S_WAVE)
            a.I('s_cbranch_scc1 %s', lab)
            a.I('s_mov_b64 exec, 1')
            a.I('v_mov_b32 v%d, 1', VT)
            a.I('v_mov_b32 v%d, %d', VT + 1, D_INIT * 4)
            a.I('buffer_atomic_add v%d, v%d, s[%d:%d], 0 offen', VT, VT + 1, S_DBG, S_DBG + 3)
            a.I('s_mov_b64 exec, -1')
            a.label(lab)
            a.vm_n -= 1
        if u == cfg.get('wou', 4):
            srd(a, S_W2, P_WO, 4194304)
            a.I('v_lshlrev_b32 v%d, 7, v%d', VT + 2, vLane)
            a.I('s_lshl_b32 s%d, s%d, 17', sT, S_ROLE)
            a.I('s_lshl_b32 s%d, s%d, 15', sT + 1, S_WAVE)
            a.I('s_add_u32 s%d, s%d, s%d', sT, sT, sT + 1)
            for k in range(4):
                a.I('buffer_load_dword v%d, v%d, s[%d:%d], s%d offen', VT + 3, VT + 2, S_W2, S_W2 + 3, sT)
                a.I('s_add_u32 s%d, s%d, 8192', sT, sT)
        gather_unit(u)
        if cfg.get('stamps') and u == cfg.get('wst', -1):
            a.I('s_memrealtime s[100:101]')
            a.I('s_waitcnt lgkmcnt(0)')
            a.I('s_mov_b32 s3, s100')
        a.I('s_barrier')
        if u + 2 < 6:
            dma_unit(u + 2)
    def gspin():
        a.I('s_add_u32 s%d, s%d, 1', sSpin, sSpin)
        a.I('s_cmp_gt_u32 s%d, 0x100000', sSpin)
        a.I('s_cbranch_scc1 R_fail')

    def dbg_load():
        return a.I('buffer_load_dwordx4 v[%d:%d], v%d, s[%d:%d], 0 offen offset:%d sc1', T0, T3, vSaveV, S_DBG, S_DBG + 3, D_CNT_OTH * 4)

    def kv_load():
        return a.I('buffer_load_dword v%d, v%d, %s, s%d offen sc1', vDummy, vL16, WS, sKvf)
    assert D_INIT == D_CNT_OTH + 1 and D_FINIT == D_CNT_OTH + 3
    a.I('v_mov_b32 v%d, 0', vSaveV)
    a.I('s_mov_b32 s%d, 0', sSpin)
    a.I('s_mov_b32 s%d, 0', sStep)
    dt = dbg_load()
    for gi in range(3):
        wissue(gi, wbufs)
    for r in late_lds:
        for q in range(2):
            a.I('ds_write_b128 v%d, v[%d:%d] offset:%d', vLW, slot(r) + 4 * q, slot(r) + 4 * q + 3, r * 2048 + q * 1024)
    a.I('s_lshr_b32 s%d, s%d, 1', sKvf, S_ROLE)
    a.I('s_lshl_b32 s%d, s%d, 11', sKvf, sKvf)
    a.I('s_add_u32 s%d, s%d, 0x%x', sKvf, sKvf, WS_FLAGS + FL_KV)
    a.I('s_add_u32 s%d, s%d, %d', sKvfMax, sKvf, 63 * 32)
    for gi in range(8):
        wconsume(gi, wbufs)
        if gi + 3 < 8:
            wissue(gi + 3, wbufs)
        if gi == 4:
            a.c('all 32 inits done, flag area zeroed?')
            a.label('R_dchk')
            a.I('v_readfirstlane_b32 s%d, v%d', sT, T1)
            a.I('v_readfirstlane_b32 s%d, v%d', sT + 1, T3)
            a.I('v_readfirstlane_b32 s%d, v%d', sMode, T0)
            a.I('s_cmp_lt_u32 s%d, 32', sT)
            a.I('s_cbranch_scc1 R_dwait')
            if cfg.get('both_modes'):
                a.I('s_cmp_lt_u32 s%d, %d', sT + 1, NZERO)
                a.I('s_cbranch_scc1 R_dwait')
            if cfg.get('pretouch', 1):
                a.I('v_lshlrev_b32 v%d, 1, v%d', T0, vL16)
                a.I('buffer_load_dword v%d, v%d, %s, s%d offen sc1', T1, T0, WS, sInLd)
                a.I('v_lshlrev_b32 v%d, 3, v%d', T0, vL16)
                a.I('s_lshl_b32 s%d, s%d, 13', sT, S_WAVE)
                a.I('s_add_u32 s%d, s%d, 0x%x', sT, sT, WS_MEMX)
                a.I('buffer_load_dword v%d, v%d, %s, s%d offen sc1', T1, T0, WS, sT)
            if cfg.get('kvflags'):
                kv_load()
    if cfg.get('stamps') and 'wst' not in cfg:
        a.I('s_memrealtime s[100:101]')
        a.I('s_waitcnt lgkmcnt(0)')
        a.I('s_mov_b32 s3, s100')
    a.I('s_mov_b32 s%d, s%d', sVm, sStampAddr)
    a.I('s_mov_b32 s%d, s%d', sVmPrev, sStampAddr)
    a.I('s_mov_b32 s%d, 0', sTag)
    a.I('s_mov_b32 s%d, 0', sRetry)
    a.I('s_mov_b32 s%d, s%d', sMxRd, sMxW)
    for k in range(4):
        a.I('s_mov_b32 s%d, 0x%x', sRing + k, WS_MEMX + k * 8192)
    a.I('s_lshl_b32 s%d, s%d, 10', sW10, S_WAVE)
    if cfg.get('kvflags'):
        a.label('R_kvfirst')
        a.I('s_waitcnt vmcnt(0)')
        a.I('v_cmp_eq_u32 vcc, 0, v%d', vDummy)
        a.I('s_nop 1')
        a.I('s_and_b32 s%d, vcc_lo, 15', sT)
        a.I('s_cbranch_scc0 R_kvgo')
        kv_load()
        gspin()
        a.I('s_branch R_kvfirst')
        a.label('R_kvgo')
        if cfg.get('pretouch', 1):
            a.I('v_xor_b32 v%d, 8192, v%d', T0, vWarm)
            for sg in range(2):
                a.I('s_mov_b32 s%d, 0x%x', sT, WS_K + sg * 262144)
                a.I('buffer_load_dword v%d, v%d, %s, s%d offen sc1', vDummy, T0, WS, sT)
                a.I('buffer_load_dword v%d, v%d, %s, s%d offen sc1', vDummy, vWarm, WS, sT)
        a.I('s_add_u32 s%d, s%d, 64', sKvf, sKvf)

    def rest(PFX, stf):
        def load_kx():
            a.I('s_mov_b32 m0, s%d', sM0a)
            a.I('buffer_load_dwordx4 v%d, %s, s%d offen sc1 lds', vKxSrc, WS, sKx)
            a.I('s_mov_b32 m0, s%d', sM0b)
            a.I('buffer_load_dwordx4 v%d, %s, s%d offen offset:512 sc1 lds', vKxSrc, WS, sKx)

        def load_v():
            for t in range(2):
                for hf in range(2):
                    a.I('buffer_load_dwordx4 v[%d:%d], v%d, %s, s%d offen offset:%d sc1', VT + 8 * t + 4 * hf, VT + 8 * t + 4 * hf + 3,
                        vVld, WS, sV, 1024 * t + 512 * hf)

        def backoff(cyc):
            if cfg.get('sleep'):
                if cyc >= 64:
                    a.I('s_sleep %d', cyc // 64)
                if cyc % 64 >= 32:
                    a.I('s_nop 7')
            else:
                n = cyc // 4
                while n > 0:
                    k = min(n, 16)
                    a.I('s_nop %d', k - 1)
                    n -= k

        def lds_half(j, hf):
            sl = j % 6
            return a.I('ds_read_b128 v[%d:%d], v%d offset:%d', slot(sl) + 4 * hf, slot(sl) + 4 * hf + 3, vLW, j * 2048 + 1024 * hf)

        def lds_set(j):
            lds_half(j, 0)
            return lds_half(j, 1)

        def zero(r, n):
            for k in range(0, n, 2):
                a.I('v_mov_b64 v[%d:%d], 0', r + k, r + k + 1)

        def spin():
            a.I('s_add_u32 s%d, s%d, 1', sSpin, sSpin)
            a.I('s_cmp_gt_u32 s%d, 0x100000', sSpin)
            a.I('s_cbranch_scc1 ' + PFX + 'fail')

        a.I('s_waitcnt lgkmcnt(0)')
        a.I('s_barrier')
        load_kx()
        if cfg.get('kvflags'):
            kv_load()
        a.I('s_add_u32 s%d, s%d, 262144', sKx, sKx)
        zero(T0, 4)
        C0, C1 = vSaveV, vSaveV + 1
        zero(ACC, 24)
        a.I('s_mov_b32 s%d, 0', sSpin)

        accidx = {('q', 0): 0, ('q', 1): 1, ('k', 0): 2, ('k', 1): 3, ('v', 0): 4, ('v', 1): 5}

        def M(X, t, kp, src=None):
            d = acc(accidx[(X, t)])
            r = mem(kp) if src is None else src
            a.I('v_smfmac_f32_16x16x64_bf16 v[%d:%d], v[%d:%d], %s, v%d', d, d + 3, r, r + 3, breg((X, t, kp)), vIdx)

        def ldv(i):
            if cfg.get('no_kv'):
                return None
            t, hf = i // 2, i % 2
            return a.I('buffer_load_dwordx4 v[%d:%d], v%d, %s, s%d offen offset:%d sc1', VT + 8 * t + 4 * hf, VT + 8 * t + 4 * hf + 3,
                       vVld, WS, sV, 1024 * t + 512 * hf)

        def poll(r0, r1):
            a.I('buffer_load_dwordx4 v[%d:%d], v%d, %s, s%d offen sc1', r0, r0 + 3, vL16, WS, sMxRd)
            a.I('buffer_load_dwordx4 v[%d:%d], v%d, %s, s%d offen sc1', r1, r1 + 3, vL16, WS, sMxRd2)

        kx, mt = {}, {}

        def rkx(f):
            kx[f] = a.I('ds_read_b128 v[%d:%d], v%d offset:%d', STG + 4 * f, STG + 4 * f + 3, vL16, LKX + f * 1024)

        def rm(k):
            mt[k] = a.I('ds_read_b128 v[%d:%d], v%d offset:%d', mem(k), mem(k) + 3, (vM0, vM1, vM2, vM3)[k & 3], 4096 * (k // 4))

        vSaveK = vSaveV

        def savepub():
            a.I('v_mov_b32 v%d, v%d', T0, VT)
            a.I('v_mov_b32 v%d, v%d', T1, vSaveK)
            a.I('v_mov_b32 v%d, v%d', T2, vSaveK + 1)
            a.I('v_mov_b32 v%d, v%d', T3, VT + 8)

        if cfg.get('stamps'):
            a.I('s_memrealtime s[6:7]')
            a.I('s_waitcnt lgkmcnt(0)')
        if cfg.get('dbgt'):
            import bulk
            bulk.dbg_time(a, 9, V=MEM)
        a.I('s_add_u32 s%d, s%d, 4096', sMxRd2, sMxRd)
        a.c('================ step loop ================')
        a.label(PFX + 'loop')
        stamp(a, cfg, 0)
        PA, PB = (mem(0), mem(4)), (VT, VT + 4)
        light = cfg.get('light', 0)
        a.label(PFX + 'repoll')
        poll(*PA)
        if cfg.get('stamps') and cfg['stamps'] != 4:
            a.I('s_waitcnt lgkmcnt(0)')
            a.I('v_mov_b32 v%d, 0', VT + 12)
            a.I('v_writelane_b32 v%d, s%d, 0', VT + 12, 52)
            for k in range(1, 10):
                a.I('v_writelane_b32 v%d, s%d, %d', VT + 12, 32 + 2 * k, k)
            a.I('v_writelane_b32 v%d, s%d, 10', VT + 12, sRetry)
            a.I('s_mov_b32 s52, s32')
            a.I('s_lshl_b32 s%d, s%d, 6', sT, S_ROLE)
            a.I('s_add_u32 s%d, s%d, s%d', sT, sT, sStep)
            a.I('s_lshl_b32 s%d, s%d, 2', sT, sT)
            a.I('s_add_u32 s%d, s%d, s%d', sT, sT, S_WAVE)
            a.I('s_lshl_b32 s%d, s%d, 6', sT, sT)
            a.I('s_add_u32 s%d, s%d, 0x%x', sStampAddr, sT, WS_DBG)
        else:
            backoff(cfg.get('pgap', 2) * (16 if light else 48))
        if light:
            a.I('buffer_load_dwordx4 v[%d:%d], v%d, %s, s%d offen sc1', VT, VT + 3, vL16, WS, sMxRd2)
        else:
            poll(*PB)

        def head(src, bad, n=2):
            s0, s1 = src
            a.I('s_waitcnt vmcnt(%d)' % n)
            a.I('v_max3_u32 v%d, v%d, v%d, v%d', C0, s0, s0 + 2, s1)
            a.I('v_max_u32 v%d, v%d, v%d', C0, C0, s1 + 2)
            a.I('v_cmp_eq_u32 vcc, -1, v%d', C0)
            a.I('ds_write_b128 v%d, v[%d:%d]', vM0, s0, s0 + 3)
            wA = a.I('ds_write_b128 v%d, v[%d:%d] offset:4096', vM0, s1, s1 + 3)
            M('q', 0, 0, s0)
            M('q', 1, 0, s0)
            a.I('s_cbranch_vccnz %s', bad)
            stamp(a, cfg, 1)
            M('q', 0, 4, s1)
            M('q', 1, 4, s1)
            M('k', 0, 0, s0)
            M('k', 1, 0, s0)
            a.wait(wA)
            a.I('s_barrier')
            rm(1)
            M('k', 0, 4, s1); rm(2)
            M('k', 1, 4, s1); rm(3)
            M('v', 0, 0, s0); rm(5)
            M('v', 1, 0, s0); rm(6)
            M('v', 0, 4, s1); rm(7)
            M('v', 1, 4, s1)
        a.I('s_branch ' + PFX + 'goA')
        if light:
            a.label(PFX + 'badB')
            spin()
            a.I('s_add_u32 s%d, s%d, 0x1000000', sRetry, sRetry)
            a.I('s_nop 2')
            zero(ACC, 8)
            a.I('s_branch ' + PFX + 'repoll')
            a.label(PFX + 'badA')
            a.I('s_add_u32 s%d, s%d, 0x10000', sRetry, sRetry)
            a.I('s_nop 5')
            zero(ACC, 8)
            head((mem(0), VT), PFX + 'badB', 0)
            a.I('s_branch ' + PFX + 'join')
            a.label(PFX + 'goA')
            head(PA, PFX + 'badA', 1)
        else:
            a.label(PFX + 'badA')
            poll(*PA)
            spin()
            a.I('s_add_u32 s%d, s%d, 0x10000', sRetry, sRetry)
            a.I('s_nop 1')
            zero(ACC, 8)
            head(PB, PFX + 'badB')
            a.I('s_branch ' + PFX + 'join')
            a.label(PFX + 'badB')
            poll(*PB)
            a.I('s_add_u32 s%d, s%d, 0x10000', sRetry, sRetry)
            a.I('s_nop 4')
            zero(ACC, 8)
            a.label(PFX + 'goA')
            head(PA, PFX + 'badA')
        a.label(PFX + 'join')
        a.I('s_cmp_eq_u32 s%d, %d', sStep, nsteps - 1)
        a.I('s_cbranch_scc1 ' + PFX + 'done')
        rkx(0)
        a.wait(mt[2])
        M('q', 0, 1); rkx(1)
        M('q', 1, 1); ldv(0)
        M('q', 0, 2); rkx(2)
        M('q', 1, 2); ldv(1); a.wait(mt[5])
        M('q', 0, 3); rkx(3)
        M('q', 1, 3); ldv(2)
        M('q', 0, 5); rkx(4)
        if cfg.get('stamps') and cfg['stamps'] != 4:
            a.I('v_lshrrev_b32 v%d, 2, v%d', C0, vL16)
            a.I('s_mov_b64 exec, 0xffff')
            a.I('buffer_store_dword v%d, v%d, %s, s%d offen', VT + 12, C0, WS, sStampAddr)
            a.I('s_mov_b64 exec, -1')
        M('q', 1, 5); tv = ldv(3); a.wait(mt[7])
        M('q', 0, 6); rkx(5)
        a.I('s_barrier')
        M('q', 1, 6)
        if cfg.get('pubpos', 1) == 0 and not cfg.get('no_pub'):
            a.I('buffer_store_dwordx4 v[%d:%d], v%d, %s, s%d offen sc1', T0, T0 + 3, vL16, WS, sVmPrev)
        M('q', 0, 7); rkx(6)
        a.I('s_sub_u32 s%d, s%d, 1', sT, sStep)
        M('q', 1, 7); rkx(7)
        a.I('s_max_i32 s%d, s%d, 0', sT, sT)
        a.I('v_mov_b32 v%d, s%d', C1, sT)
        stamp(a, cfg, 2)
        q0, q1, k0, k1, v0_, v1_ = [acc(i) for i in range(6)]
        QT = mem(0)

        def add(d, x, y):
            a.I('v_add_f32 v%d, v%d, v%d', d, x, y)

        def cvt(d, x, y):
            a.I('v_cvt_pk_bf16_f32 v%d, v%d, v%d', d, x, y)

        def pkadd(d, x, y):
            a.I('v_pk_add_f32 v[%d:%d], v[%d:%d], v[%d:%d]', d, d + 1, x, x + 1, y, y + 1)

        def sel(d, x, y):
            a.I('v_cndmask_b32 v%d, v%d, v%d, s[%d:%d]', d, x, y, sHalf, sHalf + 1)
        M('k', 0, 1)
        a.I('s_add_u32 s%d, s%d, 262144', sV, sV)
        a.I('s_and_b32 s%d, s%d, 1', sTag, sStep)
        a.I('s_waitcnt vmcnt(%d)' % ((0 if cfg.get('no_kv') else 4) + (0 if cfg.get('no_pub') or cfg.get('pubpos', 1) else 1)))
        M('k', 1, 1)
        a.I('s_mov_b32 s%d, s%d', sT, sRing)
        a.I('s_mov_b32 s%d, s%d', sRing, sRing + 1)
        add(QT, q0, q0 + 2)
        M('k', 0, 2)
        add(QT + 1, q0 + 1, q0 + 3)
        add(QT + 2, q1, q1 + 2)
        add(QT + 3, q1 + 1, q1 + 3)
        cvt(QT, QT, QT + 2)
        cvt(QT + 1, QT + 1, QT + 3)
        wq = a.I('ds_write2_b32 v%d, v%d, v%d offset0:0 offset1:4', vX1w, QT, QT + 1)
        M('k', 1, 2)
        a.I('s_mov_b32 s%d, s%d', sRing + 1, sRing + 2)
        a.I('s_mov_b32 s%d, s%d', sRing + 2, sRing + 3)
        if cfg.get('kvflags'):
            a.I('v_cmp_eq_u32 vcc, 0, v%d', vDummy)
        M('k', 0, 3)
        a.I('s_mov_b32 s%d, s%d', sRing + 3, sT)
        a.I('s_add_u32 s%d, s%d, s%d', sMxRd, sRing, sW10)
        M('k', 1, 3)
        if cfg.get('kvflags'):
            a.I('s_and_b32 s%d, vcc_lo, 3', sT)
            a.I('s_cbranch_scc1 ' + PFX + 'kvwait')
            a.label(PFX + 'kvok')
        M('k', 0, 5)
        if not cfg.get('no_warm'):
            a.I('buffer_load_dword v%d, v%d, %s, s%d offen sc1', vDummy, vWarm, WS, sWarm)
        M('k', 1, 5)
        a.wait(wq)
        a.I('s_barrier')
        qt = {}

        def rq(ks):
            qt[ks] = a.I('ds_read_b128 v[%d:%d], v%d offset:%d', slot(4) + 4 * ks, slot(4) + 4 * ks + 3, vX1rq, ks * KS)
        rq(0)
        M('k', 0, 6); rq(1)
        if cfg.get('kvflags'):
            a.I('s_add_u32 s%d, s%d, 32', sKvf, sKvf)
        M('k', 1, 6); rq(2)
        if cfg.get('kvflags'):
            a.I('s_min_u32 s%d, s%d, s%d', sKvf, sKvf, sKvfMax)
        M('k', 0, 7); rq(3)
        a.I('s_mov_b32 m0, s%d', sM0a)
        M('k', 1, 7)
        a.I('s_add_u32 s%d, s%d, 4096', sMxRd2, sMxRd)
        stamp(a, cfg, 3)
        S0, S1, S2, Pm = acc(0), acc(1), acc(2), acc(3)
        X0, X1 = S1 + 2, S1 + 3
        ON = T0
        PV0, PV1, LS = mem(4), mem(0), mem(1)
        KMR = [STG, STG + 4, STG + 8, STG + 12]

        def SM(D, A, ks):
            a.I('v_mfma_f32_16x16x32_bf16 v[%d:%d], v[%d:%d], v[%d:%d], %s', D, D + 3, A, A + 3,
                slot(4) + 4 * ks, slot(4) + 4 * ks + 3, '0' if ks == 0 else vr(D, 4))
        km = {}

        def rkm(k):
            km[k] = a.I('ds_read_b128 v[%d:%d], v%d offset:%d', KMR[k], KMR[k] + 3, vX1rk, k * KS)
        M('v', 0, 1)
        if not cfg.get('no_kv'):
            a.I('buffer_load_dwordx4 v%d, %s, s%d offen sc1 lds', vKxSrc, WS, sKx)
        a.I('s_mov_b32 m0, s%d', sM0b)
        a.I('v_xor_b32 v%d, 128, v%d', PV0, vX1w)
        M('v', 1, 1)
        a.wait(qt[3])
        add(QT, k0, k0 + 2)
        SM(S0, STG, 0)
        add(QT + 1, k0 + 1, k0 + 3)
        add(QT + 2, k1, k1 + 2)
        SM(S0, STG + 4, 1)
        add(QT + 3, k1 + 1, k1 + 3)
        cvt(vSaveK, QT, QT + 2)
        SM(S0, STG + 8, 2)
        cvt(QT + 1, QT + 1, QT + 3)
        wk = a.I('ds_write2_b32 v%d, v%d, v%d offset0:0 offset1:4', PV0, vSaveK, QT + 1)
        SM(S0, STG + 12, 3)
        if not cfg.get('no_kv'):
            a.I('buffer_load_dwordx4 v%d, %s, s%d offen offset:512 sc1 lds', vKxSrc, WS, sKx)
        a.I('v_mov_b32 v%d, 0', Pm + 3)
        SM(S1, STG + 16, 0)
        a.I('s_mov_b64 exec, 3')
        if cfg.get('kvflags'):
            kv_load()
        if not cfg.get('no_pub') and not cfg.get('no_flag'):
            a.I('buffer_store_dword v%d, v%d, %s, s%d offen sc1', C1, vL16, WS, sFl)
        a.I('s_mov_b64 exec, -1')
        SM(S1, STG + 20, 1)
        if cfg.get('pubpos', 1) == 1 and not cfg.get('no_pub'):
            a.I('buffer_store_dwordx4 v[%d:%d], v%d, %s, s%d offen sc1', T0, T0 + 3, vL16, WS, sVmPrev)
        vm_mark = a.vm_n
        zero(PV0, 4)
        SM(S1, STG + 24, 2)
        a.I('s_add_u32 s%d, s%d, 262144', sKx, sKx)
        a.I('v_mov_b32 v%d, v%d', vSaveK + 1, QT + 1)
        a.I('v_mov_b32 v%d, 0x3f803f80', ON)
        SM(S1, STG + 28, 3)
        a.wait(wk)
        a.I('s_barrier')
        rkm(0)
        M('v', 0, 2); rkm(1)
        a.I('v_max3_f32 v%d, v%d, v%d, v%d', Pm, S0, S0 + 1, S0 + 2)
        M('v', 1, 2); rkm(2)
        a.I('s_add_u32 s%d, s%d, 262144', sWarm, sWarm)
        a.I('v_mov_b32 v%d, 0x3f803f80', ON + 1)
        M('v', 0, 3); rkm(3)
        a.I('v_max3_f32 v%d, v%d, v%d, v%d', Pm, Pm, S0 + 3, S1)
        M('v', 1, 3); lds_half(8, 0)
        a.I('v_max3_f32 v%d, v%d, v%d, v%d', Pm + 1, S1 + 1, S1 + 2, S1 + 3)
        M('v', 0, 5); lds_half(8, 1)
        a.wait(km[1])
        sel(S1, S1, S1 + 2)
        SM(S2, KMR[0], 0); lds_half(9, 0)
        sel(S1 + 1, S1 + 1, S1 + 3)
        a.I('v_max_f32 v%d, v%d, v%d', X0, Pm, Pm + 1)
        SM(S2, KMR[1], 1)
        a.wait(km[3])
        zero(PV1, 4)
        SM(S2, KMR[2], 2); lds_half(9, 1)
        a.I('v_mov_b32 v%d, 0x3f803f80', ON + 2)
        a.I('v_mov_b32 v%d, 0x3f803f80', ON + 3)
        SM(S2, KMR[3], 3); lds_half(6, 0)
        a.I('v_mov_b32 v%d, v%d', X1, X0)
        stamp(a, cfg, 4)
        M('v', 1, 5); lds_half(6, 1)
        a.I('v_permlane32_swap_b32 v%d, v%d', X0, X1)
        M('v', 0, 6); lds_half(7, 0)
        a.I('v_max3_f32 v%d, v%d, v%d, v%d', X0, X0, X1, S2)
        M('v', 1, 6); lds_half(7, 1)
        a.I('v_max3_f32 v%d, v%d, v%d, v%d', X1, S2 + 1, S2 + 2, S2 + 3)
        a.I('v_max_f32 v%d, v%d, v%d', X0, X0, X1)
        a.I('v_mov_b32 v%d, v%d', X1, X0)
        M('v', 0, 7); lds_half(10, 0)
        a.I('v_permlane16_swap_b32 v%d, v%d', X0, X1)
        sel(S2, S2, S0 + 2)
        M('v', 1, 7); lds_half(10, 1)
        a.I('v_max_f32 v%d, v%d, v%d', X0, X0, X1)
        sel(S2 + 1, S2 + 1, S0 + 3)
        a.I('v_mul_f32 v%d, s%d, v%d', X0, sNC, X0)
        sel(S2 + 2, S2 + 2, S0)
        sel(S2 + 3, S2 + 3, S0 + 1)
        a.I('v_sub_f32 v%d, v%d, v%d', X1, X0, vBias)

        def pkfma(d, hi):
            a.I('v_pk_fma_f32 v[%d:%d], v[%d:%d], s[%d:%d], v[%d:%d] op_sel:[0,0,%d] op_sel_hi:[1,1,%d]', d, d + 1, d, d + 1, sC2, sC2 + 1, X0, X1, hi, hi)
        pkfma(S1, 0)
        pkfma(S2, 1)
        a.I('v_exp_f32 v%d, v%d', S1, S1)
        pkfma(S2 + 2, 1)
        a.I('v_exp_f32 v%d, v%d', S1 + 1, S1 + 1)
        pkadd(S0, v0_, v0_ + 2)
        a.I('v_exp_f32 v%d, v%d', S2, S2)
        pkadd(S0 + 2, v1_, v1_ + 2)
        a.I('v_exp_f32 v%d, v%d', S2 + 1, S2 + 1)
        cvt(Pm + 1, S1, S1 + 1)
        a.I('v_exp_f32 v%d, v%d', S2 + 2, S2 + 2)
        if tv:
            a.I('s_waitcnt vmcnt(%d)' % (vm_mark - tv[1]))
        cvt(VT, S0, S0 + 1)
        a.I('v_exp_f32 v%d, v%d', S2 + 3, S2 + 3)
        cvt(Pm, S2, S2 + 1)
        cvt(VT + 8, S0 + 2, S0 + 3)
        cvt(Pm + 2, S2 + 2, S2 + 3)
        lds_half(11, 0)
        stamp(a, cfg, 5)
        a.I('v_mfma_f32_16x16x32_bf16 v[%d:%d], v[%d:%d], v[%d:%d], 0', LS, LS + 3, Pm, Pm + 3, ON, ON + 3)
        lds_half(11, 1)
        a.I('v_smfmac_f32_16x16x64_bf16 v[%d:%d], v[%d:%d], v[%d:%d], v%d', PV0, PV0 + 3, Pm, Pm + 3, VT, VT + 7, vIdx)
        a.I('v_mov_b32 v%d, v%d', T0, VT)
        a.I('v_smfmac_f32_16x16x64_bf16 v[%d:%d], v[%d:%d], v[%d:%d], v%d', PV1, PV1 + 3, Pm, Pm + 3, VT + 8, VT + 15, vIdx)
        a.I('v_mov_b32 v%d, v%d', T1, vSaveK)
        a.I('v_mov_b32 v%d, v%d', T2, vSaveK + 1)
        a.I('v_mov_b32 v%d, v%d', T3, VT + 8)
        pkadd(X0, LS, LS + 2)
        a.I('v_rcp_f32 v%d, v%d', X0, X0)
        a.I('v_rcp_f32 v%d, v%d', X1, X1)
        pkadd(PV0, PV0, PV0 + 2)
        pkadd(PV1, PV1, PV1 + 2)
        a.I('v_pk_mul_f32 v[%d:%d], v[%d:%d], v[%d:%d]', PV0, PV0 + 1, PV0, PV0 + 1, X0, X1)
        a.I('v_pk_mul_f32 v[%d:%d], v[%d:%d], v[%d:%d]', PV1, PV1 + 1, PV1, PV1 + 1, X0, X1)
        cvt(S0, PV0, PV1)
        cvt(S0 + 1, PV0 + 1, PV1 + 1)
        wo = a.I('ds_write2_b32 v%d, v%d, v%d offset0:0 offset1:4', vX2w, S0, S0 + 1)
        zero(MEM, 16)
        a.wait(wo)
        a.I('s_barrier')
        OF = acc(4)
        of0 = a.I('ds_read_b128 v[%d:%d], v%d offset:%d', OF, OF + 3, vL16, LX2)
        of1 = a.I('ds_read_b128 v[%d:%d], v%d offset:%d', OF + 4, OF + 7, vL16, LX2 + 1024)
        zero(MEM + 16, 16)
        SEL, RD = ACC + 8, ACC + 12
        stamp(a, cfg, 6)

        def wt(b, t):
            return MEM + 16 * b + 4 * t

        def W(n):
            key = WO_ORDER[n]
            _, b, t, ks = key
            a.I('v_smfmac_f32_16x16x64_bf16 v[%d:%d], v[%d:%d], %s, v%d', wt(b, t), wt(b, t) + 3, OF + 4 * ks, OF + 4 * ks + 3, breg(key), vIdx)

        def ha(b, t, h):
            D = wt(b, t) + h
            add(D, D, D + 2)

        def hp(b, t):
            D = wt(b, t)
            pkadd(D, D, D + 2)

        G = [ACC, ACC + 4]

        def pk(b, h, tok):
            cvt(G[b] + 2 * tok + h, wt(b, 2 * h) + tok, wt(b, 2 * h + 1) + tok)

        def send(b):
            a.I('buffer_store_dwordx4 v[%d:%d], v%d, %s, s%d offen%s', G[b], G[b] + 3, vInSt, WS, sIn + b, stf)

        def tag(b):
            a.I('v_bfi_b32 v%d, 1, s%d, v%d', G[b], sTag, G[b])

        def selgen(k):
            if k == 0:
                a.I('v_mov_b32 v%d, 0x3f80', RD)
            elif k == 1:
                a.I('v_cndmask_b32 v%d, v%d, 1.0, s[%d:%d]', RD, RD, sSel + 4, sSel + 5)
            else:
                a.I('v_cndmask_b32 v%d, 0, v%d, s[%d:%d]', SEL + k - 2, RD, sSel + 2 * (k % 2), sSel + 2 * (k % 2) + 1)

        def rload(i):
            return a.I('buffer_load_dwordx4 v[%d:%d], v%d, %s, s%d offen offset:%d sc1', VT + 4 * i, VT + 4 * i + 3, vL16, WS, sInLd, i * 1024)

        lt = {}
        a.wait(of0)
        W(0); lds_half(12, 0)
        W(1); a.wait(of1); lt[12] = lds_half(12, 1)
        W(2); lds_half(13, 0)
        W(3); lt[13] = lds_half(13, 1)
        W(4); lds_half(14, 0)
        W(5); lt[14] = lds_half(14, 1); ha(0, 0, 0)
        W(6); lds_half(15, 0); ha(0, 0, 1)
        W(7); lt[15] = lds_half(15, 1); ha(0, 1, 0)
        ha(0, 1, 1)
        pk(0, 0, 0); pk(0, 0, 1)
        tag(0)
        hp(0, 2)
        lds_half(16, 0)
        lt[16] = lds_half(16, 1)
        hp(0, 3)
        pk(0, 1, 0); pk(0, 1, 1)
        send(0)
        W(8); lds_half(17, 0)
        W(9); lt[17] = lds_half(17, 1); a.wait(lt[13])
        W(10)
        a.I('s_mov_b32 s%d, s%d', sVmPrev, sVm)
        a.I('s_add_u32 s%d, s%d, 131072', sVm, sVm)
        a.I('s_mov_b32 s%d, 0', sSpin)
        W(11); a.wait(lt[15])
        a.I('s_add_u32 s%d, s%d, 1', sStep, sStep)
        W(12); lds_half(0, 0); ha(1, 0, 0)
        W(13); a.wait(lt[17]); ha(1, 0, 1)
        W(14); lds_half(0, 1); ha(1, 1, 0)
        W(15); lds_half(1, 0); ha(1, 1, 1)
        pk(1, 0, 0); pk(1, 0, 1)
        tag(1)
        hp(1, 2)
        lds_half(1, 1)
        a.I('s_cmp_ge_u32 s%d, 2', S_WAVE)
        hp(1, 3)
        pk(1, 1, 0); pk(1, 1, 1)
        send(1)
        stamp(a, cfg, 7)
        U0, U1, U2, U3 = ACC + 16, ACC + 17, ACC + 18, ACC + 19
        npre = cfg.get('npre', 3)
        a.I('s_cbranch_scc1 ' + PFX + 'late')
        backoff(cfg.get('d0', 0) * 32)
        rload(0); rload(1)
        a.label(PFX + 'late')
        for j in range(2, 1 + npre):
            lds_set(j)
        for k in range(6):
            selgen(k)
        zero(RD, 4)
        a.I('s_cbranch_scc0 ' + PFX + 'early')
        backoff(cfg.get('d1', 0) * 32)
        rload(0); rload(1)
        a.label(PFX + 'early')
        for j in range(1 + npre, 6):
            lds_set(j)
        zero(ACC + 20, 4)
        zero(ACC, 8)
        a.I('v_mov_b32 v%d, -1', U2)
        a.I('v_mov_b32 v%d, -1', U3)
        DP = ' row_mask:0xf bank_mask:0xf'
        Z = VT + 8
        dbl = cfg.get('dbl1', 0)
        R2 = MEM + 8

        def rl(R):
            for i in range(2):
                a.I('buffer_load_dwordx4 v[%d:%d], v%d, %s, s%d offen offset:%d sc1', R + 4 * i, R + 4 * i + 3, vL16, WS, sInLd, i * 1024)

        def red1(R, bad):
            a.I('v_smfmac_f32_16x16x64_bf16 v[%d:%d], v[%d:%d], v[%d:%d], v%d', RD, RD + 3, SEL, SEL + 3, R, R + 7, vIdx)
            a.I('v_bitop3_b32 v%d, v%d, v%d, s%d bitop3:0x7e', U0, R, R + 4, sTag)
            a.I('v_and_b32 v%d, 1, v%d', U0, U0)
            a.I('v_cmp_ne_u32 vcc, 0, v%d', U0)
            for k in range(4):
                a.I('v_add_f32_dpp v%d, v%d, v%d row_ror:4' + DP, Z + k, RD + k, RD + k)
            a.I('s_cbranch_vccnz ' + bad)
        if dbl:
            backoff(cfg.get('rgap', 2) * 32)
            rl(R2)
            a.I('s_waitcnt vmcnt(2) lgkmcnt(0)')
            a.label(PFX + 'chk1')
            red1(VT, PFX + 'slow1')
            a.label(PFX + 'ok1')
        else:
            a.I('s_waitcnt vmcnt(0) lgkmcnt(0)')
            a.label(PFX + 'chk1')
            red1(VT, PFX + 'slow1')
        for k in range(4):
            a.I('v_add_f32_dpp v%d, v%d, v%d row_ror:8' + DP, Z + 4 + k, Z + k, Z + k)
        stamp(a, cfg, 8)
        a.I('s_mov_b64 exec, 0x000f000f')
        a.I('v_cvt_pk_bf16_f32 v%d, v%d, v%d', U0, Z + 4, Z + 5)
        a.I('v_cvt_pk_bf16_f32 v%d, v%d, v%d', U1, Z + 6, Z + 7)
        a.I('v_min_u32 v%d, -2, v%d', U0, U0)
        a.I('buffer_store_dwordx2 v[%d:%d], v%d, %s, s%d offen%s', U0, U1, vMxSt, WS, sMxWr, stf)
        a.I('buffer_store_dwordx2 v[%d:%d], v%d, %s, s%d offen%s', U2, U3, vMxSt, WS, sMxRst, stf)
        a.I('s_mov_b64 exec, -1')
        stamp(a, cfg, 9)
        a.I('s_add_u32 s%d, s%d, s%d', sRetry, sRetry, sSpin)
        a.I('s_mov_b32 s%d, 0', sSpin)
        zero(ACC + 8, 12)
        backoff(cfg.get('d2', 0) * 32)
        if cfg.get('b3'):
            a.I('s_barrier')
        a.I('s_branch ' + PFX + 'loop')

        a.label(PFX + 'slow1')
        rload(0); rload(1)
        spin()
        zero(RD, 4)
        if dbl:
            a.I('s_waitcnt vmcnt(2)')
            red1(R2, PFX + 'slow2')
            a.I('s_branch ' + PFX + 'ok1')
            a.label(PFX + 'slow2')
            rl(R2)
            spin()
            zero(RD, 4)
            a.I('s_waitcnt vmcnt(2)')
        else:
            a.I('s_waitcnt vmcnt(0)')
        a.I('s_branch ' + PFX + 'chk1')

        if cfg.get('kvflags'):
            a.label(PFX + 'kvwait')
            kv_load()
            spin()
            a.I('s_waitcnt vmcnt(0)')
            a.I('v_cmp_eq_u32 vcc, 0, v%d', vDummy)
            a.I('s_nop 1')
            a.I('s_and_b32 s%d, vcc_lo, 3', sT)
            a.I('s_cbranch_scc1 ' + PFX + 'kvwait')
            a.I('s_branch ' + PFX + 'kvok')

        a.label(PFX + 'done')
        a.c('last segment: only k and v of the memory rows are needed')
        a.I('buffer_store_dwordx4 v[%d:%d], v%d, %s, s%d offen sc1', T0, T0 + 3, vL16, WS, sVmPrev)
        a.I('s_waitcnt lgkmcnt(0)')
        for kp in (1, 2, 3, 5, 6, 7):
            M('k', 0, kp); M('k', 1, kp); M('v', 0, kp); M('v', 1, kp)
        L = STG
        pkadd(L, k0, k0 + 2)
        pkadd(L + 2, k1, k1 + 2)
        pkadd(L + 4, v0_, v0_ + 2)
        pkadd(L + 6, v1_, v1_ + 2)
        cvt(L + 9, L, L + 2)
        cvt(L + 10, L + 1, L + 3)
        cvt(L + 8, L + 4, L + 5)
        cvt(L + 11, L + 6, L + 7)
        a.I('buffer_store_dwordx4 v[%d:%d], v%d, %s, s%d offen sc1', L + 8, L + 11, vL16, WS, sVm)
        a.I('s_waitcnt vmcnt(0)')
        if cfg.get('dbgt'):
            bulk.dbg_time(a, 10, V=MEM)
        a.I('v_mov_b32 v%d, %d', T1, nsteps)
        a.I('s_mov_b64 exec, 1')
        a.I('buffer_store_dword v%d, v%d, %s, s%d offen sc1', T1, vL16, WS, sFl)
        if cfg.get('stamps'):
            a.I('s_memrealtime s[100:101]')
            a.I('s_waitcnt lgkmcnt(0)')
            a.I('v_mov_b32 v%d, s4', T0)
            if cfg.get('hwid'):
                a.I('s_getreg_b32 s6, hwreg(HW_REG_HW_ID)')
            a.I('v_mov_b32 v%d, s6', T1)
            a.I('v_mov_b32 v%d, s100', T2)
            a.I('v_mov_b32 v%d, s%d', T3, sRetry if cfg.get('cnt') else 3)
            a.I('s_lshl_b32 s%d, s%d, 2', sT, S_ROLE)
            a.I('s_add_u32 s%d, s%d, s%d', sT, sT, S_WAVE)
            a.I('s_lshl_b32 s%d, s%d, 4', sT, sT)
            a.I('s_add_u32 s%d, s%d, 0x%x', sT, sT, WS_DBG + 0x80000)
            a.I('buffer_store_dwordx4 v[%d:%d], v%d, %s, s%d offen', T0, T3, vL16, WS, sT)
        a.I('s_endpgm')
        a.label(PFX + 'fail')
        a.I('s_mov_b64 exec, 1')
        a.I('v_mov_b32 v%d, %d', T2, D_ERR * 4)
        a.I('v_mov_b32 v%d, s%d', T3, sStep)
        a.I('v_or_b32 v%d, 0x40000000, v%d', T3, T3)
        a.I('buffer_store_dword v%d, v%d, s[%d:%d], 0 offen sc1', T3, T2, S_DBG, S_DBG + 3)
        a.I('s_endpgm')

    if cfg.get('both_modes'):
        a.c('mode: plain stores only if all 32 recurrence workgroups sit on the chosen XCD')
        a.I('s_cmp_lg_u32 s%d, 0', sMode)
        a.I('s_cbranch_scc1 R_safe')
        rest('R_', '')
        a.label('R_safe')
        rest('RS_', ' sc1')
    else:
        rest('R_', stf)
    a.label('R_dwait')
    dbg_load()
    gspin()
    a.I('s_waitcnt vmcnt(0)')
    a.I('s_branch R_dchk')
```

```python
from asmlib import *
from common import *
from rec import srd, f32bits

WS = 's[%d:%d]' % (S_WS, S_WS + 3)
DBG = 's[%d:%d]' % (S_DBG, S_DBG + 3)
DP = ' row_mask:0xf bank_mask:0xf'
sT = 84
sSpin = 83
SPIN_MAX = 0x400000


BST = False
GI = 0
GSL = 0
SL1, SL2 = 2, 2
DBGT = False


def dbg_time(a, dword, invert=False, V=248):
    if not DBGT:
        return
    a.I('s_memrealtime s[100:101]')
    a.I('s_waitcnt lgkmcnt(0)')
    if invert:
        a.I('s_not_b32 s100, s100')
    a.I('s_mov_b64 exec, 1')
    a.I('v_mov_b32 v%d, %d', V, dword * 4)
    a.I('v_mov_b32 v%d, s100', V + 1)
    a.I('buffer_atomic_umax v%d, v%d, %s, 0 offen', V + 1, V, DBG)
    a.I('s_mov_b64 exec, -1')

HOLD = 0


def bstamp(a, idx, V=14):
    if not BST:
        return
    lab = a.newlabel('BS')
    a.I('s_cmp_lg_u32 s%d, 0', S_WAVE)
    a.I('s_cbranch_scc1 %s', lab)
    a.I('s_memrealtime s[100:101]')
    a.I('s_lshl_b32 s99, s2, 6')
    a.I('s_add_u32 s99, s99, 0x%x', WS_DBG + 0x90000 + idx * 4)
    a.I('s_waitcnt lgkmcnt(0)')
    a.I('s_mov_b64 exec, 1')
    a.I('v_mov_b32 v%d, 0', V)
    a.I('v_mov_b32 v%d, s100', V + 1)
    a.I('buffer_store_dword v%d, v%d, %s, s99 offen', V + 1, V, WS)
    a.I('v_mov_b32 v%d, s%d', V + 1, S_ROLE)
    a.I('buffer_store_dword v%d, v%d, %s, s99 offen offset:32', V + 1, V, WS)
    a.I('s_mov_b64 exec, -1')
    a.label(lab)
    a.vm_n -= 2


def spin(a, fail='B_fail'):
    a.I('s_add_u32 s%d, s%d, 1', sSpin, sSpin)
    a.I('s_cmp_gt_u32 s%d, 0x%x', sSpin, SPIN_MAX)
    a.I('s_cbranch_scc1 %s', fail)


def wave_allsum(a, regs, tmp):
    for sh in (1, 2, 4, 8):
        for r in regs:
            a.I('v_add_f32_dpp v%d, v%d, v%d row_ror:%d' + DP, r, r, r, sh)
    for op in ('v_permlane16_swap_b32', 'v_permlane32_swap_b32'):
        for r, t in zip(regs, tmp):
            a.I('v_mov_b32 v%d, v%d', t, r)
        for r, t in zip(regs, tmp):
            a.I('%s v%d, v%d', op, r, t)
        for r, t in zip(regs, tmp):
            a.I('v_add_f32 v%d, v%d, v%d', r, r, t)


def rnd_bf16(a, r):
    a.I('v_cvt_pk_bf16_f32 v%d, v%d, v%d', r, r, r)
    a.I('v_and_b32 v%d, 0xffff0000, v%d', r, r)


def ln_issue(a, srow, B=200):
    a.I('v_and_b32 v%d, 63, v0', B + 8)
    a.I('v_lshlrev_b32 v%d, 4, v%d', B + 8, B + 8)
    a.I('buffer_load_dwordx4 v[%d:%d], v%d, s[%d:%d], s%d offen', B, B + 3, B + 8, S_W, S_W + 3, srow)
    return a.I('buffer_load_dwordx4 v[%d:%d], v%d, s[%d:%d], s%d offen offset:1024', B + 4, B + 7, B + 8, S_W, S_W + 3, srow)


def ln_compute(a, tok, srow, B=200):
    X = [B + 10, B + 18]
    S = [B + 26, B + 27]
    TM = [B + 28, B + 29]
    MB = [B + 30, B + 31]
    D = [B + 32, B + 40]
    if tok:
        a.wait(tok)
    for r in range(2):
        for k in range(4):
            a.I('v_lshlrev_b32 v%d, 16, v%d', X[r] + 2 * k, B + 4 * r + k)
            a.I('v_and_b32 v%d, 0xffff0000, v%d', X[r] + 2 * k + 1, B + 4 * r + k)
    for r in range(2):
        a.I('v_add_f32 v%d, v%d, v%d', S[r], X[r], X[r] + 1)
        for k in range(2, 8):
            a.I('v_add_f32 v%d, v%d, v%d', S[r], S[r], X[r] + k)
    wave_allsum(a, S, TM)
    for r in range(2):
        a.I('v_mul_f32 v%d, 0x%x, v%d', MB[r], f32bits(1.0 / 512), S[r])
    for r in range(2):
        for k in range(8):
            a.I('v_sub_f32 v%d, v%d, v%d', D[r] + k, X[r] + k, MB[r])
        a.I('v_mul_f32 v%d, v%d, v%d', S[r], D[r], D[r])
        for k in range(1, 8):
            a.I('v_fmac_f32 v%d, v%d, v%d', S[r], D[r] + k, D[r] + k)
    wave_allsum(a, S, TM)
    for r in range(2):
        a.I('v_mul_f32 v%d, 0x%x, v%d', S[r], f32bits(1.0 / 512), S[r])
        rnd_bf16(a, S[r])
        a.I('v_add_f32 v%d, 0x%x, v%d', S[r], f32bits(1e-5), S[r])
        rnd_bf16(a, S[r])
        a.I('v_sqrt_f32 v%d, v%d', S[r], S[r])
        rnd_bf16(a, S[r])
        a.I('v_rcp_f32 v%d, v%d', S[r], S[r])
        rnd_bf16(a, MB[r])
    for r in range(2):
        for k in range(4):
            a.I('v_sub_f32 v%d, v%d, v%d', D[r] + 2 * k, X[r] + 2 * k, MB[r])
            a.I('v_sub_f32 v%d, v%d, v%d', D[r] + 2 * k + 1, X[r] + 2 * k + 1, MB[r])
            a.I('v_cvt_pk_bf16_f32 v%d, v%d, v%d', TM[r], D[r] + 2 * k, D[r] + 2 * k + 1)
            a.I('v_lshlrev_b32 v%d, 16, v%d', D[r] + 2 * k, TM[r])
            a.I('v_and_b32 v%d, 0xffff0000, v%d', D[r] + 2 * k + 1, TM[r])
            a.I('v_mul_f32 v%d, v%d, v%d', D[r] + 2 * k, D[r] + 2 * k, S[r])
            a.I('v_mul_f32 v%d, v%d, v%d', D[r] + 2 * k + 1, D[r] + 2 * k + 1, S[r])
            a.I('v_cvt_pk_bf16_f32 v%d, v%d, v%d', B + 4 * r + k, D[r] + 2 * k, D[r] + 2 * k + 1)
    a.I('buffer_store_dwordx4 v[%d:%d], v%d, %s, s%d offen sc1', B, B + 3, B + 8, WS, srow)
    return a.I('buffer_store_dwordx4 v[%d:%d], v%d, %s, s%d offen offset:1024 sc1', B + 4, B + 7, B + 8, WS, srow)


def wait_dbg(a, dword, minval, V=250, fail='B_fail', sleep=2):
    lab = a.newlabel('WD')
    a.I('v_mov_b32 v%d, %d', V, dword * 4)
    a.I('s_mov_b32 s%d, 0', sSpin)
    a.label(lab)
    a.I('buffer_load_dword v%d, v%d, %s, 0 offen sc1', V + 1, V, DBG)
    spin(a, fail)
    a.I('s_waitcnt vmcnt(0)')
    a.I('v_readfirstlane_b32 s%d, v%d', sT, V + 1)
    a.I('s_cmp_ge_u32 s%d, %d', sT, minval)
    done = a.newlabel('WDd')
    a.I('s_cbranch_scc1 %s', done)
    a.I('s_sleep %d', sleep)
    a.I('s_branch %s', lab)
    a.label(done)


def flag_store(a, soff, V=250, val=1):
    a.I('s_mov_b64 exec, 1')
    a.I('v_mov_b32 v%d, 0', V)
    a.I('v_mov_b32 v%d, %s', V + 1, str(val))
    a.I('buffer_store_dword v%d, v%d, %s, s%d offen sc1', V + 1, V, WS, soff)
    a.I('s_mov_b64 exec, -1')


sSeg, sStride, sSlice, sCol, sOut, sSrc, sBuf, sFlagPrev, sHave = 64, 65, 66, 67, 68, 69, 70, 71, 72
sFlagBase = 73
sPermLo, sPermHi = 95, 96
vLane, vN, vG, vL16, vSrc, vWa, vWb = 1, 2, 3, 4, 5, 6, 7
FR = 16
ACC = 48
OUT = 80
WB = 100


def lane_consts(a):
    a.I('v_and_b32 v%d, 63, v0', vLane)
    a.I('v_and_b32 v%d, 15, v%d', vN, vLane)
    a.I('v_lshrrev_b32 v%d, 4, v%d', vG, vLane)
    a.I('v_lshlrev_b32 v%d, 4, v%d', vL16, vLane)
    a.I('s_mov_b32 s%d, 0x05040100', sPermLo)
    a.I('s_mov_b32 s%d, 0x07060302', sPermHi)


def gemm_weights(a, ffn):
    stride = 3584 if ffn else 8192
    a.I('s_mov_b32 s%d, %d', sT, stride * 8)
    a.I('v_mul_lo_u32 v%d, v%d, s%d', vWa, vG, sT)
    a.I('v_lshl_add_u32 v%d, v%d, %d, v%d', vWa, vN, 2 if ffn else 3, vWa)
    NB = 3
    toks = {}

    def issue(g):
        b = WB + 32 * (g % NB)
        for h in range(2):
            ks = 2 * g + h
            for kk in range(8):
                r = b + 16 * h + 2 * kk
                a.I('s_add_u32 s%d, s%d, %d', sT, sCol, (32 * ks + kk) * stride)
                if ffn:
                    a.I('buffer_load_dword v%d, v%d, s[%d:%d], s%d offen', r, vWa, S_W, S_W + 3, sT)
                    t = a.I('buffer_load_dword v%d, v%d, s[%d:%d], s%d offen', r + 1, vWa, S_W2, S_W2 + 3, sT)
                else:
                    t = a.I('buffer_load_dwordx2 v[%d:%d], v%d, s[%d:%d], s%d offen', r, r + 1, vWa, S_W, S_W + 3, sT)
        toks[g] = t

    def consume(g):
        b = WB + 32 * (g % NB)
        a.wait(toks[g])
        for h in range(2):
            ks = 2 * g + h
            for t in range(4):
                for p in range(4):
                    r0 = b + 16 * h + 4 * p + t // 2
                    a.I('v_perm_b32 v%d, v%d, v%d, s%d', OUT + 4 * t + p, r0 + 2, r0, sPermLo if t % 2 == 0 else sPermHi)
            for k in range(16):
                a.I('v_accvgpr_write_b32 a%d, v%d', 16 * ks + k, OUT + k)
    depth = 1 if ffn else 3
    for g in range(depth):
        issue(g)
    for g in range(8):
        if ffn and g + 1 < 8:
            issue(g + 1)
        consume(g)
        if not ffn and g + depth < 8:
            issue(g + depth)


def gemm_loop(a, kind):
    L = 'A%s_' % kind

    def dma(js=range(8)):
        for j in js:
            a.I('s_add_u32 m0, s%d, %d', sBuf, j * (1024 - 64))
            a.I('buffer_load_dwordx4 v%d, %s, s%d offen offset:%d sc1 lds', vSrc, WS, sSrc, j * 64)

    a.I('s_lshl_b32 s%d, s%d, 13', sBuf, S_WAVE)
    a.I('s_lshl_b32 s%d, s%d, 15', sSrc, sSeg)
    dma()
    a.I('s_mov_b32 s%d, 0', sHave)
    a.I('v_mov_b32 v%d, v%d', vWb, vL16)
    a.I('s_waitcnt vmcnt(0)')
    a.I('s_barrier')
    a.label(L + 'loop')
    a.I('s_add_u32 s%d, s%d, s%d', sT + 1, sSeg, sStride)
    a.I('s_min_u32 s%d, s%d, 63', sT + 1, sT + 1)
    a.I('s_lshl_b32 s%d, s%d, 15', sSrc, sT + 1)
    a.I('s_xor_b32 s%d, s%d, 32768', sBuf, sBuf)
    ft = {}

    def rd(ks):
        st = ks % 3
        a.I('ds_read_b128 v[%d:%d], v%d offset:%d', FR + 8 * st, FR + 8 * st + 3, vWb, ks * 1024)
        ft[ks] = a.I('ds_read_b128 v[%d:%d], v%d offset:%d', FR + 8 * st + 4, FR + 8 * st + 7, vWb, 16384 + ks * 1024)
    rd(0)
    rd(1)
    if not GI:
        dma()
    for ks in range(16):
        if ks + 2 < 16:
            rd(ks + 2)
        a.wait(ft[ks])
        st = ks % 3
        for T in range(2):
            for t in range(4):
                d = ACC + 16 * T + 4 * t
                x = vr(FR + 8 * st + 4 * T, 4)
                w = ar(16 * ks + 4 * t, 4)
                A, B = (x, w) if kind == 'v' else (w, x)
                a.I('v_mfma_f32_16x16x32_bf16 v[%d:%d], %s, %s, %s', d, d + 3, A, B, '0' if ks == 0 else vr(d, 4))
                if GI and ks < 4 and t == 1:
                    dma([2 * ks + T])
        if ks == 8:
            a.I('s_waitcnt vmcnt(8)')
            a.I('s_barrier')
            sk = a.newlabel(L + 'nf')
            a.I('s_or_b32 s%d, s%d, s%d', sT, S_WAVE, sHave)
            a.I('s_cmp_lg_u32 s%d, 0x100', sT)
            a.I('s_cbranch_scc1 %s', sk)
            flag_store(a, sFlagPrev)
            a.label(sk)
            a.vm_n -= 1
    a.I('s_waitcnt vmcnt(0)')
    a.I('s_barrier')
    if kind == 'qk':
        a.I('s_lshl_b32 s%d, s%d, 18', sT, sSeg)
        a.I('s_add_u32 s%d, s%d, s%d', sT, sT, sOut)
        a.I('s_add_u32 s%d, s%d, 4096', sT + 1, sT)
        for T in range(2):
            for i in range(4):
                for tp in range(2):
                    a.I('v_cvt_pk_bf16_f32 v%d, v%d, v%d', OUT + 8 * T + 2 * i + tp, ACC + 16 * T + 8 * tp + i, ACC + 16 * T + 8 * tp + 4 + i)
            for hf in range(2):
                a.I('buffer_store_dwordx4 v[%d:%d], v%d, %s, s%d offen offset:%d sc1', OUT + 8 * T + 4 * hf, OUT + 8 * T + 4 * hf + 3,
                    vL16, WS, sT + T, 1024 * hf)
    elif kind == 'v':
        a.I('s_lshl_b32 s%d, s%d, 18', sT, sSeg)
        a.I('s_add_u32 s%d, s%d, s%d', sT, sT, sOut)
        for t in range(4):
            for T in range(2):
                for i2 in range(2):
                    a.I('v_cvt_pk_bf16_f32 v%d, v%d, v%d', OUT + 4 * t + 2 * T + i2, ACC + 16 * T + 4 * t + 2 * i2, ACC + 16 * T + 4 * t + 2 * i2 + 1)
            a.I('buffer_store_dwordx4 v[%d:%d], v%d, %s, s%d offen offset:%d sc1', OUT + 4 * t, OUT + 4 * t + 3, vL16, WS, sT, 1024 * t)
    else:
        a.I('s_mul_i32 s%d, s%d, %d', sT, sSeg, 2 * 56 * 1024)
        a.I('s_add_u32 s%d, s%d, s%d', sT, sT, sOut)
        a.I('s_add_u32 s%d, s%d, %d', sT + 1, sT, 56 * 1024)
        for T in range(2):
            for i in range(4):
                g0, g1, u0, u1 = [ACC + 16 * T + 4 * t + i for t in range(4)]
                a.I('v_cvt_pk_bf16_f32 v%d, v%d, v%d', g0, g0, g1)
                a.I('v_cvt_pk_bf16_f32 v%d, v%d, v%d', u0, u0, u1)
                a.I('v_and_b32 v%d, 0xffff0000, v%d', g1, g0)
                a.I('v_and_b32 v%d, 0xffff0000, v%d', u1, u0)
                a.I('v_lshlrev_b32 v%d, 16, v%d', g0, g0)
                a.I('v_lshlrev_b32 v%d, 16, v%d', u0, u0)
                a.I('v_mul_f32 v%d, v%d, v%d', g0, g0, u0)
                a.I('v_mul_f32 v%d, v%d, v%d', g1, g1, u1)
                a.I('v_cvt_pk_bf16_f32 v%d, v%d, v%d', OUT + 4 * T + i, g0, g1)
            a.I('buffer_store_dwordx4 v[%d:%d], v%d, %s, s%d offen sc1', OUT + 4 * T, OUT + 4 * T + 3, vL16, WS, sT + T)
    a.I('s_lshl_b32 s%d, s%d, %d', sT, sSeg, 6 if kind == 'h' else 5)
    a.I('s_add_u32 s%d, s%d, s%d', sFlagPrev, sT, sFlagBase)
    a.I('s_mov_b32 s%d, 0x100', sHave)
    a.I('v_xor_b32 v%d, 32768, v%d', vWb, vWb)
    if GSL:
        a.I('s_sleep %d', GSL)
    a.I('s_add_u32 s%d, s%d, s%d', sSeg, sSeg, sStride)
    a.I('s_cmp_lt_u32 s%d, 64', sSeg)
    a.I('s_cbranch_scc1 %sloop', L)
    a.I('s_waitcnt vmcnt(0)')
    a.I('s_barrier')
    sk = a.newlabel(L + 'nf')
    a.I('s_cmp_lg_u32 s%d, 0', S_WAVE)
    a.I('s_cbranch_scc1 %s', sk)
    flag_store(a, sFlagPrev)
    a.label(sk)
    a.I('s_branch A_done')


def wait_xn(a):
    wait_dbg(a, D_FINIT, NZERO, V=FR)
    lab = a.newlabel('WX')
    a.I('v_lshrrev_b32 v%d, 1, v%d', FR + 2, vL16)
    a.I('s_mov_b32 s%d, 0x%x', sT + 1, WS_FLAGS + FL_XN)
    a.I('s_mov_b32 s%d, 0', sSpin)
    a.label(lab)
    a.I('buffer_load_dwordx2 v[%d:%d], v%d, %s, s%d offen sc1', FR, FR + 1, FR + 2, WS, sT + 1)
    spin(a)
    a.I('s_waitcnt vmcnt(0)')
    a.I('v_min_u32 v%d, v%d, v%d', FR, FR, FR + 1)
    a.I('v_cmp_eq_u32 vcc, 0, v%d', FR)
    done = a.newlabel('WXd')
    a.I('s_cbranch_vccz %s', done)
    a.I('s_sleep 2')
    a.I('s_branch %s', lab)
    a.label(done)


def gen_phase_a(a):
    a.c('================ phase A: projections, ticket in s%d ================' % S_ROLE)
    lane_consts(a)
    a.I('v_lshlrev_b32 v%d, 10, v%d', vSrc, vN)
    a.I('v_lshl_add_u32 v%d, v%d, 4, v%d', vSrc, vG, vSrc)
    a.I('s_lshr_b32 s%d, s%d, 1', sT, S_WAVE)
    a.I('s_lshl_b32 s%d, s%d, 14', sT, sT)
    a.I('s_and_b32 s%d, s%d, 1', sT + 1, S_WAVE)
    a.I('s_lshl_b32 s%d, s%d, 9', sT + 1, sT + 1)
    a.I('s_add_u32 s%d, s%d, s%d', sT, sT, sT + 1)
    a.I('v_add_u32 v%d, s%d, v%d', vSrc, sT, vSrc)
    a.I('s_cmp_ge_u32 s%d, 218', S_ROLE)
    a.I('s_cbranch_scc1 A_done')
    a.I('s_cmp_ge_u32 s%d, 176', S_ROLE)
    a.I('s_cbranch_scc1 A_h')
    a.I('s_and_b32 s%d, s%d, 31', sSlice, S_ROLE)
    a.I('s_lshr_b32 s%d, s%d, 5', sSeg, S_ROLE)
    a.I('s_mov_b32 s%d, 4', sStride)
    a.I('s_cmp_lt_u32 s%d, 128', S_ROLE)
    a.I('s_cbranch_scc1 A_kv')
    a.I('s_sub_u32 s%d, s%d, 128', sT, S_ROLE)
    a.I('s_and_b32 s%d, s%d, 15', sSlice, sT)
    a.I('s_add_u32 s%d, s%d, 32', sSlice, sSlice)
    a.I('s_lshr_b32 s%d, s%d, 4', sSeg, sT)
    a.I('s_mov_b32 s%d, 3', sStride)
    if HOLD:
        wait_dbg(a, D_WDONE, HOLD, V=FR, sleep=16)
    a.label('A_kv')
    a.I('s_and_b32 s%d, s%d, 15', sT, sSlice)
    a.I('s_lshl_b32 s%d, s%d, 9', sCol, sT)
    a.I('s_lshl_b32 s%d, s%d, 7', sT + 1, S_WAVE)
    a.I('s_add_u32 s%d, s%d, s%d', sCol, sCol, sT + 1)
    a.I('s_lshl_b32 s%d, s%d, 14', sOut, sT)
    a.I('s_lshr_b32 s%d, s%d, 1', sT + 1, S_WAVE)
    a.I('s_lshl_b32 s%d, s%d, 13', sT + 1, sT + 1)
    a.I('s_add_u32 s%d, s%d, s%d', sOut, sOut, sT + 1)
    a.I('s_and_b32 s%d, s%d, 1', sT + 2, S_WAVE)
    a.I('s_lshr_b32 s%d, s%d, 4', sT + 3, sSlice)
    a.I('s_lshl_b32 s%d, s%d, 11', sFlagBase, sT)
    a.I('s_add_u32 s%d, s%d, 0x%x', sFlagBase, sFlagBase, WS_FLAGS + FL_KV)
    a.I('s_cmp_eq_u32 s%d, 1', sT + 3)
    a.I('s_cbranch_scc1 A_v')
    a.I('s_lshl_b32 s%d, s%d, 11', sT + 2, sT + 2)
    a.I('s_add_u32 s%d, s%d, s%d', sOut, sOut, sT + 2)
    a.I('s_cmp_eq_u32 s%d, 0', sT + 3)
    a.I('s_cselect_b32 s%d, s%d, s%d', S_W, P_WK, P_WQ)
    a.I('s_cselect_b32 s%d, s%d, s%d', S_W + 1, P_WK + 1, P_WQ + 1)
    a.I('s_cselect_b32 s%d, 0, 8', sT + 1)
    a.I('s_cselect_b32 s%d, 0x%x, 0x%x' % (sT, WS_K >> 20, WS_Q >> 20))
    a.I('s_add_u32 s%d, s%d, s%d', sFlagBase, sFlagBase, sT + 1)
    a.I('s_lshl_b32 s%d, s%d, 20', sT, sT)
    a.I('s_add_u32 s%d, s%d, s%d', sOut, sOut, sT)
    a.I('s_and_b32 s%d, s%d, 0xffff', S_W + 1, S_W + 1)
    a.I('s_mov_b32 s%d, 4194304', S_W + 2)
    a.I('s_mov_b32 s%d, 0x20000', S_W + 3)
    a.I('s_branch A_w')
    a.label('A_v')
    a.I('s_lshl_b32 s%d, s%d, 12', sT + 2, sT + 2)
    a.I('s_add_u32 s%d, s%d, s%d', sOut, sOut, sT + 2)
    a.I('s_add_u32 s%d, s%d, 0x%x', sOut, sOut, WS_V)
    a.I('s_add_u32 s%d, s%d, 16', sFlagBase, sFlagBase)
    srd(a, S_W, P_WV, 4194304)
    a.label('A_w')
    gemm_weights(a, False)
    bstamp(a, 2)
    wait_xn(a)
    bstamp(a, 3)
    a.I('s_lshr_b32 s%d, s%d, 4', sT + 3, sSlice)
    a.I('s_cmp_eq_u32 s%d, 1', sT + 3)
    a.I('s_cbranch_scc1 A_vloop')
    gemm_loop(a, 'qk')
    a.label('A_vloop')
    gemm_loop(a, 'v')
    a.label('A_h')
    if HOLD:
        wait_dbg(a, D_WDONE, HOLD, V=FR, sleep=16)
    a.I('s_sub_u32 s%d, s%d, 176', sT, S_ROLE)
    a.I('s_mov_b32 s%d, 0', sSeg)
    for k in range(2):
        a.I('s_cmp_ge_u32 s%d, 14', sT)
        a.I('s_cselect_b32 s%d, 14, 0', sT + 1)
        a.I('s_sub_u32 s%d, s%d, s%d', sT, sT, sT + 1)
        a.I('s_lshr_b32 s%d, s%d, 3', sT + 1, sT + 1)
        a.I('s_add_u32 s%d, s%d, s%d', sSeg, sSeg, sT + 1)
    a.I('s_add_u32 s%d, s%d, 48', sSlice, sT)
    a.I('s_mov_b32 s%d, 3', sStride)
    a.I('s_lshl_b32 s%d, s%d, 2', sT, sT)
    a.I('s_add_u32 s%d, s%d, 0x%x', sFlagBase, sT, WS_FLAGS + FL_H)
    a.I('s_add_u32 s%d, s%d, s%d', sT, sT, S_WAVE)
    a.I('s_lshl_b32 s%d, s%d, 6', sCol, sT)
    a.I('s_lshl_b32 s%d, s%d, 10', sOut, sT)
    a.I('s_add_u32 s%d, s%d, 0x%x', sOut, sOut, WS_H)
    srd(a, S_W, P_WG, 512 * 3584)
    srd(a, S_W2, P_WU, 512 * 3584)
    gemm_weights(a, True)
    bstamp(a, 2)
    wait_xn(a)
    bstamp(a, 3)
    gemm_loop(a, 'h')
    a.label('A_done')
    bstamp(a, 4)


def poll_flags(a, vaddr, soff, nlanes, smin, V, sleep=2, far=None):
    lab = a.newlabel('PF')
    done = a.newlabel('PFd')
    a.I('s_mov_b32 s%d, 0', sSpin)
    a.I('s_mov_b64 exec, 0x%x', (1 << nlanes) - 1)
    a.label(lab)
    a.I('buffer_load_dword v%d, v%d, %s, s%d offen sc1', V, vaddr, WS, soff)
    spin(a)
    a.I('s_waitcnt vmcnt(0)')
    if smin is None:
        a.I('v_cmp_eq_u32 vcc, 0, v%d', V)
    else:
        a.I('v_cmp_gt_u32 vcc, s%d, v%d', smin, V)
    a.I('s_cbranch_vccz %s', done)
    a.I('s_sleep %d', sleep)
    if far:
        a.I('v_readfirstlane_b32 s%d, v%d', sT, V)
        a.I('s_add_u32 s%d, s%d, %d', sT, sT, far[0])
        a.I('s_cmp_ge_u32 s%d, s%d', sT, smin)
        a.I('s_cbranch_scc1 %s', lab)
        a.I('s_sleep %d', far[1])
    a.I('s_branch %s', lab)
    a.label(done)
    a.I('s_mov_b64 exec, -1')


NT1 = 96


def gen_t1(a):
    a.c('================ T1: token attention ================')
    sTask, sSegT, sHead, sBase, sB2, sNeed, sC = 64, 65, 66, 67, 68, 69, 70
    sMask = 72
    sLo = 80
    vKm, vVm, vF64, vF128, vNeg = 5, 6, 7, 8, 9
    TM = 10
    QF, KF, VF, KM, VM, S, P, O = 16, 48, 80, 112, 128, 144, 164, 176
    lane_consts(a)
    a.I('s_mov_b32 s%d, 0x%x', sC, f32bits(128 ** -0.5 * 1.4426950408889634))
    a.I('v_mov_b32 v%d, 0x%x', vNeg, f32bits(-3.0e38))
    a.I('v_lshlrev_b32 v%d, 2, v%d', TM, vG)
    for i in range(4):
        a.I('v_add_u32 v%d, %d, v%d', TM + 1, i, TM)
        a.I('v_cmp_le_u32 s[%d:%d], v%d, v%d', sMask + 2 * i, sMask + 2 * i + 1, TM + 1, vN)
    a.I('s_mov_b32 s%d, -1', sLo)
    a.I('s_mov_b32 s%d, 0', sLo + 1)
    a.I('v_lshlrev_b32 v%d, 3, v%d', vF64, vLane)
    a.I('v_lshlrev_b32 v%d, 7, v%d', vF128, vLane)
    a.I('v_lshrrev_b32 v%d, 1, v%d', TM, vG)
    a.I('v_lshlrev_b32 v%d, 10, v%d', vKm, TM)
    a.I('v_and_b32 v%d, 1, v%d', TM, vG)
    a.I('v_lshl_add_u32 v%d, v%d, 7, v%d', vKm, TM, vKm)
    a.I('v_bfe_u32 v%d, v%d, 1, 2', TM, vN)
    a.I('v_lshl_add_u32 v%d, v%d, 8, v%d', vKm, TM, vKm)
    a.I('v_and_b32 v%d, 1, v%d', TM, vN)
    a.I('v_lshl_add_u32 v%d, v%d, 2, v%d', vKm, TM, vKm)
    a.I('v_add_u32 v%d, 4, v%d', vKm, vKm)
    a.I('v_lshrrev_b32 v%d, 3, v%d', TM, vN)
    a.I('v_lshlrev_b32 v%d, 10, v%d', vVm, TM)
    a.I('v_and_b32 v%d, 1, v%d', TM, vG)
    a.I('v_lshl_add_u32 v%d, v%d, 9, v%d', vVm, TM, vVm)
    a.I('v_and_b32 v%d, 7, v%d', TM, vN)
    a.I('v_lshl_add_u32 v%d, v%d, 5, v%d', vVm, TM, vVm)
    a.I('s_lshl_b32 s%d, s%d, 12', sT, S_WAVE)
    a.I('v_add_u32 v%d, s%d, v%d', vKm, sT, vKm)
    a.I('v_add_u32 v%d, s%d, v%d', vVm, sT, vVm)
    a.I('s_lshl_b32 s%d, s%d, 2', sTask, S_ROLE)
    a.I('s_add_u32 s%d, s%d, s%d', sTask, sTask, S_WAVE)
    sDone, sFlO = 71, 82
    a.I('s_mov_b32 s%d, 0', sDone)
    a.I('s_lshl_b32 s%d, s%d, 7', sFlO, S_ROLE)
    a.I('s_lshl_b32 s%d, s%d, 2', sT, S_WAVE)
    a.I('s_add_u32 s%d, s%d, s%d', sFlO, sFlO, sT)
    a.I('s_add_u32 s%d, s%d, 0x%x', sFlO, sFlO, WS_FLAGS + FL_O)
    bstamp(a, 5)
    a.label('T1_loop')
    a.I('s_lshr_b32 s%d, s%d, 5', sSegT, sTask)
    a.I('s_and_b32 s%d, s%d, 31', sHead, sTask)
    a.I('s_lshl_b32 s%d, s%d, 5', sT + 1, sSegT)
    a.I('s_lshr_b32 s%d, s%d, 1', sT + 2, sHead)
    a.I('s_lshl_b32 s%d, s%d, 11', sT + 2, sT + 2)
    a.I('s_add_u32 s%d, s%d, s%d', sT + 1, sT + 1, sT + 2)
    a.I('s_add_u32 s%d, s%d, 0x%x', sT + 1, sT + 1, WS_FLAGS + FL_KV)
    poll_flags(a, vF64, sT + 1, 3, None, TM, sleep=8)
    a.I('s_lshl_b32 s%d, s%d, 13', sBase, sTask)
    tk = {}
    for nm, R, W0 in (('k', KF, WS_K), ('q', QF, WS_Q), ('v', VF, WS_V)):
        a.I('s_add_u32 s%d, s%d, 0x%x', sT + 1, sBase, W0)
        a.I('s_add_u32 s%d, s%d, 0x%x', sT + 2, sBase, W0 + 4096)
        for f in range(8):
            tk[nm, f] = a.I('buffer_load_dwordx4 v[%d:%d], v%d, %s, s%d offen offset:%d sc1', R + 4 * f, R + 4 * f + 3, vL16, WS,
                            sT + 1 + f // 4, (f % 4) * 1024)
    a.wait(tk['q', 7])
    for (D, Tk, Tq) in ((S, 0, 0), (S + 8, 0, 1), (S + 12, 1, 1)):
        for f in range(4):
            a.I('v_mfma_f32_16x16x32_bf16 v[%d:%d], %s, %s, %s', D, D + 3, vr(KF + 16 * Tk + 4 * f, 4), vr(QF + 16 * Tq + 4 * f, 4),
                '0' if f == 0 else vr(D, 4))
    a.I('s_add_u32 s%d, s%d, 1', sNeed, sSegT)
    a.I('s_lshl_b32 s%d, s%d, 9', sT + 1, sHead)
    a.I('s_add_u32 s%d, s%d, 0x%x', sT + 1, sT + 1, WS_FLAGS + FL_KM)
    for i in range(4):
        a.I('v_cndmask_b32 v%d, v%d, v%d, s[%d:%d]', S + i, vNeg, S + i, sMask + 2 * i, sMask + 2 * i + 1)
        a.I('v_cndmask_b32 v%d, v%d, v%d, s[%d:%d]', S + 12 + i, vNeg, S + 12 + i, sMask + 2 * i, sMask + 2 * i + 1)
    a.I('v_max3_f32 v%d, v%d, v%d, v%d', TM + 2, S, S + 1, S + 2)
    a.I('v_max_f32 v%d, v%d, v%d', TM + 2, TM + 2, S + 3)
    a.I('v_max3_f32 v%d, v%d, v%d, v%d', TM + 3, S + 8, S + 9, S + 10)
    a.I('v_max3_f32 v%d, v%d, v%d, v%d', TM + 3, TM + 3, S + 11, S + 12)
    a.I('v_max3_f32 v%d, v%d, v%d, v%d', TM + 3, TM + 3, S + 13, S + 14)
    a.I('v_max_f32 v%d, v%d, v%d', TM + 3, TM + 3, S + 15)
    poll_flags(a, vF128, sT + 1, 4, sNeed, TM, sleep=SL1, far=(3, 60))
    bstamp(a, 2, V=250)
    a.I('s_lshl_b32 s%d, s%d, 12', sB2, sTask)
    a.I('s_add_u32 s%d, s%d, 0x%x', sB2, sB2, WS_VM)
    a.I('s_lshl_b32 m0, s%d, 12', S_WAVE)
    for k in range(4):
        a.I('buffer_load_dwordx4 v%d, %s, s%d offen offset:%d sc1 lds', vL16, WS, sB2, k * 1024)
    a.I('s_waitcnt vmcnt(0)')
    for f in range(4):
        o = ((f // 2) * 2048 + (f % 2) * 64) // 4
        if f == 2:
            a.I('v_add_u32 v%d, 2048, v%d', TM, vKm)
        for c in range(0, 4, 2):
            t = a.I('ds_read2_b32 v[%d:%d], v%d offset0:%d offset1:%d', KM + 4 * f + c, KM + 4 * f + c + 1, vKm if f < 2 else TM,
                    (f % 2) * 16 + c * 4, (f % 2) * 16 + c * 4 + 4)
        tk['km', f] = t
    a.I('v_add_u32 v%d, 2048, v%d', TM + 1, vVm)

    def rvm(tau):
        G, t = tau // 4, tau % 4
        o = (t // 2) * 4 + (t % 2) * 3
        tk['vm'] = a.I('ds_read2_b32 v[%d:%d], v%d offset0:%d offset1:%d', VM + 2 * tau, VM + 2 * tau + 1, vVm if G == 0 else TM + 1, o, o + 64)
    for f in range(4):
        a.wait(tk['km', f])
        for Tq, D in ((0, S + 4), (1, S + 16)):
            a.I('v_mfma_f32_16x16x32_bf16 v[%d:%d], %s, %s, %s', D, D + 3, vr(KM + 4 * f, 4), vr(QF + 16 * Tq + 4 * f, 4), '0' if f == 0 else vr(D, 4))
    for tau in range(8):
        rvm(tau)
    MX = [TM + 2, TM + 3]
    MT = [TM + 4, TM + 5]
    for Tq, D in ((0, S + 4), (1, S + 16)):
        a.I('v_max3_f32 v%d, v%d, v%d, v%d', MX[Tq], MX[Tq], D, D + 1)
        a.I('v_max3_f32 v%d, v%d, v%d, v%d', MX[Tq], MX[Tq], D + 2, D + 3)
    for op in ('v_permlane32_swap_b32', 'v_permlane16_swap_b32'):
        for Tq in range(2):
            a.I('v_mov_b32 v%d, v%d', MT[Tq], MX[Tq])
        for Tq in range(2):
            a.I('%s v%d, v%d', op, MX[Tq], MT[Tq])
        for Tq in range(2):
            a.I('v_max_f32 v%d, v%d, v%d', MX[Tq], MX[Tq], MT[Tq])
    for Tq, D in ((0, S + 4), (1, S + 16)):
        a.I('v_mul_f32 v%d, s%d, v%d', MX[Tq], sC, MX[Tq])
        for i in range(4):
            a.I('v_cndmask_b32 v%d, v%d, v%d, s[%d:%d]', D + i, vNeg, D + i, sLo, sLo + 1)
    rng = {0: range(S, S + 8), 1: range(S + 8, S + 20)}
    for Tq in range(2):
        for r in rng[Tq]:
            a.I('v_fma_f32 v%d, v%d, s%d, -v%d', r, r, sC, MX[Tq])
        for r in rng[Tq]:
            a.I('v_exp_f32 v%d, v%d', r, r)
    a.I('v_cvt_pk_bf16_f32 v%d, v%d, v%d', P, S, S + 1)
    a.I('v_cvt_pk_bf16_f32 v%d, v%d, v%d', P + 1, S + 2, S + 3)
    a.I('v_mov_b32 v%d, 0', P + 2)
    a.I('v_mov_b32 v%d, 0', P + 3)
    for k in range(4):
        a.I('v_cvt_pk_bf16_f32 v%d, v%d, v%d', P + 4 + k, S + 8 + 2 * k, S + 9 + 2 * k)
    for Tq, D in ((0, S + 4), (1, S + 16)):
        a.I('v_cvt_pk_bf16_f32 v%d, v%d, v%d', P + 8 + 2 * Tq, D, D + 1)
        a.I('v_cvt_pk_bf16_f32 v%d, v%d, v%d', P + 9 + 2 * Tq, D + 2, D + 3)
    for Tq in range(2):
        for tau in range(8):
            D = O + 32 * Tq + 4 * tau
            a.I('v_mfma_f32_16x16x32_bf16 v[%d:%d], %s, %s, 0', D, D + 3, vr(VF + 4 * tau, 4), vr(P + 4 * Tq, 4))
            if Tq == 0:
                k = tau
                if k == 0:
                    a.I('v_add_f32 v%d, v%d, v%d', MX[0], S, S + 1)
                    a.I('v_add_f32 v%d, v%d, v%d', MX[1], S + 8, S + 9)
                elif k < 7:
                    a.I('v_add_f32 v%d, v%d, v%d', MX[0], MX[0], S + 1 + k)
                    a.I('v_add_f32 v%d, v%d, v%d', MX[1], MX[1], S + 9 + k)
                else:
                    a.I('v_add_f32 v%d, v%d, v%d', MX[1], MX[1], S + 16)
                    a.I('v_add_f32 v%d, v%d, v%d', MX[1], MX[1], S + 17)
            elif tau == 0:
                a.I('v_add_f32 v%d, v%d, v%d', MX[1], MX[1], S + 18)
                a.I('v_add_f32 v%d, v%d, v%d', MX[1], MX[1], S + 19)
    a.wait(tk['vm'])
    for Tq in range(2):
        for tau in range(8):
            D = O + 32 * Tq + 4 * tau
            a.I('v_mfma_f32_16x16x16_bf16 v[%d:%d], %s, %s, %s', D, D + 3, vr(VM + 2 * tau, 2), vr(P + 8 + 2 * Tq, 2), vr(D, 4))
    for op in ('v_permlane32_swap_b32', 'v_permlane16_swap_b32'):
        for Tq in range(2):
            a.I('v_mov_b32 v%d, v%d', MT[Tq], MX[Tq])
        for Tq in range(2):
            a.I('%s v%d, v%d', op, MX[Tq], MT[Tq])
        for Tq in range(2):
            a.I('v_add_f32 v%d, v%d, v%d', MX[Tq], MX[Tq], MT[Tq])
    for Tq in range(2):
        a.I('v_rcp_f32 v%d, v%d', MX[Tq], MX[Tq])
    bstamp(a, 3, V=250)
    a.I('s_add_u32 s%d, s%d, 0x%x', sT + 1, sBase, WS_O)
    a.I('s_add_u32 s%d, s%d, 0x%x', sT + 2, sBase, WS_O + 4096)
    for Tq in range(2):
        for G in range(2):
            B = O + 32 * Tq + 16 * G
            for r in range(16):
                a.I('v_mul_f32 v%d, v%d, v%d', B + r, B + r, MX[Tq])
            PK = KF + 16 * Tq + 8 * G
            for i in range(4):
                for tp in range(2):
                    a.I('v_cvt_pk_bf16_f32 v%d, v%d, v%d', PK + 2 * i + tp, B + 8 * tp + i, B + 8 * tp + 4 + i)
            for hf in range(2):
                a.I('buffer_store_dwordx4 v[%d:%d], v%d, %s, s%d offen offset:%d sc1', PK + 4 * hf, PK + 4 * hf + 3, vL16, WS, sT + 1 + Tq,
                    G * 2048 + hf * 1024)
    a.I('s_add_u32 s%d, s%d, 1', sDone, sDone)
    a.I('s_waitcnt vmcnt(0)')
    flag_store(a, sFlO, V=TM, val='s%d' % sDone)
    a.I('s_add_u32 s%d, s%d, %d', sTask, sTask, NT1 * 4)
    a.I('s_cmp_lt_u32 s%d, 2048', sTask)
    a.I('s_cbranch_scc1 T1_loop')
    bstamp(a, 6)
    a.I('s_endpgm')


def gen_t2(a):
    a.c('================ T2: output projection + FFN down + final ================')
    sTile, sSl, sSegT, sPar, sOB, sXO, sL2e = 64, 65, 66, 67, 68, 69, 70
    vW1, vW2, vF4, vLw, vLr, vXo = 5, 6, 7, 8, 9, 10
    TM = 12
    SA, FA = 20, 28
    BUF = 36
    XR = 132
    HW = 144
    lane_consts(a)
    a.I('s_and_b32 s%d, s%d, 15', sSl, S_ROLE)
    a.I('s_lshr_b32 s%d, s%d, 4', sTile, S_ROLE)
    a.I('s_mov_b32 s%d, 0x%x', sL2e, f32bits(-1.4426950408889634))
    a.I('v_lshlrev_b32 v%d, 14, v%d', vW1, vG)
    a.I('v_lshl_add_u32 v%d, v%d, 2, v%d', vW1, vN, vW1)
    a.I('v_lshlrev_b32 v%d, 13, v%d', vW2, vG)
    a.I('v_lshl_add_u32 v%d, v%d, 2, v%d', vW2, vN, vW2)
    a.I('v_lshlrev_b32 v%d, 2, v%d', vF4, vLane)
    vFO, sNeedO = 11, 71
    a.I('v_lshrrev_b32 v%d, 2, v%d', vFO, vLane)
    a.I('v_lshlrev_b32 v%d, 7, v%d', vFO, vFO)
    a.I('v_and_b32 v%d, 3, v%d', TM, vLane)
    a.I('v_lshl_add_u32 v%d, v%d, 2, v%d', vFO, TM, vFO)
    a.I('s_lshl_b32 s%d, s%d, 12', sT, S_WAVE)
    a.I('v_add_u32 v%d, s%d, v%d', vLw, sT, vL16)
    a.I('s_lshl_b32 s%d, s%d, 10', sT, S_WAVE)
    a.I('v_add_u32 v%d, s%d, v%d', vLr, sT, vL16)
    a.I('v_lshlrev_b32 v%d, 10, v%d', vXo, vN)
    a.I('v_lshl_add_u32 v%d, v%d, 4, v%d', vXo, vG, vXo)
    a.I('s_lshl_b32 s%d, s%d, 6', sT, sSl)
    a.I('s_lshl_b32 s%d, s%d, 2', sT + 1, S_WAVE)
    a.I('s_add_u32 s%d, s%d, s%d', sT, sT, sT + 1)
    a.I('v_add_u32 v%d, s%d, v%d', vXo, sT, vXo)
    srd(a, S_W, P_WO, 4194304)
    srd(a, S_W2, P_WD, 1792 * 1024)
    sWo, sWd = sT + 2, sT + 3
    a.I('s_lshl_b32 s%d, s%d, 6', sT, sSl)
    a.I('s_lshl_b32 s%d, s%d, 20', sWo, S_WAVE)
    a.I('s_add_u32 s%d, s%d, s%d', sWo, sWo, sT)
    a.I('s_mul_i32 s%d, s%d, %d', sWd, S_WAVE, 14 * 32 * 1024)
    a.I('s_add_u32 s%d, s%d, s%d', sWd, sWd, sT)
    frs = [('d', j) for j in range(14)] + [('o', j) for j in range(32)]
    GS = 2
    groups = [frs[i:i + GS] for i in range(0, len(frs), GS)]
    NB = 3
    toks = {}

    def issue(gi):
        b = BUF + 16 * (gi % (NB + 1))
        for q, (kind, j) in enumerate(groups[gi]):
            for e in range(8):
                if kind == 'o':
                    row = (j // 4) * 128 + 64 * ((j % 4) // 2) + 8 * (j % 2) + e
                    a.I('s_add_u32 s%d, s%d, %d', sT, sWo, row * 1024)
                    t = a.I('buffer_load_dword v%d, v%d, s[%d:%d], s%d offen', b + 8 * q + e, vW1, S_W, S_W + 3, sT)
                else:
                    a.I('s_add_u32 s%d, s%d, %d', sT, sWd, (32 * j + e) * 1024)
                    t = a.I('buffer_load_dword v%d, v%d, s[%d:%d], s%d offen', b + 8 * q + e, vW2, S_W2, S_W2 + 3, sT)
        toks[gi] = t

    def consume(gi):
        b = BUF + 16 * (gi % (NB + 1))
        a.wait(toks[gi])
        for q, (kind, j) in enumerate(groups[gi]):
            for t in range(2):
                for p in range(4):
                    dst = HW + 8 * j + 4 * t + p if kind == 'd' else TM + 4 * t + p
                    a.I('v_perm_b32 v%d, v%d, v%d, s%d', dst, b + 8 * q + 2 * p + 1, b + 8 * q + 2 * p, sPermLo if t == 0 else sPermHi)
            if kind == 'o':
                for k in range(8):
                    a.I('v_accvgpr_write_b32 a%d, v%d', 8 * j + k, TM + k)
    for gi in range(NB):
        issue(gi)
    for gi in range(len(groups)):
        if gi + NB < len(groups):
            issue(gi + NB)
        consume(gi)
    srd(a, S_W, P_X, 2097152)
    srd(a, S_W2, P_OUT, 2097152)
    a.I('s_mov_b32 s%d, 0', sPar)
    bstamp(a, 5)
    a.label('T2_loop')
    a.I('s_lshr_b32 s%d, s%d, 1', sSegT, sTile)
    a.I('s_lshl_b32 s%d, s%d, 6', sT + 1, sSegT)
    a.I('s_add_u32 s%d, s%d, 0x%x', sT + 1, sT + 1, WS_FLAGS + FL_H)
    poll_flags(a, vF4, sT + 1, 14, None, TM, sleep=8)
    a.I('s_mul_i32 s%d, s%d, %d', sT + 1, sTile, 56 * 1024)
    a.I('s_mul_i32 s%d, s%d, %d', sT + 2, S_WAVE, 14 * 1024)
    a.I('s_add_u32 s%d, s%d, s%d', sT + 1, sT + 1, sT + 2)
    a.I('s_add_u32 s%d, s%d, 0x%x', sT + 1, sT + 1, WS_H)
    ht = []
    for j in range(14):
        if j and j % 4 == 0:
            a.I('s_add_u32 s%d, s%d, 4096', sT + 1, sT + 1)
        ht.append(a.I('buffer_load_dwordx4 v[%d:%d], v%d, %s, s%d offen offset:%d sc1', BUF + 4 * j, BUF + 4 * j + 3, vL16, WS, sT + 1, (j % 4) * 1024))
    a.I('s_lshl_b32 s%d, s%d, 14', sXO, sTile)
    a.I('buffer_load_dword v%d, v%d, s[%d:%d], s%d offen', XR, vXo, S_W, S_W + 3, sXO)
    for j in range(14):
        a.wait(ht[j])
        for t in range(2):
            a.I('v_mfma_f32_16x16x32_bf16 v[%d:%d], %s, %s, %s', FA + 4 * t, FA + 4 * t + 3, vr(HW + 8 * j + 4 * t, 4), vr(BUF + 4 * j, 4),
                '0' if j == 0 else vr(FA + 4 * t, 4))
    assert NT1 == 96
    a.I('s_mul_i32 s%d, s%d, 43', sNeedO, sSegT)
    a.I('s_lshr_b32 s%d, s%d, 9', sNeedO, sNeedO)
    a.I('s_mul_i32 s%d, s%d, 12', sT + 1, sNeedO)
    a.I('s_sub_u32 s%d, s%d, s%d', sT + 1, sSegT, sT + 1)
    a.I('s_lshl_b32 s%d, s%d, 10', sT + 1, sT + 1)
    a.I('s_lshl_b32 s%d, s%d, 8', sT + 2, S_WAVE)
    a.I('s_add_u32 s%d, s%d, s%d', sT + 1, sT + 1, sT + 2)
    a.I('s_add_u32 s%d, s%d, 0x%x', sT + 1, sT + 1, WS_FLAGS + FL_O)
    a.I('s_add_u32 s%d, s%d, 1', sNeedO, sNeedO)
    a.I('s_lshl_b32 s%d, s%d, 18', sOB, sSegT)
    a.I('s_lshl_b32 s%d, s%d, 16', sT + 2, S_WAVE)
    a.I('s_add_u32 s%d, s%d, s%d', sOB, sOB, sT + 2)
    a.I('s_and_b32 s%d, s%d, 1', sT + 2, sTile)
    a.I('s_lshl_b32 s%d, s%d, 12', sT + 2, sT + 2)
    a.I('s_add_u32 s%d, s%d, s%d', sOB, sOB, sT + 2)
    a.I('s_add_u32 s%d, s%d, 0x%x', sOB, sOB, WS_O)
    for t in range(2):
        for i in range(4):
            a.I('ds_write_b32 v%d, v%d offset:%d', vLw, FA + 4 * t + i, i * 1024 + 8 + 4 * t)
    poll_flags(a, vFO, sT + 1, 8, sNeedO, TM, sleep=SL2)
    bstamp(a, 2, V=134)
    ot = {}

    def oload(j):
        if j % 4 == 0:
            a.I('s_add_u32 s%d, s%d, %d', sT + 1, sOB, (j // 4) * 8192)
        r = BUF + 4 * (j % 24)
        ot[j] = a.I('buffer_load_dwordx4 v[%d:%d], v%d, %s, s%d offen offset:%d sc1', r, r + 3, vL16, WS, sT + 1, (j % 4) * 1024)
    for j in range(24):
        oload(j)
    for j in range(32):
        a.wait(ot[j])
        r = BUF + 4 * (j % 24)
        for t in range(2):
            a.I('v_mfma_f32_16x16x32_bf16 v[%d:%d], %s, %s, %s', SA + 4 * t, SA + 4 * t + 3, ar(8 * j + 4 * t, 4), vr(r, 4),
                '0' if j == 0 else vr(SA + 4 * t, 4))
        if j + 24 < 32:
            oload(j + 24)
    bstamp(a, 3, V=134)
    if BST:
        a.I('s_nop 7')
    for t in range(2):
        for i in range(4):
            a.I('ds_write_b32 v%d, v%d offset:%d', vLw, SA + 4 * t + i, i * 1024 + 4 * t)
    a.I('s_waitcnt lgkmcnt(0)')
    a.I('s_barrier')
    R = BUF
    for w in range(4):
        a.I('ds_read_b128 v[%d:%d], v%d offset:%d', R + 4 * w, R + 4 * w + 3, vLr, w * 4096)
    a.I('v_xor_b32 v%d, 16384, v%d', vLw, vLw)
    a.I('v_xor_b32 v%d, 16384, v%d', vLr, vLr)
    a.I('s_waitcnt lgkmcnt(0)')
    for k in range(4):
        a.I('v_add_f32 v%d, v%d, v%d', R + k, R + k, R + 4 + k)
        a.I('v_add_f32 v%d, v%d, v%d', R + 8 + k, R + 8 + k, R + 12 + k)
    for k in range(4):
        a.I('v_add_f32 v%d, v%d, v%d', R + k, R + k, R + 8 + k)

    def unpack(dst, src):
        a.I('v_and_b32 v%d, 0xffff0000, v%d', dst + 1, src)
        a.I('v_lshlrev_b32 v%d, 16, v%d', dst, src)
    a.I('v_cvt_pk_bf16_f32 v%d, v%d, v%d', R, R, R + 1)
    a.I('v_cvt_pk_bf16_f32 v%d, v%d, v%d', R + 2, R + 2, R + 3)
    unpack(R, R)
    unpack(R + 2, R + 2)
    for k in range(2):
        a.I('v_mul_f32 v%d, s%d, v%d', R + 4 + k, sL2e, R + 2 + k)
    for k in range(2):
        a.I('v_exp_f32 v%d, v%d', R + 4 + k, R + 4 + k)
    for k in range(2):
        a.I('v_add_f32 v%d, 1.0, v%d', R + 4 + k, R + 4 + k)
    for k in range(2):
        a.I('v_rcp_f32 v%d, v%d', R + 4 + k, R + 4 + k)
    for k in range(2):
        a.I('v_mul_f32 v%d, v%d, v%d', R + 2 + k, R + 2 + k, R + 4 + k)
    a.I('v_cvt_pk_bf16_f32 v%d, v%d, v%d', R + 2, R + 2, R + 3)
    unpack(R + 2, R + 2)
    for k in range(2):
        a.I('v_mul_f32 v%d, v%d, v%d', R + k, R + k, R + 2 + k)
    a.I('v_cvt_pk_bf16_f32 v%d, v%d, v%d', R, R, R + 1)
    unpack(R, R)
    unpack(R + 2, XR)
    for k in range(2):
        a.I('v_add_f32 v%d, v%d, v%d', R + k, R + k, R + 2 + k)
    a.I('v_cvt_pk_bf16_f32 v%d, v%d, v%d', TM + 1, R, R + 1)
    a.I('buffer_store_dword v%d, v%d, s[%d:%d], s%d offen', TM + 1, vXo, S_W2, S_W2 + 3, sXO)
    a.I('s_add_u32 s%d, s%d, 8', sTile, sTile)
    a.I('s_cmp_lt_u32 s%d, 128', sTile)
    a.I('s_cbranch_scc1 T2_loop')
    dbg_time(a, 11, V=134)
    bstamp(a, 7)
    a.I('s_endpgm')
```

```python
import struct
from asmlib import *
from common import *

LKX, LX1, LX2, LMISC, LW = 0, 8192, 13312, 14336, 16384
GS, KS = 256, 1024
LM = 8192
LWSTRIDE = 18 * 2048

vM0, vIdx, vBias, vL16, vLW, vInSt, vM1, vMxSt = 0, 1, 2, 3, 4, 5, 6, 7
vVld, vKxSrc, vX1w, vX1rq, vX1rk, vX2w, vM2, vM3 = 8, 9, 10, 11, 12, 13, 14, 15
vWarm, vDummy, vSaveV, vT0 = 16, 17, 18, 20
MEM, ACC, VT, STG, WV = 24, 56, 80, 96, 144

sStep, sTag, sMxRd = 64, 65, 66
sRing = 88
sMxWr, sMxRst = 88, 90
sW10, sStampAddr = 68, 69
sRetry = 67
sIn = 70
sInLd, sInLd2 = 72, 73
sMxW = 74
sKx, sV, sKm, sVm, sVmPrev = 75, 76, 77, 78, 79
sHalf = 80
sC = 82
sSpin = 83
sT = 84
sM0a, sM0b = 92, 93
sFl = 94
sPermLo, sPermHi = 95, 96
sWarm = 97
sMxRd2 = 98
sKvf, sKvfMax = 73, 77
sPiece = 99
sMode = 63
sC2, sNC = 30, 82
sSel = 24


def f32bits(x):
    return struct.unpack('<I', struct.pack('<f', x))[0]


def mem(k):
    return MEM + 4 * k


def acc(i):
    return ACC + 4 * i


def slot(j):
    return STG + 8 * j


WO_ORDER = [('o', b, t, ks) for b in range(2) for t in range(4) for ks in range(2)]
WO_ORDER[1], WO_ORDER[2] = WO_ORDER[2], WO_ORDER[1]


def placement():
    P = {}
    lds = [('q', 0, 0), ('q', 1, 0), ('k', 0, 0), ('k', 1, 0), ('v', 0, 0), ('v', 1, 0)]
    lds += WO_ORDER[0:6] + WO_ORDER[10:16]
    for i, k in enumerate(lds):
        P[k] = ('l', i)
    rest = []
    for X in 'qkv':
        for kp in range(8):
            for t in range(2):
                if (X, t, kp) not in P:
                    rest.append((X, t, kp))
    rest += WO_ORDER[6:10]
    assert len(rest) == 46
    for n, k in enumerate(rest):
        P[k] = ('v', WV + 8 * n) if n < 14 else ('a', 8 * (n - 14))
    return P


PL = placement()


def breg(key):
    kind, r = PL[key]
    if kind == 'v':
        return vr(r, 8)
    if kind == 'a':
        return ar(r, 8)
    return vr(slot(r % 6), 8)


def d0_instr(m):
    return 32 * (m // 4) + 8 * (m % 2) + 2 * ((m % 4) // 2)


def srd(a, s, ptr, size):
    a.I('s_mov_b32 s%d, s%d', s, ptr)
    a.I('s_and_b32 s%d, s%d, 0xffff', s + 1, ptr + 1)
    a.I('s_mov_b32 s%d, 0x%x', s + 2, size)
    a.I('s_mov_b32 s%d, 0x20000', s + 3)


def stamp(a, cfg, idx):
    if not cfg.get('stamps'):
        return
    if cfg['stamps'] >= 2 and idx != 0:
        return
    if cfg['stamps'] == 4:
        return
    a.I('%s s[%d:%d]', 's_memrealtime' if cfg.get('rt') else 's_memtime', 32 + 2 * idx, 33 + 2 * idx)


def gen_rec(a, cfg):
    if cfg.get('stamps') == 3:
        orig_emit = a.emit
        cnt = dict(n=0, on=False)

        def emit(line):
            if line.startswith('R_goA:'):
                cnt['on'] = True
            if cnt['on'] and (line.startswith('v_smfmac') or line.startswith('v_mfma')):
                k = cnt['n'] - cfg['st0']
                if cnt['n'] >= 12 and k >= 0 and k % cfg['stp'] == 0 and k // cfg['stp'] < 9:
                    orig_emit('s_memtime s[%d:%d]' % (34 + 2 * (k // cfg['stp']), 35 + 2 * (k // cfg['stp'])))
                cnt['n'] += 1
            return orig_emit(line)
        a.emit = emit
    fast = cfg.get('fast', True)
    stf = '' if fast else ' sc1'
    nsteps = cfg.get('nsteps', 64)
    T0, T1, T2, T3 = vT0, vT0 + 1, vT0 + 2, vT0 + 3
    WS = 's[%d:%d]' % (S_WS, S_WS + 3)
    vLane = VT + 15
    vN, vG = T0, T1
    a.c('================ recurrence role: s%d = head ================' % S_ROLE)
    if cfg.get('hxor'):
        a.I('s_xor_b32 s%d, s%d, %d', S_ROLE, S_ROLE, cfg['hxor'])
    a.I('v_and_b32 v%d, 63, v0', vLane)
    a.I('v_lshlrev_b32 v%d, 4, v%d', vL16, vLane)
    a.I('v_and_b32 v%d, 15, v%d', vN, vLane)
    a.I('v_lshrrev_b32 v%d, 4, v%d', vG, vLane)
    a.I('s_mov_b32 s%d, 0xcccccccc', sHalf)
    a.I('s_mov_b32 s%d, 0xcccccccc', sHalf + 1)
    a.I('v_mov_b32 v%d, 0x4444', vIdx)
    a.I('v_mov_b32 v%d, 0xeeee', T2)
    a.I('v_cndmask_b32 v%d, v%d, v%d, s[%d:%d]', vIdx, vIdx, T2, sHalf, sHalf + 1)
    a.I('s_mov_b32 s%d, 0', sT)
    a.I('s_mov_b32 s%d, 0x33333333', sT + 1)
    a.I('v_mov_b32 v%d, 0', vBias)
    a.I('v_mov_b32 v%d, 0x%x', T2, f32bits(3.0e38))
    a.I('v_cndmask_b32 v%d, v%d, v%d, s[%d:%d]', vBias, vBias, T2, sT, sT + 1)
    a.I('s_mov_b32 s%d, 0x%x', sC2, f32bits(128 ** -0.5 * 1.4426950408889634))
    a.I('s_mov_b32 s%d, 0x%x', sC2 + 1, f32bits(128 ** -0.5 * 1.4426950408889634))
    a.I('s_mov_b32 s%d, 0x%x', sNC, f32bits(-128 ** -0.5 * 1.4426950408889634))
    a.I('s_mov_b32 s%d, 0x05040100', sPermLo)
    a.I('s_mov_b32 s%d, 0x07060302', sPermHi)
    for k, m in enumerate((0x000f000f, 0x00f000f0, 0xaaaaaaaa)):
        a.I('s_mov_b32 s%d, 0x%x', sSel + 2 * k, m)
        a.I('s_mov_b32 s%d, 0x%x', sSel + 2 * k + 1, m)
    a.I('s_mul_i32 s%d, s%d, %d', sT, S_WAVE, LWSTRIDE)
    a.I('s_add_u32 s%d, s%d, %d', sT, sT, LW)
    a.I('v_add_u32 v%d, s%d, v%d', vLW, sT, vL16)
    a.I('s_lshl_b32 s%d, s%d, 10', sT, S_WAVE)
    a.I('s_add_u32 s%d, s%d, 0x%x', sMxW, sT, WS_MEMX)
    a.I('s_add_u32 s%d, s%d, %d', sT, sT, LM)
    a.I('v_add_u32 v%d, s%d, v%d', vM0, sT, vL16)
    a.I('v_xor_b32 v%d, 1024, v%d', vM1, vM0)
    a.I('v_xor_b32 v%d, 2048, v%d', vM2, vM0)
    a.I('v_xor_b32 v%d, 3072, v%d', vM3, vM0)
    a.I('v_lshlrev_b32 v%d, 13, v%d', vInSt, vG)
    a.I('v_lshrrev_b32 v%d, 2, v%d', T2, vN)
    a.I('v_lshl_add_u32 v%d, v%d, 11, v%d', vInSt, T2, vInSt)
    a.I('v_and_b32 v%d, 3, v%d', T2, vN)
    a.I('v_lshl_add_u32 v%d, v%d, 4, v%d', vInSt, T2, vInSt)
    a.I('s_lshl_b32 s%d, s%d, 15', sT, S_WAVE)
    a.I('s_lshl_b32 s%d, s%d, 6', sT + 1, S_ROLE)
    a.I('s_add_u32 s%d, s%d, s%d', sT, sT, sT + 1)
    a.I('s_add_u32 s%d, s%d, 0x%x', sIn, sT, WS_INBOX)
    a.I('s_add_u32 s%d, s%d, 0x%x', sIn + 1, sT, WS_INBOX + 131072)
    sPi = sT + 4
    a.I('s_lshl_b32 s%d, s%d, 1', sPi, S_ROLE)
    a.I('s_and_b32 s%d, s%d, 1', sT, S_WAVE)
    a.I('s_add_u32 s%d, s%d, s%d', sPi, sPi, sT)
    a.I('s_lshr_b32 s%d, s%d, 1', sT, S_WAVE)
    a.I('s_lshl_b32 s%d, s%d, 6', sT, sT)
    a.I('s_add_u32 s%d, s%d, s%d', sPi, sPi, sT)
    a.I('s_mov_b32 s%d, s%d', sPiece, sPi)
    a.I('s_lshl_b32 s%d, s%d, 11', sT, sPi)
    a.I('s_add_u32 s%d, s%d, 0x%x', sInLd, sT, WS_INBOX)
    a.I('s_lshr_b32 s%d, s%d, 4', sT, sPi)
    a.I('s_lshl_b32 s%d, s%d, 10', sT, sT)
    a.I('s_bfe_u32 s%d, s%d, 0x20002', sT + 1, sPi)
    a.I('s_lshl_b32 s%d, s%d, 6', sT + 1, sT + 1)
    a.I('s_add_u32 s%d, s%d, s%d', sT, sT, sT + 1)
    a.I('s_and_b32 s%d, s%d, 3', sT + 1, sPi)
    a.I('s_lshl_b32 s%d, s%d, 8', sT + 1, sT + 1)
    a.I('s_add_u32 s%d, s%d, s%d', sT, sT, sT + 1)
    a.I('v_and_b32 v%d, 1, v%d', T2, vG)
    a.I('v_lshlrev_b32 v%d, 4, v%d', vMxSt, T2)
    a.I('v_bfe_u32 v%d, v%d, 1, 1', T2, vN)
    a.I('v_lshl_add_u32 v%d, v%d, 5, v%d', vMxSt, T2, vMxSt)
    a.I('v_and_b32 v%d, 1, v%d', T2, vN)
    a.I('v_lshl_add_u32 v%d, v%d, 3, v%d', vMxSt, T2, vMxSt)
    a.I('v_add_u32 v%d, s%d, v%d', vMxSt, sT, vMxSt)
    a.I('v_and_b32 v%d, 1, v%d', T2, vN)
    a.I('v_lshlrev_b32 v%d, 11, v%d', vVld, T2)
    a.I('v_lshrrev_b32 v%d, 1, v%d', T2, vG)
    a.I('v_lshl_add_u32 v%d, v%d, 8, v%d', vVld, T2, vVld)
    a.I('v_lshrrev_b32 v%d, 1, v%d', T2, vN)
    a.I('v_lshl_add_u32 v%d, v%d, 4, v%d', vVld, T2, vVld)
    a.I('v_and_b32 v%d, 1, v%d', T2, vG)
    a.I('v_lshlrev_b32 v%d, 2, v%d', T2, T2)
    a.I('v_sub_u32 v%d, v%d, v%d', vVld, vVld, T2)
    a.I('s_lshr_b32 s%d, s%d, 1', sT, S_WAVE)
    a.I('s_lshl_b32 s%d, s%d, 12', sT, sT)
    a.I('s_and_b32 s%d, s%d, 1', sT + 1, S_WAVE)
    a.I('s_lshl_b32 s%d, s%d, 7', sT + 1, sT + 1)
    a.I('s_add_u32 s%d, s%d, s%d', sT, sT, sT + 1)
    a.I('s_add_u32 s%d, s%d, 4', sT, sT)
    a.I('v_add_u32 v%d, s%d, v%d', vVld, sT, vVld)
    a.I('v_and_b32 v%d, 1, v%d', T2, vG)
    a.I('v_lshlrev_b32 v%d, 10, v%d', vKxSrc, T2)
    a.I('v_lshrrev_b32 v%d, 1, v%d', T2, vG)
    a.I('v_lshl_add_u32 v%d, v%d, 8, v%d', vKxSrc, T2, vKxSrc)
    a.I('v_lshl_add_u32 v%d, v%d, 4, v%d', vKxSrc, vN, vKxSrc)
    a.I('s_lshl_b32 s%d, s%d, 11', sM0a, S_WAVE)
    a.I('v_add_u32 v%d, s%d, v%d', vKxSrc, sM0a, vKxSrc)
    a.I('s_add_u32 s%d, s%d, %d', sM0a, sM0a, LKX)
    a.I('s_add_u32 s%d, s%d, %d', sM0b, sM0a, 1024 - 512)
    a.I('s_mov_b32 s%d, %d', sT + 1, GS)
    a.I('v_lshrrev_b32 v%d, 2, v%d', T2, vN)
    a.I('v_mul_lo_u32 v%d, v%d, s%d', vX1w, T2, sT + 1)
    a.I('v_lshl_add_u32 v%d, v%d, 5, v%d', vX1w, vG, vX1w)
    a.I('v_and_b32 v%d, 3, v%d', T2, vN)
    a.I('v_lshl_add_u32 v%d, v%d, 2, v%d', vX1w, T2, vX1w)
    a.I('s_mul_i32 s%d, s%d, %d', sT, S_WAVE, KS)
    a.I('s_add_u32 s%d, s%d, %d', sT, sT, LX1)
    a.I('v_add_u32 v%d, s%d, v%d', vX1w, sT, vX1w)
    a.I('v_bfe_u32 v%d, v%d, 2, 1', T2, vN)
    a.I('v_mul_u32_u24 v%d, 192, v%d', T2, T2)
    a.I('v_xor_b32 v%d, v%d, v%d', vX1w, T2, vX1w)
    a.I('v_mul_lo_u32 v%d, v%d, s%d', vX1rk, vG, sT + 1)
    a.I('v_lshrrev_b32 v%d, 2, v%d', T2, vN)
    a.I('v_lshlrev_b32 v%d, 5, v%d', T2, T2)
    a.I('v_and_b32 v%d, 1, v%d', T3, vN)
    a.I('v_lshl_add_u32 v%d, v%d, 4, v%d', T2, T3, T2)
    a.I('v_add_u32 v%d, v%d, v%d', vX1rq, vX1rk, T2)
    a.I('v_add_u32 v%d, %d, v%d', vX1rq, LX1, vX1rq)
    a.I('v_and_b32 v%d, 7, v%d', T2, vN)
    a.I('v_lshl_add_u32 v%d, v%d, 4, v%d', vX1rk, T2, vX1rk)
    a.I('v_add_u32 v%d, %d, v%d', vX1rk, LX1 + 128, vX1rk)
    a.I('v_and_b32 v%d, 1, v%d', T2, vG)
    a.I('v_mul_u32_u24 v%d, 192, v%d', T2, T2)
    a.I('v_xor_b32 v%d, v%d, v%d', vX1rq, T2, vX1rq)
    a.I('v_xor_b32 v%d, v%d, v%d', vX1rk, T2, vX1rk)
    a.I('v_lshrrev_b32 v%d, 3, v%d', T2, vN)
    a.I('v_lshlrev_b32 v%d, 8, v%d', vX2w, T2)
    a.I('v_lshl_add_u32 v%d, v%d, 6, v%d', vX2w, vG, vX2w)
    a.I('v_bfe_u32 v%d, v%d, 2, 1', T2, vN)
    a.I('v_lshl_add_u32 v%d, v%d, 5, v%d', vX2w, T2, vX2w)
    a.I('v_and_b32 v%d, 3, v%d', T2, vN)
    a.I('v_lshl_add_u32 v%d, v%d, 2, v%d', vX2w, T2, vX2w)
    a.I('s_lshl_b32 s%d, s%d, 9', sT, S_WAVE)
    a.I('s_add_u32 s%d, s%d, %d', sT, sT, LX2)
    a.I('v_add_u32 v%d, s%d, v%d', vX2w, sT, vX2w)
    if cfg.get('warm128'):
        a.I('v_lshrrev_b32 v%d, 1, v%d', vWarm, vLane)
        a.I('v_lshlrev_b32 v%d, 7, v%d', vWarm, vWarm)
    else:
        a.I('v_lshlrev_b32 v%d, 6, v%d', vWarm, vLane)
    a.I('s_lshl_b32 s%d, s%d, 13', sT, S_ROLE)
    a.I('s_and_b32 s%d, s%d, 1', sT + 1, S_WAVE)
    a.I('s_lshl_b32 s%d, s%d, 12', sT + 1, sT + 1)
    a.I('s_add_u32 s%d, s%d, s%d', sT, sT, sT + 1)
    a.I('s_lshr_b32 s%d, s%d, 1', sT + 1, S_WAVE)
    a.I('s_mul_i32 s%d, s%d, 0x%x', sT + 1, sT + 1, WS_V - WS_K)
    a.I('s_add_u32 s%d, s%d, s%d', sT, sT, sT + 1)
    a.I('v_add_u32 v%d, s%d, v%d', vWarm, sT, vWarm)
    a.I('s_lshl_b32 s%d, s%d, 13', sT, S_ROLE)
    a.I('s_add_u32 s%d, s%d, 0x%x', sKx, sT, WS_K)
    a.I('s_add_u32 s%d, s%d, 0x%x', sV, sT, WS_V - 4)
    a.I('s_lshl_b32 s%d, s%d, 12', sT, S_ROLE)
    a.I('s_lshl_b32 s%d, s%d, 10', sT + 1, S_WAVE)
    a.I('s_add_u32 s%d, s%d, s%d', sT, sT, sT + 1)
    a.I('s_add_u32 s%d, s%d, 0x%x', sStampAddr, sT, WS_VM)
    a.I('s_lshl_b32 s%d, s%d, 9', sT, S_ROLE)
    a.I('s_lshl_b32 s%d, s%d, 7', sT + 1, S_WAVE)
    a.I('s_add_u32 s%d, s%d, s%d', sT, sT, sT + 1)
    a.I('s_add_u32 s%d, s%d, 0x%x', sFl, sT, WS_FLAGS + FL_KM)
    a.I('s_mov_b32 s%d, 0x%x', sWarm, WS_K + 2 * 262144)

    a.c('init exchange buffers')
    for k in range(4):
        a.I('v_mov_b32 v%d, -1', ACC + k)
    for k in range(2):
        a.I('buffer_store_dwordx4 v[%d:%d], v%d, %s, s%d offen offset:%d sc1', ACC, ACC + 3, vL16, WS, sInLd, 1024 * k)
    for k in range(1, 4):
        a.I('s_mov_b32 s%d, 0x%x', sT, WS_MEMX + k * 8192)
        a.I('buffer_store_dwordx2 v[%d:%d], v%d, %s, s%d offen sc1', ACC, ACC + 1, vMxSt, WS, sT)
    srd(a, S_W, P_MEM0, 8192)
    a.I('v_and_b32 v%d, 1, v%d', T2, vG)
    a.I('v_lshlrev_b32 v%d, 10, v%d', T2, T2)
    a.I('v_and_b32 v%d, 3, v%d', T3, vN)
    a.I('v_lshl_add_u32 v%d, v%d, 3, v%d', T2, T3, T2)
    a.I('s_and_b32 s%d, s%d, 3', sT, sPiece)
    a.I('s_lshl_b32 s%d, s%d, 5', sT, sT)
    a.I('v_add_u32 v%d, s%d, v%d', T2, sT, T2)
    a.I('s_bfe_u32 s%d, s%d, 0x20002', sT, sPiece)
    a.I('s_lshl_b32 s%d, s%d, 11', sT, sT)
    a.I('s_lshr_b32 s%d, s%d, 4', sT + 1, sPiece)
    a.I('s_lshl_b32 s%d, s%d, 7', sT + 1, sT + 1)
    a.I('s_add_u32 s%d, s%d, s%d', sT, sT, sT + 1)
    a.I('buffer_load_dwordx2 v[%d:%d], v%d, s[%d:%d], s%d offen', vSaveV, vSaveV + 1, T2, S_W, S_W + 3, sT)

    a.c('weights')
    vRow, vWo, vDs = VT + 13, VT + 14, VT + 12
    GA = [VT + 8, VT + 9, VT + 10, VT + 11]
    a.I('v_lshrrev_b32 v%d, 1, v%d', vRow, vG)
    a.I('v_lshlrev_b32 v%d, 4, v%d', vRow, vRow)
    a.I('v_and_b32 v%d, 1, v%d', vWo, vG)
    a.I('v_lshl_add_u32 v%d, v%d, 2, v%d', vRow, vWo, vRow)
    a.I('v_lshlrev_b32 v%d, 10, v%d', vWo, vRow)
    a.I('v_lshl_add_u32 v%d, v%d, 3, v%d', vWo, vN, vWo)
    a.I('v_lshlrev_b32 v%d, 8, v%d', vRow, vRow)
    a.I('v_lshl_add_u32 v%d, v%d, 2, v%d', vRow, vN, vRow)
    for kp in range(4):
        a.I('s_xor_b32 s%d, s%d, %d', sT, S_WAVE, kp)
        a.I('s_lshl_b32 s%d, s%d, 14', sT, sT)
        a.I('s_lshl_b32 s%d, s%d, 6', sT + 1, S_WAVE)
        a.I('s_add_u32 s%d, s%d, s%d', sT, sT, sT + 1)
        a.I('s_add_u32 s%d, s%d, %d', sT, sT, LW)
        a.I('v_add_u32 v%d, s%d, v%d', GA[kp], sT, vRow)
    a.I('v_lshlrev_b32 v%d, 13, v%d', vDs, vG)
    a.I('v_lshl_add_u32 v%d, v%d, 4, v%d', vDs, vN, vDs)
    sSrc, sDst, sOb = sT + 2, sT + 3, sT + 6
    a.I('s_lshl_b32 s%d, s%d, 8', sSrc, S_ROLE)
    a.I('s_lshl_b32 s%d, s%d, 19', sT, S_WAVE)
    a.I('s_add_u32 s%d, s%d, s%d', sSrc, sSrc, sT)
    a.I('s_lshl_b32 s%d, s%d, 14', sDst, S_WAVE)
    a.I('s_add_u32 s%d, s%d, %d', sDst, sDst, LW)
    a.I('s_lshl_b32 s%d, s%d, 17', sOb, S_ROLE)
    a.I('s_lshl_b32 s%d, s%d, 7', sT, S_WAVE)
    a.I('s_add_u32 s%d, s%d, s%d', sOb, sOb, sT)
    outb = MEM
    utok = {}
    word = ('qkv', 'kvq', 'kqv', 'vkq')[cfg.get('word', 0)]

    def dma_unit(u):
        sr_ = S_W if (u // 2) % 2 == 0 else S_W2
        if u % 2 == 0:
            srd(a, sr_, {'q': P_WQ, 'k': P_WK, 'v': P_WV}[word[u // 2]], 4194304)
        for j in range(16):
            a.I('s_add_u32 m0, s%d, %d', sDst, (u % 2) * 65536 + j * 1024)
            a.I('s_add_u32 s%d, s%d, %d', sT, sSrc, ((u % 2) * 256 + 4 * j) * 8192)
            utok[u] = a.I('buffer_load_dwordx4 v%d, s[%d:%d], s%d offen%s lds', vDs, sr_, sr_ + 3, sT, ' nt' if cfg.get('wnt') else '')

    late_lds = []

    def put(key, m0, nm, srcs, hold=False):
        kind, r = PL[key]
        ob = outb + (put.n % 2) * 8
        put.n += 1
        for k, (rh, rl, sel) in enumerate(srcs):
            if kind == 'v':
                dst = r + m0 + k
            elif kind == 'l' and hold:
                dst = slot(r) + m0 + k
            else:
                dst = ob + k
            a.I('v_perm_b32 v%d, v%d, v%d, s%d', dst, rh, rl, sel)
        if kind == 'a':
            for k in range(nm):
                a.I('v_accvgpr_write_b32 a%d, v%d', r + m0 + k, ob + k)
        elif kind == 'l' and hold:
            late_lds.append(r)
        elif kind == 'l':
            for q in range(nm // 4):
                a.I('ds_write_b128 v%d, v[%d:%d] offset:%d', vLW, ob + 4 * q, ob + 4 * q + 3, r * 2048 + ((m0 // 4) + q) * 1024)
    put.n = 0
    gb = [40, 56]

    def gather_unit(u):
        X = word[u // 2]
        gt = {}

        def rd(k):
            b = gb[k % 2]
            for m in range(8):
                gt[k] = a.I('ds_read2st64_b32 v[%d:%d], v%d offset0:%d offset1:%d', b + 2 * m, b + 2 * m + 1, GA[k], d0_instr(m), d0_instr(m) + 1)
        rd(0)
        for k in range(4):
            if k + 1 < 4:
                rd(k + 1)
            a.wait(gt[k])
            b = gb[k % 2]
            for t in range(2):
                put((X, t, 4 * (u % 2) + k), 0, 8, [(b + 2 * m + 1, b + 2 * m, sPermLo if t == 0 else sPermHi) for m in range(8)], hold=True)
        for k in range(4):
            a.I('v_xor_b32 v%d, 0x%x, v%d', GA[k], (LW ^ (LW + 65536)) if False else 0, GA[k]) if False else None
        for k in range(4):
            if u % 2 == 0:
                a.I('v_add_u32 v%d, 65536, v%d', GA[k], GA[k])
            else:
                a.I('v_subrev_u32 v%d, 65536, v%d', GA[k], GA[k])

    wgroups = [(ks, b, mh) for b in range(2) for ks in range(2) for mh in range(2)]
    wbufs = [40, 56, 72]
    wtok = {}

    def wissue(gi, bufs):
        ks, b_, mh = wgroups[gi]
        b = bufs[gi % len(bufs)]
        for mm in range(4):
            m = 4 * mh + mm
            for j in range(2):
                row = 64 * ks + d0_instr(m) + j
                a.I('s_add_u32 s%d, s%d, %d', sT, sOb, row * 1024 + 512 * b_)
                r = b + 4 * mm + 2 * j
                wtok[gi] = a.I('buffer_load_dwordx2 v[%d:%d], v%d, s[%d:%d], s%d offen', r, r + 1, vWo, S_W2, S_W2 + 3, sT)

    def wconsume(gi, bufs):
        ks, b_, mh = wgroups[gi]
        b = bufs[gi % len(bufs)]
        a.wait(wtok[gi])
        for t in range(4):
            a.I('s_waitcnt lgkmcnt(1)')
            sel = sPermLo if t % 2 == 0 else sPermHi
            put(('o', b_, t, ks), 4 * mh, 4, [(b + 4 * mm + 2 + t // 2, b + 4 * mm + t // 2, sel) for mm in range(4)])

    dma_unit(0)
    dma_unit(1)
    for u in range(6):
        a.wait(utok[u])
        a.I('s_barrier')
        if u == 0:
            a.I('v_min_u32 v%d, -2, v%d', vSaveV, vSaveV)
            a.I('s_mov_b32 s%d, 0x%x', sT, WS_MEMX)
            a.I('buffer_store_dwordx2 v[%d:%d], v%d, %s, s%d offen sc1', vSaveV, vSaveV + 1, vMxSt, WS, sT)
        if u == 2:
            lab = a.newlabel('R_sig')
            a.I('s_cmp_lg_u32 s%d, 0', S_WAVE)
            a.I('s_cbranch_scc1 %s', lab)
            a.I('s_mov_b64 exec, 1')
            a.I('v_mov_b32 v%d, 1', VT)
            a.I('v_mov_b32 v%d, %d', VT + 1, D_INIT * 4)
            a.I('buffer_atomic_add v%d, v%d, s[%d:%d], 0 offen', VT, VT + 1, S_DBG, S_DBG + 3)
            a.I('s_mov_b64 exec, -1')
            a.label(lab)
            a.vm_n -= 1
        if u == cfg.get('wou', 4):
            srd(a, S_W2, P_WO, 4194304)
            a.I('v_lshlrev_b32 v%d, 7, v%d', VT + 2, vLane)
            a.I('s_lshl_b32 s%d, s%d, 17', sT, S_ROLE)
            a.I('s_lshl_b32 s%d, s%d, 15', sT + 1, S_WAVE)
            a.I('s_add_u32 s%d, s%d, s%d', sT, sT, sT + 1)
            for k in range(4):
                a.I('buffer_load_dword v%d, v%d, s[%d:%d], s%d offen', VT + 3, VT + 2, S_W2, S_W2 + 3, sT)
                a.I('s_add_u32 s%d, s%d, 8192', sT, sT)
        gather_unit(u)
        if cfg.get('stamps') and u == cfg.get('wst', -1):
            a.I('s_memrealtime s[100:101]')
            a.I('s_waitcnt lgkmcnt(0)')
            a.I('s_mov_b32 s3, s100')
        a.I('s_barrier')
        if u + 2 < 6:
            dma_unit(u + 2)
    def gspin():
        a.I('s_add_u32 s%d, s%d, 1', sSpin, sSpin)
        a.I('s_cmp_gt_u32 s%d, 0x100000', sSpin)
        a.I('s_cbranch_scc1 R_fail')

    def dbg_load():
        return a.I('buffer_load_dwordx4 v[%d:%d], v%d, s[%d:%d], 0 offen offset:%d sc1', T0, T3, vSaveV, S_DBG, S_DBG + 3, D_CNT_OTH * 4)

    def kv_load():
        return a.I('buffer_load_dword v%d, v%d, %s, s%d offen sc1', vDummy, vL16, WS, sKvf)
    assert D_INIT == D_CNT_OTH + 1 and D_FINIT == D_CNT_OTH + 3
    a.I('v_mov_b32 v%d, 0', vSaveV)
    a.I('s_mov_b32 s%d, 0', sSpin)
    a.I('s_mov_b32 s%d, 0', sStep)
    dt = dbg_load()
    for gi in range(3):
        wissue(gi, wbufs)
    for r in late_lds:
        for q in range(2):
            a.I('ds_write_b128 v%d, v[%d:%d] offset:%d', vLW, slot(r) + 4 * q, slot(r) + 4 * q + 3, r * 2048 + q * 1024)
    a.I('s_lshr_b32 s%d, s%d, 1', sKvf, S_ROLE)
    a.I('s_lshl_b32 s%d, s%d, 11', sKvf, sKvf)
    a.I('s_add_u32 s%d, s%d, 0x%x', sKvf, sKvf, WS_FLAGS + FL_KV)
    a.I('s_add_u32 s%d, s%d, %d', sKvfMax, sKvf, 63 * 32)
    for gi in range(8):
        wconsume(gi, wbufs)
        if gi + 3 < 8:
            wissue(gi + 3, wbufs)
        if gi == 4:
            a.c('all 32 inits done, flag area zeroed?')
            a.label('R_dchk')
            a.I('v_readfirstlane_b32 s%d, v%d', sT, T1)
            a.I('v_readfirstlane_b32 s%d, v%d', sT + 1, T3)
            a.I('v_readfirstlane_b32 s%d, v%d', sMode, T0)
            a.I('s_cmp_lt_u32 s%d, 32', sT)
            a.I('s_cbranch_scc1 R_dwait')
            if cfg.get('both_modes'):
                a.I('s_cmp_lt_u32 s%d, %d', sT + 1, NZERO)
                a.I('s_cbranch_scc1 R_dwait')
            if cfg.get('pretouch', 1):
                a.I('v_lshlrev_b32 v%d, 1, v%d', T0, vL16)
                a.I('buffer_load_dword v%d, v%d, %s, s%d offen sc1', T1, T0, WS, sInLd)
                a.I('v_lshlrev_b32 v%d, 3, v%d', T0, vL16)
                a.I('s_lshl_b32 s%d, s%d, 13', sT, S_WAVE)
                a.I('s_add_u32 s%d, s%d, 0x%x', sT, sT, WS_MEMX)
                a.I('buffer_load_dword v%d, v%d, %s, s%d offen sc1', T1, T0, WS, sT)
            if cfg.get('kvflags'):
                kv_load()
    if cfg.get('stamps') and 'wst' not in cfg:
        a.I('s_memrealtime s[100:101]')
        a.I('s_waitcnt lgkmcnt(0)')
        a.I('s_mov_b32 s3, s100')
    a.I('s_mov_b32 s%d, s%d', sVm, sStampAddr)
    a.I('s_mov_b32 s%d, s%d', sVmPrev, sStampAddr)
    a.I('s_mov_b32 s%d, 0', sTag)
    a.I('s_mov_b32 s%d, 0', sRetry)
    a.I('s_mov_b32 s%d, s%d', sMxRd, sMxW)
    for k in range(4):
        a.I('s_mov_b32 s%d, 0x%x', sRing + k, WS_MEMX + k * 8192)
    a.I('s_lshl_b32 s%d, s%d, 10', sW10, S_WAVE)
    if cfg.get('kvflags'):
        a.label('R_kvfirst')
        a.I('s_waitcnt vmcnt(0)')
        a.I('v_cmp_eq_u32 vcc, 0, v%d', vDummy)
        a.I('s_nop 1')
        a.I('s_and_b32 s%d, vcc_lo, 15', sT)
        a.I('s_cbranch_scc0 R_kvgo')
        kv_load()
        gspin()
        a.I('s_branch R_kvfirst')
        a.label('R_kvgo')
        if cfg.get('pretouch', 1):
            a.I('v_xor_b32 v%d, 8192, v%d', T0, vWarm)
            for sg in range(2):
                a.I('s_mov_b32 s%d, 0x%x', sT, WS_K + sg * 262144)
                a.I('buffer_load_dword v%d, v%d, %s, s%d offen sc1', vDummy, T0, WS, sT)
                a.I('buffer_load_dword v%d, v%d, %s, s%d offen sc1', vDummy, vWarm, WS, sT)
        a.I('s_add_u32 s%d, s%d, 64', sKvf, sKvf)

    def rest(PFX, stf):
        def load_kx():
            a.I('s_mov_b32 m0, s%d', sM0a)
            a.I('buffer_load_dwordx4 v%d, %s, s%d offen sc1 lds', vKxSrc, WS, sKx)
            a.I('s_mov_b32 m0, s%d', sM0b)
            a.I('buffer_load_dwordx4 v%d, %s, s%d offen offset:512 sc1 lds', vKxSrc, WS, sKx)

        def load_v():
            for t in range(2):
                for hf in range(2):
                    a.I('buffer_load_dwordx4 v[%d:%d], v%d, %s, s%d offen offset:%d sc1', VT + 8 * t + 4 * hf, VT + 8 * t + 4 * hf + 3,
                        vVld, WS, sV, 1024 * t + 512 * hf)

        def backoff(cyc):
            if cfg.get('sleep'):
                if cyc >= 64:
                    a.I('s_sleep %d', cyc // 64)
                if cyc % 64 >= 32:
                    a.I('s_nop 7')
            else:
                n = cyc // 4
                while n > 0:
                    k = min(n, 16)
                    a.I('s_nop %d', k - 1)
                    n -= k

        def lds_half(j, hf):
            sl = j % 6
            return a.I('ds_read_b128 v[%d:%d], v%d offset:%d', slot(sl) + 4 * hf, slot(sl) + 4 * hf + 3, vLW, j * 2048 + 1024 * hf)

        def lds_set(j):
            lds_half(j, 0)
            return lds_half(j, 1)

        def zero(r, n):
            for k in range(0, n, 2):
                a.I('v_mov_b64 v[%d:%d], 0', r + k, r + k + 1)

        def spin():
            a.I('s_add_u32 s%d, s%d, 1', sSpin, sSpin)
            a.I('s_cmp_gt_u32 s%d, 0x100000', sSpin)
            a.I('s_cbranch_scc1 ' + PFX + 'fail')

        a.I('s_waitcnt lgkmcnt(0)')
        a.I('s_barrier')
        load_kx()
        if cfg.get('kvflags'):
            kv_load()
        a.I('s_add_u32 s%d, s%d, 262144', sKx, sKx)
        zero(T0, 4)
        C0, C1 = vSaveV, vSaveV + 1
        zero(ACC, 24)
        a.I('s_mov_b32 s%d, 0', sSpin)

        accidx = {('q', 0): 0, ('q', 1): 1, ('k', 0): 2, ('k', 1): 3, ('v', 0): 4, ('v', 1): 5}

        def M(X, t, kp, src=None):
            d = acc(accidx[(X, t)])
            r = mem(kp) if src is None else src
            a.I('v_smfmac_f32_16x16x64_bf16 v[%d:%d], v[%d:%d], %s, v%d', d, d + 3, r, r + 3, breg((X, t, kp)), vIdx)

        def ldv(i):
            if cfg.get('no_kv'):
                return None
            t, hf = i // 2, i % 2
            return a.I('buffer_load_dwordx4 v[%d:%d], v%d, %s, s%d offen offset:%d sc1', VT + 8 * t + 4 * hf, VT + 8 * t + 4 * hf + 3,
                       vVld, WS, sV, 1024 * t + 512 * hf)

        def poll(r0, r1):
            a.I('buffer_load_dwordx4 v[%d:%d], v%d, %s, s%d offen sc1', r0, r0 + 3, vL16, WS, sMxRd)
            a.I('buffer_load_dwordx4 v[%d:%d], v%d, %s, s%d offen sc1', r1, r1 + 3, vL16, WS, sMxRd2)

        kx, mt = {}, {}

        def rkx(f):
            kx[f] = a.I('ds_read_b128 v[%d:%d], v%d offset:%d', STG + 4 * f, STG + 4 * f + 3, vL16, LKX + f * 1024)

        def rm(k):
            mt[k] = a.I('ds_read_b128 v[%d:%d], v%d offset:%d', mem(k), mem(k) + 3, (vM0, vM1, vM2, vM3)[k & 3], 4096 * (k // 4))

        vSaveK = vSaveV

        def savepub():
            a.I('v_mov_b32 v%d, v%d', T0, VT)
            a.I('v_mov_b32 v%d, v%d', T1, vSaveK)
            a.I('v_mov_b32 v%d, v%d', T2, vSaveK + 1)
            a.I('v_mov_b32 v%d, v%d', T3, VT + 8)

        if cfg.get('stamps'):
            a.I('s_memrealtime s[6:7]')
            a.I('s_waitcnt lgkmcnt(0)')
        if cfg.get('dbgt'):
            import bulk
            bulk.dbg_time(a, 9, V=MEM)
        a.I('s_add_u32 s%d, s%d, 4096', sMxRd2, sMxRd)
        a.c('================ step loop ================')
        a.label(PFX + 'loop')
        stamp(a, cfg, 0)
        PA, PB = (mem(0), mem(4)), (VT, VT + 4)
        light = cfg.get('light', 0)
        a.label(PFX + 'repoll')
        poll(*PA)
        if cfg.get('stamps') and cfg['stamps'] != 4:
            a.I('s_waitcnt lgkmcnt(0)')
            a.I('v_mov_b32 v%d, 0', VT + 12)
            a.I('v_writelane_b32 v%d, s%d, 0', VT + 12, 52)
            for k in range(1, 10):
                a.I('v_writelane_b32 v%d, s%d, %d', VT + 12, 32 + 2 * k, k)
            a.I('v_writelane_b32 v%d, s%d, 10', VT + 12, sRetry)
            a.I('s_mov_b32 s52, s32')
            a.I('s_lshl_b32 s%d, s%d, 6', sT, S_ROLE)
            a.I('s_add_u32 s%d, s%d, s%d', sT, sT, sStep)
            a.I('s_lshl_b32 s%d, s%d, 2', sT, sT)
            a.I('s_add_u32 s%d, s%d, s%d', sT, sT, S_WAVE)
            a.I('s_lshl_b32 s%d, s%d, 6', sT, sT)
            a.I('s_add_u32 s%d, s%d, 0x%x', sStampAddr, sT, WS_DBG)
        else:
            backoff(cfg.get('pgap', 2) * (16 if light else 48))
        if light:
            a.I('buffer_load_dwordx4 v[%d:%d], v%d, %s, s%d offen sc1', VT, VT + 3, vL16, WS, sMxRd2)
        else:
            poll(*PB)

        def head(src, bad, n=2):
            s0, s1 = src
            a.I('s_waitcnt vmcnt(%d)' % n)
            a.I('v_max3_u32 v%d, v%d, v%d, v%d', C0, s0, s0 + 2, s1)
            a.I('v_max_u32 v%d, v%d, v%d', C0, C0, s1 + 2)
            a.I('v_cmp_eq_u32 vcc, -1, v%d', C0)
            a.I('ds_write_b128 v%d, v[%d:%d]', vM0, s0, s0 + 3)
            wA = a.I('ds_write_b128 v%d, v[%d:%d] offset:4096', vM0, s1, s1 + 3)
            M('q', 0, 0, s0)
            M('q', 1, 0, s0)
            a.I('s_cbranch_vccnz %s', bad)
            stamp(a, cfg, 1)
            M('q', 0, 4, s1)
            M('q', 1, 4, s1)
            M('k', 0, 0, s0)
            M('k', 1, 0, s0)
            a.wait(wA)
            a.I('s_barrier')
            rm(1)
            M('k', 0, 4, s1); rm(2)
            M('k', 1, 4, s1); rm(3)
            M('v', 0, 0, s0); rm(5)
            M('v', 1, 0, s0); rm(6)
            M('v', 0, 4, s1); rm(7)
            M('v', 1, 4, s1)
        a.I('s_branch ' + PFX + 'goA')
        if light:
            a.label(PFX + 'badB')
            spin()
            a.I('s_add_u32 s%d, s%d, 0x1000000', sRetry, sRetry)
            a.I('s_nop 2')
            zero(ACC, 8)
            a.I('s_branch ' + PFX + 'repoll')
            a.label(PFX + 'badA')
            a.I('s_add_u32 s%d, s%d, 0x10000', sRetry, sRetry)
            a.I('s_nop 5')
            zero(ACC, 8)
            head((mem(0), VT), PFX + 'badB', 0)
            a.I('s_branch ' + PFX + 'join')
            a.label(PFX + 'goA')
            head(PA, PFX + 'badA', 1)
        else:
            a.label(PFX + 'badA')
            poll(*PA)
            spin()
            a.I('s_add_u32 s%d, s%d, 0x10000', sRetry, sRetry)
            a.I('s_nop 1')
            zero(ACC, 8)
            head(PB, PFX + 'badB')
            a.I('s_branch ' + PFX + 'join')
            a.label(PFX + 'badB')
            poll(*PB)
            a.I('s_add_u32 s%d, s%d, 0x10000', sRetry, sRetry)
            a.I('s_nop 4')
            zero(ACC, 8)
            a.label(PFX + 'goA')
            head(PA, PFX + 'badA')
        a.label(PFX + 'join')
        a.I('s_cmp_eq_u32 s%d, %d', sStep, nsteps - 1)
        a.I('s_cbranch_scc1 ' + PFX + 'done')
        rkx(0)
        a.wait(mt[2])
        q0, q1, k0, k1, v0_, v1_ = [acc(i) for i in range(6)]
        QT = mem(0)

        def add(d, x, y):
            a.I('v_add_f32 v%d, v%d, v%d', d, x, y)

        def cvt(d, x, y):
            a.I('v_cvt_pk_bf16_f32 v%d, v%d, v%d', d, x, y)

        def pkadd(d, x, y):
            a.I('v_pk_add_f32 v[%d:%d], v[%d:%d], v[%d:%d]', d, d + 1, x, x + 1, y, y + 1)

        def sel(d, x, y):
            a.I('v_cndmask_b32 v%d, v%d, v%d, s[%d:%d]', d, x, y, sHalf, sHalf + 1)
        M('q', 0, 1); ldv(0)
        a.I('s_sub_u32 s%d, s%d, 1', sT, sStep)
        M('q', 1, 1); rkx(1)
        a.I('s_max_i32 s%d, s%d, 0', sT, sT)
        a.I('v_mov_b32 v%d, s%d', C1, sT)
        M('q', 0, 2); ldv(1)
        if cfg.get('kvflags'):
            a.I('v_cmp_eq_u32 vcc, 0, v%d', vDummy)
        M('q', 1, 2); rkx(2); a.wait(mt[5])
        M('q', 0, 3); ldv(2)
        if cfg.get('stamps') and cfg['stamps'] != 4:
            a.I('v_lshrrev_b32 v%d, 2, v%d', C0, vL16)
            a.I('s_mov_b64 exec, 0xffff')
            a.I('buffer_store_dword v%d, v%d, %s, s%d offen', VT + 12, C0, WS, sStampAddr)
            a.I('s_mov_b64 exec, -1')
        M('q', 1, 3); rkx(3)
        if cfg.get('kvflags'):
            a.I('s_and_b32 s%d, vcc_lo, 3', sT)
            a.I('s_cbranch_scc1 ' + PFX + 'kvwait')
            a.label(PFX + 'kvok')
        M('q', 0, 5); tv = ldv(3)
        if cfg.get('kvflags'):
            a.I('s_add_u32 s%d, s%d, 32', sKvf, sKvf)
        M('q', 1, 5); rkx(4); a.wait(mt[7])
        M('q', 0, 6)
        a.I('s_barrier')
        a.I('s_mov_b64 exec, 3')
        if not cfg.get('no_pub') and not cfg.get('no_flag'):
            a.I('buffer_store_dword v%d, v%d, %s, s%d offen sc1', C1, vL16, WS, sFl)
        a.I('s_mov_b64 exec, -1')
        M('q', 1, 6)
        if not cfg.get('no_pub'):
            a.I('buffer_store_dwordx4 v[%d:%d], v%d, %s, s%d offen sc1', T0, T0 + 3, vL16, WS, sVmPrev)
        M('q', 0, 7); rkx(5)
        if cfg.get('kvflags'):
            a.I('s_min_u32 s%d, s%d, s%d', sKvf, sKvf, sKvfMax)
        M('q', 1, 7); rkx(6)
        a.I('s_add_u32 s%d, s%d, 262144', sV, sV)
        stamp(a, cfg, 2)
        M('k', 0, 1); rkx(7)
        a.I('s_waitcnt vmcnt(%d)' % (a.vm_n - tv[1] + 4 if tv else 0))
        M('k', 1, 1)
        a.I('s_mov_b32 s%d, s%d', sT, sRing)
        a.I('s_mov_b32 s%d, s%d', sRing, sRing + 1)
        add(QT, q0, q0 + 2)
        M('k', 0, 2)
        add(QT + 1, q0 + 1, q0 + 3)
        add(QT + 2, q1, q1 + 2)
        add(QT + 3, q1 + 1, q1 + 3)
        cvt(QT, QT, QT + 2)
        cvt(QT + 1, QT + 1, QT + 3)
        wq = a.I('ds_write2_b32 v%d, v%d, v%d offset0:0 offset1:4', vX1w, QT, QT + 1)
        M('k', 1, 2)
        if not cfg.get('no_warm'):
            a.I('buffer_load_dword v%d, v%d, %s, s%d offen sc1', vDummy, vWarm, WS, sWarm)
        a.I('s_mov_b32 s%d, s%d', sRing + 1, sRing + 2)
        M('k', 0, 3)
        a.I('s_mov_b32 s%d, s%d', sRing + 2, sRing + 3)
        a.I('s_mov_b32 s%d, s%d', sRing + 3, sT)
        M('k', 1, 3)
        if cfg.get('kvflags'):
            a.I('s_mov_b64 exec, 3')
            kv_load()
            a.I('s_mov_b64 exec, -1')
        M('k', 0, 5)
        a.I('s_add_u32 s%d, s%d, s%d', sMxRd, sRing, sW10)
        a.I('s_and_b32 s%d, s%d, 1', sTag, sStep)
        M('k', 1, 5)
        a.wait(wq)
        a.I('s_barrier')
        qt = {}

        def rq(ks):
            qt[ks] = a.I('ds_read_b128 v[%d:%d], v%d offset:%d', slot(4) + 4 * ks, slot(4) + 4 * ks + 3, vX1rq, ks * KS)
        rq(0)
        M('k', 0, 6); rq(1)
        M('k', 1, 6); rq(2)
        M('k', 0, 7); rq(3)
        a.I('s_mov_b32 m0, s%d', sM0a)
        M('k', 1, 7)
        a.I('s_add_u32 s%d, s%d, 4096', sMxRd2, sMxRd)
        stamp(a, cfg, 3)
        S0, S1, S2, Pm = acc(0), acc(1), acc(2), acc(3)
        X0, X1 = S1 + 2, S1 + 3
        ON = T0
        PV0, PV1, LS = mem(4), mem(0), mem(1)
        KMR = [STG, STG + 4, STG + 8, STG + 12]

        def SM(D, A, ks):
            a.I('v_mfma_f32_16x16x32_bf16 v[%d:%d], v[%d:%d], v[%d:%d], %s', D, D + 3, A, A + 3,
                slot(4) + 4 * ks, slot(4) + 4 * ks + 3, '0' if ks == 0 else vr(D, 4))
        km = {}

        def rkm(k):
            km[k] = a.I('ds_read_b128 v[%d:%d], v%d offset:%d', KMR[k], KMR[k] + 3, vX1rk, k * KS)
        M('v', 0, 1)
        if not cfg.get('no_kv'):
            a.I('buffer_load_dwordx4 v%d, %s, s%d offen sc1 lds', vKxSrc, WS, sKx)
        a.I('s_mov_b32 m0, s%d', sM0b)
        a.I('v_xor_b32 v%d, 128, v%d', PV0, vX1w)
        M('v', 1, 1)
        a.wait(qt[3])
        add(QT, k0, k0 + 2)
        SM(S0, STG, 0)
        add(QT + 1, k0 + 1, k0 + 3)
        add(QT + 2, k1, k1 + 2)
        SM(S0, STG + 4, 1)
        add(QT + 3, k1 + 1, k1 + 3)
        cvt(vSaveK, QT, QT + 2)
        SM(S0, STG + 8, 2)
        cvt(vSaveK + 1, QT + 1, QT + 3)
        wk = a.I('ds_write2_b32 v%d, v%d, v%d offset0:0 offset1:4', PV0, vSaveK, vSaveK + 1)
        SM(S0, STG + 12, 3)
        if not cfg.get('no_kv'):
            a.I('buffer_load_dwordx4 v%d, %s, s%d offen offset:512 sc1 lds', vKxSrc, WS, sKx)
        a.I('v_mov_b32 v%d, 0', Pm + 3)
        SM(S1, STG + 16, 0)
        SM(S1, STG + 20, 1)
        vm_mark = a.vm_n
        zero(PV0, 4)
        SM(S1, STG + 24, 2)
        a.I('s_add_u32 s%d, s%d, 262144', sKx, sKx)
        a.I('v_mov_b32 v%d, 0x3f803f80', ON)
        SM(S1, STG + 28, 3)
        a.wait(wk)
        a.I('s_barrier')
        rkm(0)
        M('v', 0, 2); rkm(1)
        a.I('v_max3_f32 v%d, v%d, v%d, v%d', Pm, S0, S0 + 1, S0 + 2)
        M('v', 1, 2); rkm(2)
        a.I('s_add_u32 s%d, s%d, 262144', sWarm, sWarm)
        a.I('v_mov_b32 v%d, 0x3f803f80', ON + 1)
        M('v', 0, 3); rkm(3)
        a.I('v_max3_f32 v%d, v%d, v%d, v%d', Pm, Pm, S0 + 3, S1)
        M('v', 1, 3); lds_half(8, 0)
        a.I('v_max3_f32 v%d, v%d, v%d, v%d', Pm + 1, S1 + 1, S1 + 2, S1 + 3)
        M('v', 0, 5); lds_half(8, 1)
        a.wait(km[1])
        sel(S1, S1, S1 + 2)
        SM(S2, KMR[0], 0); lds_half(9, 0)
        sel(S1 + 1, S1 + 1, S1 + 3)
        a.I('v_max_f32 v%d, v%d, v%d', X0, Pm, Pm + 1)
        SM(S2, KMR[1], 1)
        a.wait(km[3])
        zero(PV1, 4)
        SM(S2, KMR[2], 2); lds_half(9, 1)
        a.I('v_mov_b32 v%d, 0x3f803f80', ON + 2)
        a.I('v_mov_b32 v%d, 0x3f803f80', ON + 3)
        SM(S2, KMR[3], 3); lds_half(6, 0)
        a.I('v_mov_b32 v%d, v%d', X1, X0)
        stamp(a, cfg, 4)
        M('v', 1, 5); lds_half(6, 1)
        a.I('v_permlane32_swap_b32 v%d, v%d', X0, X1)
        M('v', 0, 6); lds_half(7, 0)
        a.I('v_max3_f32 v%d, v%d, v%d, v%d', X0, X0, X1, S2)
        M('v', 1, 6); lds_half(7, 1)
        a.I('v_max3_f32 v%d, v%d, v%d, v%d', X1, S2 + 1, S2 + 2, S2 + 3)
        a.I('v_max_f32 v%d, v%d, v%d', X0, X0, X1)
        a.I('v_mov_b32 v%d, v%d', X1, X0)
        M('v', 0, 7); lds_half(10, 0)
        a.I('v_permlane16_swap_b32 v%d, v%d', X0, X1)
        sel(S2, S2, S0 + 2)
        M('v', 1, 7); lds_half(10, 1)
        a.I('v_max_f32 v%d, v%d, v%d', X0, X0, X1)
        sel(S2 + 1, S2 + 1, S0 + 3)
        a.I('v_mul_f32 v%d, s%d, v%d', X0, sNC, X0)
        sel(S2 + 2, S2 + 2, S0)
        sel(S2 + 3, S2 + 3, S0 + 1)
        a.I('v_sub_f32 v%d, v%d, v%d', X1, X0, vBias)

        def pkfma(d, hi):
            a.I('v_pk_fma_f32 v[%d:%d], v[%d:%d], s[%d:%d], v[%d:%d] op_sel:[0,0,%d] op_sel_hi:[1,1,%d]', d, d + 1, d, d + 1, sC2, sC2 + 1, X0, X1, hi, hi)
        pkfma(S1, 0)
        pkfma(S2, 1)
        a.I('v_exp_f32 v%d, v%d', S1, S1)
        pkfma(S2 + 2, 1)
        a.I('v_exp_f32 v%d, v%d', S1 + 1, S1 + 1)
        pkadd(S0, v0_, v0_ + 2)
        a.I('v_exp_f32 v%d, v%d', S2, S2)
        pkadd(S0 + 2, v1_, v1_ + 2)
        a.I('v_exp_f32 v%d, v%d', S2 + 1, S2 + 1)
        cvt(Pm + 1, S1, S1 + 1)
        a.I('v_exp_f32 v%d, v%d', S2 + 2, S2 + 2)
        if tv:
            a.I('s_waitcnt vmcnt(%d)' % (vm_mark - tv[1]))
        cvt(VT, S0, S0 + 1)
        a.I('v_exp_f32 v%d, v%d', S2 + 3, S2 + 3)
        cvt(Pm, S2, S2 + 1)
        cvt(VT + 8, S0 + 2, S0 + 3)
        cvt(Pm + 2, S2 + 2, S2 + 3)
        lds_half(11, 0)
        stamp(a, cfg, 5)
        a.I('v_mfma_f32_16x16x32_bf16 v[%d:%d], v[%d:%d], v[%d:%d], 0', LS, LS + 3, Pm, Pm + 3, ON, ON + 3)
        lds_half(11, 1)
        a.I('v_smfmac_f32_16x16x64_bf16 v[%d:%d], v[%d:%d], v[%d:%d], v%d', PV0, PV0 + 3, Pm, Pm + 3, VT, VT + 7, vIdx)
        a.I('v_mov_b32 v%d, v%d', T0, VT)
        a.I('v_smfmac_f32_16x16x64_bf16 v[%d:%d], v[%d:%d], v[%d:%d], v%d', PV1, PV1 + 3, Pm, Pm + 3, VT + 8, VT + 15, vIdx)
        a.I('v_mov_b32 v%d, v%d', T1, vSaveK)
        a.I('v_mov_b32 v%d, v%d', T2, vSaveK + 1)
        a.I('v_mov_b32 v%d, v%d', T3, VT + 8)
        pkadd(X0, LS, LS + 2)
        a.I('v_rcp_f32 v%d, v%d', X0, X0)
        a.I('v_rcp_f32 v%d, v%d', X1, X1)
        pkadd(PV0, PV0, PV0 + 2)
        pkadd(PV1, PV1, PV1 + 2)
        a.I('v_pk_mul_f32 v[%d:%d], v[%d:%d], v[%d:%d]', PV0, PV0 + 1, PV0, PV0 + 1, X0, X1)
        a.I('v_pk_mul_f32 v[%d:%d], v[%d:%d], v[%d:%d]', PV1, PV1 + 1, PV1, PV1 + 1, X0, X1)
        cvt(S0, PV0, PV1)
        cvt(S0 + 1, PV0 + 1, PV1 + 1)
        wo = a.I('ds_write2_b32 v%d, v%d, v%d offset0:0 offset1:4', vX2w, S0, S0 + 1)
        zero(MEM, 16)
        a.wait(wo)
        a.I('s_barrier')
        OF = acc(4)
        of0 = a.I('ds_read_b128 v[%d:%d], v%d offset:%d', OF, OF + 3, vL16, LX2)
        of1 = a.I('ds_read_b128 v[%d:%d], v%d offset:%d', OF + 4, OF + 7, vL16, LX2 + 1024)
        zero(MEM + 16, 16)
        SEL, RD = ACC + 8, ACC + 12
        stamp(a, cfg, 6)

        def wt(b, t):
            return MEM + 16 * b + 4 * t

        def W(n):
            key = WO_ORDER[n]
            _, b, t, ks = key
            a.I('v_smfmac_f32_16x16x64_bf16 v[%d:%d], v[%d:%d], %s, v%d', wt(b, t), wt(b, t) + 3, OF + 4 * ks, OF + 4 * ks + 3, breg(key), vIdx)

        def ha(b, t, h):
            D = wt(b, t) + h
            add(D, D, D + 2)

        def hp(b, t):
            D = wt(b, t)
            pkadd(D, D, D + 2)

        G = [ACC, ACC + 4]

        def pk(b, h, tok):
            cvt(G[b] + 2 * tok + h, wt(b, 2 * h) + tok, wt(b, 2 * h + 1) + tok)

        def send(b):
            a.I('buffer_store_dwordx4 v[%d:%d], v%d, %s, s%d offen%s', G[b], G[b] + 3, vInSt, WS, sIn + b, stf)

        def tag(b):
            a.I('v_bfi_b32 v%d, 1, s%d, v%d', G[b], sTag, G[b])

        def selgen(k):
            if k == 0:
                a.I('v_mov_b32 v%d, 0x3f80', RD)
            elif k == 1:
                a.I('v_cndmask_b32 v%d, v%d, 1.0, s[%d:%d]', RD, RD, sSel + 4, sSel + 5)
            else:
                a.I('v_cndmask_b32 v%d, 0, v%d, s[%d:%d]', SEL + k - 2, RD, sSel + 2 * (k % 2), sSel + 2 * (k % 2) + 1)

        def rload(i):
            return a.I('buffer_load_dwordx4 v[%d:%d], v%d, %s, s%d offen offset:%d sc1', VT + 4 * i, VT + 4 * i + 3, vL16, WS, sInLd, i * 1024)

        lt = {}
        a.wait(of0)
        W(0); lds_half(12, 0)
        W(1); a.wait(of1); lt[12] = lds_half(12, 1)
        W(2); lds_half(13, 0)
        W(3); lt[13] = lds_half(13, 1)
        W(4); lds_half(14, 0)
        W(5); lt[14] = lds_half(14, 1); ha(0, 0, 0)
        W(6); lds_half(15, 0); ha(0, 0, 1)
        W(7); lt[15] = lds_half(15, 1); ha(0, 1, 0)
        ha(0, 1, 1)
        pk(0, 0, 0); pk(0, 0, 1)
        tag(0)
        hp(0, 2)
        lds_half(16, 0)
        lt[16] = lds_half(16, 1)
        hp(0, 3)
        pk(0, 1, 0); pk(0, 1, 1)
        send(0)
        W(8); lds_half(17, 0)
        W(9); lt[17] = lds_half(17, 1); a.wait(lt[13])
        W(10)
        a.I('s_mov_b32 s%d, s%d', sVmPrev, sVm)
        a.I('s_add_u32 s%d, s%d, 131072', sVm, sVm)
        a.I('s_mov_b32 s%d, 0', sSpin)
        W(11); a.wait(lt[15])
        a.I('s_add_u32 s%d, s%d, 1', sStep, sStep)
        W(12); lds_half(0, 0); ha(1, 0, 0)
        W(13); a.wait(lt[17]); ha(1, 0, 1)
        W(14); lds_half(0, 1); ha(1, 1, 0)
        W(15); lds_half(1, 0); ha(1, 1, 1)
        pk(1, 0, 0); pk(1, 0, 1)
        tag(1)
        hp(1, 2)
        lds_half(1, 1)
        a.I('s_cmp_ge_u32 s%d, 2', S_WAVE)
        hp(1, 3)
        pk(1, 1, 0); pk(1, 1, 1)
        send(1)
        stamp(a, cfg, 7)
        U0, U1, U2, U3 = ACC + 16, ACC + 17, ACC + 18, ACC + 19
        npre = cfg.get('npre', 3)
        a.I('s_cbranch_scc1 ' + PFX + 'late')
        backoff(cfg.get('d0', 0) * 32)
        rload(0); rload(1)
        a.label(PFX + 'late')
        for j in range(2, 1 + npre):
            lds_set(j)
        for k in range(6):
            selgen(k)
        zero(RD, 4)
        a.I('s_cbranch_scc0 ' + PFX + 'early')
        backoff(cfg.get('d1', 0) * 32)
        rload(0); rload(1)
        a.label(PFX + 'early')
        for j in range(1 + npre, 6):
            lds_set(j)
        zero(ACC + 20, 4)
        zero(ACC, 8)
        a.I('v_mov_b32 v%d, -1', U2)
        a.I('v_mov_b32 v%d, -1', U3)
        DP = ' row_mask:0xf bank_mask:0xf'
        Z = VT + 8
        dbl = cfg.get('dbl1', 0)
        R2 = MEM + 8

        def rl(R):
            for i in range(2):
                a.I('buffer_load_dwordx4 v[%d:%d], v%d, %s, s%d offen offset:%d sc1', R + 4 * i, R + 4 * i + 3, vL16, WS, sInLd, i * 1024)

        def red1(R, bad):
            a.I('v_smfmac_f32_16x16x64_bf16 v[%d:%d], v[%d:%d], v[%d:%d], v%d', RD, RD + 3, SEL, SEL + 3, R, R + 7, vIdx)
            a.I('v_bitop3_b32 v%d, v%d, v%d, s%d bitop3:0x7e', U0, R, R + 4, sTag)
            a.I('v_and_b32 v%d, 1, v%d', U0, U0)
            a.I('v_cmp_ne_u32 vcc, 0, v%d', U0)
            for k in range(4):
                a.I('v_add_f32_dpp v%d, v%d, v%d row_ror:4' + DP, Z + k, RD + k, RD + k)
            a.I('s_cbranch_vccnz ' + bad)
        if dbl:
            backoff(cfg.get('rgap', 2) * 32)
            rl(R2)
            a.I('s_waitcnt vmcnt(2) lgkmcnt(0)')
            a.label(PFX + 'chk1')
            red1(VT, PFX + 'slow1')
            a.label(PFX + 'ok1')
        else:
            a.I('s_waitcnt vmcnt(0) lgkmcnt(0)')
            a.label(PFX + 'chk1')
            red1(VT, PFX + 'slow1')
        for k in range(4):
            a.I('v_add_f32_dpp v%d, v%d, v%d row_ror:8' + DP, Z + 4 + k, Z + k, Z + k)
        stamp(a, cfg, 8)
        a.I('s_mov_b64 exec, 0x000f000f')
        a.I('v_cvt_pk_bf16_f32 v%d, v%d, v%d', U0, Z + 4, Z + 5)
        a.I('v_cvt_pk_bf16_f32 v%d, v%d, v%d', U1, Z + 6, Z + 7)
        a.I('v_min_u32 v%d, -2, v%d', U0, U0)
        a.I('buffer_store_dwordx2 v[%d:%d], v%d, %s, s%d offen%s', U0, U1, vMxSt, WS, sMxWr, stf)
        a.I('buffer_store_dwordx2 v[%d:%d], v%d, %s, s%d offen%s', U2, U3, vMxSt, WS, sMxRst, stf)
        a.I('s_mov_b64 exec, -1')
        stamp(a, cfg, 9)
        a.I('s_add_u32 s%d, s%d, s%d', sRetry, sRetry, sSpin)
        a.I('s_mov_b32 s%d, 0', sSpin)
        zero(ACC + 8, 12)
        backoff(cfg.get('d2', 0) * 32)
        if cfg.get('b3'):
            a.I('s_barrier')
        a.I('s_branch ' + PFX + 'loop')

        a.label(PFX + 'slow1')
        rload(0); rload(1)
        spin()
        zero(RD, 4)
        if dbl:
            a.I('s_waitcnt vmcnt(2)')
            red1(R2, PFX + 'slow2')
            a.I('s_branch ' + PFX + 'ok1')
            a.label(PFX + 'slow2')
            rl(R2)
            spin()
            zero(RD, 4)
            a.I('s_waitcnt vmcnt(2)')
        else:
            a.I('s_waitcnt vmcnt(0)')
        a.I('s_branch ' + PFX + 'chk1')

        if cfg.get('kvflags'):
            a.label(PFX + 'kvwait')
            kv_load()
            spin()
            a.I('s_waitcnt vmcnt(0)')
            a.I('v_cmp_eq_u32 vcc, 0, v%d', vDummy)
            a.I('s_nop 1')
            a.I('s_and_b32 s%d, vcc_lo, 3', sT)
            a.I('s_cbranch_scc1 ' + PFX + 'kvwait')
            a.I('s_branch ' + PFX + 'kvok')

        a.label(PFX + 'done')
        a.c('last segment: only k and v of the memory rows are needed')
        a.I('buffer_store_dwordx4 v[%d:%d], v%d, %s, s%d offen sc1', T0, T0 + 3, vL16, WS, sVmPrev)
        a.I('s_waitcnt lgkmcnt(0)')
        for kp in (1, 2, 3, 5, 6, 7):
            M('k', 0, kp); M('k', 1, kp); M('v', 0, kp); M('v', 1, kp)
        L = STG
        pkadd(L, k0, k0 + 2)
        pkadd(L + 2, k1, k1 + 2)
        pkadd(L + 4, v0_, v0_ + 2)
        pkadd(L + 6, v1_, v1_ + 2)
        cvt(L + 9, L, L + 2)
        cvt(L + 10, L + 1, L + 3)
        cvt(L + 8, L + 4, L + 5)
        cvt(L + 11, L + 6, L + 7)
        a.I('buffer_store_dwordx4 v[%d:%d], v%d, %s, s%d offen sc1', L + 8, L + 11, vL16, WS, sVm)
        a.I('s_waitcnt vmcnt(0)')
        if cfg.get('dbgt'):
            bulk.dbg_time(a, 10, V=MEM)
        a.I('v_mov_b32 v%d, %d', T1, nsteps)
        a.I('s_mov_b64 exec, 1')
        a.I('buffer_store_dword v%d, v%d, %s, s%d offen sc1', T1, vL16, WS, sFl)
        if cfg.get('stamps'):
            a.I('s_memrealtime s[100:101]')
            a.I('s_waitcnt lgkmcnt(0)')
            a.I('v_mov_b32 v%d, s4', T0)
            if cfg.get('hwid'):
                a.I('s_getreg_b32 s6, hwreg(HW_REG_HW_ID)')
            a.I('v_mov_b32 v%d, s6', T1)
            a.I('v_mov_b32 v%d, s100', T2)
            a.I('v_mov_b32 v%d, s%d', T3, sRetry if cfg.get('cnt') else 3)
            a.I('s_lshl_b32 s%d, s%d, 2', sT, S_ROLE)
            a.I('s_add_u32 s%d, s%d, s%d', sT, sT, S_WAVE)
            a.I('s_lshl_b32 s%d, s%d, 4', sT, sT)
            a.I('s_add_u32 s%d, s%d, 0x%x', sT, sT, WS_DBG + 0x80000)
            a.I('buffer_store_dwordx4 v[%d:%d], v%d, %s, s%d offen', T0, T3, vL16, WS, sT)
        a.I('s_endpgm')
        a.label(PFX + 'fail')
        a.I('s_mov_b64 exec, 1')
        a.I('v_mov_b32 v%d, %d', T2, D_ERR * 4)
        a.I('v_mov_b32 v%d, s%d', T3, sStep)
        a.I('v_or_b32 v%d, 0x40000000, v%d', T3, T3)
        a.I('buffer_store_dword v%d, v%d, s[%d:%d], 0 offen sc1', T3, T2, S_DBG, S_DBG + 3)
        a.I('s_endpgm')

    if cfg.get('both_modes'):
        a.c('mode: plain stores only if all 32 recurrence workgroups sit on the chosen XCD')
        a.I('s_cmp_lg_u32 s%d, 0', sMode)
        a.I('s_cbranch_scc1 R_safe')
        rest('R_', '')
        a.label('R_safe')
        rest('RS_', ' sc1')
    else:
        rest('R_', stf)
    a.label('R_dwait')
    dbg_load()
    gspin()
    a.I('s_waitcnt vmcnt(0)')
    a.I('s_branch R_dchk')
```

```python
import sys
from asmlib import *
from common import *
import importlib, os
rec = importlib.import_module(os.environ.get('REC_MOD', 'rec'))
import bulk
from bulk import sT, WS, DBG

LDS_TK = 14336


def ticket(a, dword, sdst, pre=None, between=None):
    lab = a.newlabel('TK')
    a.I('v_mov_b32 v253, %d', LDS_TK)
    a.I('s_cmp_lg_u32 s%d, 0', S_WAVE)
    a.I('s_cbranch_scc1 %s', lab)
    a.I('s_mov_b64 exec, 1')
    a.I('v_mov_b32 v251, 1')
    a.I('v_mov_b32 v252, %d', dword * 4)
    if pre is not None:
        sk = a.newlabel('TKs')
        a.I('v_mov_b32 v251, 32')
        a.I('s_cmp_lt_u32 s%d, 256', pre)
        a.I('s_cbranch_scc1 %s', sk)
        a.I('v_mov_b32 v251, 1')
    a.I('buffer_atomic_add v251, v252, %s, 0 offen sc0', DBG)
    if between is not None:
        lab2 = a.newlabel('TK')
        a.I('s_mov_b64 exec, -1')
        a.label(lab)
        a.I('s_barrier')
        n = between(a)
        a.I('s_cmp_lg_u32 s%d, 0', S_WAVE)
        a.I('s_cbranch_scc1 %s', lab2)
        a.I('s_mov_b64 exec, 1')
        a.I('s_waitcnt vmcnt(%d)', n)
        lab = lab2
    else:
        a.I('s_waitcnt vmcnt(0)')
    if pre is not None:
        a.label(sk)
    a.I('ds_write_b32 v253, v251')
    a.I('s_waitcnt lgkmcnt(0)')
    a.I('s_mov_b64 exec, -1')
    a.label(lab)
    a.I('s_barrier')
    a.I('ds_read_b32 v251, v253')
    a.I('s_waitcnt lgkmcnt(0)')
    a.I('v_readfirstlane_b32 s%d, v251', sdst)
    a.I('s_barrier')


def dbg_add(a, dword):
    lab = a.newlabel('DA')
    a.I('s_cmp_lg_u32 s%d, 0', S_WAVE)
    a.I('s_cbranch_scc1 %s', lab)
    a.I('s_mov_b64 exec, 1')
    a.I('v_mov_b32 v251, 1')
    a.I('v_mov_b32 v252, %d', dword * 4)
    a.I('buffer_atomic_add v251, v252, %s, 0 offen', DBG)
    a.I('s_waitcnt vmcnt(0)')
    a.I('s_mov_b64 exec, -1')
    a.label(lab)


def build(cfg):
    a = Asm()
    bulk.BST = bool(cfg.get('stamps'))
    bulk.GI = cfg.get('gi', 0)
    bulk.GSL = cfg.get('gsl', 0)
    bulk.SL1, bulk.SL2 = cfg.get('sl1', 2), cfg.get('sl2', 2)
    a.I('s_cmp_ge_u32 s2, 256')
    a.I('s_cbranch_scc1 K_exit')
    if cfg.get('stamps'):
        a.I('s_memrealtime s[4:5]')
    a.I('s_load_dwordx16 s[32:47], s[0:1], 0')
    a.I('s_load_dwordx8 s[48:55], s[0:1], 64')
    a.I('s_load_dwordx4 s[56:59], s[0:1], 96')
    a.I('s_getreg_b32 s%d, hwreg(HW_REG_XCC_ID)', S_XCC)
    a.I('s_and_b32 s%d, s%d, 15', S_XCC, S_XCC)
    a.I('v_lshrrev_b32 v1, 6, v0')
    a.I('v_readfirstlane_b32 s%d, v1', S_WAVE)
    a.I('s_waitcnt lgkmcnt(0)')
    rec.srd(a, S_WS, P_WS, WS_SIZE)
    rec.srd(a, S_DBG, P_DBG, 256)
    if cfg.get('dbgt'):
        bulk.DBGT = True
        bulk.dbg_time(a, 12, invert=True)
    if cfg.get('codepf', 1):
        a.I('s_getpc_b64 s[4:5]' if not cfg.get('stamps') else 's_getpc_b64 s[6:7]')
        a.label('K_pc')
        pc = 6 if cfg.get('stamps') else 4
        a.I('v_lshlrev_b32 v254, 7, v0')
        for k in range(cfg.get('codekb', 96) // 32):
            a.I('v_min_u32 v255, K_end-K_pc-4, v254')
            a.I('global_load_dword v%d, v255, s[%d:%d]', 240 + k, pc, pc + 1)
            a.I('v_add_u32 v254, 0x8000, v254')
    a.I('s_cmp_lg_u32 s%d, %d', S_XCC, cfg.get('xcd', 0))
    a.I('s_cbranch_scc1 K_bulk_t')
    def kick(a):
        rec.srd(a, S_W, P_WQ, 4194304)
        a.I('v_and_b32 v250, 63, v0')
        a.I('v_lshlrev_b32 v250, 7, v250')
        a.I('s_lshr_b32 s%d, s2, 3', sT)
        a.I('s_and_b32 s%d, s%d, 31', sT, sT)
        a.I('s_lshl_b32 s%d, s%d, 2', sT, sT)
        a.I('s_add_u32 s%d, s%d, s%d', sT, sT, S_WAVE)
        a.I('s_lshl_b32 s%d, s%d, 13', sT, sT)
        n = cfg.get('kick', 0)
        for k in range(n):
            a.I('buffer_load_dword v249, v250, s[%d:%d], s%d offen', S_W, S_W + 3, sT)
            a.I('s_add_u32 s%d, s%d, %d', sT, sT, 128 * 8192)
        return n
    ticket(a, D_TICK_REC, S_ROLE, between=kick if cfg.get('kick') else None)
    a.I('s_cmp_lt_u32 s%d, 32', S_ROLE)
    a.I('s_cbranch_scc1 K_rec')
    a.label('K_bulk_t')
    ticket(a, D_TICK_A, S_ROLE)
    bulk.bstamp(a, 0)
    a.I('s_sub_u32 s%d, s%d, 128', sT + 1, S_ROLE)
    a.I('s_cmp_ge_u32 s%d, %d', sT + 1, NZERO)
    a.I('s_cbranch_scc1 K_nz')
    for k in range(4):
        a.I('v_mov_b32 v%d, 0', 240 + k)
    a.I('v_and_b32 v244, 63, v0')
    a.I('v_lshlrev_b32 v244, 4, v244')
    per = FL_SIZE // (4 * NZERO)
    assert per % 1024 == 0
    a.I('s_lshl_b32 s%d, s%d, 2', sT + 1, sT + 1)
    a.I('s_add_u32 s%d, s%d, s%d', sT + 1, sT + 1, S_WAVE)
    a.I('s_mul_i32 s%d, s%d, %d', sT, sT + 1, per)
    a.I('s_add_u32 s%d, s%d, 0x%x', sT, sT, WS_FLAGS)
    for k in range(per // 1024):
        if k and k % 4 == 0:
            a.I('s_add_u32 s%d, s%d, 4096', sT, sT)
        a.I('buffer_store_dwordx4 v[240:243], v244, %s, s%d offen offset:%d sc1', WS, sT, (k % 4) * 1024)
    a.I('s_waitcnt vmcnt(0)')
    a.I('s_barrier')
    dbg_add(a, D_FINIT)
    a.label('K_nz')
    a.I('s_sub_u32 s%d, s%d, 128', sT + 5, S_ROLE)
    a.I('s_cmp_ge_u32 s%d, 96', sT + 5)
    a.I('s_cbranch_scc1 K_a')
    rec.srd(a, S_W, P_X, 2097152)
    a.label('K_ln')
    a.I('s_lshl_b32 s%d, s%d, 14', sT + 6, sT + 5)
    a.I('s_lshl_b32 s%d, s%d, 12', sT, S_WAVE)
    a.I('s_add_u32 s%d, s%d, s%d', sT + 6, sT + 6, sT)
    a.I('s_add_u32 s%d, s%d, 2048', sT + 7, sT + 6)
    t0 = bulk.ln_issue(a, sT + 6, B=200)
    t1 = bulk.ln_issue(a, sT + 7, B=150)
    if cfg.get('wopf', 1):
        rec.srd(a, S_W2, P_WO, 4194304)
        a.I('s_lshl_b32 s%d, s%d, 1', sT + 4, sT + 6)
        for k in range(8):
            if k == 4:
                a.I('s_add_u32 s%d, s%d, 4096', sT + 4, sT + 4)
            a.I('buffer_load_dwordx4 v[%d:%d], v208, s[%d:%d], s%d offen offset:%d', 100 + 4 * k, 103 + 4 * k, S_W2, S_W2 + 3, sT + 4, (k % 4) * 1024)
    bulk.ln_compute(a, t0, sT + 6, B=200)
    bulk.ln_compute(a, t1, sT + 7, B=150)
    bulk.wait_dbg(a, D_FINIT, NZERO)
    a.I('s_barrier')
    lab = a.newlabel('LNF')
    a.I('s_cmp_lg_u32 s%d, 0', S_WAVE)
    a.I('s_cbranch_scc1 %s', lab)
    a.I('s_lshl_b32 s%d, s%d, 2', sT + 1, sT + 5)
    a.I('s_add_u32 s%d, s%d, 0x%x', sT + 1, sT + 1, WS_FLAGS + FL_XN)
    bulk.flag_store(a, sT + 1)
    a.label(lab)
    a.I('s_add_u32 s%d, s%d, 96', sT + 5, sT + 5)
    a.I('s_cmp_lt_u32 s%d, 128', sT + 5)
    a.I('s_cbranch_scc1 K_ln')
    bulk.bstamp(a, 1)
    a.label('K_a')
    bulk.gen_phase_a(a)
    bulk.wait_dbg(a, D_FINIT, NZERO)
    a.I('s_mov_b32 s%d, 0', bulk.sSpin)
    a.I('v_mov_b32 v250, 0')
    a.label('K_arr')
    a.I('buffer_load_dword v251, v250, %s, 0 offen offset:%d sc1', DBG, D_TICK_REC * 4)
    a.I('buffer_load_dword v252, v250, %s, 0 offen offset:%d sc1', DBG, D_TICK_A * 4)
    bulk.spin(a)
    a.I('s_waitcnt vmcnt(0)')
    a.I('v_readfirstlane_b32 s%d, v251', sT)
    a.I('v_readfirstlane_b32 s%d, v252', sT + 1)
    a.I('s_cmp_ge_u32 s%d, 32', sT)
    a.I('s_cbranch_scc1 K_arr2')
    a.I('s_add_u32 s%d, s%d, s%d', sT, sT, sT + 1)
    a.I('s_cmp_lt_u32 s%d, 256', sT)
    a.I('s_cbranch_scc1 K_arr')
    a.label('K_arr2')
    ticket(a, D_TICK_REC, S_ROLE, pre=sT)
    a.I('s_cmp_ge_u32 s%d, 32', S_ROLE)
    a.I('s_cbranch_scc1 K_b')
    dbg_add(a, D_CNT_OTH)
    a.I('s_branch K_rec')
    a.label('K_b')
    ticket(a, D_TICK_B, S_ROLE)
    a.I('s_cmp_lt_u32 s%d, %d', S_ROLE, bulk.NT1)
    a.I('s_cbranch_scc1 K_t1')
    a.I('s_sub_u32 s%d, s%d, %d', S_ROLE, S_ROLE, bulk.NT1)
    a.I('s_cmp_ge_u32 s%d, 128', S_ROLE)
    a.I('s_cbranch_scc1 K_exit')
    bulk.gen_t2(a)
    a.label('K_t1')
    bulk.gen_t1(a)
    a.label('B_fail')
    a.I('s_mov_b64 exec, 1')
    a.I('v_mov_b32 v252, %d', (D_ERR + 2) * 4)
    a.I('v_mov_b32 v251, s%d', S_ROLE)
    a.I('v_or_b32 v251, 0x20000000, v251')
    a.I('buffer_store_dword v251, v252, %s, 0 offen sc1', DBG)
    a.label('K_exit')
    a.I('s_endpgm')
    a.label('K_rec')
    rec.gen_rec(a, cfg)
    a.label('K_end')
    errs = a.verify_edges()
    for e in errs:
        print('HAZARD', e, file=sys.stderr)
    k = KNAME + '_kernel'
    ref = open('cdna_kernels/%s.s.ref' % KNAME).read().split('\n')
    hdr = '\n'.join(l for l in ref[:17] if l.startswith(';') and '@launch' not in l) + '\n'
    hdr += '; @launch grid=(256,1,1) block=(256,1,1) lds=163840\n.amdgcn_target "amdgcn-amd-amdhsa--gfx950"\n.text\n.globl %s\n.p2align 8\n.type %s,@function\n%s:\n' % (k, k, k)
    ftr = '''.section .rodata,"a"
.p2align 6
.amdhsa_kernel %s
  .amdhsa_next_free_vgpr 512
  .amdhsa_next_free_sgpr 102
  .amdhsa_accum_offset 256
  .amdhsa_group_segment_fixed_size 0
  .amdhsa_kernarg_size 112
  .amdhsa_user_sgpr_count 2
  .amdhsa_user_sgpr_kernarg_segment_ptr 1
  .amdhsa_system_sgpr_workgroup_id_x 1
  .amdhsa_float_denorm_mode_32 3
.end_amdhsa_kernel
''' % k
    return hdr + a.text() + ftr


if __name__ == '__main__':
    cfg = dict(fast=True, kvflags=1, both_modes=1, npre=5, d0=4, d1=5, d2=2, pgap=3, b3=1, warm128=1, pubpos=0, dbl1=1, rgap=3, codepf=0, wnt=0, word=1)
    for arg in sys.argv[2:]:
        k, v = arg.split('=')
        cfg[k] = int(v)
    open(sys.argv[1], 'w').write(build(cfg))
```

```python
from asmlib import *
from common import *
from rec import srd, f32bits

WS = 's[%d:%d]' % (S_WS, S_WS + 3)
DBG = 's[%d:%d]' % (S_DBG, S_DBG + 3)
DP = ' row_mask:0xf bank_mask:0xf'
sT = 84
sSpin = 83
SPIN_MAX = 0x400000


BST = False
GI = 0
HALF = 1
GSL = 0
SL1, SL2 = 2, 2
DBGT = False


def dbg_time(a, dword, invert=False, V=248):
    if not DBGT:
        return
    a.I('s_memrealtime s[100:101]')
    a.I('s_waitcnt lgkmcnt(0)')
    if invert:
        a.I('s_not_b32 s100, s100')
    a.I('s_mov_b64 exec, 1')
    a.I('v_mov_b32 v%d, %d', V, dword * 4)
    a.I('v_mov_b32 v%d, s100', V + 1)
    a.I('buffer_atomic_umax v%d, v%d, %s, 0 offen', V + 1, V, DBG)
    a.I('s_mov_b64 exec, -1')

HOLD = 0


def bstamp(a, idx, V=14):
    if not BST:
        return
    lab = a.newlabel('BS')
    a.I('s_cmp_lg_u32 s%d, 0', S_WAVE)
    a.I('s_cbranch_scc1 %s', lab)
    a.I('s_memrealtime s[100:101]')
    a.I('s_lshl_b32 s99, s2, 6')
    a.I('s_add_u32 s99, s99, 0x%x', WS_DBG + 0x90000 + idx * 4)
    a.I('s_waitcnt lgkmcnt(0)')
    a.I('s_mov_b64 exec, 1')
    a.I('v_mov_b32 v%d, 0', V)
    a.I('v_mov_b32 v%d, s100', V + 1)
    a.I('buffer_store_dword v%d, v%d, %s, s99 offen', V + 1, V, WS)
    a.I('v_mov_b32 v%d, s%d', V + 1, S_ROLE)
    a.I('buffer_store_dword v%d, v%d, %s, s99 offen offset:32', V + 1, V, WS)
    a.I('s_mov_b64 exec, -1')
    a.label(lab)
    a.vm_n -= 2


def spin(a, fail='B_fail'):
    a.I('s_add_u32 s%d, s%d, 1', sSpin, sSpin)
    a.I('s_cmp_gt_u32 s%d, 0x%x', sSpin, SPIN_MAX)
    a.I('s_cbranch_scc1 %s', fail)


def wave_allsum(a, regs, tmp):
    for sh in (1, 2, 4, 8):
        for r in regs:
            a.I('v_add_f32_dpp v%d, v%d, v%d row_ror:%d' + DP, r, r, r, sh)
    for op in ('v_permlane16_swap_b32', 'v_permlane32_swap_b32'):
        for r, t in zip(regs, tmp):
            a.I('v_mov_b32 v%d, v%d', t, r)
        for r, t in zip(regs, tmp):
            a.I('%s v%d, v%d', op, r, t)
        for r, t in zip(regs, tmp):
            a.I('v_add_f32 v%d, v%d, v%d', r, r, t)


def rnd_bf16(a, r):
    a.I('v_cvt_pk_bf16_f32 v%d, v%d, v%d', r, r, r)
    a.I('v_and_b32 v%d, 0xffff0000, v%d', r, r)


def ln_issue(a, srow, B=200):
    a.I('v_and_b32 v%d, 63, v0', B + 8)
    a.I('v_lshlrev_b32 v%d, 4, v%d', B + 8, B + 8)
    a.I('buffer_load_dwordx4 v[%d:%d], v%d, s[%d:%d], s%d offen', B, B + 3, B + 8, S_W, S_W + 3, srow)
    return a.I('buffer_load_dwordx4 v[%d:%d], v%d, s[%d:%d], s%d offen offset:1024', B + 4, B + 7, B + 8, S_W, S_W + 3, srow)


def ln_compute(a, tok, srow, B=200):
    X = [B + 10, B + 18]
    S = [B + 26, B + 27]
    TM = [B + 28, B + 29]
    MB = [B + 30, B + 31]
    D = [B + 32, B + 40]
    if tok:
        a.wait(tok)
    for r in range(2):
        for k in range(4):
            a.I('v_lshlrev_b32 v%d, 16, v%d', X[r] + 2 * k, B + 4 * r + k)
            a.I('v_and_b32 v%d, 0xffff0000, v%d', X[r] + 2 * k + 1, B + 4 * r + k)
    for r in range(2):
        a.I('v_add_f32 v%d, v%d, v%d', S[r], X[r], X[r] + 1)
        for k in range(2, 8):
            a.I('v_add_f32 v%d, v%d, v%d', S[r], S[r], X[r] + k)
    wave_allsum(a, S, TM)
    for r in range(2):
        a.I('v_mul_f32 v%d, 0x%x, v%d', MB[r], f32bits(1.0 / 512), S[r])
    for r in range(2):
        for k in range(8):
            a.I('v_sub_f32 v%d, v%d, v%d', D[r] + k, X[r] + k, MB[r])
        a.I('v_mul_f32 v%d, v%d, v%d', S[r], D[r], D[r])
        for k in range(1, 8):
            a.I('v_fmac_f32 v%d, v%d, v%d', S[r], D[r] + k, D[r] + k)
    wave_allsum(a, S, TM)
    for r in range(2):
        a.I('v_mul_f32 v%d, 0x%x, v%d', S[r], f32bits(1.0 / 512), S[r])
        rnd_bf16(a, S[r])
        a.I('v_add_f32 v%d, 0x%x, v%d', S[r], f32bits(1e-5), S[r])
        rnd_bf16(a, S[r])
        a.I('v_sqrt_f32 v%d, v%d', S[r], S[r])
        rnd_bf16(a, S[r])
        a.I('v_rcp_f32 v%d, v%d', S[r], S[r])
        rnd_bf16(a, MB[r])
    for r in range(2):
        for k in range(4):
            a.I('v_sub_f32 v%d, v%d, v%d', D[r] + 2 * k, X[r] + 2 * k, MB[r])
            a.I('v_sub_f32 v%d, v%d, v%d', D[r] + 2 * k + 1, X[r] + 2 * k + 1, MB[r])
            a.I('v_cvt_pk_bf16_f32 v%d, v%d, v%d', TM[r], D[r] + 2 * k, D[r] + 2 * k + 1)
            a.I('v_lshlrev_b32 v%d, 16, v%d', D[r] + 2 * k, TM[r])
            a.I('v_and_b32 v%d, 0xffff0000, v%d', D[r] + 2 * k + 1, TM[r])
            a.I('v_mul_f32 v%d, v%d, v%d', D[r] + 2 * k, D[r] + 2 * k, S[r])
            a.I('v_mul_f32 v%d, v%d, v%d', D[r] + 2 * k + 1, D[r] + 2 * k + 1, S[r])
            a.I('v_cvt_pk_bf16_f32 v%d, v%d, v%d', B + 4 * r + k, D[r] + 2 * k, D[r] + 2 * k + 1)
    a.I('buffer_store_dwordx4 v[%d:%d], v%d, %s, s%d offen sc1', B, B + 3, B + 8, WS, srow)
    return a.I('buffer_store_dwordx4 v[%d:%d], v%d, %s, s%d offen offset:1024 sc1', B + 4, B + 7, B + 8, WS, srow)


def wait_dbg(a, dword, minval, V=250, fail='B_fail', sleep=2):
    lab = a.newlabel('WD')
    a.I('v_mov_b32 v%d, %d', V, dword * 4)
    a.I('s_mov_b32 s%d, 0', sSpin)
    a.label(lab)
    a.I('buffer_load_dword v%d, v%d, %s, 0 offen sc1', V + 1, V, DBG)
    spin(a, fail)
    a.I('s_waitcnt vmcnt(0)')
    a.I('v_readfirstlane_b32 s%d, v%d', sT, V + 1)
    a.I('s_cmp_ge_u32 s%d, %d', sT, minval)
    done = a.newlabel('WDd')
    a.I('s_cbranch_scc1 %s', done)
    a.I('s_sleep %d', sleep)
    a.I('s_branch %s', lab)
    a.label(done)


def flag_store(a, soff, V=250, val=1):
    a.I('s_mov_b64 exec, 1')
    a.I('v_mov_b32 v%d, 0', V)
    a.I('v_mov_b32 v%d, %s', V + 1, str(val))
    a.I('buffer_store_dword v%d, v%d, %s, s%d offen sc1', V + 1, V, WS, soff)
    a.I('s_mov_b64 exec, -1')


sSeg, sStride, sSlice, sCol, sOut, sSrc, sBuf, sFlagPrev, sHave = 64, 65, 66, 67, 68, 69, 70, 71, 72
sFlagBase = 73
sPermLo, sPermHi = 95, 96
vLane, vN, vG, vL16, vSrc, vWa, vWb = 1, 2, 3, 4, 5, 6, 7
FR = 16
ACC = 48
OUT = 80
WB = 100


def lane_consts(a):
    a.I('v_and_b32 v%d, 63, v0', vLane)
    a.I('v_and_b32 v%d, 15, v%d', vN, vLane)
    a.I('v_lshrrev_b32 v%d, 4, v%d', vG, vLane)
    a.I('v_lshlrev_b32 v%d, 4, v%d', vL16, vLane)
    a.I('s_mov_b32 s%d, 0x05040100', sPermLo)
    a.I('s_mov_b32 s%d, 0x07060302', sPermHi)


def gemm_weights(a, ffn):
    stride = 3584 if ffn else 8192
    a.I('s_mov_b32 s%d, %d', sT, stride * 8)
    a.I('v_mul_lo_u32 v%d, v%d, s%d', vWa, vG, sT)
    a.I('v_lshl_add_u32 v%d, v%d, %d, v%d', vWa, vN, 2 if ffn else 3, vWa)
    NB = 3
    toks = {}

    def issue(g):
        b = WB + 32 * (g % NB)
        for h in range(2):
            ks = 2 * g + h
            for kk in range(8):
                r = b + 16 * h + 2 * kk
                a.I('s_add_u32 s%d, s%d, %d', sT, sCol, (32 * ks + kk) * stride)
                if ffn:
                    a.I('buffer_load_dword v%d, v%d, s[%d:%d], s%d offen', r, vWa, S_W, S_W + 3, sT)
                    t = a.I('buffer_load_dword v%d, v%d, s[%d:%d], s%d offen', r + 1, vWa, S_W2, S_W2 + 3, sT)
                else:
                    t = a.I('buffer_load_dwordx2 v[%d:%d], v%d, s[%d:%d], s%d offen', r, r + 1, vWa, S_W, S_W + 3, sT)
        toks[g] = t

    def consume(g):
        b = WB + 32 * (g % NB)
        a.wait(toks[g])
        for h in range(2):
            ks = 2 * g + h
            for t in range(4):
                for p in range(4):
                    r0 = b + 16 * h + 4 * p + t // 2
                    a.I('v_perm_b32 v%d, v%d, v%d, s%d', OUT + 4 * t + p, r0 + 2, r0, sPermLo if t % 2 == 0 else sPermHi)
            for k in range(16):
                a.I('v_accvgpr_write_b32 a%d, v%d', 16 * ks + k, OUT + k)
    depth = 1 if ffn else 3
    for g in range(depth):
        issue(g)
    for g in range(8):
        if ffn and g + 1 < 8:
            issue(g + 1)
        consume(g)
        if not ffn and g + depth < 8:
            issue(g + depth)


def gemm_loop(a, kind):
    L = 'A%s_' % kind

    def dma(js=range(8)):
        for j in js:
            a.I('s_add_u32 m0, s%d, %d', sBuf, j * (1024 - 64))
            a.I('buffer_load_dwordx4 v%d, %s, s%d offen offset:%d sc1 lds', vSrc, WS, sSrc, j * 64)

    a.I('s_lshl_b32 s%d, s%d, 13', sBuf, S_WAVE)
    a.I('s_lshl_b32 s%d, s%d, 15', sSrc, sSeg)
    dma()
    a.I('s_mov_b32 s%d, 0', sHave)
    a.I('v_mov_b32 v%d, v%d', vWb, vL16)
    a.I('s_waitcnt vmcnt(0)')
    a.I('s_barrier')
    a.label(L + 'loop')
    a.I('s_add_u32 s%d, s%d, s%d', sT + 1, sSeg, sStride)
    a.I('s_min_u32 s%d, s%d, 63', sT + 1, sT + 1)
    a.I('s_lshl_b32 s%d, s%d, 15', sSrc, sT + 1)
    a.I('s_xor_b32 s%d, s%d, 32768', sBuf, sBuf)
    ft = {}

    def rd(ks):
        st = ks % 3
        a.I('ds_read_b128 v[%d:%d], v%d offset:%d', FR + 8 * st, FR + 8 * st + 3, vWb, ks * 1024)
        ft[ks] = a.I('ds_read_b128 v[%d:%d], v%d offset:%d', FR + 8 * st + 4, FR + 8 * st + 7, vWb, 16384 + ks * 1024)
    rd(0)
    rd(1)
    if not GI:
        dma()
    for ks in range(16):
        if ks + 2 < 16:
            rd(ks + 2)
        a.wait(ft[ks])
        st = ks % 3
        for T in range(2):
            for t in range(4):
                d = ACC + 16 * T + 4 * t
                x = vr(FR + 8 * st + 4 * T, 4)
                w = ar(16 * ks + 4 * t, 4)
                A, B = (x, w) if kind == 'v' else (w, x)
                a.I('v_mfma_f32_16x16x32_bf16 v[%d:%d], %s, %s, %s', d, d + 3, A, B, '0' if ks == 0 else vr(d, 4))
                if GI and ks < 4 and t == 1:
                    dma([2 * ks + T])
        if ks == 8:
            a.I('s_waitcnt vmcnt(8)')
            a.I('s_barrier')
            sk = a.newlabel(L + 'nf')
            a.I('s_or_b32 s%d, s%d, s%d', sT, S_WAVE, sHave)
            a.I('s_cmp_lg_u32 s%d, 0x100', sT)
            a.I('s_cbranch_scc1 %s', sk)
            flag_store(a, sFlagPrev)
            a.label(sk)
            a.vm_n -= 1
    a.I('s_waitcnt vmcnt(0)')
    a.I('s_barrier')
    if kind == 'qk':
        a.I('s_lshl_b32 s%d, s%d, 18', sT, sSeg)
        a.I('s_add_u32 s%d, s%d, s%d', sT, sT, sOut)
        a.I('s_add_u32 s%d, s%d, 4096', sT + 1, sT)
        for T in range(2):
            for i in range(4):
                for tp in range(2):
                    a.I('v_cvt_pk_bf16_f32 v%d, v%d, v%d', OUT + 8 * T + 2 * i + tp, ACC + 16 * T + 8 * tp + i, ACC + 16 * T + 8 * tp + 4 + i)
            for hf in range(2):
                a.I('buffer_store_dwordx4 v[%d:%d], v%d, %s, s%d offen offset:%d sc1', OUT + 8 * T + 4 * hf, OUT + 8 * T + 4 * hf + 3,
                    vL16, WS, sT + T, 1024 * hf)
    elif kind == 'v':
        a.I('s_lshl_b32 s%d, s%d, 18', sT, sSeg)
        a.I('s_add_u32 s%d, s%d, s%d', sT, sT, sOut)
        for t in range(4):
            for T in range(2):
                for i2 in range(2):
                    a.I('v_cvt_pk_bf16_f32 v%d, v%d, v%d', OUT + 4 * t + 2 * T + i2, ACC + 16 * T + 4 * t + 2 * i2, ACC + 16 * T + 4 * t + 2 * i2 + 1)
            a.I('buffer_store_dwordx4 v[%d:%d], v%d, %s, s%d offen offset:%d sc1', OUT + 4 * t, OUT + 4 * t + 3, vL16, WS, sT, 1024 * t)
    else:
        a.I('s_mul_i32 s%d, s%d, %d', sT, sSeg, 2 * 56 * 1024)
        a.I('s_add_u32 s%d, s%d, s%d', sT, sT, sOut)
        a.I('s_add_u32 s%d, s%d, %d', sT + 1, sT, 56 * 1024)
        for T in range(2):
            for i in range(4):
                g0, g1, u0, u1 = [ACC + 16 * T + 4 * t + i for t in range(4)]
                a.I('v_cvt_pk_bf16_f32 v%d, v%d, v%d', g0, g0, g1)
                a.I('v_cvt_pk_bf16_f32 v%d, v%d, v%d', u0, u0, u1)
                a.I('v_and_b32 v%d, 0xffff0000, v%d', g1, g0)
                a.I('v_and_b32 v%d, 0xffff0000, v%d', u1, u0)
                a.I('v_lshlrev_b32 v%d, 16, v%d', g0, g0)
                a.I('v_lshlrev_b32 v%d, 16, v%d', u0, u0)
                a.I('v_mul_f32 v%d, v%d, v%d', g0, g0, u0)
                a.I('v_mul_f32 v%d, v%d, v%d', g1, g1, u1)
                a.I('v_cvt_pk_bf16_f32 v%d, v%d, v%d', OUT + 4 * T + i, g0, g1)
            a.I('buffer_store_dwordx4 v[%d:%d], v%d, %s, s%d offen sc1', OUT + 4 * T, OUT + 4 * T + 3, vL16, WS, sT + T)
    a.I('s_lshl_b32 s%d, s%d, %d', sT, sSeg, 6 if kind == 'h' else 5)
    a.I('s_add_u32 s%d, s%d, s%d', sFlagPrev, sT, sFlagBase)
    a.I('s_mov_b32 s%d, 0x100', sHave)
    a.I('v_xor_b32 v%d, 32768, v%d', vWb, vWb)
    if GSL:
        a.I('s_sleep %d', GSL)
    a.I('s_add_u32 s%d, s%d, s%d', sSeg, sSeg, sStride)
    a.I('s_cmp_lt_u32 s%d, 64', sSeg)
    a.I('s_cbranch_scc1 %sloop', L)
    a.I('s_waitcnt vmcnt(0)')
    a.I('s_barrier')
    sk = a.newlabel(L + 'nf')
    a.I('s_cmp_lg_u32 s%d, 0', S_WAVE)
    a.I('s_cbranch_scc1 %s', sk)
    flag_store(a, sFlagPrev)
    a.label(sk)
    a.I('s_branch A_done')


def wait_xn(a):
    wait_dbg(a, D_FINIT, NZERO, V=FR)
    lab = a.newlabel('WX')
    a.I('v_lshrrev_b32 v%d, 1, v%d', FR + 2, vL16)
    a.I('s_mov_b32 s%d, 0x%x', sT + 1, WS_FLAGS + FL_XN)
    a.I('s_mov_b32 s%d, 0', sSpin)
    a.label(lab)
    a.I('buffer_load_dwordx2 v[%d:%d], v%d, %s, s%d offen sc1', FR, FR + 1, FR + 2, WS, sT + 1)
    spin(a)
    a.I('s_waitcnt vmcnt(0)')
    a.I('v_min_u32 v%d, v%d, v%d', FR, FR, FR + 1)
    a.I('v_cmp_eq_u32 vcc, 0, v%d', FR)
    done = a.newlabel('WXd')
    a.I('s_cbranch_vccz %s', done)
    a.I('s_sleep 2')
    a.I('s_branch %s', lab)
    a.label(done)


def gen_phase_a(a):
    a.c('================ phase A: projections, ticket in s%d ================' % S_ROLE)
    lane_consts(a)
    a.I('v_lshlrev_b32 v%d, 10, v%d', vSrc, vN)
    a.I('v_lshl_add_u32 v%d, v%d, 4, v%d', vSrc, vG, vSrc)
    a.I('s_lshr_b32 s%d, s%d, 1', sT, S_WAVE)
    a.I('s_lshl_b32 s%d, s%d, 14', sT, sT)
    a.I('s_and_b32 s%d, s%d, 1', sT + 1, S_WAVE)
    a.I('s_lshl_b32 s%d, s%d, 9', sT + 1, sT + 1)
    a.I('s_add_u32 s%d, s%d, s%d', sT, sT, sT + 1)
    a.I('v_add_u32 v%d, s%d, v%d', vSrc, sT, vSrc)
    a.I('s_cmp_ge_u32 s%d, 218', S_ROLE)
    a.I('s_cbranch_scc1 A_done')
    a.I('s_cmp_ge_u32 s%d, 176', S_ROLE)
    a.I('s_cbranch_scc1 A_h')
    a.I('s_and_b32 s%d, s%d, 31', sSlice, S_ROLE)
    a.I('s_lshr_b32 s%d, s%d, 5', sSeg, S_ROLE)
    a.I('s_mov_b32 s%d, 4', sStride)
    a.I('s_cmp_lt_u32 s%d, 128', S_ROLE)
    a.I('s_cbranch_scc1 A_kv')
    a.I('s_sub_u32 s%d, s%d, 128', sT, S_ROLE)
    a.I('s_and_b32 s%d, s%d, 15', sSlice, sT)
    a.I('s_add_u32 s%d, s%d, 32', sSlice, sSlice)
    a.I('s_lshr_b32 s%d, s%d, 4', sSeg, sT)
    a.I('s_mov_b32 s%d, 3', sStride)
    if HOLD:
        wait_dbg(a, D_WDONE, HOLD, V=FR, sleep=16)
    a.label('A_kv')
    a.I('s_and_b32 s%d, s%d, 15', sT, sSlice)
    a.I('s_lshl_b32 s%d, s%d, 9', sCol, sT)
    a.I('s_lshl_b32 s%d, s%d, 7', sT + 1, S_WAVE)
    a.I('s_add_u32 s%d, s%d, s%d', sCol, sCol, sT + 1)
    a.I('s_lshl_b32 s%d, s%d, 14', sOut, sT)
    a.I('s_lshr_b32 s%d, s%d, 1', sT + 1, S_WAVE)
    a.I('s_lshl_b32 s%d, s%d, 13', sT + 1, sT + 1)
    a.I('s_add_u32 s%d, s%d, s%d', sOut, sOut, sT + 1)
    a.I('s_and_b32 s%d, s%d, 1', sT + 2, S_WAVE)
    a.I('s_lshr_b32 s%d, s%d, 4', sT + 3, sSlice)
    a.I('s_lshl_b32 s%d, s%d, 11', sFlagBase, sT)
    a.I('s_add_u32 s%d, s%d, 0x%x', sFlagBase, sFlagBase, WS_FLAGS + FL_KV)
    a.I('s_cmp_eq_u32 s%d, 1', sT + 3)
    a.I('s_cbranch_scc1 A_v')
    a.I('s_lshl_b32 s%d, s%d, 11', sT + 2, sT + 2)
    a.I('s_add_u32 s%d, s%d, s%d', sOut, sOut, sT + 2)
    a.I('s_cmp_eq_u32 s%d, 0', sT + 3)
    a.I('s_cselect_b32 s%d, s%d, s%d', S_W, P_WK, P_WQ)
    a.I('s_cselect_b32 s%d, s%d, s%d', S_W + 1, P_WK + 1, P_WQ + 1)
    a.I('s_cselect_b32 s%d, 0, 8', sT + 1)
    a.I('s_cselect_b32 s%d, 0x%x, 0x%x' % (sT, WS_K >> 20, WS_Q >> 20))
    a.I('s_add_u32 s%d, s%d, s%d', sFlagBase, sFlagBase, sT + 1)
    a.I('s_lshl_b32 s%d, s%d, 20', sT, sT)
    a.I('s_add_u32 s%d, s%d, s%d', sOut, sOut, sT)
    a.I('s_and_b32 s%d, s%d, 0xffff', S_W + 1, S_W + 1)
    a.I('s_mov_b32 s%d, 4194304', S_W + 2)
    a.I('s_mov_b32 s%d, 0x20000', S_W + 3)
    a.I('s_branch A_w')
    a.label('A_v')
    a.I('s_lshl_b32 s%d, s%d, 12', sT + 2, sT + 2)
    a.I('s_add_u32 s%d, s%d, s%d', sOut, sOut, sT + 2)
    a.I('s_add_u32 s%d, s%d, 0x%x', sOut, sOut, WS_V)
    a.I('s_add_u32 s%d, s%d, 16', sFlagBase, sFlagBase)
    srd(a, S_W, P_WV, 4194304)
    a.label('A_w')
    gemm_weights(a, False)
    bstamp(a, 2)
    wait_xn(a)
    bstamp(a, 3)
    a.I('s_lshr_b32 s%d, s%d, 4', sT + 3, sSlice)
    a.I('s_cmp_eq_u32 s%d, 1', sT + 3)
    a.I('s_cbranch_scc1 A_vloop')
    gemm_loop(a, 'qk')
    a.label('A_vloop')
    gemm_loop(a, 'v')
    a.label('A_h')
    if HOLD:
        wait_dbg(a, D_WDONE, HOLD, V=FR, sleep=16)
    a.I('s_sub_u32 s%d, s%d, 176', sT, S_ROLE)
    a.I('s_mov_b32 s%d, 0', sSeg)
    for k in range(2):
        a.I('s_cmp_ge_u32 s%d, 14', sT)
        a.I('s_cselect_b32 s%d, 14, 0', sT + 1)
        a.I('s_sub_u32 s%d, s%d, s%d', sT, sT, sT + 1)
        a.I('s_lshr_b32 s%d, s%d, 3', sT + 1, sT + 1)
        a.I('s_add_u32 s%d, s%d, s%d', sSeg, sSeg, sT + 1)
    a.I('s_add_u32 s%d, s%d, 48', sSlice, sT)
    a.I('s_mov_b32 s%d, 3', sStride)
    a.I('s_lshl_b32 s%d, s%d, 2', sT, sT)
    a.I('s_add_u32 s%d, s%d, 0x%x', sFlagBase, sT, WS_FLAGS + FL_H)
    a.I('s_add_u32 s%d, s%d, s%d', sT, sT, S_WAVE)
    a.I('s_lshl_b32 s%d, s%d, 6', sCol, sT)
    a.I('s_lshl_b32 s%d, s%d, 10', sOut, sT)
    a.I('s_add_u32 s%d, s%d, 0x%x', sOut, sOut, WS_H)
    srd(a, S_W, P_WG, 512 * 3584)
    srd(a, S_W2, P_WU, 512 * 3584)
    gemm_weights(a, True)
    bstamp(a, 2)
    wait_xn(a)
    bstamp(a, 3)
    gemm_loop(a, 'h')
    a.label('A_done')
    bstamp(a, 4)


def poll_flags(a, vaddr, soff, nlanes, smin, V, sleep=2, far=None):
    lab = a.newlabel('PF')
    done = a.newlabel('PFd')
    a.I('s_mov_b32 s%d, 0', sSpin)
    a.I('s_mov_b64 exec, 0x%x', (1 << nlanes) - 1)
    a.label(lab)
    a.I('buffer_load_dword v%d, v%d, %s, s%d offen sc1', V, vaddr, WS, soff)
    spin(a)
    a.I('s_waitcnt vmcnt(0)')
    if smin is None:
        a.I('v_cmp_eq_u32 vcc, 0, v%d', V)
    else:
        a.I('v_cmp_gt_u32 vcc, s%d, v%d', smin, V)
    a.I('s_cbranch_vccz %s', done)
    a.I('s_sleep %d', sleep)
    if far:
        a.I('v_readfirstlane_b32 s%d, v%d', sT, V)
        a.I('s_add_u32 s%d, s%d, %d', sT, sT, far[0])
        a.I('s_cmp_ge_u32 s%d, s%d', sT, smin)
        a.I('s_cbranch_scc1 %s', lab)
        a.I('s_sleep %d', far[1])
    a.I('s_branch %s', lab)
    a.label(done)
    a.I('s_mov_b64 exec, -1')


NT1 = 96


def gen_t1(a):
    a.c('================ T1: token attention ================')
    sTask, sSegT, sHead, sBase, sB2, sNeed, sC = 64, 65, 66, 67, 68, 69, 70
    sMask = 72
    sLo = 80
    vKm, vVm, vF64, vF128, vNeg = 5, 6, 7, 8, 9
    TM = 10
    QF, KF, VF, KM, VM, S, P, O = 16, 48, 80, 112, 128, 144, 164, 176
    lane_consts(a)
    sC2, sNC = 92, sC
    a.I('s_mov_b32 s%d, 0x%x', sC2, f32bits(128 ** -0.5 * 1.4426950408889634))
    a.I('s_mov_b32 s%d, 0x%x', sC2 + 1, f32bits(128 ** -0.5 * 1.4426950408889634))
    a.I('s_mov_b32 s%d, 0x%x', sNC, f32bits(-128 ** -0.5 * 1.4426950408889634))
    a.I('v_mov_b32 v%d, 0x%x', vNeg, f32bits(-3.0e38))
    a.I('v_lshlrev_b32 v%d, 2, v%d', TM, vG)
    for i in range(4):
        a.I('v_add_u32 v%d, %d, v%d', TM + 1, i, TM)
        a.I('v_cmp_le_u32 s[%d:%d], v%d, v%d', sMask + 2 * i, sMask + 2 * i + 1, TM + 1, vN)
    a.I('s_mov_b32 s%d, -1', sLo)
    a.I('s_mov_b32 s%d, 0', sLo + 1)
    a.I('v_lshlrev_b32 v%d, 3, v%d', vF64, vLane)
    a.I('v_lshlrev_b32 v%d, 7, v%d', vF128, vLane)
    a.I('v_lshrrev_b32 v%d, 1, v%d', TM, vG)
    a.I('v_lshlrev_b32 v%d, 10, v%d', vKm, TM)
    a.I('v_and_b32 v%d, 1, v%d', TM, vG)
    a.I('v_lshl_add_u32 v%d, v%d, 7, v%d', vKm, TM, vKm)
    a.I('v_bfe_u32 v%d, v%d, 1, 2', TM, vN)
    a.I('v_lshl_add_u32 v%d, v%d, 8, v%d', vKm, TM, vKm)
    a.I('v_and_b32 v%d, 1, v%d', TM, vN)
    a.I('v_lshl_add_u32 v%d, v%d, 2, v%d', vKm, TM, vKm)
    a.I('v_add_u32 v%d, 4, v%d', vKm, vKm)
    a.I('v_lshrrev_b32 v%d, 3, v%d', TM, vN)
    a.I('v_lshlrev_b32 v%d, 10, v%d', vVm, TM)
    a.I('v_and_b32 v%d, 1, v%d', TM, vG)
    a.I('v_lshl_add_u32 v%d, v%d, 9, v%d', vVm, TM, vVm)
    a.I('v_and_b32 v%d, 7, v%d', TM, vN)
    a.I('v_lshl_add_u32 v%d, v%d, 5, v%d', vVm, TM, vVm)
    a.I('s_lshl_b32 s%d, s%d, 12', sT, S_WAVE)
    a.I('v_add_u32 v%d, s%d, v%d', vKm, sT, vKm)
    a.I('v_add_u32 v%d, s%d, v%d', vVm, sT, vVm)
    a.I('s_lshl_b32 s%d, s%d, 2', sTask, S_ROLE)
    a.I('s_add_u32 s%d, s%d, s%d', sTask, sTask, S_WAVE)
    sDone, sFlO = 71, 82
    a.I('s_mov_b32 s%d, 0', sDone)
    a.I('s_lshl_b32 s%d, s%d, 7', sFlO, S_ROLE)
    a.I('s_lshl_b32 s%d, s%d, 2', sT, S_WAVE)
    a.I('s_add_u32 s%d, s%d, s%d', sFlO, sFlO, sT)
    a.I('s_add_u32 s%d, s%d, 0x%x', sFlO, sFlO, WS_FLAGS + FL_O)
    bstamp(a, 5)
    a.label('T1_loop')
    a.I('s_lshr_b32 s%d, s%d, 5', sSegT, sTask)
    a.I('s_and_b32 s%d, s%d, 31', sHead, sTask)
    a.I('s_lshl_b32 s%d, s%d, 5', sT + 1, sSegT)
    a.I('s_lshr_b32 s%d, s%d, 1', sT + 2, sHead)
    a.I('s_lshl_b32 s%d, s%d, 11', sT + 2, sT + 2)
    a.I('s_add_u32 s%d, s%d, s%d', sT + 1, sT + 1, sT + 2)
    a.I('s_add_u32 s%d, s%d, 0x%x', sT + 1, sT + 1, WS_FLAGS + FL_KV)
    poll_flags(a, vF64, sT + 1, 3, None, TM, sleep=8)
    a.I('s_lshl_b32 s%d, s%d, 13', sBase, sTask)
    tk = {}
    for nm, R, W0 in (('k', KF, WS_K), ('q', QF, WS_Q), ('v', VF, WS_V)):
        a.I('s_add_u32 s%d, s%d, 0x%x', sT + 1, sBase, W0)
        a.I('s_add_u32 s%d, s%d, 0x%x', sT + 2, sBase, W0 + 4096)
        for f in range(8):
            tk[nm, f] = a.I('buffer_load_dwordx4 v[%d:%d], v%d, %s, s%d offen offset:%d sc1', R + 4 * f, R + 4 * f + 3, vL16, WS,
                            sT + 1 + f // 4, (f % 4) * 1024)
    a.wait(tk['q', 7])
    for (D, Tk, Tq) in ((S, 0, 0), (S + 8, 0, 1), (S + 12, 1, 1)):
        for f in range(4):
            a.I('v_mfma_f32_16x16x32_bf16 v[%d:%d], %s, %s, %s', D, D + 3, vr(KF + 16 * Tk + 4 * f, 4), vr(QF + 16 * Tq + 4 * f, 4),
                '0' if f == 0 else vr(D, 4))
    a.I('s_add_u32 s%d, s%d, 1', sNeed, sSegT)
    a.I('s_lshl_b32 s%d, s%d, 9', sT + 1, sHead)
    a.I('s_add_u32 s%d, s%d, 0x%x', sT + 1, sT + 1, WS_FLAGS + FL_KM)
    for i in range(4):
        a.I('v_cndmask_b32 v%d, v%d, v%d, s[%d:%d]', S + i, vNeg, S + i, sMask + 2 * i, sMask + 2 * i + 1)
        a.I('v_cndmask_b32 v%d, v%d, v%d, s[%d:%d]', S + 12 + i, vNeg, S + 12 + i, sMask + 2 * i, sMask + 2 * i + 1)
    a.I('v_max3_f32 v%d, v%d, v%d, v%d', TM + 2, S, S + 1, S + 2)
    a.I('v_max_f32 v%d, v%d, v%d', TM + 2, TM + 2, S + 3)
    a.I('v_max3_f32 v%d, v%d, v%d, v%d', TM + 3, S + 8, S + 9, S + 10)
    a.I('v_max3_f32 v%d, v%d, v%d, v%d', TM + 3, TM + 3, S + 11, S + 12)
    a.I('v_max3_f32 v%d, v%d, v%d, v%d', TM + 3, TM + 3, S + 13, S + 14)
    a.I('v_max_f32 v%d, v%d, v%d', TM + 3, TM + 3, S + 15)
    poll_flags(a, vF128, sT + 1, 4, sNeed, TM, sleep=SL1, far=(3, 60))
    bstamp(a, 2, V=250)
    a.I('s_lshl_b32 s%d, s%d, 12', sB2, sTask)
    a.I('s_add_u32 s%d, s%d, 0x%x', sB2, sB2, WS_VM)
    a.I('s_lshl_b32 m0, s%d, 12', S_WAVE)
    for k in range(4):
        a.I('buffer_load_dwordx4 v%d, %s, s%d offen offset:%d sc1 lds', vL16, WS, sB2, k * 1024)
    a.I('s_waitcnt vmcnt(0)')
    for f in range(4):
        o = ((f // 2) * 2048 + (f % 2) * 64) // 4
        if f == 2:
            a.I('v_add_u32 v%d, 2048, v%d', TM, vKm)
        for c in range(0, 4, 2):
            t = a.I('ds_read2_b32 v[%d:%d], v%d offset0:%d offset1:%d', KM + 4 * f + c, KM + 4 * f + c + 1, vKm if f < 2 else TM,
                    (f % 2) * 16 + c * 4, (f % 2) * 16 + c * 4 + 4)
        tk['km', f] = t
    a.I('v_add_u32 v%d, 2048, v%d', TM + 1, vVm)

    def rvm(tau):
        G, t = tau // 4, tau % 4
        o = (t // 2) * 4 + (t % 2) * 3
        tk['vm'] = a.I('ds_read2_b32 v[%d:%d], v%d offset0:%d offset1:%d', VM + 2 * tau, VM + 2 * tau + 1, vVm if G == 0 else TM + 1, o, o + 64)
    for f in range(4):
        a.wait(tk['km', f])
        for Tq, D in ((0, S + 4), (1, S + 16)):
            a.I('v_mfma_f32_16x16x32_bf16 v[%d:%d], %s, %s, %s', D, D + 3, vr(KM + 4 * f, 4), vr(QF + 16 * Tq + 4 * f, 4), '0' if f == 0 else vr(D, 4))
    for tau in range(8):
        rvm(tau)
    MX = [TM + 2, TM + 3]
    MT = [TM + 4, TM + 5]
    for Tq, D in ((0, S + 4), (1, S + 16)):
        a.I('v_max3_f32 v%d, v%d, v%d, v%d', MX[Tq], MX[Tq], D, D + 1)
        a.I('v_max3_f32 v%d, v%d, v%d, v%d', MX[Tq], MX[Tq], D + 2, D + 3)
    for op in ('v_permlane32_swap_b32', 'v_permlane16_swap_b32'):
        for Tq in range(2):
            a.I('v_mov_b32 v%d, v%d', MT[Tq], MX[Tq])
        for Tq in range(2):
            a.I('%s v%d, v%d', op, MX[Tq], MT[Tq])
        for Tq in range(2):
            a.I('v_max_f32 v%d, v%d, v%d', MX[Tq], MX[Tq], MT[Tq])
    for Tq, D in ((0, S + 4), (1, S + 16)):
        a.I('v_mul_f32 v%d, s%d, v%d', MX[Tq], sNC, MX[Tq])
        for i in range(4):
            a.I('v_cndmask_b32 v%d, v%d, v%d, s[%d:%d]', D + i, vNeg, D + i, sLo, sLo + 1)
    rng = {0: range(S, S + 8), 1: range(S + 8, S + 20)}
    for Tq in range(2):
        for r in list(rng[Tq])[::2]:
            a.I('v_pk_fma_f32 v[%d:%d], v[%d:%d], s[%d:%d], v[%d:%d] op_sel:[0,0,%d] op_sel_hi:[1,1,%d]', r, r + 1, r, r + 1, sC2, sC2 + 1,
                MX[0], MX[1], Tq, Tq)
        for r in rng[Tq]:
            a.I('v_exp_f32 v%d, v%d', r, r)
    a.I('v_cvt_pk_bf16_f32 v%d, v%d, v%d', P, S, S + 1)
    a.I('v_cvt_pk_bf16_f32 v%d, v%d, v%d', P + 1, S + 2, S + 3)
    a.I('v_mov_b32 v%d, 0', P + 2)
    a.I('v_mov_b32 v%d, 0', P + 3)
    for k in range(4):
        a.I('v_cvt_pk_bf16_f32 v%d, v%d, v%d', P + 4 + k, S + 8 + 2 * k, S + 9 + 2 * k)
    for Tq, D in ((0, S + 4), (1, S + 16)):
        a.I('v_cvt_pk_bf16_f32 v%d, v%d, v%d', P + 8 + 2 * Tq, D, D + 1)
        a.I('v_cvt_pk_bf16_f32 v%d, v%d, v%d', P + 9 + 2 * Tq, D + 2, D + 3)
    for Tq in range(2):
        for tau in range(8):
            D = O + 32 * Tq + 4 * tau
            a.I('v_mfma_f32_16x16x32_bf16 v[%d:%d], %s, %s, 0', D, D + 3, vr(VF + 4 * tau, 4), vr(P + 4 * Tq, 4))
            if Tq == 0:
                k = tau
                if k == 0:
                    a.I('v_add_f32 v%d, v%d, v%d', MX[0], S, S + 1)
                    a.I('v_add_f32 v%d, v%d, v%d', MX[1], S + 8, S + 9)
                elif k < 7:
                    a.I('v_add_f32 v%d, v%d, v%d', MX[0], MX[0], S + 1 + k)
                    a.I('v_add_f32 v%d, v%d, v%d', MX[1], MX[1], S + 9 + k)
                else:
                    a.I('v_add_f32 v%d, v%d, v%d', MX[1], MX[1], S + 16)
                    a.I('v_add_f32 v%d, v%d, v%d', MX[1], MX[1], S + 17)
            elif tau == 0:
                a.I('v_add_f32 v%d, v%d, v%d', MX[1], MX[1], S + 18)
                a.I('v_add_f32 v%d, v%d, v%d', MX[1], MX[1], S + 19)
    a.wait(tk['vm'])
    for Tq in range(2):
        for tau in range(8):
            D = O + 32 * Tq + 4 * tau
            a.I('v_mfma_f32_16x16x16_bf16 v[%d:%d], %s, %s, %s', D, D + 3, vr(VM + 2 * tau, 2), vr(P + 8 + 2 * Tq, 2), vr(D, 4))
    for op in ('v_permlane32_swap_b32', 'v_permlane16_swap_b32'):
        for Tq in range(2):
            a.I('v_mov_b32 v%d, v%d', MT[Tq], MX[Tq])
        for Tq in range(2):
            a.I('%s v%d, v%d', op, MX[Tq], MT[Tq])
        for Tq in range(2):
            a.I('v_add_f32 v%d, v%d, v%d', MX[Tq], MX[Tq], MT[Tq])
    for Tq in range(2):
        a.I('v_rcp_f32 v%d, v%d', MX[Tq], MX[Tq])
    bstamp(a, 3, V=250)
    a.I('s_add_u32 s%d, s%d, 0x%x', sT + 1, sBase, WS_O)
    a.I('s_add_u32 s%d, s%d, 0x%x', sT + 2, sBase, WS_O + 4096)
    for Tq in range(2):
        for G in range(2):
            B = O + 32 * Tq + 16 * G
            for r in range(0, 16, 2):
                a.I('v_pk_mul_f32 v[%d:%d], v[%d:%d], v[%d:%d] op_sel:[0,%d] op_sel_hi:[1,%d]', B + r, B + r + 1, B + r, B + r + 1, MX[0], MX[1], Tq, Tq)
            PK = KF + 16 * Tq + 8 * G
            for i in range(4):
                for tp in range(2):
                    a.I('v_cvt_pk_bf16_f32 v%d, v%d, v%d', PK + 2 * i + tp, B + 8 * tp + i, B + 8 * tp + 4 + i)
            for hf in range(2):
                a.I('buffer_store_dwordx4 v[%d:%d], v%d, %s, s%d offen offset:%d sc1', PK + 4 * hf, PK + 4 * hf + 3, vL16, WS, sT + 1 + Tq,
                    G * 2048 + hf * 1024)
    a.I('s_add_u32 s%d, s%d, 1', sDone, sDone)
    a.I('s_waitcnt vmcnt(0)')
    flag_store(a, sFlO, V=TM, val='s%d' % sDone)
    a.I('s_add_u32 s%d, s%d, %d', sTask, sTask, NT1 * 4)
    a.I('s_cmp_lt_u32 s%d, 2048', sTask)
    a.I('s_cbranch_scc1 T1_loop')
    bstamp(a, 6)
    a.I('s_endpgm')


def gen_t2(a):
    a.c('================ T2: output projection + FFN down + final ================')
    sTile, sSl, sSegT, sPar, sOB, sXO, sL2e = 64, 65, 66, 67, 68, 69, 70
    vW1, vW2, vF4, vLw, vLr, vXo = 5, 6, 7, 8, 9, 10
    TM = 12
    SA, FA = 20, 28
    BUF = 36
    XR = 132
    HW = 144
    lane_consts(a)
    a.I('s_and_b32 s%d, s%d, 15', sSl, S_ROLE)
    a.I('s_lshr_b32 s%d, s%d, 4', sTile, S_ROLE)
    a.I('s_mov_b32 s%d, 0x%x', sL2e, f32bits(-1.4426950408889634))
    a.I('v_lshlrev_b32 v%d, 14, v%d', vW1, vG)
    a.I('v_lshl_add_u32 v%d, v%d, 2, v%d', vW1, vN, vW1)
    a.I('v_lshlrev_b32 v%d, 13, v%d', vW2, vG)
    a.I('v_lshl_add_u32 v%d, v%d, 2, v%d', vW2, vN, vW2)
    a.I('v_lshlrev_b32 v%d, 2, v%d', vF4, vLane)
    vFO, sNeedO = 11, 71
    a.I('v_lshrrev_b32 v%d, 2, v%d', vFO, vLane)
    a.I('v_lshlrev_b32 v%d, 7, v%d', vFO, vFO)
    a.I('v_and_b32 v%d, 3, v%d', TM, vLane)
    a.I('v_lshl_add_u32 v%d, v%d, 2, v%d', vFO, TM, vFO)
    a.I('s_lshl_b32 s%d, s%d, 12', sT, S_WAVE)
    a.I('v_add_u32 v%d, s%d, v%d', vLw, sT, vL16)
    a.I('s_lshl_b32 s%d, s%d, 10', sT, S_WAVE)
    a.I('v_add_u32 v%d, s%d, v%d', vLr, sT, vL16)
    a.I('v_lshlrev_b32 v%d, 10, v%d', vXo, vN)
    a.I('v_lshl_add_u32 v%d, v%d, 4, v%d', vXo, vG, vXo)
    a.I('s_lshl_b32 s%d, s%d, 6', sT, sSl)
    a.I('s_lshl_b32 s%d, s%d, 2', sT + 1, S_WAVE)
    a.I('s_add_u32 s%d, s%d, s%d', sT, sT, sT + 1)
    a.I('v_add_u32 v%d, s%d, v%d', vXo, sT, vXo)
    srd(a, S_W, P_WO, 4194304)
    srd(a, S_W2, P_WD, 1792 * 1024)
    sWo, sWd = sT + 2, sT + 3
    a.I('s_lshl_b32 s%d, s%d, 6', sT, sSl)
    a.I('s_lshl_b32 s%d, s%d, 20', sWo, S_WAVE)
    a.I('s_add_u32 s%d, s%d, s%d', sWo, sWo, sT)
    a.I('s_mul_i32 s%d, s%d, %d', sWd, S_WAVE, 14 * 32 * 1024)
    a.I('s_add_u32 s%d, s%d, s%d', sWd, sWd, sT)
    frs = [('d', j) for j in range(14)] + [('o', j) for j in range(32)]
    GS = 2
    groups = [frs[i:i + GS] for i in range(0, len(frs), GS)]
    NB = 3
    toks = {}

    def issue(gi):
        b = BUF + 16 * (gi % (NB + 1))
        for q, (kind, j) in enumerate(groups[gi]):
            for e in range(8):
                if kind == 'o':
                    row = (j // 4) * 128 + 64 * ((j % 4) // 2) + 8 * (j % 2) + e
                    a.I('s_add_u32 s%d, s%d, %d', sT, sWo, row * 1024)
                    t = a.I('buffer_load_dword v%d, v%d, s[%d:%d], s%d offen', b + 8 * q + e, vW1, S_W, S_W + 3, sT)
                else:
                    a.I('s_add_u32 s%d, s%d, %d', sT, sWd, (32 * j + e) * 1024)
                    t = a.I('buffer_load_dword v%d, v%d, s[%d:%d], s%d offen', b + 8 * q + e, vW2, S_W2, S_W2 + 3, sT)
        toks[gi] = t

    def consume(gi):
        b = BUF + 16 * (gi % (NB + 1))
        a.wait(toks[gi])
        for q, (kind, j) in enumerate(groups[gi]):
            for t in range(2):
                for p in range(4):
                    dst = HW + 8 * j + 4 * t + p if kind == 'd' else TM + 4 * t + p
                    a.I('v_perm_b32 v%d, v%d, v%d, s%d', dst, b + 8 * q + 2 * p + 1, b + 8 * q + 2 * p, sPermLo if t == 0 else sPermHi)
            if kind == 'o':
                for k in range(8):
                    a.I('v_accvgpr_write_b32 a%d, v%d', 8 * j + k, TM + k)
    for gi in range(NB):
        issue(gi)
    for gi in range(len(groups)):
        if gi + NB < len(groups):
            issue(gi + NB)
        consume(gi)
    srd(a, S_W, P_X, 2097152)
    srd(a, S_W2, P_OUT, 2097152)
    sTask, sEx = sPar, 72
    a.I('s_mov_b32 s%d, s%d', sTask, sTile)
    bstamp(a, 5)
    a.label('T2_loop')
    if HALF:
        a.I('s_lshr_b32 s%d, s%d, 1', sTile, sTask)
        a.I('s_bitcmp1_b32 s%d, 0', sTask)
        a.I('s_mov_b32 s%d, 0x00ff00ff', sEx)
        a.I('s_cselect_b32 s%d, 0xff00ff00, s%d', sEx, sEx)
        a.I('s_mov_b32 s%d, s%d', sEx + 1, sEx)
    a.I('s_lshr_b32 s%d, s%d, 1', sSegT, sTile)
    a.I('s_lshl_b32 s%d, s%d, 6', sT + 1, sSegT)
    a.I('s_add_u32 s%d, s%d, 0x%x', sT + 1, sT + 1, WS_FLAGS + FL_H)
    poll_flags(a, vF4, sT + 1, 14, None, TM, sleep=8)
    a.I('s_mul_i32 s%d, s%d, %d', sT + 1, sTile, 56 * 1024)
    a.I('s_mul_i32 s%d, s%d, %d', sT + 2, S_WAVE, 14 * 1024)
    a.I('s_add_u32 s%d, s%d, s%d', sT + 1, sT + 1, sT + 2)
    a.I('s_add_u32 s%d, s%d, 0x%x', sT + 1, sT + 1, WS_H)
    ht = []
    if HALF:
        a.I('s_mov_b64 exec, s[%d:%d]', sEx, sEx + 1)
    for j in range(14):
        if j and j % 4 == 0:
            a.I('s_add_u32 s%d, s%d, 4096', sT + 1, sT + 1)
        ht.append(a.I('buffer_load_dwordx4 v[%d:%d], v%d, %s, s%d offen offset:%d sc1', BUF + 4 * j, BUF + 4 * j + 3, vL16, WS, sT + 1, (j % 4) * 1024))
    a.I('s_lshl_b32 s%d, s%d, 14', sXO, sTile)
    a.I('buffer_load_dword v%d, v%d, s[%d:%d], s%d offen', XR, vXo, S_W, S_W + 3, sXO)
    if HALF:
        a.I('s_mov_b64 exec, -1')
    for j in range(14):
        a.wait(ht[j])
        for t in range(2):
            a.I('v_mfma_f32_16x16x32_bf16 v[%d:%d], %s, %s, %s', FA + 4 * t, FA + 4 * t + 3, vr(HW + 8 * j + 4 * t, 4), vr(BUF + 4 * j, 4),
                '0' if j == 0 else vr(FA + 4 * t, 4))
    assert NT1 == 96
    a.I('s_mul_i32 s%d, s%d, 43', sNeedO, sSegT)
    a.I('s_lshr_b32 s%d, s%d, 9', sNeedO, sNeedO)
    a.I('s_mul_i32 s%d, s%d, 12', sT + 1, sNeedO)
    a.I('s_sub_u32 s%d, s%d, s%d', sT + 1, sSegT, sT + 1)
    a.I('s_lshl_b32 s%d, s%d, 10', sT + 1, sT + 1)
    a.I('s_lshl_b32 s%d, s%d, 8', sT + 2, S_WAVE)
    a.I('s_add_u32 s%d, s%d, s%d', sT + 1, sT + 1, sT + 2)
    a.I('s_add_u32 s%d, s%d, 0x%x', sT + 1, sT + 1, WS_FLAGS + FL_O)
    a.I('s_add_u32 s%d, s%d, 1', sNeedO, sNeedO)
    a.I('s_lshl_b32 s%d, s%d, 18', sOB, sSegT)
    a.I('s_lshl_b32 s%d, s%d, 16', sT + 2, S_WAVE)
    a.I('s_add_u32 s%d, s%d, s%d', sOB, sOB, sT + 2)
    a.I('s_and_b32 s%d, s%d, 1', sT + 2, sTile)
    a.I('s_lshl_b32 s%d, s%d, 12', sT + 2, sT + 2)
    a.I('s_add_u32 s%d, s%d, s%d', sOB, sOB, sT + 2)
    a.I('s_add_u32 s%d, s%d, 0x%x', sOB, sOB, WS_O)
    for t in range(2):
        for i in range(4):
            a.I('ds_write_b32 v%d, v%d offset:%d', vLw, FA + 4 * t + i, i * 1024 + 8 + 4 * t)
    poll_flags(a, vFO, sT + 1, 8, sNeedO, TM, sleep=SL2)
    bstamp(a, 2, V=134)
    ot = {}

    def oload(j):
        if j % 4 == 0:
            a.I('s_add_u32 s%d, s%d, %d', sT + 1, sOB, (j // 4) * 8192)
        r = BUF + 4 * (j % 24)
        ot[j] = a.I('buffer_load_dwordx4 v[%d:%d], v%d, %s, s%d offen offset:%d sc1', r, r + 3, vL16, WS, sT + 1, (j % 4) * 1024)
    if HALF:
        a.I('s_mov_b64 exec, s[%d:%d]', sEx, sEx + 1)
    for j in range(24):
        oload(j)
    if HALF:
        a.I('s_mov_b64 exec, -1')
    for j in range(32):
        a.wait(ot[j])
        r = BUF + 4 * (j % 24)
        for t in range(2):
            a.I('v_mfma_f32_16x16x32_bf16 v[%d:%d], %s, %s, %s', SA + 4 * t, SA + 4 * t + 3, ar(8 * j + 4 * t, 4), vr(r, 4),
                '0' if j == 0 else vr(SA + 4 * t, 4))
        if j + 24 < 32:
            if HALF:
                a.I('s_mov_b64 exec, s[%d:%d]', sEx, sEx + 1)
            oload(j + 24)
            if HALF:
                a.I('s_mov_b64 exec, -1')
    bstamp(a, 3, V=134)
    if BST:
        a.I('s_nop 7')
    for t in range(2):
        for i in range(4):
            a.I('ds_write_b32 v%d, v%d offset:%d', vLw, SA + 4 * t + i, i * 1024 + 4 * t)
    a.I('s_waitcnt lgkmcnt(0)')
    a.I('s_barrier')
    R = BUF
    for w in range(4):
        a.I('ds_read_b128 v[%d:%d], v%d offset:%d', R + 4 * w, R + 4 * w + 3, vLr, w * 4096)
    a.I('v_xor_b32 v%d, 16384, v%d', vLw, vLw)
    a.I('v_xor_b32 v%d, 16384, v%d', vLr, vLr)
    a.I('s_waitcnt lgkmcnt(0)')
    for k in range(4):
        a.I('v_add_f32 v%d, v%d, v%d', R + k, R + k, R + 4 + k)
        a.I('v_add_f32 v%d, v%d, v%d', R + 8 + k, R + 8 + k, R + 12 + k)
    for k in range(4):
        a.I('v_add_f32 v%d, v%d, v%d', R + k, R + k, R + 8 + k)

    def unpack(dst, src):
        a.I('v_and_b32 v%d, 0xffff0000, v%d', dst + 1, src)
        a.I('v_lshlrev_b32 v%d, 16, v%d', dst, src)
    a.I('v_cvt_pk_bf16_f32 v%d, v%d, v%d', R, R, R + 1)
    a.I('v_cvt_pk_bf16_f32 v%d, v%d, v%d', R + 2, R + 2, R + 3)
    unpack(R, R)
    unpack(R + 2, R + 2)
    for k in range(2):
        a.I('v_mul_f32 v%d, s%d, v%d', R + 4 + k, sL2e, R + 2 + k)
    for k in range(2):
        a.I('v_exp_f32 v%d, v%d', R + 4 + k, R + 4 + k)
    for k in range(2):
        a.I('v_add_f32 v%d, 1.0, v%d', R + 4 + k, R + 4 + k)
    for k in range(2):
        a.I('v_rcp_f32 v%d, v%d', R + 4 + k, R + 4 + k)
    for k in range(2):
        a.I('v_mul_f32 v%d, v%d, v%d', R + 2 + k, R + 2 + k, R + 4 + k)
    a.I('v_cvt_pk_bf16_f32 v%d, v%d, v%d', R + 2, R + 2, R + 3)
    unpack(R + 2, R + 2)
    for k in range(2):
        a.I('v_mul_f32 v%d, v%d, v%d', R + k, R + k, R + 2 + k)
    a.I('v_cvt_pk_bf16_f32 v%d, v%d, v%d', R, R, R + 1)
    unpack(R, R)
    unpack(R + 2, XR)
    for k in range(2):
        a.I('v_add_f32 v%d, v%d, v%d', R + k, R + k, R + 2 + k)
    a.I('v_cvt_pk_bf16_f32 v%d, v%d, v%d', TM + 1, R, R + 1)
    if HALF:
        a.I('s_mov_b64 exec, s[%d:%d]', sEx, sEx + 1)
    a.I('buffer_store_dword v%d, v%d, s[%d:%d], s%d offen', TM + 1, vXo, S_W2, S_W2 + 3, sXO)
    if HALF:
        a.I('s_mov_b64 exec, -1')
        a.I('s_add_u32 s%d, s%d, 8', sTask, sTask)
        a.I('s_cmp_lt_u32 s%d, 256', sTask)
    else:
        a.I('s_add_u32 s%d, s%d, 8', sTile, sTile)
        a.I('s_cmp_lt_u32 s%d, 128', sTile)
    a.I('s_cbranch_scc1 T2_loop')
    dbg_time(a, 11, V=134)
    bstamp(a, 7)
    a.I('s_endpgm')
```

```python
import struct
from asmlib import *
from common import *

LKX, LX1, LX2, LMISC, LW = 0, 8192, 13312, 14336, 16384
GS, KS = 256, 1024
LM = 8192
LWSTRIDE = 18 * 2048

vM0, vIdx, vBias, vL16, vLW, vInSt, vM1, vMxSt = 0, 1, 2, 3, 4, 5, 6, 7
vVld, vKxSrc, vX1w, vX1rq, vX1rk, vX2w, vM2, vM3 = 8, 9, 10, 11, 12, 13, 14, 15
vWarm, vDummy, vSaveV, vT0 = 16, 17, 18, 20
MEM, ACC, VT, STG, WV = 24, 56, 80, 96, 144

sStep, sTag, sMxRd = 64, 65, 66
sRing = 88
sMxWr, sMxRst = 88, 90
sW10, sStampAddr = 68, 69
sRetry = 67
sIn = 70
sInLd, sInLd2 = 72, 73
sMxW = 74
sKx, sV, sKm, sVm, sVmPrev = 75, 76, 77, 78, 79
sHalf = 80
sC = 82
sSpin = 83
sT = 84
sM0a, sM0b = 92, 93
sFl = 94
sPermLo, sPermHi = 95, 96
sWarm = 97
sMxRd2 = 98
sKvf, sKvfMax = 73, 77
sPiece = 99
sMode = 63
sC2, sNC = 30, 82
sSel = 24


def f32bits(x):
    return struct.unpack('<I', struct.pack('<f', x))[0]


def mem(k):
    return MEM + 4 * k


def acc(i):
    return ACC + 4 * i


def slot(j):
    return STG + 8 * j


WO_ORDER = [('o', b, t, ks) for b in range(2) for t in range(4) for ks in range(2)]
WO_ORDER[1], WO_ORDER[2] = WO_ORDER[2], WO_ORDER[1]


def placement():
    P = {}
    lds = [('q', 0, 0), ('q', 1, 0), ('k', 0, 0), ('k', 1, 0), ('v', 0, 0), ('v', 1, 0)]
    lds += WO_ORDER[0:6] + WO_ORDER[10:16]
    for i, k in enumerate(lds):
        P[k] = ('l', i)
    rest = []
    for X in 'qkv':
        for kp in range(8):
            for t in range(2):
                if (X, t, kp) not in P:
                    rest.append((X, t, kp))
    rest += WO_ORDER[6:10]
    assert len(rest) == 46
    for n, k in enumerate(rest):
        P[k] = ('v', WV + 8 * n) if n < 14 else ('a', 8 * (n - 14))
    return P


PL = placement()


def breg(key):
    kind, r = PL[key]
    if kind == 'v':
        return vr(r, 8)
    if kind == 'a':
        return ar(r, 8)
    return vr(slot(r % 6), 8)


def d0_instr(m):
    return 32 * (m // 4) + 8 * (m % 2) + 2 * ((m % 4) // 2)


def srd(a, s, ptr, size):
    a.I('s_mov_b32 s%d, s%d', s, ptr)
    a.I('s_and_b32 s%d, s%d, 0xffff', s + 1, ptr + 1)
    a.I('s_mov_b32 s%d, 0x%x', s + 2, size)
    a.I('s_mov_b32 s%d, 0x20000', s + 3)


def stamp(a, cfg, idx):
    if not cfg.get('stamps'):
        return
    if cfg['stamps'] >= 2 and idx != 0:
        return
    if cfg['stamps'] == 4:
        return
    a.I('%s s[%d:%d]', 's_memrealtime' if cfg.get('rt') else 's_memtime', 32 + 2 * idx, 33 + 2 * idx)


def gen_rec(a, cfg):
    if cfg.get('stamps') == 3:
        orig_emit = a.emit
        cnt = dict(n=0, on=False)

        def emit(line):
            if line.startswith('R_goA:'):
                cnt['on'] = True
            if cnt['on'] and (line.startswith('v_smfmac') or line.startswith('v_mfma')):
                k = cnt['n'] - cfg['st0']
                if cnt['n'] >= 12 and k >= 0 and k % cfg['stp'] == 0 and k // cfg['stp'] < 9:
                    orig_emit('s_memtime s[%d:%d]' % (34 + 2 * (k // cfg['stp']), 35 + 2 * (k // cfg['stp'])))
                cnt['n'] += 1
            return orig_emit(line)
        a.emit = emit
    fast = cfg.get('fast', True)
    stf = '' if fast else ' sc1'
    nsteps = cfg.get('nsteps', 64)
    T0, T1, T2, T3 = vT0, vT0 + 1, vT0 + 2, vT0 + 3
    WS = 's[%d:%d]' % (S_WS, S_WS + 3)
    vLane = VT + 15
    vN, vG = T0, T1
    a.c('================ recurrence role: s%d = head ================' % S_ROLE)
    if cfg.get('hxor'):
        a.I('s_xor_b32 s%d, s%d, %d', S_ROLE, S_ROLE, cfg['hxor'])
    a.I('v_and_b32 v%d, 63, v0', vLane)
    a.I('v_lshlrev_b32 v%d, 4, v%d', vL16, vLane)
    a.I('v_and_b32 v%d, 15, v%d', vN, vLane)
    a.I('v_lshrrev_b32 v%d, 4, v%d', vG, vLane)
    a.I('s_mov_b32 s%d, 0xcccccccc', sHalf)
    a.I('s_mov_b32 s%d, 0xcccccccc', sHalf + 1)
    a.I('v_mov_b32 v%d, 0x4444', vIdx)
    a.I('v_mov_b32 v%d, 0xeeee', T2)
    a.I('v_cndmask_b32 v%d, v%d, v%d, s[%d:%d]', vIdx, vIdx, T2, sHalf, sHalf + 1)
    a.I('s_mov_b32 s%d, 0', sT)
    a.I('s_mov_b32 s%d, 0x33333333', sT + 1)
    a.I('v_mov_b32 v%d, 0', vBias)
    a.I('v_mov_b32 v%d, 0x%x', T2, f32bits(3.0e38))
    a.I('v_cndmask_b32 v%d, v%d, v%d, s[%d:%d]', vBias, vBias, T2, sT, sT + 1)
    a.I('s_mov_b32 s%d, 0x%x', sC2, f32bits(128 ** -0.5 * 1.4426950408889634))
    a.I('s_mov_b32 s%d, 0x%x', sC2 + 1, f32bits(128 ** -0.5 * 1.4426950408889634))
    a.I('s_mov_b32 s%d, 0x%x', sNC, f32bits(-128 ** -0.5 * 1.4426950408889634))
    a.I('s_mov_b32 s%d, 0x05040100', sPermLo)
    a.I('s_mov_b32 s%d, 0x07060302', sPermHi)
    for k, m in enumerate((0x000f000f, 0x00f000f0, 0xaaaaaaaa)):
        a.I('s_mov_b32 s%d, 0x%x', sSel + 2 * k, m)
        a.I('s_mov_b32 s%d, 0x%x', sSel + 2 * k + 1, m)
    a.I('s_mul_i32 s%d, s%d, %d', sT, S_WAVE, LWSTRIDE)
    a.I('s_add_u32 s%d, s%d, %d', sT, sT, LW)
    a.I('v_add_u32 v%d, s%d, v%d', vLW, sT, vL16)
    a.I('s_lshl_b32 s%d, s%d, 10', sT, S_WAVE)
    a.I('s_add_u32 s%d, s%d, 0x%x', sMxW, sT, WS_MEMX)
    a.I('s_add_u32 s%d, s%d, %d', sT, sT, LM)
    a.I('v_add_u32 v%d, s%d, v%d', vM0, sT, vL16)
    a.I('v_xor_b32 v%d, 1024, v%d', vM1, vM0)
    a.I('v_xor_b32 v%d, 2048, v%d', vM2, vM0)
    a.I('v_xor_b32 v%d, 3072, v%d', vM3, vM0)
    a.I('v_lshlrev_b32 v%d, 13, v%d', vInSt, vG)
    a.I('v_lshrrev_b32 v%d, 2, v%d', T2, vN)
    a.I('v_lshl_add_u32 v%d, v%d, 11, v%d', vInSt, T2, vInSt)
    a.I('v_and_b32 v%d, 3, v%d', T2, vN)
    a.I('v_lshl_add_u32 v%d, v%d, 4, v%d', vInSt, T2, vInSt)
    a.I('s_lshl_b32 s%d, s%d, 15', sT, S_WAVE)
    a.I('s_lshl_b32 s%d, s%d, 6', sT + 1, S_ROLE)
    a.I('s_add_u32 s%d, s%d, s%d', sT, sT, sT + 1)
    a.I('s_add_u32 s%d, s%d, 0x%x', sIn, sT, WS_INBOX)
    a.I('s_add_u32 s%d, s%d, 0x%x', sIn + 1, sT, WS_INBOX + 131072)
    sPi = sT + 4
    a.I('s_lshl_b32 s%d, s%d, 1', sPi, S_ROLE)
    a.I('s_and_b32 s%d, s%d, 1', sT, S_WAVE)
    a.I('s_add_u32 s%d, s%d, s%d', sPi, sPi, sT)
    a.I('s_lshr_b32 s%d, s%d, 1', sT, S_WAVE)
    a.I('s_lshl_b32 s%d, s%d, 6', sT, sT)
    a.I('s_add_u32 s%d, s%d, s%d', sPi, sPi, sT)
    a.I('s_mov_b32 s%d, s%d', sPiece, sPi)
    a.I('s_lshl_b32 s%d, s%d, 11', sT, sPi)
    a.I('s_add_u32 s%d, s%d, 0x%x', sInLd, sT, WS_INBOX)
    a.I('s_lshr_b32 s%d, s%d, 4', sT, sPi)
    a.I('s_lshl_b32 s%d, s%d, 10', sT, sT)
    a.I('s_bfe_u32 s%d, s%d, 0x20002', sT + 1, sPi)
    a.I('s_lshl_b32 s%d, s%d, 6', sT + 1, sT + 1)
    a.I('s_add_u32 s%d, s%d, s%d', sT, sT, sT + 1)
    a.I('s_and_b32 s%d, s%d, 3', sT + 1, sPi)
    a.I('s_lshl_b32 s%d, s%d, 8', sT + 1, sT + 1)
    a.I('s_add_u32 s%d, s%d, s%d', sT, sT, sT + 1)
    a.I('v_and_b32 v%d, 1, v%d', T2, vG)
    a.I('v_lshlrev_b32 v%d, 4, v%d', vMxSt, T2)
    a.I('v_bfe_u32 v%d, v%d, 1, 1', T2, vN)
    a.I('v_lshl_add_u32 v%d, v%d, 5, v%d', vMxSt, T2, vMxSt)
    a.I('v_and_b32 v%d, 1, v%d', T2, vN)
    a.I('v_lshl_add_u32 v%d, v%d, 3, v%d', vMxSt, T2, vMxSt)
    a.I('v_add_u32 v%d, s%d, v%d', vMxSt, sT, vMxSt)
    a.I('v_and_b32 v%d, 1, v%d', T2, vN)
    a.I('v_lshlrev_b32 v%d, 11, v%d', vVld, T2)
    a.I('v_lshrrev_b32 v%d, 1, v%d', T2, vG)
    a.I('v_lshl_add_u32 v%d, v%d, 8, v%d', vVld, T2, vVld)
    a.I('v_lshrrev_b32 v%d, 1, v%d', T2, vN)
    a.I('v_lshl_add_u32 v%d, v%d, 4, v%d', vVld, T2, vVld)
    a.I('v_and_b32 v%d, 1, v%d', T2, vG)
    a.I('v_lshlrev_b32 v%d, 2, v%d', T2, T2)
    a.I('v_sub_u32 v%d, v%d, v%d', vVld, vVld, T2)
    a.I('s_lshr_b32 s%d, s%d, 1', sT, S_WAVE)
    a.I('s_lshl_b32 s%d, s%d, 12', sT, sT)
    a.I('s_and_b32 s%d, s%d, 1', sT + 1, S_WAVE)
    a.I('s_lshl_b32 s%d, s%d, 7', sT + 1, sT + 1)
    a.I('s_add_u32 s%d, s%d, s%d', sT, sT, sT + 1)
    a.I('s_add_u32 s%d, s%d, 4', sT, sT)
    a.I('v_add_u32 v%d, s%d, v%d', vVld, sT, vVld)
    a.I('v_and_b32 v%d, 1, v%d', T2, vG)
    a.I('v_lshlrev_b32 v%d, 10, v%d', vKxSrc, T2)
    a.I('v_lshrrev_b32 v%d, 1, v%d', T2, vG)
    a.I('v_lshl_add_u32 v%d, v%d, 8, v%d', vKxSrc, T2, vKxSrc)
    a.I('v_lshl_add_u32 v%d, v%d, 4, v%d', vKxSrc, vN, vKxSrc)
    a.I('s_lshl_b32 s%d, s%d, 11', sM0a, S_WAVE)
    a.I('v_add_u32 v%d, s%d, v%d', vKxSrc, sM0a, vKxSrc)
    a.I('s_add_u32 s%d, s%d, %d', sM0a, sM0a, LKX)
    a.I('s_add_u32 s%d, s%d, %d', sM0b, sM0a, 1024 - 512)
    a.I('s_mov_b32 s%d, %d', sT + 1, GS)
    a.I('v_lshrrev_b32 v%d, 2, v%d', T2, vN)
    a.I('v_mul_lo_u32 v%d, v%d, s%d', vX1w, T2, sT + 1)
    a.I('v_lshl_add_u32 v%d, v%d, 5, v%d', vX1w, vG, vX1w)
    a.I('v_and_b32 v%d, 3, v%d', T2, vN)
    a.I('v_lshl_add_u32 v%d, v%d, 2, v%d', vX1w, T2, vX1w)
    a.I('s_mul_i32 s%d, s%d, %d', sT, S_WAVE, KS)
    a.I('s_add_u32 s%d, s%d, %d', sT, sT, LX1)
    a.I('v_add_u32 v%d, s%d, v%d', vX1w, sT, vX1w)
    a.I('v_bfe_u32 v%d, v%d, 2, 1', T2, vN)
    a.I('v_mul_u32_u24 v%d, 192, v%d', T2, T2)
    a.I('v_xor_b32 v%d, v%d, v%d', vX1w, T2, vX1w)
    a.I('v_mul_lo_u32 v%d, v%d, s%d', vX1rk, vG, sT + 1)
    a.I('v_lshrrev_b32 v%d, 2, v%d', T2, vN)
    a.I('v_lshlrev_b32 v%d, 5, v%d', T2, T2)
    a.I('v_and_b32 v%d, 1, v%d', T3, vN)
    a.I('v_lshl_add_u32 v%d, v%d, 4, v%d', T2, T3, T2)
    a.I('v_add_u32 v%d, v%d, v%d', vX1rq, vX1rk, T2)
    a.I('v_add_u32 v%d, %d, v%d', vX1rq, LX1, vX1rq)
    a.I('v_and_b32 v%d, 7, v%d', T2, vN)
    a.I('v_lshl_add_u32 v%d, v%d, 4, v%d', vX1rk, T2, vX1rk)
    a.I('v_add_u32 v%d, %d, v%d', vX1rk, LX1 + 128, vX1rk)
    a.I('v_and_b32 v%d, 1, v%d', T2, vG)
    a.I('v_mul_u32_u24 v%d, 192, v%d', T2, T2)
    a.I('v_xor_b32 v%d, v%d, v%d', vX1rq, T2, vX1rq)
    a.I('v_xor_b32 v%d, v%d, v%d', vX1rk, T2, vX1rk)
    a.I('v_lshrrev_b32 v%d, 3, v%d', T2, vN)
    a.I('v_lshlrev_b32 v%d, 8, v%d', vX2w, T2)
    a.I('v_lshl_add_u32 v%d, v%d, 6, v%d', vX2w, vG, vX2w)
    a.I('v_bfe_u32 v%d, v%d, 2, 1', T2, vN)
    a.I('v_lshl_add_u32 v%d, v%d, 5, v%d', vX2w, T2, vX2w)
    a.I('v_and_b32 v%d, 3, v%d', T2, vN)
    a.I('v_lshl_add_u32 v%d, v%d, 2, v%d', vX2w, T2, vX2w)
    a.I('s_lshl_b32 s%d, s%d, 9', sT, S_WAVE)
    a.I('s_add_u32 s%d, s%d, %d', sT, sT, LX2)
    a.I('v_add_u32 v%d, s%d, v%d', vX2w, sT, vX2w)
    if cfg.get('warm128'):
        a.I('v_lshrrev_b32 v%d, 1, v%d', vWarm, vLane)
        a.I('v_lshlrev_b32 v%d, 7, v%d', vWarm, vWarm)
    else:
        a.I('v_lshlrev_b32 v%d, 6, v%d', vWarm, vLane)
    a.I('s_lshl_b32 s%d, s%d, 13', sT, S_ROLE)
    a.I('s_and_b32 s%d, s%d, 1', sT + 1, S_WAVE)
    a.I('s_lshl_b32 s%d, s%d, 12', sT + 1, sT + 1)
    a.I('s_add_u32 s%d, s%d, s%d', sT, sT, sT + 1)
    a.I('s_lshr_b32 s%d, s%d, 1', sT + 1, S_WAVE)
    a.I('s_mul_i32 s%d, s%d, 0x%x', sT + 1, sT + 1, WS_V - WS_K)
    a.I('s_add_u32 s%d, s%d, s%d', sT, sT, sT + 1)
    a.I('v_add_u32 v%d, s%d, v%d', vWarm, sT, vWarm)
    a.I('s_lshl_b32 s%d, s%d, 13', sT, S_ROLE)
    a.I('s_add_u32 s%d, s%d, 0x%x', sKx, sT, WS_K)
    a.I('s_add_u32 s%d, s%d, 0x%x', sV, sT, WS_V - 4)
    a.I('s_lshl_b32 s%d, s%d, 12', sT, S_ROLE)
    a.I('s_lshl_b32 s%d, s%d, 10', sT + 1, S_WAVE)
    a.I('s_add_u32 s%d, s%d, s%d', sT, sT, sT + 1)
    a.I('s_add_u32 s%d, s%d, 0x%x', sStampAddr, sT, WS_VM)
    a.I('s_lshl_b32 s%d, s%d, 9', sT, S_ROLE)
    a.I('s_lshl_b32 s%d, s%d, 7', sT + 1, S_WAVE)
    a.I('s_add_u32 s%d, s%d, s%d', sT, sT, sT + 1)
    a.I('s_add_u32 s%d, s%d, 0x%x', sFl, sT, WS_FLAGS + FL_KM)
    a.I('s_mov_b32 s%d, 0x%x', sWarm, WS_K + 2 * 262144)

    a.c('init exchange buffers')
    for k in range(4):
        a.I('v_mov_b32 v%d, -1', ACC + k)
    for k in range(2):
        a.I('buffer_store_dwordx4 v[%d:%d], v%d, %s, s%d offen offset:%d sc1', ACC, ACC + 3, vL16, WS, sInLd, 1024 * k)
    for k in range(1, 4):
        a.I('s_mov_b32 s%d, 0x%x', sT, WS_MEMX + k * 8192)
        a.I('buffer_store_dwordx2 v[%d:%d], v%d, %s, s%d offen sc1', ACC, ACC + 1, vMxSt, WS, sT)
    srd(a, S_W, P_MEM0, 8192)
    a.I('v_and_b32 v%d, 1, v%d', T2, vG)
    a.I('v_lshlrev_b32 v%d, 10, v%d', T2, T2)
    a.I('v_and_b32 v%d, 3, v%d', T3, vN)
    a.I('v_lshl_add_u32 v%d, v%d, 3, v%d', T2, T3, T2)
    a.I('s_and_b32 s%d, s%d, 3', sT, sPiece)
    a.I('s_lshl_b32 s%d, s%d, 5', sT, sT)
    a.I('v_add_u32 v%d, s%d, v%d', T2, sT, T2)
    a.I('s_bfe_u32 s%d, s%d, 0x20002', sT, sPiece)
    a.I('s_lshl_b32 s%d, s%d, 11', sT, sT)
    a.I('s_lshr_b32 s%d, s%d, 4', sT + 1, sPiece)
    a.I('s_lshl_b32 s%d, s%d, 7', sT + 1, sT + 1)
    a.I('s_add_u32 s%d, s%d, s%d', sT, sT, sT + 1)
    a.I('buffer_load_dwordx2 v[%d:%d], v%d, s[%d:%d], s%d offen', vSaveV, vSaveV + 1, T2, S_W, S_W + 3, sT)

    a.c('weights')
    vRow, vWo, vDs = VT + 13, VT + 14, VT + 12
    GA = [VT + 8, VT + 9, VT + 10, VT + 11]
    a.I('v_lshrrev_b32 v%d, 1, v%d', vRow, vG)
    a.I('v_lshlrev_b32 v%d, 4, v%d', vRow, vRow)
    a.I('v_and_b32 v%d, 1, v%d', vWo, vG)
    a.I('v_lshl_add_u32 v%d, v%d, 2, v%d', vRow, vWo, vRow)
    a.I('v_lshlrev_b32 v%d, 10, v%d', vWo, vRow)
    a.I('v_lshl_add_u32 v%d, v%d, 3, v%d', vWo, vN, vWo)
    a.I('v_lshlrev_b32 v%d, 8, v%d', vRow, vRow)
    a.I('v_lshl_add_u32 v%d, v%d, 2, v%d', vRow, vN, vRow)
    for kp in range(4):
        a.I('s_xor_b32 s%d, s%d, %d', sT, S_WAVE, kp)
        a.I('s_lshl_b32 s%d, s%d, 14', sT, sT)
        a.I('s_lshl_b32 s%d, s%d, 6', sT + 1, S_WAVE)
        a.I('s_add_u32 s%d, s%d, s%d', sT, sT, sT + 1)
        a.I('s_add_u32 s%d, s%d, %d', sT, sT, LW)
        a.I('v_add_u32 v%d, s%d, v%d', GA[kp], sT, vRow)
    a.I('v_lshlrev_b32 v%d, 13, v%d', vDs, vG)
    a.I('v_lshl_add_u32 v%d, v%d, 4, v%d', vDs, vN, vDs)
    sSrc, sDst, sOb = sT + 2, sT + 3, sT + 6
    a.I('s_lshl_b32 s%d, s%d, 8', sSrc, S_ROLE)
    a.I('s_lshl_b32 s%d, s%d, 19', sT, S_WAVE)
    a.I('s_add_u32 s%d, s%d, s%d', sSrc, sSrc, sT)
    a.I('s_lshl_b32 s%d, s%d, 14', sDst, S_WAVE)
    a.I('s_add_u32 s%d, s%d, %d', sDst, sDst, LW)
    a.I('s_lshl_b32 s%d, s%d, 17', sOb, S_ROLE)
    a.I('s_lshl_b32 s%d, s%d, 7', sT, S_WAVE)
    a.I('s_add_u32 s%d, s%d, s%d', sOb, sOb, sT)
    outb = MEM
    utok = {}
    word = ('qkv', 'kvq', 'kqv', 'vkq')[cfg.get('word', 0)]

    def dma_unit(u):
        sr_ = S_W if (u // 2) % 2 == 0 else S_W2
        if u % 2 == 0:
            srd(a, sr_, {'q': P_WQ, 'k': P_WK, 'v': P_WV}[word[u // 2]], 4194304)
        for j in range(16):
            a.I('s_add_u32 m0, s%d, %d', sDst, (u % 2) * 65536 + j * 1024)
            a.I('s_add_u32 s%d, s%d, %d', sT, sSrc, ((u % 2) * 256 + 4 * j) * 8192)
            utok[u] = a.I('buffer_load_dwordx4 v%d, s[%d:%d], s%d offen%s lds', vDs, sr_, sr_ + 3, sT, ' nt' if cfg.get('wnt') else '')

    late_lds = []

    def put(key, m0, nm, srcs, hold=False):
        kind, r = PL[key]
        ob = outb + (put.n % 2) * 8
        put.n += 1
        for k, (rh, rl, sel) in enumerate(srcs):
            if kind == 'v':
                dst = r + m0 + k
            elif kind == 'l' and hold:
                dst = slot(r) + m0 + k
            else:
                dst = ob + k
            a.I('v_perm_b32 v%d, v%d, v%d, s%d', dst, rh, rl, sel)
        if kind == 'a':
            for k in range(nm):
                a.I('v_accvgpr_write_b32 a%d, v%d', r + m0 + k, ob + k)
        elif kind == 'l' and hold:
            late_lds.append(r)
        elif kind == 'l':
            for q in range(nm // 4):
                a.I('ds_write_b128 v%d, v[%d:%d] offset:%d', vLW, ob + 4 * q, ob + 4 * q + 3, r * 2048 + ((m0 // 4) + q) * 1024)
    put.n = 0
    gb = [40, 56]

    def gather_unit(u):
        X = word[u // 2]
        gt = {}

        def rd(k):
            b = gb[k % 2]
            for m in range(8):
                gt[k] = a.I('ds_read2st64_b32 v[%d:%d], v%d offset0:%d offset1:%d', b + 2 * m, b + 2 * m + 1, GA[k], d0_instr(m), d0_instr(m) + 1)
        rd(0)
        for k in range(4):
            if k + 1 < 4:
                rd(k + 1)
            a.wait(gt[k])
            b = gb[k % 2]
            for t in range(2):
                put((X, t, 4 * (u % 2) + k), 0, 8, [(b + 2 * m + 1, b + 2 * m, sPermLo if t == 0 else sPermHi) for m in range(8)], hold=True)
        for k in range(4):
            a.I('v_xor_b32 v%d, 0x%x, v%d', GA[k], (LW ^ (LW + 65536)) if False else 0, GA[k]) if False else None
        for k in range(4):
            if u % 2 == 0:
                a.I('v_add_u32 v%d, 65536, v%d', GA[k], GA[k])
            else:
                a.I('v_subrev_u32 v%d, 65536, v%d', GA[k], GA[k])

    wgroups = [(ks, b, mh) for b in range(2) for ks in range(2) for mh in range(2)]
    wbufs = [40, 56, 72]
    wtok = {}

    def wissue(gi, bufs):
        ks, b_, mh = wgroups[gi]
        b = bufs[gi % len(bufs)]
        for mm in range(4):
            m = 4 * mh + mm
            for j in range(2):
                row = 64 * ks + d0_instr(m) + j
                a.I('s_add_u32 s%d, s%d, %d', sT, sOb, row * 1024 + 512 * b_)
                r = b + 4 * mm + 2 * j
                wtok[gi] = a.I('buffer_load_dwordx2 v[%d:%d], v%d, s[%d:%d], s%d offen', r, r + 1, vWo, S_W2, S_W2 + 3, sT)

    def wconsume(gi, bufs):
        ks, b_, mh = wgroups[gi]
        b = bufs[gi % len(bufs)]
        a.wait(wtok[gi])
        for t in range(4):
            a.I('s_waitcnt lgkmcnt(1)')
            sel = sPermLo if t % 2 == 0 else sPermHi
            put(('o', b_, t, ks), 4 * mh, 4, [(b + 4 * mm + 2 + t // 2, b + 4 * mm + t // 2, sel) for mm in range(4)])

    dma_unit(0)
    dma_unit(1)
    for u in range(6):
        a.wait(utok[u])
        a.I('s_barrier')
        if u == 0:
            a.I('v_min_u32 v%d, -2, v%d', vSaveV, vSaveV)
            a.I('s_mov_b32 s%d, 0x%x', sT, WS_MEMX)
            a.I('buffer_store_dwordx2 v[%d:%d], v%d, %s, s%d offen sc1', vSaveV, vSaveV + 1, vMxSt, WS, sT)
        if u == 2:
            lab = a.newlabel('R_sig')
            a.I('s_cmp_lg_u32 s%d, 0', S_WAVE)
            a.I('s_cbranch_scc1 %s', lab)
            a.I('s_mov_b64 exec, 1')
            a.I('v_mov_b32 v%d, 1', VT)
            a.I('v_mov_b32 v%d, %d', VT + 1, D_INIT * 4)
            a.I('buffer_atomic_add v%d, v%d, s[%d:%d], 0 offen', VT, VT + 1, S_DBG, S_DBG + 3)
            a.I('s_mov_b64 exec, -1')
            a.label(lab)
            a.vm_n -= 1
        if u == cfg.get('wou', 4):
            srd(a, S_W2, P_WO, 4194304)
            a.I('v_lshlrev_b32 v%d, 7, v%d', VT + 2, vLane)
            a.I('s_lshl_b32 s%d, s%d, 17', sT, S_ROLE)
            a.I('s_lshl_b32 s%d, s%d, 15', sT + 1, S_WAVE)
            a.I('s_add_u32 s%d, s%d, s%d', sT, sT, sT + 1)
            for k in range(4):
                a.I('buffer_load_dword v%d, v%d, s[%d:%d], s%d offen', VT + 3, VT + 2, S_W2, S_W2 + 3, sT)
                a.I('s_add_u32 s%d, s%d, 8192', sT, sT)
        gather_unit(u)
        if cfg.get('stamps') and u == cfg.get('wst', -1):
            a.I('s_memrealtime s[100:101]')
            a.I('s_waitcnt lgkmcnt(0)')
            a.I('s_mov_b32 s3, s100')
        a.I('s_barrier')
        if u + 2 < 6:
            dma_unit(u + 2)
    def gspin():
        a.I('s_add_u32 s%d, s%d, 1', sSpin, sSpin)
        a.I('s_cmp_gt_u32 s%d, 0x100000', sSpin)
        a.I('s_cbranch_scc1 R_fail')

    def dbg_load():
        return a.I('buffer_load_dwordx4 v[%d:%d], v%d, s[%d:%d], 0 offen offset:%d sc1', T0, T3, vSaveV, S_DBG, S_DBG + 3, D_CNT_OTH * 4)

    def kv_load():
        return a.I('buffer_load_dword v%d, v%d, %s, s%d offen sc1', vDummy, vL16, WS, sKvf)
    assert D_INIT == D_CNT_OTH + 1 and D_FINIT == D_CNT_OTH + 3
    a.I('v_mov_b32 v%d, 0', vSaveV)
    a.I('s_mov_b32 s%d, 0', sSpin)
    a.I('s_mov_b32 s%d, 0', sStep)
    dt = dbg_load()
    for gi in range(3):
        wissue(gi, wbufs)
    for r in late_lds:
        for q in range(2):
            a.I('ds_write_b128 v%d, v[%d:%d] offset:%d', vLW, slot(r) + 4 * q, slot(r) + 4 * q + 3, r * 2048 + q * 1024)
    a.I('s_lshr_b32 s%d, s%d, 1', sKvf, S_ROLE)
    a.I('s_lshl_b32 s%d, s%d, 11', sKvf, sKvf)
    a.I('s_add_u32 s%d, s%d, 0x%x', sKvf, sKvf, WS_FLAGS + FL_KV)
    a.I('s_add_u32 s%d, s%d, %d', sKvfMax, sKvf, 63 * 32)
    for gi in range(8):
        wconsume(gi, wbufs)
        if gi + 3 < 8:
            wissue(gi + 3, wbufs)
        if gi == 4:
            a.c('all 32 inits done, flag area zeroed?')
            a.label('R_dchk')
            a.I('v_readfirstlane_b32 s%d, v%d', sT, T1)
            a.I('v_readfirstlane_b32 s%d, v%d', sT + 1, T3)
            a.I('v_readfirstlane_b32 s%d, v%d', sMode, T0)
            a.I('s_cmp_lt_u32 s%d, 32', sT)
            a.I('s_cbranch_scc1 R_dwait')
            if cfg.get('both_modes'):
                a.I('s_cmp_lt_u32 s%d, %d', sT + 1, NZERO)
                a.I('s_cbranch_scc1 R_dwait')
            if cfg.get('pretouch', 1):
                a.I('v_lshlrev_b32 v%d, 1, v%d', T0, vL16)
                a.I('buffer_load_dword v%d, v%d, %s, s%d offen sc1', T1, T0, WS, sInLd)
                a.I('v_lshlrev_b32 v%d, 3, v%d', T0, vL16)
                a.I('s_lshl_b32 s%d, s%d, 13', sT, S_WAVE)
                a.I('s_add_u32 s%d, s%d, 0x%x', sT, sT, WS_MEMX)
                a.I('buffer_load_dword v%d, v%d, %s, s%d offen sc1', T1, T0, WS, sT)
            if cfg.get('kvflags'):
                kv_load()
    if cfg.get('stamps') and 'wst' not in cfg:
        a.I('s_memrealtime s[100:101]')
        a.I('s_waitcnt lgkmcnt(0)')
        a.I('s_mov_b32 s3, s100')
    a.I('s_mov_b32 s%d, s%d', sVm, sStampAddr)
    a.I('s_mov_b32 s%d, s%d', sVmPrev, sStampAddr)
    a.I('s_mov_b32 s%d, 0', sTag)
    a.I('s_mov_b32 s%d, 0', sRetry)
    a.I('s_mov_b32 s%d, s%d', sMxRd, sMxW)
    for k in range(4):
        a.I('s_mov_b32 s%d, 0x%x', sRing + k, WS_MEMX + k * 8192)
    a.I('s_lshl_b32 s%d, s%d, 10', sW10, S_WAVE)
    if cfg.get('kvflags'):
        a.label('R_kvfirst')
        a.I('s_waitcnt vmcnt(0)')
        a.I('v_cmp_eq_u32 vcc, 0, v%d', vDummy)
        a.I('s_nop 1')
        a.I('s_and_b32 s%d, vcc_lo, 15', sT)
        a.I('s_cbranch_scc0 R_kvgo')
        kv_load()
        gspin()
        a.I('s_branch R_kvfirst')
        a.label('R_kvgo')
        if cfg.get('pretouch', 1):
            a.I('v_xor_b32 v%d, 8192, v%d', T0, vWarm)
            for sg in range(2):
                a.I('s_mov_b32 s%d, 0x%x', sT, WS_K + sg * 262144)
                a.I('buffer_load_dword v%d, v%d, %s, s%d offen sc1', vDummy, T0, WS, sT)
                a.I('buffer_load_dword v%d, v%d, %s, s%d offen sc1', vDummy, vWarm, WS, sT)
        a.I('s_add_u32 s%d, s%d, 64', sKvf, sKvf)

    def rest(PFX, stf):
        def load_kx():
            a.I('s_mov_b32 m0, s%d', sM0a)
            a.I('buffer_load_dwordx4 v%d, %s, s%d offen sc1 lds', vKxSrc, WS, sKx)
            a.I('s_mov_b32 m0, s%d', sM0b)
            a.I('buffer_load_dwordx4 v%d, %s, s%d offen offset:512 sc1 lds', vKxSrc, WS, sKx)

        def load_v():
            for t in range(2):
                for hf in range(2):
                    a.I('buffer_load_dwordx4 v[%d:%d], v%d, %s, s%d offen offset:%d sc1', VT + 8 * t + 4 * hf, VT + 8 * t + 4 * hf + 3,
                        vVld, WS, sV, 1024 * t + 512 * hf)

        def backoff(cyc):
            if cfg.get('sleep'):
                if cyc >= 64:
                    a.I('s_sleep %d', cyc // 64)
                if cyc % 64 >= 32:
                    a.I('s_nop 7')
            else:
                n = cyc // 4
                while n > 0:
                    k = min(n, 16)
                    a.I('s_nop %d', k - 1)
                    n -= k

        def lds_half(j, hf):
            sl = j % 6
            return a.I('ds_read_b128 v[%d:%d], v%d offset:%d', slot(sl) + 4 * hf, slot(sl) + 4 * hf + 3, vLW, j * 2048 + 1024 * hf)

        def lds_set(j):
            lds_half(j, 0)
            return lds_half(j, 1)

        def zero(r, n):
            for k in range(0, n, 2):
                a.I('v_mov_b64 v[%d:%d], 0', r + k, r + k + 1)

        def spin():
            a.I('s_add_u32 s%d, s%d, 1', sSpin, sSpin)
            a.I('s_cmp_gt_u32 s%d, 0x100000', sSpin)
            a.I('s_cbranch_scc1 ' + PFX + 'fail')

        a.I('s_waitcnt lgkmcnt(0)')
        a.I('s_barrier')
        load_kx()
        if cfg.get('kvflags'):
            kv_load()
        a.I('s_add_u32 s%d, s%d, 262144', sKx, sKx)
        zero(T0, 4)
        C0, C1 = vSaveV, vSaveV + 1
        zero(ACC, 24)
        a.I('s_mov_b32 s%d, 0', sSpin)

        accidx = {('q', 0): 0, ('q', 1): 1, ('k', 0): 2, ('k', 1): 3, ('v', 0): 4, ('v', 1): 5}

        def M(X, t, kp, src=None):
            d = acc(accidx[(X, t)])
            r = mem(kp) if src is None else src
            a.I('v_smfmac_f32_16x16x64_bf16 v[%d:%d], v[%d:%d], %s, v%d', d, d + 3, r, r + 3, breg((X, t, kp)), vIdx)

        def ldv(i):
            if cfg.get('no_kv'):
                return None
            t, hf = i // 2, i % 2
            return a.I('buffer_load_dwordx4 v[%d:%d], v%d, %s, s%d offen offset:%d sc1', VT + 8 * t + 4 * hf, VT + 8 * t + 4 * hf + 3,
                       vVld, WS, sV, 1024 * t + 512 * hf)

        def poll(r0, r1):
            a.I('buffer_load_dwordx4 v[%d:%d], v%d, %s, s%d offen sc1', r0, r0 + 3, vL16, WS, sMxRd)
            a.I('buffer_load_dwordx4 v[%d:%d], v%d, %s, s%d offen sc1', r1, r1 + 3, vL16, WS, sMxRd2)

        kx, mt = {}, {}

        def rkx(f):
            kx[f] = a.I('ds_read_b128 v[%d:%d], v%d offset:%d', STG + 4 * f, STG + 4 * f + 3, vL16, LKX + f * 1024)

        def rm(k):
            mt[k] = a.I('ds_read_b128 v[%d:%d], v%d offset:%d', mem(k), mem(k) + 3, (vM0, vM1, vM2, vM3)[k & 3], 4096 * (k // 4))

        vSaveK = vSaveV

        def savepub():
            a.I('v_mov_b32 v%d, v%d', T0, VT)
            a.I('v_mov_b32 v%d, v%d', T1, vSaveK)
            a.I('v_mov_b32 v%d, v%d', T2, vSaveK + 1)
            a.I('v_mov_b32 v%d, v%d', T3, VT + 8)

        if cfg.get('stamps'):
            a.I('s_memrealtime s[6:7]')
            a.I('s_waitcnt lgkmcnt(0)')
        if cfg.get('dbgt'):
            import bulk
            bulk.dbg_time(a, 9, V=MEM)
        a.I('s_add_u32 s%d, s%d, 4096', sMxRd2, sMxRd)
        a.c('================ step loop ================')
        a.label(PFX + 'loop')
        stamp(a, cfg, 0)
        PA, PB = (mem(0), mem(4)), (VT, VT + 4)
        light = cfg.get('light', 0)
        a.label(PFX + 'repoll')
        poll(*PA)
        if cfg.get('stamps') and cfg['stamps'] != 4:
            a.I('s_waitcnt lgkmcnt(0)')
            a.I('v_mov_b32 v%d, 0', VT + 12)
            a.I('v_writelane_b32 v%d, s%d, 0', VT + 12, 52)
            for k in range(1, 10):
                a.I('v_writelane_b32 v%d, s%d, %d', VT + 12, 32 + 2 * k, k)
            a.I('v_writelane_b32 v%d, s%d, 10', VT + 12, sRetry)
            a.I('s_mov_b32 s52, s32')
            a.I('s_lshl_b32 s%d, s%d, 6', sT, S_ROLE)
            a.I('s_add_u32 s%d, s%d, s%d', sT, sT, sStep)
            a.I('s_lshl_b32 s%d, s%d, 2', sT, sT)
            a.I('s_add_u32 s%d, s%d, s%d', sT, sT, S_WAVE)
            a.I('s_lshl_b32 s%d, s%d, 6', sT, sT)
            a.I('s_add_u32 s%d, s%d, 0x%x', sStampAddr, sT, WS_DBG)
        else:
            backoff(cfg.get('pgap', 2) * (16 if light else 48))
        if light:
            a.I('buffer_load_dwordx4 v[%d:%d], v%d, %s, s%d offen sc1', VT, VT + 3, vL16, WS, sMxRd2)
        else:
            poll(*PB)

        def head(src, bad, n=2):
            s0, s1 = src
            a.I('s_waitcnt vmcnt(%d)' % (n + 1))
            a.I('ds_write_b128 v%d, v[%d:%d]', vM0, s0, s0 + 3)
            a.I('v_max_u32 v%d, v%d, v%d', C0, s0, s0 + 2)
            M('q', 0, 0, s0)
            a.I('s_waitcnt vmcnt(%d)' % n)
            wA = a.I('ds_write_b128 v%d, v[%d:%d] offset:4096', vM0, s1, s1 + 3)
            a.I('v_max3_u32 v%d, v%d, v%d, v%d', C0, C0, s1, s1 + 2)
            a.I('v_cmp_eq_u32 vcc, -1, v%d', C0)
            M('q', 1, 0, s0)
            M('q', 0, 4, s1)
            a.I('s_cbranch_vccnz %s', bad)
            stamp(a, cfg, 1)
            M('q', 1, 4, s1)
            M('k', 0, 0, s0)
            M('k', 1, 0, s0)
            a.wait(wA)
            a.I('s_barrier')
            rm(1)
            M('k', 0, 4, s1); rm(2)
            M('k', 1, 4, s1); rm(3)
            M('v', 0, 0, s0); rm(5)
            M('v', 1, 0, s0); rm(6)
            M('v', 0, 4, s1); rm(7)
            M('v', 1, 4, s1)
        a.I('s_branch ' + PFX + 'goA')
        if light:
            a.label(PFX + 'badB')
            spin()
            a.I('s_add_u32 s%d, s%d, 0x1000000', sRetry, sRetry)
            a.I('s_nop 2')
            zero(ACC, 8)
            a.I('s_branch ' + PFX + 'repoll')
            a.label(PFX + 'badA')
            a.I('s_add_u32 s%d, s%d, 0x10000', sRetry, sRetry)
            a.I('s_nop 5')
            zero(ACC, 8)
            head((mem(0), VT), PFX + 'badB', 0)
            a.I('s_branch ' + PFX + 'join')
            a.label(PFX + 'goA')
            head(PA, PFX + 'badA', 1)
        else:
            a.label(PFX + 'badA')
            poll(*PA)
            spin()
            a.I('s_add_u32 s%d, s%d, 0x10000', sRetry, sRetry)
            a.I('s_nop 1')
            zero(ACC, 8)
            head(PB, PFX + 'badB')
            a.I('s_branch ' + PFX + 'join')
            a.label(PFX + 'badB')
            poll(*PB)
            a.I('s_add_u32 s%d, s%d, 0x10000', sRetry, sRetry)
            a.I('s_nop 4')
            zero(ACC, 8)
            a.label(PFX + 'goA')
            head(PA, PFX + 'badA')
        a.label(PFX + 'join')
        a.I('s_cmp_eq_u32 s%d, %d', sStep, nsteps - 1)
        a.I('s_cbranch_scc1 ' + PFX + 'done')
        rkx(0)
        a.wait(mt[2])
        q0, q1, k0, k1, v0_, v1_ = [acc(i) for i in range(6)]
        QT = mem(0)

        def add(d, x, y):
            a.I('v_add_f32 v%d, v%d, v%d', d, x, y)

        def cvt(d, x, y):
            a.I('v_cvt_pk_bf16_f32 v%d, v%d, v%d', d, x, y)

        def pkadd(d, x, y):
            a.I('v_pk_add_f32 v[%d:%d], v[%d:%d], v[%d:%d]', d, d + 1, x, x + 1, y, y + 1)

        def sel(d, x, y):
            a.I('v_cndmask_b32 v%d, v%d, v%d, s[%d:%d]', d, x, y, sHalf, sHalf + 1)
        M('q', 0, 1); ldv(0)
        a.I('s_sub_u32 s%d, s%d, 1', sT, sStep)
        M('q', 1, 1); rkx(1)
        a.I('s_max_i32 s%d, s%d, 0', sT, sT)
        a.I('v_mov_b32 v%d, s%d', C1, sT)
        M('q', 0, 2); ldv(1)
        if cfg.get('kvflags'):
            a.I('v_cmp_eq_u32 vcc, 0, v%d', vDummy)
        M('q', 1, 2); rkx(2); a.wait(mt[5])
        M('q', 0, 3); ldv(2)
        if cfg.get('stamps') and cfg['stamps'] != 4:
            a.I('v_lshrrev_b32 v%d, 2, v%d', C0, vL16)
            a.I('s_mov_b64 exec, 0xffff')
            a.I('buffer_store_dword v%d, v%d, %s, s%d offen', VT + 12, C0, WS, sStampAddr)
            a.I('s_mov_b64 exec, -1')
        M('q', 1, 3); rkx(3)
        if cfg.get('kvflags'):
            a.I('s_and_b32 s%d, vcc_lo, 3', sT)
            a.I('s_cbranch_scc1 ' + PFX + 'kvwait')
            a.label(PFX + 'kvok')
        M('q', 0, 5); tv = ldv(3)
        if cfg.get('kvflags'):
            a.I('s_add_u32 s%d, s%d, 32', sKvf, sKvf)
        M('q', 1, 5); rkx(4); a.wait(mt[7])
        M('q', 0, 6)
        a.I('s_barrier')
        a.I('s_mov_b64 exec, 3')
        if not cfg.get('no_pub') and not cfg.get('no_flag'):
            a.I('buffer_store_dword v%d, v%d, %s, s%d offen sc1', C1, vL16, WS, sFl)
        a.I('s_mov_b64 exec, -1')
        M('q', 1, 6)
        if not cfg.get('no_pub'):
            a.I('buffer_store_dwordx4 v[%d:%d], v%d, %s, s%d offen sc1', T0, T0 + 3, vL16, WS, sVmPrev)
        M('q', 0, 7); rkx(5)
        if cfg.get('kvflags'):
            a.I('s_min_u32 s%d, s%d, s%d', sKvf, sKvf, sKvfMax)
        M('q', 1, 7); rkx(6)
        a.I('s_add_u32 s%d, s%d, 262144', sV, sV)
        stamp(a, cfg, 2)
        M('k', 0, 1); rkx(7)
        a.I('s_waitcnt vmcnt(%d)' % (a.vm_n - tv[1] + 4 if tv else 0))
        M('k', 1, 1)
        a.I('s_mov_b32 s%d, s%d', sT, sRing)
        a.I('s_mov_b32 s%d, s%d', sRing, sRing + 1)
        add(QT, q0, q0 + 2)
        M('k', 0, 2)
        add(QT + 1, q0 + 1, q0 + 3)
        add(QT + 2, q1, q1 + 2)
        add(QT + 3, q1 + 1, q1 + 3)
        cvt(QT, QT, QT + 2)
        cvt(QT + 1, QT + 1, QT + 3)
        wq = a.I('ds_write2_b32 v%d, v%d, v%d offset0:0 offset1:4', vX1w, QT, QT + 1)
        M('k', 1, 2)
        if not cfg.get('no_warm'):
            a.I('buffer_load_dword v%d, v%d, %s, s%d offen sc1', vDummy, vWarm, WS, sWarm)
        a.I('s_mov_b32 s%d, s%d', sRing + 1, sRing + 2)
        M('k', 0, 3)
        a.I('s_mov_b32 s%d, s%d', sRing + 2, sRing + 3)
        a.I('s_mov_b32 s%d, s%d', sRing + 3, sT)
        M('k', 1, 3)
        if cfg.get('kvflags'):
            a.I('s_mov_b64 exec, 3')
            kv_load()
            a.I('s_mov_b64 exec, -1')
        M('k', 0, 5)
        a.I('s_add_u32 s%d, s%d, s%d', sMxRd, sRing, sW10)
        a.I('s_and_b32 s%d, s%d, 1', sTag, sStep)
        M('k', 1, 5)
        a.wait(wq)
        a.I('s_barrier')
        qt = {}

        def rq(ks):
            qt[ks] = a.I('ds_read_b128 v[%d:%d], v%d offset:%d', slot(4) + 4 * ks, slot(4) + 4 * ks + 3, vX1rq, ks * KS)
        rq(0)
        M('k', 0, 6); rq(1)
        M('k', 1, 6); rq(2)
        M('k', 0, 7); rq(3)
        a.I('s_mov_b32 m0, s%d', sM0a)
        M('k', 1, 7)
        a.I('s_add_u32 s%d, s%d, 4096', sMxRd2, sMxRd)
        stamp(a, cfg, 3)
        S0, S1, S2, Pm = acc(0), acc(1), acc(2), acc(3)
        X0, X1 = S1 + 2, S1 + 3
        ON = T0
        PV0, PV1, LS = mem(4), mem(0), mem(1)
        KMR = [STG, STG + 4, STG + 8, STG + 12]

        def SM(D, A, ks):
            a.I('v_mfma_f32_16x16x32_bf16 v[%d:%d], v[%d:%d], v[%d:%d], %s', D, D + 3, A, A + 3,
                slot(4) + 4 * ks, slot(4) + 4 * ks + 3, '0' if ks == 0 else vr(D, 4))
        km = {}

        def rkm(k):
            km[k] = a.I('ds_read_b128 v[%d:%d], v%d offset:%d', KMR[k], KMR[k] + 3, vX1rk, k * KS)
        M('v', 0, 1)
        if not cfg.get('no_kv'):
            a.I('buffer_load_dwordx4 v%d, %s, s%d offen sc1 lds', vKxSrc, WS, sKx)
        a.I('s_mov_b32 m0, s%d', sM0b)
        a.I('v_xor_b32 v%d, 128, v%d', PV0, vX1w)
        M('v', 1, 1)
        a.wait(qt[3])
        add(QT, k0, k0 + 2)
        SM(S0, STG, 0)
        add(QT + 1, k0 + 1, k0 + 3)
        add(QT + 2, k1, k1 + 2)
        SM(S0, STG + 4, 1)
        add(QT + 3, k1 + 1, k1 + 3)
        cvt(vSaveK, QT, QT + 2)
        SM(S0, STG + 8, 2)
        cvt(vSaveK + 1, QT + 1, QT + 3)
        wk = a.I('ds_write2_b32 v%d, v%d, v%d offset0:0 offset1:4', PV0, vSaveK, vSaveK + 1)
        SM(S0, STG + 12, 3)
        if not cfg.get('no_kv'):
            a.I('buffer_load_dwordx4 v%d, %s, s%d offen offset:512 sc1 lds', vKxSrc, WS, sKx)
        a.I('v_mov_b32 v%d, 0', Pm + 3)
        SM(S1, STG + 16, 0)
        SM(S1, STG + 20, 1)
        vm_mark = a.vm_n
        zero(PV0, 4)
        SM(S1, STG + 24, 2)
        a.I('s_add_u32 s%d, s%d, 262144', sKx, sKx)
        a.I('v_mov_b32 v%d, 0x3f803f80', ON)
        SM(S1, STG + 28, 3)
        a.wait(wk)
        a.I('s_barrier')
        rkm(0)
        M('v', 0, 2); rkm(1)
        a.I('v_max3_f32 v%d, v%d, v%d, v%d', Pm, S0, S0 + 1, S0 + 2)
        M('v', 1, 2); rkm(2)
        a.I('s_add_u32 s%d, s%d, 262144', sWarm, sWarm)
        a.I('v_mov_b32 v%d, 0x3f803f80', ON + 1)
        M('v', 0, 3); rkm(3)
        a.I('v_max3_f32 v%d, v%d, v%d, v%d', Pm, Pm, S0 + 3, S1)
        M('v', 1, 3); lds_half(8, 0)
        a.I('v_max3_f32 v%d, v%d, v%d, v%d', Pm + 1, S1 + 1, S1 + 2, S1 + 3)
        M('v', 0, 5); lds_half(8, 1)
        a.wait(km[1])
        sel(S1, S1, S1 + 2)
        SM(S2, KMR[0], 0); lds_half(9, 0)
        sel(S1 + 1, S1 + 1, S1 + 3)
        a.I('v_max_f32 v%d, v%d, v%d', X0, Pm, Pm + 1)
        SM(S2, KMR[1], 1)
        a.wait(km[3])
        zero(PV1, 4)
        SM(S2, KMR[2], 2); lds_half(9, 1)
        a.I('v_mov_b32 v%d, 0x3f803f80', ON + 2)
        a.I('v_mov_b32 v%d, 0x3f803f80', ON + 3)
        SM(S2, KMR[3], 3); lds_half(6, 0)
        a.I('v_mov_b32 v%d, v%d', X1, X0)
        stamp(a, cfg, 4)
        M('v', 1, 5); lds_half(6, 1)
        a.I('v_permlane32_swap_b32 v%d, v%d', X0, X1)
        M('v', 0, 6); lds_half(7, 0)
        a.I('v_max3_f32 v%d, v%d, v%d, v%d', X0, X0, X1, S2)
        M('v', 1, 6); lds_half(7, 1)
        a.I('v_max3_f32 v%d, v%d, v%d, v%d', X1, S2 + 1, S2 + 2, S2 + 3)
        a.I('v_max_f32 v%d, v%d, v%d', X0, X0, X1)
        a.I('v_mov_b32 v%d, v%d', X1, X0)
        M('v', 0, 7); lds_half(10, 0)
        a.I('v_permlane16_swap_b32 v%d, v%d', X0, X1)
        sel(S2, S2, S0 + 2)
        M('v', 1, 7); lds_half(10, 1)
        a.I('v_max_f32 v%d, v%d, v%d', X0, X0, X1)
        sel(S2 + 1, S2 + 1, S0 + 3)
        a.I('v_mul_f32 v%d, s%d, v%d', X0, sNC, X0)
        sel(S2 + 2, S2 + 2, S0)
        sel(S2 + 3, S2 + 3, S0 + 1)
        a.I('v_sub_f32 v%d, v%d, v%d', X1, X0, vBias)

        def pkfma(d, hi):
            a.I('v_pk_fma_f32 v[%d:%d], v[%d:%d], s[%d:%d], v[%d:%d] op_sel:[0,0,%d] op_sel_hi:[1,1,%d]', d, d + 1, d, d + 1, sC2, sC2 + 1, X0, X1, hi, hi)
        pkfma(S1, 0)
        pkfma(S2, 1)
        a.I('v_exp_f32 v%d, v%d', S1, S1)
        pkfma(S2 + 2, 1)
        a.I('v_exp_f32 v%d, v%d', S1 + 1, S1 + 1)
        pkadd(S0, v0_, v0_ + 2)
        a.I('v_exp_f32 v%d, v%d', S2, S2)
        pkadd(S0 + 2, v1_, v1_ + 2)
        a.I('v_exp_f32 v%d, v%d', S2 + 1, S2 + 1)
        cvt(Pm + 1, S1, S1 + 1)
        a.I('v_exp_f32 v%d, v%d', S2 + 2, S2 + 2)
        if tv:
            a.I('s_waitcnt vmcnt(%d)' % (vm_mark - tv[1]))
        cvt(VT, S0, S0 + 1)
        a.I('v_exp_f32 v%d, v%d', S2 + 3, S2 + 3)
        cvt(Pm, S2, S2 + 1)
        cvt(VT + 8, S0 + 2, S0 + 3)
        cvt(Pm + 2, S2 + 2, S2 + 3)
        lds_half(11, 0)
        stamp(a, cfg, 5)
        a.I('v_mfma_f32_16x16x32_bf16 v[%d:%d], v[%d:%d], v[%d:%d], 0', LS, LS + 3, Pm, Pm + 3, ON, ON + 3)
        lds_half(11, 1)
        a.I('v_smfmac_f32_16x16x64_bf16 v[%d:%d], v[%d:%d], v[%d:%d], v%d', PV0, PV0 + 3, Pm, Pm + 3, VT, VT + 7, vIdx)
        a.I('v_mov_b32 v%d, v%d', T0, VT)
        a.I('v_smfmac_f32_16x16x64_bf16 v[%d:%d], v[%d:%d], v[%d:%d], v%d', PV1, PV1 + 3, Pm, Pm + 3, VT + 8, VT + 15, vIdx)
        a.I('v_mov_b32 v%d, v%d', T1, vSaveK)
        a.I('v_mov_b32 v%d, v%d', T2, vSaveK + 1)
        a.I('v_mov_b32 v%d, v%d', T3, VT + 8)
        pkadd(X0, LS, LS + 2)
        a.I('v_rcp_f32 v%d, v%d', X0, X0)
        a.I('v_rcp_f32 v%d, v%d', X1, X1)
        pkadd(PV0, PV0, PV0 + 2)
        pkadd(PV1, PV1, PV1 + 2)
        a.I('v_pk_mul_f32 v[%d:%d], v[%d:%d], v[%d:%d]', PV0, PV0 + 1, PV0, PV0 + 1, X0, X1)
        a.I('v_pk_mul_f32 v[%d:%d], v[%d:%d], v[%d:%d]', PV1, PV1 + 1, PV1, PV1 + 1, X0, X1)
        cvt(S0, PV0, PV1)
        cvt(S0 + 1, PV0 + 1, PV1 + 1)
        wo = a.I('ds_write2_b32 v%d, v%d, v%d offset0:0 offset1:4', vX2w, S0, S0 + 1)
        zero(MEM, 16)
        a.wait(wo)
        a.I('s_barrier')
        OF = acc(4)
        of0 = a.I('ds_read_b128 v[%d:%d], v%d offset:%d', OF, OF + 3, vL16, LX2)
        of1 = a.I('ds_read_b128 v[%d:%d], v%d offset:%d', OF + 4, OF + 7, vL16, LX2 + 1024)
        zero(MEM + 16, 16)
        SEL, RD = ACC + 8, ACC + 12
        stamp(a, cfg, 6)

        def wt(b, t):
            return MEM + 16 * b + 4 * t

        def W(n):
            key = WO_ORDER[n]
            _, b, t, ks = key
            a.I('v_smfmac_f32_16x16x64_bf16 v[%d:%d], v[%d:%d], %s, v%d', wt(b, t), wt(b, t) + 3, OF + 4 * ks, OF + 4 * ks + 3, breg(key), vIdx)

        def ha(b, t, h):
            D = wt(b, t) + h
            add(D, D, D + 2)

        def hp(b, t):
            D = wt(b, t)
            pkadd(D, D, D + 2)

        G = [ACC, ACC + 4]

        def pk(b, h, tok):
            cvt(G[b] + 2 * tok + h, wt(b, 2 * h) + tok, wt(b, 2 * h + 1) + tok)

        def send(b):
            a.I('buffer_store_dwordx4 v[%d:%d], v%d, %s, s%d offen%s', G[b], G[b] + 3, vInSt, WS, sIn + b, stf)

        def tag(b):
            a.I('v_bfi_b32 v%d, 1, s%d, v%d', G[b], sTag, G[b])

        def selgen(k):
            if k == 0:
                a.I('v_mov_b32 v%d, 0x3f80', RD)
            elif k == 1:
                a.I('v_cndmask_b32 v%d, v%d, 1.0, s[%d:%d]', RD, RD, sSel + 4, sSel + 5)
            else:
                a.I('v_cndmask_b32 v%d, 0, v%d, s[%d:%d]', SEL + k - 2, RD, sSel + 2 * (k % 2), sSel + 2 * (k % 2) + 1)

        def rload(i):
            return a.I('buffer_load_dwordx4 v[%d:%d], v%d, %s, s%d offen offset:%d sc1', VT + 4 * i, VT + 4 * i + 3, vL16, WS, sInLd, i * 1024)

        lt = {}
        a.wait(of0)
        W(0); lds_half(12, 0)
        W(1); a.wait(of1); lt[12] = lds_half(12, 1)
        W(2); lds_half(13, 0)
        W(3); lt[13] = lds_half(13, 1)
        W(4); lds_half(14, 0)
        W(5); lt[14] = lds_half(14, 1); ha(0, 0, 0)
        W(6); lds_half(15, 0); ha(0, 0, 1)
        W(7); lt[15] = lds_half(15, 1); ha(0, 1, 0)
        ha(0, 1, 1)
        pk(0, 0, 0); pk(0, 0, 1)
        tag(0)
        hp(0, 2)
        lds_half(16, 0)
        lt[16] = lds_half(16, 1)
        hp(0, 3)
        pk(0, 1, 0); pk(0, 1, 1)
        send(0)
        W(8); lds_half(17, 0)
        W(9); lt[17] = lds_half(17, 1); a.wait(lt[13])
        W(10)
        a.I('s_mov_b32 s%d, s%d', sVmPrev, sVm)
        a.I('s_add_u32 s%d, s%d, 131072', sVm, sVm)
        a.I('s_mov_b32 s%d, 0', sSpin)
        W(11); a.wait(lt[15])
        a.I('s_add_u32 s%d, s%d, 1', sStep, sStep)
        W(12); lds_half(0, 0); ha(1, 0, 0)
        W(13); a.wait(lt[17]); ha(1, 0, 1)
        W(14); lds_half(0, 1); ha(1, 1, 0)
        W(15); lds_half(1, 0); ha(1, 1, 1)
        pk(1, 0, 0); pk(1, 0, 1)
        tag(1)
        hp(1, 2)
        lds_half(1, 1)
        a.I('s_cmp_ge_u32 s%d, 2', S_WAVE)
        hp(1, 3)
        pk(1, 1, 0); pk(1, 1, 1)
        send(1)
        stamp(a, cfg, 7)
        U0, U1, U2, U3 = ACC + 16, ACC + 17, ACC + 18, ACC + 19
        npre = cfg.get('npre', 3)
        a.I('s_cbranch_scc1 ' + PFX + 'late')
        backoff(cfg.get('d0', 0) * 32)
        rload(0); rload(1)
        a.label(PFX + 'late')
        for j in range(2, 1 + npre):
            lds_set(j)
        for k in range(6):
            selgen(k)
        zero(RD, 4)
        a.I('s_cbranch_scc0 ' + PFX + 'early')
        backoff(cfg.get('d1', 0) * 32)
        rload(0); rload(1)
        a.label(PFX + 'early')
        for j in range(1 + npre, 6):
            lds_set(j)
        zero(ACC + 20, 4)
        zero(ACC, 8)
        a.I('v_mov_b32 v%d, -1', U2)
        a.I('v_mov_b32 v%d, -1', U3)
        DP = ' row_mask:0xf bank_mask:0xf'
        Z = VT + 8
        dbl = cfg.get('dbl1', 0)
        R2 = MEM + 8

        def rl(R):
            for i in range(2):
                a.I('buffer_load_dwordx4 v[%d:%d], v%d, %s, s%d offen offset:%d sc1', R + 4 * i, R + 4 * i + 3, vL16, WS, sInLd, i * 1024)

        def red1(R, bad):
            a.I('v_smfmac_f32_16x16x64_bf16 v[%d:%d], v[%d:%d], v[%d:%d], v%d', RD, RD + 3, SEL, SEL + 3, R, R + 7, vIdx)
            a.I('v_bitop3_b32 v%d, v%d, v%d, s%d bitop3:0x7e', U0, R, R + 4, sTag)
            a.I('v_and_b32 v%d, 1, v%d', U0, U0)
            a.I('v_cmp_ne_u32 vcc, 0, v%d', U0)
            for k in range(4):
                a.I('v_add_f32_dpp v%d, v%d, v%d row_ror:4' + DP, Z + k, RD + k, RD + k)
            a.I('s_cbranch_vccnz ' + bad)
        if dbl:
            backoff(cfg.get('rgap', 2) * 32)
            rl(R2)
            a.I('s_waitcnt vmcnt(2) lgkmcnt(0)')
            a.label(PFX + 'chk1')
            red1(VT, PFX + 'slow1')
            a.label(PFX + 'ok1')
        else:
            a.I('s_waitcnt vmcnt(0) lgkmcnt(0)')
            a.label(PFX + 'chk1')
            red1(VT, PFX + 'slow1')
        for k in range(4):
            a.I('v_add_f32_dpp v%d, v%d, v%d row_ror:8' + DP, Z + 4 + k, Z + k, Z + k)
        stamp(a, cfg, 8)
        a.I('s_mov_b64 exec, 0x000f000f')
        a.I('v_cvt_pk_bf16_f32 v%d, v%d, v%d', U0, Z + 4, Z + 5)
        a.I('v_cvt_pk_bf16_f32 v%d, v%d, v%d', U1, Z + 6, Z + 7)
        a.I('v_min_u32 v%d, -2, v%d', U0, U0)
        a.I('buffer_store_dwordx2 v[%d:%d], v%d, %s, s%d offen%s', U0, U1, vMxSt, WS, sMxWr, stf)
        a.I('buffer_store_dwordx2 v[%d:%d], v%d, %s, s%d offen%s', U2, U3, vMxSt, WS, sMxRst, stf)
        a.I('s_mov_b64 exec, -1')
        stamp(a, cfg, 9)
        a.I('s_add_u32 s%d, s%d, s%d', sRetry, sRetry, sSpin)
        a.I('s_mov_b32 s%d, 0', sSpin)
        zero(ACC + 8, 12)
        backoff(cfg.get('d2', 0) * 32)
        if cfg.get('b3'):
            a.I('s_barrier')
        a.I('s_branch ' + PFX + 'loop')

        a.label(PFX + 'slow1')
        rload(0); rload(1)
        spin()
        zero(RD, 4)
        if dbl:
            a.I('s_waitcnt vmcnt(2)')
            red1(R2, PFX + 'slow2')
            a.I('s_branch ' + PFX + 'ok1')
            a.label(PFX + 'slow2')
            rl(R2)
            spin()
            zero(RD, 4)
            a.I('s_waitcnt vmcnt(2)')
        else:
            a.I('s_waitcnt vmcnt(0)')
        a.I('s_branch ' + PFX + 'chk1')

        if cfg.get('kvflags'):
            a.label(PFX + 'kvwait')
            kv_load()
            spin()
            a.I('s_waitcnt vmcnt(0)')
            a.I('v_cmp_eq_u32 vcc, 0, v%d', vDummy)
            a.I('s_nop 1')
            a.I('s_and_b32 s%d, vcc_lo, 3', sT)
            a.I('s_cbranch_scc1 ' + PFX + 'kvwait')
            a.I('s_branch ' + PFX + 'kvok')

        a.label(PFX + 'done')
        a.c('last segment: only k and v of the memory rows are needed')
        a.I('buffer_store_dwordx4 v[%d:%d], v%d, %s, s%d offen sc1', T0, T0 + 3, vL16, WS, sVmPrev)
        a.I('s_waitcnt lgkmcnt(0)')
        for kp in (1, 2, 3, 5, 6, 7):
            M('k', 0, kp); M('k', 1, kp); M('v', 0, kp); M('v', 1, kp)
        L = STG
        pkadd(L, k0, k0 + 2)
        pkadd(L + 2, k1, k1 + 2)
        pkadd(L + 4, v0_, v0_ + 2)
        pkadd(L + 6, v1_, v1_ + 2)
        cvt(L + 9, L, L + 2)
        cvt(L + 10, L + 1, L + 3)
        cvt(L + 8, L + 4, L + 5)
        cvt(L + 11, L + 6, L + 7)
        a.I('buffer_store_dwordx4 v[%d:%d], v%d, %s, s%d offen sc1', L + 8, L + 11, vL16, WS, sVm)
        a.I('s_waitcnt vmcnt(0)')
        if cfg.get('dbgt'):
            bulk.dbg_time(a, 10, V=MEM)
        a.I('v_mov_b32 v%d, %d', T1, nsteps)
        a.I('s_mov_b64 exec, 1')
        a.I('buffer_store_dword v%d, v%d, %s, s%d offen sc1', T1, vL16, WS, sFl)
        if cfg.get('stamps'):
            a.I('s_memrealtime s[100:101]')
            a.I('s_waitcnt lgkmcnt(0)')
            a.I('v_mov_b32 v%d, s4', T0)
            if cfg.get('hwid'):
                a.I('s_getreg_b32 s6, hwreg(HW_REG_HW_ID)')
            a.I('v_mov_b32 v%d, s6', T1)
            a.I('v_mov_b32 v%d, s100', T2)
            a.I('v_mov_b32 v%d, s%d', T3, sRetry if cfg.get('cnt') else 3)
            a.I('s_lshl_b32 s%d, s%d, 2', sT, S_ROLE)
            a.I('s_add_u32 s%d, s%d, s%d', sT, sT, S_WAVE)
            a.I('s_lshl_b32 s%d, s%d, 4', sT, sT)
            a.I('s_add_u32 s%d, s%d, 0x%x', sT, sT, WS_DBG + 0x80000)
            a.I('buffer_store_dwordx4 v[%d:%d], v%d, %s, s%d offen', T0, T3, vL16, WS, sT)
        a.I('s_endpgm')
        a.label(PFX + 'fail')
        a.I('s_mov_b64 exec, 1')
        a.I('v_mov_b32 v%d, %d', T2, D_ERR * 4)
        a.I('v_mov_b32 v%d, s%d', T3, sStep)
        a.I('v_or_b32 v%d, 0x40000000, v%d', T3, T3)
        a.I('buffer_store_dword v%d, v%d, s[%d:%d], 0 offen sc1', T3, T2, S_DBG, S_DBG + 3)
        a.I('s_endpgm')

    if cfg.get('both_modes'):
        a.c('mode: plain stores only if all 32 recurrence workgroups sit on the chosen XCD')
        a.I('s_cmp_lg_u32 s%d, 0', sMode)
        a.I('s_cbranch_scc1 R_safe')
        rest('R_', '')
        a.label('R_safe')
        rest('RS_', ' sc1')
    else:
        rest('R_', stf)
    a.label('R_dwait')
    dbg_load()
    gspin()
    a.I('s_waitcnt vmcnt(0)')
    a.I('s_branch R_dchk')
```

```python
import sys
from asmlib import *
from common import *
import importlib, os
rec = importlib.import_module(os.environ.get('REC_MOD', 'rec'))
import bulk
from bulk import sT, WS, DBG

LDS_TK = 14336


def ticket(a, dword, sdst, pre=None, between=None):
    lab = a.newlabel('TK')
    a.I('v_mov_b32 v253, %d', LDS_TK)
    a.I('s_cmp_lg_u32 s%d, 0', S_WAVE)
    a.I('s_cbranch_scc1 %s', lab)
    a.I('s_mov_b64 exec, 1')
    a.I('v_mov_b32 v251, 1')
    a.I('v_mov_b32 v252, %d', dword * 4)
    if pre is not None:
        sk = a.newlabel('TKs')
        a.I('v_mov_b32 v251, 32')
        a.I('s_cmp_lt_u32 s%d, 256', pre)
        a.I('s_cbranch_scc1 %s', sk)
        a.I('v_mov_b32 v251, 1')
    a.I('buffer_atomic_add v251, v252, %s, 0 offen sc0', DBG)
    if between is not None:
        lab2 = a.newlabel('TK')
        a.I('s_mov_b64 exec, -1')
        a.label(lab)
        a.I('s_barrier')
        n = between(a)
        a.I('s_cmp_lg_u32 s%d, 0', S_WAVE)
        a.I('s_cbranch_scc1 %s', lab2)
        a.I('s_mov_b64 exec, 1')
        a.I('s_waitcnt vmcnt(%d)', n)
        lab = lab2
    else:
        a.I('s_waitcnt vmcnt(0)')
    if pre is not None:
        a.label(sk)
    a.I('ds_write_b32 v253, v251')
    a.I('s_waitcnt lgkmcnt(0)')
    a.I('s_mov_b64 exec, -1')
    a.label(lab)
    a.I('s_barrier')
    a.I('ds_read_b32 v251, v253')
    a.I('s_waitcnt lgkmcnt(0)')
    a.I('v_readfirstlane_b32 s%d, v251', sdst)
    a.I('s_barrier')


def dbg_add(a, dword):
    lab = a.newlabel('DA')
    a.I('s_cmp_lg_u32 s%d, 0', S_WAVE)
    a.I('s_cbranch_scc1 %s', lab)
    a.I('s_mov_b64 exec, 1')
    a.I('v_mov_b32 v251, 1')
    a.I('v_mov_b32 v252, %d', dword * 4)
    a.I('buffer_atomic_add v251, v252, %s, 0 offen', DBG)
    a.I('s_waitcnt vmcnt(0)')
    a.I('s_mov_b64 exec, -1')
    a.label(lab)


def build(cfg):
    a = Asm()
    bulk.BST = bool(cfg.get('stamps'))
    bulk.GI = cfg.get('gi', 0)
    bulk.HALF = cfg.get('half', 0)
    bulk.GSL = cfg.get('gsl', 0)
    bulk.SL1, bulk.SL2 = cfg.get('sl1', 2), cfg.get('sl2', 2)
    a.I('s_cmp_ge_u32 s2, 256')
    a.I('s_cbranch_scc1 K_exit')
    if cfg.get('stamps'):
        a.I('s_memrealtime s[4:5]')
    a.I('s_load_dwordx16 s[32:47], s[0:1], 0')
    a.I('s_load_dwordx8 s[48:55], s[0:1], 64')
    a.I('s_load_dwordx4 s[56:59], s[0:1], 96')
    a.I('s_getreg_b32 s%d, hwreg(HW_REG_XCC_ID)', S_XCC)
    a.I('s_and_b32 s%d, s%d, 15', S_XCC, S_XCC)
    a.I('v_lshrrev_b32 v1, 6, v0')
    a.I('v_readfirstlane_b32 s%d, v1', S_WAVE)
    a.I('s_waitcnt lgkmcnt(0)')
    rec.srd(a, S_WS, P_WS, WS_SIZE)
    rec.srd(a, S_DBG, P_DBG, 256)
    if cfg.get('dbgt'):
        bulk.DBGT = True
        bulk.dbg_time(a, 12, invert=True)
    if cfg.get('codepf', 1):
        a.I('s_getpc_b64 s[4:5]' if not cfg.get('stamps') else 's_getpc_b64 s[6:7]')
        a.label('K_pc')
        pc = 6 if cfg.get('stamps') else 4
        a.I('v_lshlrev_b32 v254, 7, v0')
        for k in range(cfg.get('codekb', 96) // 32):
            a.I('v_min_u32 v255, K_end-K_pc-4, v254')
            a.I('global_load_dword v%d, v255, s[%d:%d]', 240 + k, pc, pc + 1)
            a.I('v_add_u32 v254, 0x8000, v254')
    a.I('s_cmp_lg_u32 s%d, %d', S_XCC, cfg.get('xcd', 0))
    a.I('s_cbranch_scc1 K_bulk_t')
    def kick(a):
        rec.srd(a, S_W, P_WQ, 4194304)
        a.I('v_and_b32 v250, 63, v0')
        a.I('v_lshlrev_b32 v250, 7, v250')
        a.I('s_lshr_b32 s%d, s2, 3', sT)
        a.I('s_and_b32 s%d, s%d, 31', sT, sT)
        a.I('s_lshl_b32 s%d, s%d, 2', sT, sT)
        a.I('s_add_u32 s%d, s%d, s%d', sT, sT, S_WAVE)
        a.I('s_lshl_b32 s%d, s%d, 13', sT, sT)
        n = cfg.get('kick', 0)
        for k in range(n):
            a.I('buffer_load_dword v249, v250, s[%d:%d], s%d offen', S_W, S_W + 3, sT)
            a.I('s_add_u32 s%d, s%d, %d', sT, sT, 128 * 8192)
        return n
    ticket(a, D_TICK_REC, S_ROLE, between=kick if cfg.get('kick') else None)
    a.I('s_cmp_lt_u32 s%d, 32', S_ROLE)
    a.I('s_cbranch_scc1 K_rec')
    a.label('K_bulk_t')
    ticket(a, D_TICK_A, S_ROLE)
    bulk.bstamp(a, 0)
    a.I('s_sub_u32 s%d, s%d, 128', sT + 1, S_ROLE)
    a.I('s_cmp_ge_u32 s%d, %d', sT + 1, NZERO)
    a.I('s_cbranch_scc1 K_nz')
    for k in range(4):
        a.I('v_mov_b32 v%d, 0', 240 + k)
    a.I('v_and_b32 v244, 63, v0')
    a.I('v_lshlrev_b32 v244, 4, v244')
    per = FL_SIZE // (4 * NZERO)
    assert per % 1024 == 0
    a.I('s_lshl_b32 s%d, s%d, 2', sT + 1, sT + 1)
    a.I('s_add_u32 s%d, s%d, s%d', sT + 1, sT + 1, S_WAVE)
    a.I('s_mul_i32 s%d, s%d, %d', sT, sT + 1, per)
    a.I('s_add_u32 s%d, s%d, 0x%x', sT, sT, WS_FLAGS)
    for k in range(per // 1024):
        if k and k % 4 == 0:
            a.I('s_add_u32 s%d, s%d, 4096', sT, sT)
        a.I('buffer_store_dwordx4 v[240:243], v244, %s, s%d offen offset:%d sc1', WS, sT, (k % 4) * 1024)
    a.I('s_waitcnt vmcnt(0)')
    a.I('s_barrier')
    dbg_add(a, D_FINIT)
    a.label('K_nz')
    a.I('s_sub_u32 s%d, s%d, 128', sT + 5, S_ROLE)
    a.I('s_cmp_ge_u32 s%d, 96', sT + 5)
    a.I('s_cbranch_scc1 K_a')
    rec.srd(a, S_W, P_X, 2097152)
    a.label('K_ln')
    a.I('s_lshl_b32 s%d, s%d, 14', sT + 6, sT + 5)
    a.I('s_lshl_b32 s%d, s%d, 12', sT, S_WAVE)
    a.I('s_add_u32 s%d, s%d, s%d', sT + 6, sT + 6, sT)
    a.I('s_add_u32 s%d, s%d, 2048', sT + 7, sT + 6)
    t0 = bulk.ln_issue(a, sT + 6, B=200)
    t1 = bulk.ln_issue(a, sT + 7, B=150)
    if cfg.get('wopf', 1):
        rec.srd(a, S_W2, P_WO, 4194304)
        a.I('s_lshl_b32 s%d, s%d, 1', sT + 4, sT + 6)
        for k in range(8):
            if k == 4:
                a.I('s_add_u32 s%d, s%d, 4096', sT + 4, sT + 4)
            a.I('buffer_load_dwordx4 v[%d:%d], v208, s[%d:%d], s%d offen offset:%d', 100 + 4 * k, 103 + 4 * k, S_W2, S_W2 + 3, sT + 4, (k % 4) * 1024)
    bulk.ln_compute(a, t0, sT + 6, B=200)
    bulk.ln_compute(a, t1, sT + 7, B=150)
    bulk.wait_dbg(a, D_FINIT, NZERO)
    a.I('s_barrier')
    lab = a.newlabel('LNF')
    a.I('s_cmp_lg_u32 s%d, 0', S_WAVE)
    a.I('s_cbranch_scc1 %s', lab)
    a.I('s_lshl_b32 s%d, s%d, 2', sT + 1, sT + 5)
    a.I('s_add_u32 s%d, s%d, 0x%x', sT + 1, sT + 1, WS_FLAGS + FL_XN)
    bulk.flag_store(a, sT + 1)
    a.label(lab)
    a.I('s_add_u32 s%d, s%d, 96', sT + 5, sT + 5)
    a.I('s_cmp_lt_u32 s%d, 128', sT + 5)
    a.I('s_cbranch_scc1 K_ln')
    bulk.bstamp(a, 1)
    a.label('K_a')
    bulk.gen_phase_a(a)
    bulk.wait_dbg(a, D_FINIT, NZERO)
    a.I('s_mov_b32 s%d, 0', bulk.sSpin)
    a.I('v_mov_b32 v250, 0')
    a.label('K_arr')
    a.I('buffer_load_dword v251, v250, %s, 0 offen offset:%d sc1', DBG, D_TICK_REC * 4)
    a.I('buffer_load_dword v252, v250, %s, 0 offen offset:%d sc1', DBG, D_TICK_A * 4)
    bulk.spin(a)
    a.I('s_waitcnt vmcnt(0)')
    a.I('v_readfirstlane_b32 s%d, v251', sT)
    a.I('v_readfirstlane_b32 s%d, v252', sT + 1)
    a.I('s_cmp_ge_u32 s%d, 32', sT)
    a.I('s_cbranch_scc1 K_arr2')
    a.I('s_add_u32 s%d, s%d, s%d', sT, sT, sT + 1)
    a.I('s_cmp_lt_u32 s%d, 256', sT)
    a.I('s_cbranch_scc1 K_arr')
    a.label('K_arr2')
    ticket(a, D_TICK_REC, S_ROLE, pre=sT)
    a.I('s_cmp_ge_u32 s%d, 32', S_ROLE)
    a.I('s_cbranch_scc1 K_b')
    dbg_add(a, D_CNT_OTH)
    a.I('s_branch K_rec')
    a.label('K_b')
    ticket(a, D_TICK_B, S_ROLE)
    if cfg.get('t2first', 0):
        a.I('s_cmp_ge_u32 s%d, 128', S_ROLE)
        a.I('s_cbranch_scc1 K_t1')
        bulk.gen_t2(a)
        a.label('K_t1')
        a.I('s_sub_u32 s%d, s%d, 128', S_ROLE, S_ROLE)
        a.I('s_cmp_ge_u32 s%d, %d', S_ROLE, bulk.NT1)
        a.I('s_cbranch_scc1 K_exit')
        bulk.gen_t1(a)
    else:
        a.I('s_cmp_lt_u32 s%d, %d', S_ROLE, bulk.NT1)
        a.I('s_cbranch_scc1 K_t1')
        a.I('s_sub_u32 s%d, s%d, %d', S_ROLE, S_ROLE, bulk.NT1)
        a.I('s_cmp_ge_u32 s%d, 128', S_ROLE)
        a.I('s_cbranch_scc1 K_exit')
        bulk.gen_t2(a)
        a.label('K_t1')
        bulk.gen_t1(a)
    a.label('B_fail')
    a.I('s_mov_b64 exec, 1')
    a.I('v_mov_b32 v252, %d', (D_ERR + 2) * 4)
    a.I('v_mov_b32 v251, s%d', S_ROLE)
    a.I('v_or_b32 v251, 0x20000000, v251')
    a.I('buffer_store_dword v251, v252, %s, 0 offen sc1', DBG)
    a.label('K_exit')
    a.I('s_endpgm')
    a.label('K_rec')
    rec.gen_rec(a, cfg)
    a.label('K_end')
    errs = a.verify_edges()
    for e in errs:
        print('HAZARD', e, file=sys.stderr)
    k = KNAME + '_kernel'
    ref = open('cdna_kernels/%s.s.ref' % KNAME).read().split('\n')
    hdr = '\n'.join(l for l in ref[:17] if l.startswith(';') and '@launch' not in l) + '\n'
    hdr += '; @launch grid=(256,1,1) block=(256,1,1) lds=163840\n.amdgcn_target "amdgcn-amd-amdhsa--gfx950"\n.text\n.globl %s\n.p2align 8\n.type %s,@function\n%s:\n' % (k, k, k)
    ftr = '''.section .rodata,"a"
.p2align 6
.amdhsa_kernel %s
  .amdhsa_next_free_vgpr 512
  .amdhsa_next_free_sgpr 102
  .amdhsa_accum_offset 256
  .amdhsa_group_segment_fixed_size 0
  .amdhsa_kernarg_size 112
  .amdhsa_user_sgpr_count 2
  .amdhsa_user_sgpr_kernarg_segment_ptr 1
  .amdhsa_system_sgpr_workgroup_id_x 1
  .amdhsa_float_denorm_mode_32 3
.end_amdhsa_kernel
''' % k
    return hdr + a.text() + ftr


if __name__ == '__main__':
    cfg = dict(fast=True, kvflags=1, both_modes=1, npre=5, d0=4, d1=5, d2=2, pgap=3, b3=1, warm128=1, pubpos=0, dbl1=1, rgap=3, codepf=0, wnt=0, word=1)
    for arg in sys.argv[2:]:
        k, v = arg.split('=')
        cfg[k] = int(v)
    open(sys.argv[1], 'w').write(build(cfg))
```

```python
from asmlib import *
from common import *
from rec import srd, f32bits

WS = 's[%d:%d]' % (S_WS, S_WS + 3)
DBG = 's[%d:%d]' % (S_DBG, S_DBG + 3)
DP = ' row_mask:0xf bank_mask:0xf'
sT = 84
sSpin = 83
SPIN_MAX = 0x400000


BST = False
GI = 0
HALF = 1
GSL = 0
SL1, SL2 = 2, 2
DBGT = False


def dbg_time(a, dword, invert=False, V=248):
    if not DBGT:
        return
    a.I('s_memrealtime s[100:101]')
    a.I('s_waitcnt lgkmcnt(0)')
    if invert:
        a.I('s_not_b32 s100, s100')
    a.I('s_mov_b64 exec, 1')
    a.I('v_mov_b32 v%d, %d', V, dword * 4)
    a.I('v_mov_b32 v%d, s100', V + 1)
    a.I('buffer_atomic_umax v%d, v%d, %s, 0 offen', V + 1, V, DBG)
    a.I('s_mov_b64 exec, -1')

HOLD = 0


def bstamp(a, idx, V=14):
    if not BST:
        return
    lab = a.newlabel('BS')
    a.I('s_cmp_lg_u32 s%d, 0', S_WAVE)
    a.I('s_cbranch_scc1 %s', lab)
    a.I('s_memrealtime s[100:101]')
    a.I('s_lshl_b32 s99, s2, 6')
    a.I('s_add_u32 s99, s99, 0x%x', WS_DBG + 0x90000 + idx * 4)
    a.I('s_waitcnt lgkmcnt(0)')
    a.I('s_mov_b64 exec, 1')
    a.I('v_mov_b32 v%d, 0', V)
    a.I('v_mov_b32 v%d, s100', V + 1)
    a.I('buffer_store_dword v%d, v%d, %s, s99 offen', V + 1, V, WS)
    a.I('v_mov_b32 v%d, s%d', V + 1, S_ROLE)
    a.I('buffer_store_dword v%d, v%d, %s, s99 offen offset:32', V + 1, V, WS)
    a.I('s_mov_b64 exec, -1')
    a.label(lab)
    a.vm_n -= 2


def spin(a, fail='B_fail'):
    a.I('s_add_u32 s%d, s%d, 1', sSpin, sSpin)
    a.I('s_cmp_gt_u32 s%d, 0x%x', sSpin, SPIN_MAX)
    a.I('s_cbranch_scc1 %s', fail)


def wave_allsum(a, regs, tmp):
    for sh in (1, 2, 4, 8):
        for r in regs:
            a.I('v_add_f32_dpp v%d, v%d, v%d row_ror:%d' + DP, r, r, r, sh)
    for op in ('v_permlane16_swap_b32', 'v_permlane32_swap_b32'):
        for r, t in zip(regs, tmp):
            a.I('v_mov_b32 v%d, v%d', t, r)
        for r, t in zip(regs, tmp):
            a.I('%s v%d, v%d', op, r, t)
        for r, t in zip(regs, tmp):
            a.I('v_add_f32 v%d, v%d, v%d', r, r, t)


def rnd_bf16(a, r):
    a.I('v_cvt_pk_bf16_f32 v%d, v%d, v%d', r, r, r)
    a.I('v_and_b32 v%d, 0xffff0000, v%d', r, r)


def ln_issue(a, srow, B=200):
    a.I('v_and_b32 v%d, 63, v0', B + 8)
    a.I('v_lshlrev_b32 v%d, 4, v%d', B + 8, B + 8)
    a.I('buffer_load_dwordx4 v[%d:%d], v%d, s[%d:%d], s%d offen', B, B + 3, B + 8, S_W, S_W + 3, srow)
    return a.I('buffer_load_dwordx4 v[%d:%d], v%d, s[%d:%d], s%d offen offset:1024', B + 4, B + 7, B + 8, S_W, S_W + 3, srow)


def ln_compute(a, tok, srow, B=200):
    X = [B + 10, B + 18]
    S = [B + 26, B + 27]
    TM = [B + 28, B + 29]
    MB = [B + 30, B + 31]
    D = [B + 32, B + 40]
    if tok:
        a.wait(tok)
    for r in range(2):
        for k in range(4):
            a.I('v_lshlrev_b32 v%d, 16, v%d', X[r] + 2 * k, B + 4 * r + k)
            a.I('v_and_b32 v%d, 0xffff0000, v%d', X[r] + 2 * k + 1, B + 4 * r + k)
    for r in range(2):
        a.I('v_add_f32 v%d, v%d, v%d', S[r], X[r], X[r] + 1)
        for k in range(2, 8):
            a.I('v_add_f32 v%d, v%d, v%d', S[r], S[r], X[r] + k)
    wave_allsum(a, S, TM)
    for r in range(2):
        a.I('v_mul_f32 v%d, 0x%x, v%d', MB[r], f32bits(1.0 / 512), S[r])
    for r in range(2):
        for k in range(8):
            a.I('v_sub_f32 v%d, v%d, v%d', D[r] + k, X[r] + k, MB[r])
        a.I('v_mul_f32 v%d, v%d, v%d', S[r], D[r], D[r])
        for k in range(1, 8):
            a.I('v_fmac_f32 v%d, v%d, v%d', S[r], D[r] + k, D[r] + k)
    wave_allsum(a, S, TM)
    for r in range(2):
        a.I('v_mul_f32 v%d, 0x%x, v%d', S[r], f32bits(1.0 / 512), S[r])
        rnd_bf16(a, S[r])
        a.I('v_add_f32 v%d, 0x%x, v%d', S[r], f32bits(1e-5), S[r])
        rnd_bf16(a, S[r])
        a.I('v_sqrt_f32 v%d, v%d', S[r], S[r])
        rnd_bf16(a, S[r])
        a.I('v_rcp_f32 v%d, v%d', S[r], S[r])
        rnd_bf16(a, MB[r])
    for r in range(2):
        for k in range(4):
            a.I('v_sub_f32 v%d, v%d, v%d', D[r] + 2 * k, X[r] + 2 * k, MB[r])
            a.I('v_sub_f32 v%d, v%d, v%d', D[r] + 2 * k + 1, X[r] + 2 * k + 1, MB[r])
            a.I('v_cvt_pk_bf16_f32 v%d, v%d, v%d', TM[r], D[r] + 2 * k, D[r] + 2 * k + 1)
            a.I('v_lshlrev_b32 v%d, 16, v%d', D[r] + 2 * k, TM[r])
            a.I('v_and_b32 v%d, 0xffff0000, v%d', D[r] + 2 * k + 1, TM[r])
            a.I('v_mul_f32 v%d, v%d, v%d', D[r] + 2 * k, D[r] + 2 * k, S[r])
            a.I('v_mul_f32 v%d, v%d, v%d', D[r] + 2 * k + 1, D[r] + 2 * k + 1, S[r])
            a.I('v_cvt_pk_bf16_f32 v%d, v%d, v%d', B + 4 * r + k, D[r] + 2 * k, D[r] + 2 * k + 1)
    a.I('buffer_store_dwordx4 v[%d:%d], v%d, %s, s%d offen sc1', B, B + 3, B + 8, WS, srow)
    return a.I('buffer_store_dwordx4 v[%d:%d], v%d, %s, s%d offen offset:1024 sc1', B + 4, B + 7, B + 8, WS, srow)


def wait_dbg(a, dword, minval, V=250, fail='B_fail', sleep=2):
    lab = a.newlabel('WD')
    a.I('v_mov_b32 v%d, %d', V, dword * 4)
    a.I('s_mov_b32 s%d, 0', sSpin)
    a.label(lab)
    a.I('buffer_load_dword v%d, v%d, %s, 0 offen sc1', V + 1, V, DBG)
    spin(a, fail)
    a.I('s_waitcnt vmcnt(0)')
    a.I('v_readfirstlane_b32 s%d, v%d', sT, V + 1)
    a.I('s_cmp_ge_u32 s%d, %d', sT, minval)
    done = a.newlabel('WDd')
    a.I('s_cbranch_scc1 %s', done)
    a.I('s_sleep %d', sleep)
    a.I('s_branch %s', lab)
    a.label(done)


def flag_store(a, soff, V=250, val=1):
    a.I('s_mov_b64 exec, 1')
    a.I('v_mov_b32 v%d, 0', V)
    a.I('v_mov_b32 v%d, %s', V + 1, str(val))
    a.I('buffer_store_dword v%d, v%d, %s, s%d offen sc1', V + 1, V, WS, soff)
    a.I('s_mov_b64 exec, -1')


sSeg, sStride, sSlice, sCol, sOut, sSrc, sBuf, sFlagPrev, sHave = 64, 65, 66, 67, 68, 69, 70, 71, 72
sFlagBase = 73
sPermLo, sPermHi = 95, 96
vLane, vN, vG, vL16, vSrc, vWa, vWb = 1, 2, 3, 4, 5, 6, 7
FR = 16
ACC = 48
OUT = 80
WB = 100


def lane_consts(a):
    a.I('v_and_b32 v%d, 63, v0', vLane)
    a.I('v_and_b32 v%d, 15, v%d', vN, vLane)
    a.I('v_lshrrev_b32 v%d, 4, v%d', vG, vLane)
    a.I('v_lshlrev_b32 v%d, 4, v%d', vL16, vLane)
    a.I('s_mov_b32 s%d, 0x05040100', sPermLo)
    a.I('s_mov_b32 s%d, 0x07060302', sPermHi)


def gemm_weights(a, ffn):
    stride = 3584 if ffn else 8192
    a.I('s_mov_b32 s%d, %d', sT, stride * 8)
    a.I('v_mul_lo_u32 v%d, v%d, s%d', vWa, vG, sT)
    a.I('v_lshl_add_u32 v%d, v%d, %d, v%d', vWa, vN, 2 if ffn else 3, vWa)
    NB = 3
    toks = {}

    def issue(g):
        b = WB + 32 * (g % NB)
        for h in range(2):
            ks = 2 * g + h
            for kk in range(8):
                r = b + 16 * h + 2 * kk
                a.I('s_add_u32 s%d, s%d, %d', sT, sCol, (32 * ks + kk) * stride)
                if ffn:
                    a.I('buffer_load_dword v%d, v%d, s[%d:%d], s%d offen', r, vWa, S_W, S_W + 3, sT)
                    t = a.I('buffer_load_dword v%d, v%d, s[%d:%d], s%d offen', r + 1, vWa, S_W2, S_W2 + 3, sT)
                else:
                    t = a.I('buffer_load_dwordx2 v[%d:%d], v%d, s[%d:%d], s%d offen', r, r + 1, vWa, S_W, S_W + 3, sT)
        toks[g] = t

    def consume(g):
        b = WB + 32 * (g % NB)
        a.wait(toks[g])
        for h in range(2):
            ks = 2 * g + h
            for t in range(4):
                for p in range(4):
                    r0 = b + 16 * h + 4 * p + t // 2
                    a.I('v_perm_b32 v%d, v%d, v%d, s%d', OUT + 4 * t + p, r0 + 2, r0, sPermLo if t % 2 == 0 else sPermHi)
            for k in range(16):
                a.I('v_accvgpr_write_b32 a%d, v%d', 16 * ks + k, OUT + k)
    depth = 1 if ffn else 3
    for g in range(depth):
        issue(g)
    for g in range(8):
        if ffn and g + 1 < 8:
            issue(g + 1)
        consume(g)
        if not ffn and g + depth < 8:
            issue(g + depth)


def gemm_loop(a, kind):
    L = 'A%s_' % kind

    def dma(js=range(8)):
        for j in js:
            a.I('s_add_u32 m0, s%d, %d', sBuf, j * (1024 - 64))
            a.I('buffer_load_dwordx4 v%d, %s, s%d offen offset:%d sc1 lds', vSrc, WS, sSrc, j * 64)

    a.I('s_lshl_b32 s%d, s%d, 13', sBuf, S_WAVE)
    a.I('s_lshl_b32 s%d, s%d, 15', sSrc, sSeg)
    dma()
    a.I('s_mov_b32 s%d, 0', sHave)
    a.I('v_mov_b32 v%d, v%d', vWb, vL16)
    a.I('s_waitcnt vmcnt(0)')
    a.I('s_barrier')
    a.label(L + 'loop')
    a.I('s_add_u32 s%d, s%d, s%d', sT + 1, sSeg, sStride)
    a.I('s_min_u32 s%d, s%d, 63', sT + 1, sT + 1)
    a.I('s_lshl_b32 s%d, s%d, 15', sSrc, sT + 1)
    a.I('s_xor_b32 s%d, s%d, 32768', sBuf, sBuf)
    ft = {}

    def rd(ks):
        st = ks % 3
        a.I('ds_read_b128 v[%d:%d], v%d offset:%d', FR + 8 * st, FR + 8 * st + 3, vWb, ks * 1024)
        ft[ks] = a.I('ds_read_b128 v[%d:%d], v%d offset:%d', FR + 8 * st + 4, FR + 8 * st + 7, vWb, 16384 + ks * 1024)
    rd(0)
    rd(1)
    if not GI:
        dma()
    for ks in range(16):
        if ks + 2 < 16:
            rd(ks + 2)
        a.wait(ft[ks])
        st = ks % 3
        for T in range(2):
            for t in range(4):
                d = ACC + 16 * T + 4 * t
                x = vr(FR + 8 * st + 4 * T, 4)
                w = ar(16 * ks + 4 * t, 4)
                A, B = (x, w) if kind == 'v' else (w, x)
                a.I('v_mfma_f32_16x16x32_bf16 v[%d:%d], %s, %s, %s', d, d + 3, A, B, '0' if ks == 0 else vr(d, 4))
                if GI and ks < 4 and t == 1:
                    dma([2 * ks + T])
        if ks == 8:
            a.I('s_waitcnt vmcnt(8)')
            a.I('s_barrier')
            sk = a.newlabel(L + 'nf')
            a.I('s_or_b32 s%d, s%d, s%d', sT, S_WAVE, sHave)
            a.I('s_cmp_lg_u32 s%d, 0x100', sT)
            a.I('s_cbranch_scc1 %s', sk)
            flag_store(a, sFlagPrev)
            a.label(sk)
            a.vm_n -= 1
    a.I('s_waitcnt vmcnt(0)')
    a.I('s_barrier')
    if kind == 'qk':
        a.I('s_lshl_b32 s%d, s%d, 18', sT, sSeg)
        a.I('s_add_u32 s%d, s%d, s%d', sT, sT, sOut)
        a.I('s_add_u32 s%d, s%d, 4096', sT + 1, sT)
        for T in range(2):
            for i in range(4):
                for tp in range(2):
                    a.I('v_cvt_pk_bf16_f32 v%d, v%d, v%d', OUT + 8 * T + 2 * i + tp, ACC + 16 * T + 8 * tp + i, ACC + 16 * T + 8 * tp + 4 + i)
            for hf in range(2):
                a.I('buffer_store_dwordx4 v[%d:%d], v%d, %s, s%d offen offset:%d sc1', OUT + 8 * T + 4 * hf, OUT + 8 * T + 4 * hf + 3,
                    vL16, WS, sT + T, 1024 * hf)
    elif kind == 'v':
        a.I('s_lshl_b32 s%d, s%d, 18', sT, sSeg)
        a.I('s_add_u32 s%d, s%d, s%d', sT, sT, sOut)
        for t in range(4):
            for T in range(2):
                for i2 in range(2):
                    a.I('v_cvt_pk_bf16_f32 v%d, v%d, v%d', OUT + 4 * t + 2 * T + i2, ACC + 16 * T + 4 * t + 2 * i2, ACC + 16 * T + 4 * t + 2 * i2 + 1)
            a.I('buffer_store_dwordx4 v[%d:%d], v%d, %s, s%d offen offset:%d sc1', OUT + 4 * t, OUT + 4 * t + 3, vL16, WS, sT, 1024 * t)
    else:
        a.I('s_mul_i32 s%d, s%d, %d', sT, sSeg, 2 * 56 * 1024)
        a.I('s_add_u32 s%d, s%d, s%d', sT, sT, sOut)
        a.I('s_add_u32 s%d, s%d, %d', sT + 1, sT, 56 * 1024)
        for T in range(2):
            for i in range(4):
                g0, g1, u0, u1 = [ACC + 16 * T + 4 * t + i for t in range(4)]
                a.I('v_cvt_pk_bf16_f32 v%d, v%d, v%d', g0, g0, g1)
                a.I('v_cvt_pk_bf16_f32 v%d, v%d, v%d', u0, u0, u1)
                a.I('v_and_b32 v%d, 0xffff0000, v%d', g1, g0)
                a.I('v_and_b32 v%d, 0xffff0000, v%d', u1, u0)
                a.I('v_lshlrev_b32 v%d, 16, v%d', g0, g0)
                a.I('v_lshlrev_b32 v%d, 16, v%d', u0, u0)
                a.I('v_mul_f32 v%d, v%d, v%d', g0, g0, u0)
                a.I('v_mul_f32 v%d, v%d, v%d', g1, g1, u1)
                a.I('v_cvt_pk_bf16_f32 v%d, v%d, v%d', OUT + 4 * T + i, g0, g1)
            a.I('buffer_store_dwordx4 v[%d:%d], v%d, %s, s%d offen sc1', OUT + 4 * T, OUT + 4 * T + 3, vL16, WS, sT + T)
    a.I('s_lshl_b32 s%d, s%d, %d', sT, sSeg, 6 if kind == 'h' else 5)
    a.I('s_add_u32 s%d, s%d, s%d', sFlagPrev, sT, sFlagBase)
    a.I('s_mov_b32 s%d, 0x100', sHave)
    a.I('v_xor_b32 v%d, 32768, v%d', vWb, vWb)
    if GSL:
        a.I('s_sleep %d', GSL)
    a.I('s_add_u32 s%d, s%d, s%d', sSeg, sSeg, sStride)
    a.I('s_cmp_lt_u32 s%d, 64', sSeg)
    a.I('s_cbranch_scc1 %sloop', L)
    a.I('s_waitcnt vmcnt(0)')
    a.I('s_barrier')
    sk = a.newlabel(L + 'nf')
    a.I('s_cmp_lg_u32 s%d, 0', S_WAVE)
    a.I('s_cbranch_scc1 %s', sk)
    flag_store(a, sFlagPrev)
    a.label(sk)
    a.I('s_branch A_done')


def wait_xn(a):
    wait_dbg(a, D_FINIT, NZERO, V=FR)
    lab = a.newlabel('WX')
    a.I('v_lshrrev_b32 v%d, 1, v%d', FR + 2, vL16)
    a.I('s_mov_b32 s%d, 0x%x', sT + 1, WS_FLAGS + FL_XN)
    a.I('s_mov_b32 s%d, 0', sSpin)
    a.label(lab)
    a.I('buffer_load_dwordx2 v[%d:%d], v%d, %s, s%d offen sc1', FR, FR + 1, FR + 2, WS, sT + 1)
    spin(a)
    a.I('s_waitcnt vmcnt(0)')
    a.I('v_min_u32 v%d, v%d, v%d', FR, FR, FR + 1)
    a.I('v_cmp_eq_u32 vcc, 0, v%d', FR)
    done = a.newlabel('WXd')
    a.I('s_cbranch_vccz %s', done)
    a.I('s_sleep 2')
    a.I('s_branch %s', lab)
    a.label(done)


def gen_phase_a(a):
    a.c('================ phase A: projections, ticket in s%d ================' % S_ROLE)
    lane_consts(a)
    a.I('v_lshlrev_b32 v%d, 10, v%d', vSrc, vN)
    a.I('v_lshl_add_u32 v%d, v%d, 4, v%d', vSrc, vG, vSrc)
    a.I('s_lshr_b32 s%d, s%d, 1', sT, S_WAVE)
    a.I('s_lshl_b32 s%d, s%d, 14', sT, sT)
    a.I('s_and_b32 s%d, s%d, 1', sT + 1, S_WAVE)
    a.I('s_lshl_b32 s%d, s%d, 9', sT + 1, sT + 1)
    a.I('s_add_u32 s%d, s%d, s%d', sT, sT, sT + 1)
    a.I('v_add_u32 v%d, s%d, v%d', vSrc, sT, vSrc)
    a.I('s_cmp_ge_u32 s%d, 218', S_ROLE)
    a.I('s_cbranch_scc1 A_done')
    a.I('s_cmp_ge_u32 s%d, 176', S_ROLE)
    a.I('s_cbranch_scc1 A_h')
    a.I('s_and_b32 s%d, s%d, 31', sSlice, S_ROLE)
    a.I('s_lshr_b32 s%d, s%d, 5', sSeg, S_ROLE)
    a.I('s_mov_b32 s%d, 4', sStride)
    a.I('s_cmp_lt_u32 s%d, 128', S_ROLE)
    a.I('s_cbranch_scc1 A_kv')
    a.I('s_sub_u32 s%d, s%d, 128', sT, S_ROLE)
    a.I('s_and_b32 s%d, s%d, 15', sSlice, sT)
    a.I('s_add_u32 s%d, s%d, 32', sSlice, sSlice)
    a.I('s_lshr_b32 s%d, s%d, 4', sSeg, sT)
    a.I('s_mov_b32 s%d, 3', sStride)
    if HOLD:
        wait_dbg(a, D_WDONE, HOLD, V=FR, sleep=16)
    a.label('A_kv')
    a.I('s_and_b32 s%d, s%d, 15', sT, sSlice)
    a.I('s_lshl_b32 s%d, s%d, 9', sCol, sT)
    a.I('s_lshl_b32 s%d, s%d, 7', sT + 1, S_WAVE)
    a.I('s_add_u32 s%d, s%d, s%d', sCol, sCol, sT + 1)
    a.I('s_lshl_b32 s%d, s%d, 14', sOut, sT)
    a.I('s_lshr_b32 s%d, s%d, 1', sT + 1, S_WAVE)
    a.I('s_lshl_b32 s%d, s%d, 13', sT + 1, sT + 1)
    a.I('s_add_u32 s%d, s%d, s%d', sOut, sOut, sT + 1)
    a.I('s_and_b32 s%d, s%d, 1', sT + 2, S_WAVE)
    a.I('s_lshr_b32 s%d, s%d, 4', sT + 3, sSlice)
    a.I('s_lshl_b32 s%d, s%d, 11', sFlagBase, sT)
    a.I('s_add_u32 s%d, s%d, 0x%x', sFlagBase, sFlagBase, WS_FLAGS + FL_KV)
    a.I('s_cmp_eq_u32 s%d, 1', sT + 3)
    a.I('s_cbranch_scc1 A_v')
    a.I('s_lshl_b32 s%d, s%d, 11', sT + 2, sT + 2)
    a.I('s_add_u32 s%d, s%d, s%d', sOut, sOut, sT + 2)
    a.I('s_cmp_eq_u32 s%d, 0', sT + 3)
    a.I('s_cselect_b32 s%d, s%d, s%d', S_W, P_WK, P_WQ)
    a.I('s_cselect_b32 s%d, s%d, s%d', S_W + 1, P_WK + 1, P_WQ + 1)
    a.I('s_cselect_b32 s%d, 0, 8', sT + 1)
    a.I('s_cselect_b32 s%d, 0x%x, 0x%x' % (sT, WS_K >> 20, WS_Q >> 20))
    a.I('s_add_u32 s%d, s%d, s%d', sFlagBase, sFlagBase, sT + 1)
    a.I('s_lshl_b32 s%d, s%d, 20', sT, sT)
    a.I('s_add_u32 s%d, s%d, s%d', sOut, sOut, sT)
    a.I('s_and_b32 s%d, s%d, 0xffff', S_W + 1, S_W + 1)
    a.I('s_mov_b32 s%d, 4194304', S_W + 2)
    a.I('s_mov_b32 s%d, 0x20000', S_W + 3)
    a.I('s_branch A_w')
    a.label('A_v')
    a.I('s_lshl_b32 s%d, s%d, 12', sT + 2, sT + 2)
    a.I('s_add_u32 s%d, s%d, s%d', sOut, sOut, sT + 2)
    a.I('s_add_u32 s%d, s%d, 0x%x', sOut, sOut, WS_V)
    a.I('s_add_u32 s%d, s%d, 16', sFlagBase, sFlagBase)
    srd(a, S_W, P_WV, 4194304)
    a.label('A_w')
    gemm_weights(a, False)
    bstamp(a, 2)
    wait_xn(a)
    bstamp(a, 3)
    a.I('s_lshr_b32 s%d, s%d, 4', sT + 3, sSlice)
    a.I('s_cmp_eq_u32 s%d, 1', sT + 3)
    a.I('s_cbranch_scc1 A_vloop')
    gemm_loop(a, 'qk')
    a.label('A_vloop')
    gemm_loop(a, 'v')
    a.label('A_h')
    if HOLD:
        wait_dbg(a, D_WDONE, HOLD, V=FR, sleep=16)
    a.I('s_sub_u32 s%d, s%d, 176', sT, S_ROLE)
    a.I('s_mov_b32 s%d, 0', sSeg)
    for k in range(2):
        a.I('s_cmp_ge_u32 s%d, 14', sT)
        a.I('s_cselect_b32 s%d, 14, 0', sT + 1)
        a.I('s_sub_u32 s%d, s%d, s%d', sT, sT, sT + 1)
        a.I('s_lshr_b32 s%d, s%d, 3', sT + 1, sT + 1)
        a.I('s_add_u32 s%d, s%d, s%d', sSeg, sSeg, sT + 1)
    a.I('s_add_u32 s%d, s%d, 48', sSlice, sT)
    a.I('s_mov_b32 s%d, 3', sStride)
    a.I('s_lshl_b32 s%d, s%d, 2', sT, sT)
    a.I('s_add_u32 s%d, s%d, 0x%x', sFlagBase, sT, WS_FLAGS + FL_H)
    a.I('s_add_u32 s%d, s%d, s%d', sT, sT, S_WAVE)
    a.I('s_lshl_b32 s%d, s%d, 6', sCol, sT)
    a.I('s_lshl_b32 s%d, s%d, 10', sOut, sT)
    a.I('s_add_u32 s%d, s%d, 0x%x', sOut, sOut, WS_H)
    srd(a, S_W, P_WG, 512 * 3584)
    srd(a, S_W2, P_WU, 512 * 3584)
    gemm_weights(a, True)
    bstamp(a, 2)
    wait_xn(a)
    bstamp(a, 3)
    gemm_loop(a, 'h')
    a.label('A_done')
    bstamp(a, 4)


def poll_flags(a, vaddr, soff, nlanes, smin, V, sleep=2, far=None):
    lab = a.newlabel('PF')
    done = a.newlabel('PFd')
    a.I('s_mov_b32 s%d, 0', sSpin)
    a.I('s_mov_b64 exec, 0x%x', (1 << nlanes) - 1)
    a.label(lab)
    a.I('buffer_load_dword v%d, v%d, %s, s%d offen sc1', V, vaddr, WS, soff)
    spin(a)
    a.I('s_waitcnt vmcnt(0)')
    if smin is None:
        a.I('v_cmp_eq_u32 vcc, 0, v%d', V)
    else:
        a.I('v_cmp_gt_u32 vcc, s%d, v%d', smin, V)
    a.I('s_cbranch_vccz %s', done)
    a.I('s_sleep %d', sleep)
    if far:
        a.I('v_readfirstlane_b32 s%d, v%d', sT, V)
        a.I('s_add_u32 s%d, s%d, %d', sT, sT, far[0])
        a.I('s_cmp_ge_u32 s%d, s%d', sT, smin)
        a.I('s_cbranch_scc1 %s', lab)
        a.I('s_sleep %d', far[1])
    a.I('s_branch %s', lab)
    a.label(done)
    a.I('s_mov_b64 exec, -1')


NT1 = 96


def gen_t1(a):
    a.c('================ T1: token attention ================')
    sTask, sSegT, sHead, sBase, sB2, sNeed, sC = 64, 65, 66, 67, 68, 69, 70
    sMask = 72
    sLo = 80
    vKm, vVm, vF64, vF128, vNeg = 5, 6, 7, 8, 9
    TM = 10
    QF, KF, VF, KM, VM, S, P, O = 16, 48, 80, 112, 128, 144, 164, 176
    lane_consts(a)
    sC2, sNC = 92, sC
    a.I('s_mov_b32 s%d, 0x%x', sC2, f32bits(128 ** -0.5 * 1.4426950408889634))
    a.I('s_mov_b32 s%d, 0x%x', sC2 + 1, f32bits(128 ** -0.5 * 1.4426950408889634))
    a.I('s_mov_b32 s%d, 0x%x', sNC, f32bits(-128 ** -0.5 * 1.4426950408889634))
    a.I('v_mov_b32 v%d, 0x%x', vNeg, f32bits(-3.0e38))
    a.I('v_lshlrev_b32 v%d, 2, v%d', TM, vG)
    for i in range(4):
        a.I('v_add_u32 v%d, %d, v%d', TM + 1, i, TM)
        a.I('v_cmp_le_u32 s[%d:%d], v%d, v%d', sMask + 2 * i, sMask + 2 * i + 1, TM + 1, vN)
    a.I('s_mov_b32 s%d, -1', sLo)
    a.I('s_mov_b32 s%d, 0', sLo + 1)
    a.I('v_lshlrev_b32 v%d, 3, v%d', vF64, vLane)
    a.I('v_lshlrev_b32 v%d, 7, v%d', vF128, vLane)
    a.I('v_lshrrev_b32 v%d, 1, v%d', TM, vG)
    a.I('v_lshlrev_b32 v%d, 10, v%d', vKm, TM)
    a.I('v_and_b32 v%d, 1, v%d', TM, vG)
    a.I('v_lshl_add_u32 v%d, v%d, 7, v%d', vKm, TM, vKm)
    a.I('v_bfe_u32 v%d, v%d, 1, 2', TM, vN)
    a.I('v_lshl_add_u32 v%d, v%d, 8, v%d', vKm, TM, vKm)
    a.I('v_and_b32 v%d, 1, v%d', TM, vN)
    a.I('v_lshl_add_u32 v%d, v%d, 2, v%d', vKm, TM, vKm)
    a.I('v_add_u32 v%d, 4, v%d', vKm, vKm)
    a.I('v_lshrrev_b32 v%d, 3, v%d', TM, vN)
    a.I('v_lshlrev_b32 v%d, 10, v%d', vVm, TM)
    a.I('v_and_b32 v%d, 1, v%d', TM, vG)
    a.I('v_lshl_add_u32 v%d, v%d, 9, v%d', vVm, TM, vVm)
    a.I('v_and_b32 v%d, 7, v%d', TM, vN)
    a.I('v_lshl_add_u32 v%d, v%d, 5, v%d', vVm, TM, vVm)
    a.I('s_lshl_b32 s%d, s%d, 12', sT, S_WAVE)
    a.I('v_add_u32 v%d, s%d, v%d', vKm, sT, vKm)
    a.I('v_add_u32 v%d, s%d, v%d', vVm, sT, vVm)
    a.I('s_lshl_b32 s%d, s%d, 2', sTask, S_ROLE)
    a.I('s_add_u32 s%d, s%d, s%d', sTask, sTask, S_WAVE)
    sDone, sFlO = 71, 82
    a.I('s_mov_b32 s%d, 0', sDone)
    a.I('s_lshl_b32 s%d, s%d, 7', sFlO, S_ROLE)
    a.I('s_lshl_b32 s%d, s%d, 2', sT, S_WAVE)
    a.I('s_add_u32 s%d, s%d, s%d', sFlO, sFlO, sT)
    a.I('s_add_u32 s%d, s%d, 0x%x', sFlO, sFlO, WS_FLAGS + FL_O)
    bstamp(a, 5)
    a.label('T1_loop')
    a.I('s_lshr_b32 s%d, s%d, 5', sSegT, sTask)
    a.I('s_and_b32 s%d, s%d, 31', sHead, sTask)
    a.I('s_lshl_b32 s%d, s%d, 5', sT + 1, sSegT)
    a.I('s_lshr_b32 s%d, s%d, 1', sT + 2, sHead)
    a.I('s_lshl_b32 s%d, s%d, 11', sT + 2, sT + 2)
    a.I('s_add_u32 s%d, s%d, s%d', sT + 1, sT + 1, sT + 2)
    a.I('s_add_u32 s%d, s%d, 0x%x', sT + 1, sT + 1, WS_FLAGS + FL_KV)
    poll_flags(a, vF64, sT + 1, 3, None, TM, sleep=8)
    a.I('s_lshl_b32 s%d, s%d, 13', sBase, sTask)
    tk = {}
    for nm, R, W0 in (('k', KF, WS_K), ('q', QF, WS_Q), ('v', VF, WS_V)):
        a.I('s_add_u32 s%d, s%d, 0x%x', sT + 1, sBase, W0)
        a.I('s_add_u32 s%d, s%d, 0x%x', sT + 2, sBase, W0 + 4096)
        for f in range(8):
            tk[nm, f] = a.I('buffer_load_dwordx4 v[%d:%d], v%d, %s, s%d offen offset:%d sc1', R + 4 * f, R + 4 * f + 3, vL16, WS,
                            sT + 1 + f // 4, (f % 4) * 1024)
    a.wait(tk['q', 7])
    for (D, Tk, Tq) in ((S, 0, 0), (S + 8, 0, 1), (S + 12, 1, 1)):
        for f in range(4):
            a.I('v_mfma_f32_16x16x32_bf16 v[%d:%d], %s, %s, %s', D, D + 3, vr(KF + 16 * Tk + 4 * f, 4), vr(QF + 16 * Tq + 4 * f, 4),
                '0' if f == 0 else vr(D, 4))
    a.I('s_add_u32 s%d, s%d, 1', sNeed, sSegT)
    a.I('s_lshl_b32 s%d, s%d, 9', sT + 1, sHead)
    a.I('s_add_u32 s%d, s%d, 0x%x', sT + 1, sT + 1, WS_FLAGS + FL_KM)
    for i in range(4):
        a.I('v_cndmask_b32 v%d, v%d, v%d, s[%d:%d]', S + i, vNeg, S + i, sMask + 2 * i, sMask + 2 * i + 1)
        a.I('v_cndmask_b32 v%d, v%d, v%d, s[%d:%d]', S + 12 + i, vNeg, S + 12 + i, sMask + 2 * i, sMask + 2 * i + 1)
    a.I('v_max3_f32 v%d, v%d, v%d, v%d', TM + 2, S, S + 1, S + 2)
    a.I('v_max_f32 v%d, v%d, v%d', TM + 2, TM + 2, S + 3)
    a.I('v_max3_f32 v%d, v%d, v%d, v%d', TM + 3, S + 8, S + 9, S + 10)
    a.I('v_max3_f32 v%d, v%d, v%d, v%d', TM + 3, TM + 3, S + 11, S + 12)
    a.I('v_max3_f32 v%d, v%d, v%d, v%d', TM + 3, TM + 3, S + 13, S + 14)
    a.I('v_max_f32 v%d, v%d, v%d', TM + 3, TM + 3, S + 15)
    for r in (S, S + 2, S + 8, S + 10, S + 12, S + 14):
        a.I('v_pk_mul_f32 v[%d:%d], v[%d:%d], s[%d:%d]', r, r + 1, r, r + 1, sC2, sC2 + 1)
    poll_flags(a, vF128, sT + 1, 4, sNeed, TM, sleep=SL1, far=(3, 60))
    bstamp(a, 2, V=250)
    a.I('s_lshl_b32 s%d, s%d, 12', sB2, sTask)
    a.I('s_add_u32 s%d, s%d, 0x%x', sB2, sB2, WS_VM)
    a.I('s_lshl_b32 m0, s%d, 12', S_WAVE)
    for k in range(4):
        a.I('buffer_load_dwordx4 v%d, %s, s%d offen offset:%d sc1 lds', vL16, WS, sB2, k * 1024)
    a.I('s_waitcnt vmcnt(0)')
    for f in range(4):
        o = ((f // 2) * 2048 + (f % 2) * 64) // 4
        if f == 2:
            a.I('v_add_u32 v%d, 2048, v%d', TM, vKm)
        for c in range(0, 4, 2):
            t = a.I('ds_read2_b32 v[%d:%d], v%d offset0:%d offset1:%d', KM + 4 * f + c, KM + 4 * f + c + 1, vKm if f < 2 else TM,
                    (f % 2) * 16 + c * 4, (f % 2) * 16 + c * 4 + 4)
        tk['km', f] = t
    a.I('v_add_u32 v%d, 2048, v%d', TM + 1, vVm)

    def rvm(tau):
        G, t = tau // 4, tau % 4
        o = (t // 2) * 4 + (t % 2) * 3
        tk['vm'] = a.I('ds_read2_b32 v[%d:%d], v%d offset0:%d offset1:%d', VM + 2 * tau, VM + 2 * tau + 1, vVm if G == 0 else TM + 1, o, o + 64)
    for f in range(4):
        a.wait(tk['km', f])
        for Tq, D in ((0, S + 4), (1, S + 16)):
            a.I('v_mfma_f32_16x16x32_bf16 v[%d:%d], %s, %s, %s', D, D + 3, vr(KM + 4 * f, 4), vr(QF + 16 * Tq + 4 * f, 4), '0' if f == 0 else vr(D, 4))
    for tau in range(8):
        rvm(tau)
    MX = [TM + 2, TM + 3]
    MT = [TM + 4, TM + 5]
    for Tq, D in ((0, S + 4), (1, S + 16)):
        a.I('v_max3_f32 v%d, v%d, v%d, v%d', MX[Tq], MX[Tq], D, D + 1)
        a.I('v_max3_f32 v%d, v%d, v%d, v%d', MX[Tq], MX[Tq], D + 2, D + 3)
    for op in ('v_permlane32_swap_b32', 'v_permlane16_swap_b32'):
        for Tq in range(2):
            a.I('v_mov_b32 v%d, v%d', MT[Tq], MX[Tq])
        for Tq in range(2):
            a.I('%s v%d, v%d', op, MX[Tq], MT[Tq])
        for Tq in range(2):
            a.I('v_max_f32 v%d, v%d, v%d', MX[Tq], MX[Tq], MT[Tq])
    for Tq, D in ((0, S + 4), (1, S + 16)):
        a.I('v_mul_f32 v%d, s%d, v%d', MX[Tq], sNC, MX[Tq])
        for i in range(4):
            a.I('v_cndmask_b32 v%d, v%d, v%d, s[%d:%d]', D + i, vNeg, D + i, sLo, sLo + 1)
    rng = {0: range(S, S + 8), 1: range(S + 8, S + 20)}
    for Tq in range(2):
        for r in ((S + 4, S + 6) if Tq == 0 else (S + 16, S + 18)):
            a.I('v_pk_mul_f32 v[%d:%d], v[%d:%d], s[%d:%d]', r, r + 1, r, r + 1, sC2, sC2 + 1)
        for r in list(rng[Tq])[::2]:
            a.I('v_pk_add_f32 v[%d:%d], v[%d:%d], v[%d:%d] op_sel:[0,%d] op_sel_hi:[1,%d]', r, r + 1, r, r + 1, MX[0], MX[1], Tq, Tq)
        for r in rng[Tq]:
            a.I('v_exp_f32 v%d, v%d', r, r)
    a.I('v_cvt_pk_bf16_f32 v%d, v%d, v%d', P, S, S + 1)
    a.I('v_cvt_pk_bf16_f32 v%d, v%d, v%d', P + 1, S + 2, S + 3)
    a.I('v_mov_b32 v%d, 0', P + 2)
    a.I('v_mov_b32 v%d, 0', P + 3)
    for k in range(4):
        a.I('v_cvt_pk_bf16_f32 v%d, v%d, v%d', P + 4 + k, S + 8 + 2 * k, S + 9 + 2 * k)
    for Tq, D in ((0, S + 4), (1, S + 16)):
        a.I('v_cvt_pk_bf16_f32 v%d, v%d, v%d', P + 8 + 2 * Tq, D, D + 1)
        a.I('v_cvt_pk_bf16_f32 v%d, v%d, v%d', P + 9 + 2 * Tq, D + 2, D + 3)
    for Tq in range(2):
        for tau in range(8):
            D = O + 32 * Tq + 4 * tau
            a.I('v_mfma_f32_16x16x32_bf16 v[%d:%d], %s, %s, 0', D, D + 3, vr(VF + 4 * tau, 4), vr(P + 4 * Tq, 4))
            if Tq == 0:
                k = tau
                if k == 0:
                    a.I('v_add_f32 v%d, v%d, v%d', MX[0], S, S + 1)
                    a.I('v_add_f32 v%d, v%d, v%d', MX[1], S + 8, S + 9)
                elif k < 7:
                    a.I('v_add_f32 v%d, v%d, v%d', MX[0], MX[0], S + 1 + k)
                    a.I('v_add_f32 v%d, v%d, v%d', MX[1], MX[1], S + 9 + k)
                else:
                    a.I('v_add_f32 v%d, v%d, v%d', MX[1], MX[1], S + 16)
                    a.I('v_add_f32 v%d, v%d, v%d', MX[1], MX[1], S + 17)
            elif tau == 0:
                a.I('v_add_f32 v%d, v%d, v%d', MX[1], MX[1], S + 18)
                a.I('v_add_f32 v%d, v%d, v%d', MX[1], MX[1], S + 19)
    a.wait(tk['vm'])
    for Tq in range(2):
        for tau in range(8):
            D = O + 32 * Tq + 4 * tau
            a.I('v_mfma_f32_16x16x16_bf16 v[%d:%d], %s, %s, %s', D, D + 3, vr(VM + 2 * tau, 2), vr(P + 8 + 2 * Tq, 2), vr(D, 4))
    for op in ('v_permlane32_swap_b32', 'v_permlane16_swap_b32'):
        for Tq in range(2):
            a.I('v_mov_b32 v%d, v%d', MT[Tq], MX[Tq])
        for Tq in range(2):
            a.I('%s v%d, v%d', op, MX[Tq], MT[Tq])
        for Tq in range(2):
            a.I('v_add_f32 v%d, v%d, v%d', MX[Tq], MX[Tq], MT[Tq])
    for Tq in range(2):
        a.I('v_rcp_f32 v%d, v%d', MX[Tq], MX[Tq])
    bstamp(a, 3, V=250)
    a.I('s_add_u32 s%d, s%d, 0x%x', sT + 1, sBase, WS_O)
    a.I('s_add_u32 s%d, s%d, 0x%x', sT + 2, sBase, WS_O + 4096)
    for Tq in range(2):
        for G in range(2):
            B = O + 32 * Tq + 16 * G
            for r in range(0, 16, 2):
                a.I('v_pk_mul_f32 v[%d:%d], v[%d:%d], v[%d:%d] op_sel:[0,%d] op_sel_hi:[1,%d]', B + r, B + r + 1, B + r, B + r + 1, MX[0], MX[1], Tq, Tq)
            PK = KF + 16 * Tq + 8 * G
            for i in range(4):
                for tp in range(2):
                    a.I('v_cvt_pk_bf16_f32 v%d, v%d, v%d', PK + 2 * i + tp, B + 8 * tp + i, B + 8 * tp + 4 + i)
            for hf in range(2):
                a.I('buffer_store_dwordx4 v[%d:%d], v%d, %s, s%d offen offset:%d sc1', PK + 4 * hf, PK + 4 * hf + 3, vL16, WS, sT + 1 + Tq,
                    G * 2048 + hf * 1024)
    a.I('s_add_u32 s%d, s%d, 1', sDone, sDone)
    a.I('s_waitcnt vmcnt(0)')
    flag_store(a, sFlO, V=TM, val='s%d' % sDone)
    a.I('s_add_u32 s%d, s%d, %d', sTask, sTask, NT1 * 4)
    a.I('s_cmp_lt_u32 s%d, 2048', sTask)
    a.I('s_cbranch_scc1 T1_loop')
    bstamp(a, 6)
    a.I('s_endpgm')


def gen_t2(a):
    a.c('================ T2: output projection + FFN down + final ================')
    sTile, sSl, sSegT, sPar, sOB, sXO, sL2e = 64, 65, 66, 67, 68, 69, 70
    vW1, vW2, vF4, vLw, vLr, vXo = 5, 6, 7, 8, 9, 10
    TM = 12
    SA, FA = 20, 28
    BUF = 36
    XR = 132
    HW = 144
    lane_consts(a)
    a.I('s_and_b32 s%d, s%d, 15', sSl, S_ROLE)
    a.I('s_lshr_b32 s%d, s%d, 4', sTile, S_ROLE)
    a.I('s_mov_b32 s%d, 0x%x', sL2e, f32bits(-1.4426950408889634))
    a.I('v_lshlrev_b32 v%d, 14, v%d', vW1, vG)
    a.I('v_lshl_add_u32 v%d, v%d, 2, v%d', vW1, vN, vW1)
    a.I('v_lshlrev_b32 v%d, 13, v%d', vW2, vG)
    a.I('v_lshl_add_u32 v%d, v%d, 2, v%d', vW2, vN, vW2)
    a.I('v_lshlrev_b32 v%d, 2, v%d', vF4, vLane)
    vFO, sNeedO = 11, 71
    a.I('v_lshrrev_b32 v%d, 2, v%d', vFO, vLane)
    a.I('v_lshlrev_b32 v%d, 7, v%d', vFO, vFO)
    a.I('v_and_b32 v%d, 3, v%d', TM, vLane)
    a.I('v_lshl_add_u32 v%d, v%d, 2, v%d', vFO, TM, vFO)
    a.I('s_lshl_b32 s%d, s%d, 12', sT, S_WAVE)
    a.I('v_add_u32 v%d, s%d, v%d', vLw, sT, vL16)
    a.I('s_lshl_b32 s%d, s%d, 10', sT, S_WAVE)
    a.I('v_add_u32 v%d, s%d, v%d', vLr, sT, vL16)
    a.I('v_lshlrev_b32 v%d, 10, v%d', vXo, vN)
    a.I('v_lshl_add_u32 v%d, v%d, 4, v%d', vXo, vG, vXo)
    a.I('s_lshl_b32 s%d, s%d, 6', sT, sSl)
    a.I('s_lshl_b32 s%d, s%d, 2', sT + 1, S_WAVE)
    a.I('s_add_u32 s%d, s%d, s%d', sT, sT, sT + 1)
    a.I('v_add_u32 v%d, s%d, v%d', vXo, sT, vXo)
    srd(a, S_W, P_WO, 4194304)
    srd(a, S_W2, P_WD, 1792 * 1024)
    sWo, sWd = sT + 2, sT + 3
    a.I('s_lshl_b32 s%d, s%d, 6', sT, sSl)
    a.I('s_lshl_b32 s%d, s%d, 20', sWo, S_WAVE)
    a.I('s_add_u32 s%d, s%d, s%d', sWo, sWo, sT)
    a.I('s_mul_i32 s%d, s%d, %d', sWd, S_WAVE, 14 * 32 * 1024)
    a.I('s_add_u32 s%d, s%d, s%d', sWd, sWd, sT)
    frs = [('d', j) for j in range(14)] + [('o', j) for j in range(32)]
    GS = 2
    groups = [frs[i:i + GS] for i in range(0, len(frs), GS)]
    NB = 3
    toks = {}

    def issue(gi):
        b = BUF + 16 * (gi % (NB + 1))
        for q, (kind, j) in enumerate(groups[gi]):
            for e in range(8):
                if kind == 'o':
                    row = (j // 4) * 128 + 64 * ((j % 4) // 2) + 8 * (j % 2) + e
                    a.I('s_add_u32 s%d, s%d, %d', sT, sWo, row * 1024)
                    t = a.I('buffer_load_dword v%d, v%d, s[%d:%d], s%d offen', b + 8 * q + e, vW1, S_W, S_W + 3, sT)
                else:
                    a.I('s_add_u32 s%d, s%d, %d', sT, sWd, (32 * j + e) * 1024)
                    t = a.I('buffer_load_dword v%d, v%d, s[%d:%d], s%d offen', b + 8 * q + e, vW2, S_W2, S_W2 + 3, sT)
        toks[gi] = t

    def consume(gi):
        b = BUF + 16 * (gi % (NB + 1))
        a.wait(toks[gi])
        for q, (kind, j) in enumerate(groups[gi]):
            for t in range(2):
                for p in range(4):
                    dst = HW + 8 * j + 4 * t + p if kind == 'd' else TM + 4 * t + p
                    a.I('v_perm_b32 v%d, v%d, v%d, s%d', dst, b + 8 * q + 2 * p + 1, b + 8 * q + 2 * p, sPermLo if t == 0 else sPermHi)
            if kind == 'o':
                for k in range(8):
                    a.I('v_accvgpr_write_b32 a%d, v%d', 8 * j + k, TM + k)
    for gi in range(NB):
        issue(gi)
    for gi in range(len(groups)):
        if gi + NB < len(groups):
            issue(gi + NB)
        consume(gi)
    srd(a, S_W, P_X, 2097152)
    srd(a, S_W2, P_OUT, 2097152)
    sTask, sEx = sPar, 72
    a.I('s_mov_b32 s%d, s%d', sTask, sTile)
    bstamp(a, 5)
    a.label('T2_loop')
    if HALF:
        a.I('s_lshr_b32 s%d, s%d, 1', sTile, sTask)
        a.I('s_bitcmp1_b32 s%d, 0', sTask)
        a.I('s_mov_b32 s%d, 0x00ff00ff', sEx)
        a.I('s_cselect_b32 s%d, 0xff00ff00, s%d', sEx, sEx)
        a.I('s_mov_b32 s%d, s%d', sEx + 1, sEx)
    a.I('s_lshr_b32 s%d, s%d, 1', sSegT, sTile)
    a.I('s_lshl_b32 s%d, s%d, 6', sT + 1, sSegT)
    a.I('s_add_u32 s%d, s%d, 0x%x', sT + 1, sT + 1, WS_FLAGS + FL_H)
    poll_flags(a, vF4, sT + 1, 14, None, TM, sleep=8)
    a.I('s_mul_i32 s%d, s%d, %d', sT + 1, sTile, 56 * 1024)
    a.I('s_mul_i32 s%d, s%d, %d', sT + 2, S_WAVE, 14 * 1024)
    a.I('s_add_u32 s%d, s%d, s%d', sT + 1, sT + 1, sT + 2)
    a.I('s_add_u32 s%d, s%d, 0x%x', sT + 1, sT + 1, WS_H)
    ht = []
    if HALF:
        a.I('s_mov_b64 exec, s[%d:%d]', sEx, sEx + 1)
    for j in range(14):
        if j and j % 4 == 0:
            a.I('s_add_u32 s%d, s%d, 4096', sT + 1, sT + 1)
        ht.append(a.I('buffer_load_dwordx4 v[%d:%d], v%d, %s, s%d offen offset:%d sc1', BUF + 4 * j, BUF + 4 * j + 3, vL16, WS, sT + 1, (j % 4) * 1024))
    a.I('s_lshl_b32 s%d, s%d, 14', sXO, sTile)
    a.I('buffer_load_dword v%d, v%d, s[%d:%d], s%d offen', XR, vXo, S_W, S_W + 3, sXO)
    if HALF:
        a.I('s_mov_b64 exec, -1')
    for j in range(14):
        a.wait(ht[j])
        for t in range(2):
            a.I('v_mfma_f32_16x16x32_bf16 v[%d:%d], %s, %s, %s', FA + 4 * t, FA + 4 * t + 3, vr(HW + 8 * j + 4 * t, 4), vr(BUF + 4 * j, 4),
                '0' if j == 0 else vr(FA + 4 * t, 4))
    assert NT1 == 96
    a.I('s_mul_i32 s%d, s%d, 43', sNeedO, sSegT)
    a.I('s_lshr_b32 s%d, s%d, 9', sNeedO, sNeedO)
    a.I('s_mul_i32 s%d, s%d, 12', sT + 1, sNeedO)
    a.I('s_sub_u32 s%d, s%d, s%d', sT + 1, sSegT, sT + 1)
    a.I('s_lshl_b32 s%d, s%d, 10', sT + 1, sT + 1)
    a.I('s_lshl_b32 s%d, s%d, 8', sT + 2, S_WAVE)
    a.I('s_add_u32 s%d, s%d, s%d', sT + 1, sT + 1, sT + 2)
    a.I('s_add_u32 s%d, s%d, 0x%x', sT + 1, sT + 1, WS_FLAGS + FL_O)
    a.I('s_add_u32 s%d, s%d, 1', sNeedO, sNeedO)
    a.I('s_lshl_b32 s%d, s%d, 18', sOB, sSegT)
    a.I('s_lshl_b32 s%d, s%d, 16', sT + 2, S_WAVE)
    a.I('s_add_u32 s%d, s%d, s%d', sOB, sOB, sT + 2)
    a.I('s_and_b32 s%d, s%d, 1', sT + 2, sTile)
    a.I('s_lshl_b32 s%d, s%d, 12', sT + 2, sT + 2)
    a.I('s_add_u32 s%d, s%d, s%d', sOB, sOB, sT + 2)
    a.I('s_add_u32 s%d, s%d, 0x%x', sOB, sOB, WS_O)
    for t in range(2):
        for i in range(4):
            a.I('ds_write_b32 v%d, v%d offset:%d', vLw, FA + 4 * t + i, i * 1024 + 8 + 4 * t)
    poll_flags(a, vFO, sT + 1, 8, sNeedO, TM, sleep=SL2)
    bstamp(a, 2, V=134)
    ot = {}

    def oload(j):
        if j % 4 == 0:
            a.I('s_add_u32 s%d, s%d, %d', sT + 1, sOB, (j // 4) * 8192)
        r = BUF + 4 * (j % 24)
        ot[j] = a.I('buffer_load_dwordx4 v[%d:%d], v%d, %s, s%d offen offset:%d sc1', r, r + 3, vL16, WS, sT + 1, (j % 4) * 1024)
    if HALF:
        a.I('s_mov_b64 exec, s[%d:%d]', sEx, sEx + 1)
    for j in range(24):
        oload(j)
    if HALF:
        a.I('s_mov_b64 exec, -1')
    for j in range(32):
        a.wait(ot[j])
        r = BUF + 4 * (j % 24)
        for t in range(2):
            a.I('v_mfma_f32_16x16x32_bf16 v[%d:%d], %s, %s, %s', SA + 4 * t, SA + 4 * t + 3, ar(8 * j + 4 * t, 4), vr(r, 4),
                '0' if j == 0 else vr(SA + 4 * t, 4))
        if j + 24 < 32:
            if HALF:
                a.I('s_mov_b64 exec, s[%d:%d]', sEx, sEx + 1)
            oload(j + 24)
            if HALF:
                a.I('s_mov_b64 exec, -1')
    bstamp(a, 3, V=134)
    if BST:
        a.I('s_nop 7')
    for t in range(2):
        for i in range(4):
            a.I('ds_write_b32 v%d, v%d offset:%d', vLw, SA + 4 * t + i, i * 1024 + 4 * t)
    a.I('s_waitcnt lgkmcnt(0)')
    a.I('s_barrier')
    R = BUF
    for w in range(4):
        a.I('ds_read_b128 v[%d:%d], v%d offset:%d', R + 4 * w, R + 4 * w + 3, vLr, w * 4096)
    a.I('v_xor_b32 v%d, 16384, v%d', vLw, vLw)
    a.I('v_xor_b32 v%d, 16384, v%d', vLr, vLr)
    a.I('s_waitcnt lgkmcnt(0)')
    for k in range(4):
        a.I('v_add_f32 v%d, v%d, v%d', R + k, R + k, R + 4 + k)
        a.I('v_add_f32 v%d, v%d, v%d', R + 8 + k, R + 8 + k, R + 12 + k)
    for k in range(4):
        a.I('v_add_f32 v%d, v%d, v%d', R + k, R + k, R + 8 + k)

    def unpack(dst, src):
        a.I('v_and_b32 v%d, 0xffff0000, v%d', dst + 1, src)
        a.I('v_lshlrev_b32 v%d, 16, v%d', dst, src)
    a.I('v_cvt_pk_bf16_f32 v%d, v%d, v%d', R, R, R + 1)
    a.I('v_cvt_pk_bf16_f32 v%d, v%d, v%d', R + 2, R + 2, R + 3)
    unpack(R, R)
    unpack(R + 2, R + 2)
    for k in range(2):
        a.I('v_mul_f32 v%d, s%d, v%d', R + 4 + k, sL2e, R + 2 + k)
    for k in range(2):
        a.I('v_exp_f32 v%d, v%d', R + 4 + k, R + 4 + k)
    for k in range(2):
        a.I('v_add_f32 v%d, 1.0, v%d', R + 4 + k, R + 4 + k)
    for k in range(2):
        a.I('v_rcp_f32 v%d, v%d', R + 4 + k, R + 4 + k)
    for k in range(2):
        a.I('v_mul_f32 v%d, v%d, v%d', R + 2 + k, R + 2 + k, R + 4 + k)
    a.I('v_cvt_pk_bf16_f32 v%d, v%d, v%d', R + 2, R + 2, R + 3)
    unpack(R + 2, R + 2)
    for k in range(2):
        a.I('v_mul_f32 v%d, v%d, v%d', R + k, R + k, R + 2 + k)
    a.I('v_cvt_pk_bf16_f32 v%d, v%d, v%d', R, R, R + 1)
    unpack(R, R)
    unpack(R + 2, XR)
    for k in range(2):
        a.I('v_add_f32 v%d, v%d, v%d', R + k, R + k, R + 2 + k)
    a.I('v_cvt_pk_bf16_f32 v%d, v%d, v%d', TM + 1, R, R + 1)
    if HALF:
        a.I('s_mov_b64 exec, s[%d:%d]', sEx, sEx + 1)
    a.I('buffer_store_dword v%d, v%d, s[%d:%d], s%d offen', TM + 1, vXo, S_W2, S_W2 + 3, sXO)
    if HALF:
        a.I('s_mov_b64 exec, -1')
        a.I('s_add_u32 s%d, s%d, 8', sTask, sTask)
        a.I('s_cmp_lt_u32 s%d, 256', sTask)
    else:
        a.I('s_add_u32 s%d, s%d, 8', sTile, sTile)
        a.I('s_cmp_lt_u32 s%d, 128', sTile)
    a.I('s_cbranch_scc1 T2_loop')
    dbg_time(a, 11, V=134)
    bstamp(a, 7)
    a.I('s_endpgm')
```

```python
import struct
from asmlib import *
from common import *

LKX, LX1, LX2, LMISC, LW = 0, 8192, 13312, 14336, 16384
GS, KS = 256, 1024
LM = 8192
LWSTRIDE = 18 * 2048

vM0, vIdx, vBias, vL16, vLW, vInSt, vM1, vMxSt = 0, 1, 2, 3, 4, 5, 6, 7
vVld, vKxSrc, vX1w, vX1rq, vX1rk, vX2w, vM2, vM3 = 8, 9, 10, 11, 12, 13, 14, 15
vWarm, vDummy, vSaveV, vT0 = 16, 17, 18, 20
MEM, ACC, VT, STG, WV = 24, 56, 80, 96, 144

sStep, sTag, sMxRd = 64, 65, 66
sRing = 88
sMxWr, sMxRst = 88, 90
sW10, sStampAddr = 68, 69
sRetry = 67
sIn = 70
sInLd, sInLd2 = 72, 73
sMxW = 74
sKx, sV, sKm, sVm, sVmPrev = 75, 76, 77, 78, 79
sHalf = 80
sC = 82
sSpin = 83
sT = 84
sM0a, sM0b = 92, 93
sFl = 94
sPermLo, sPermHi = 95, 96
sWarm = 97
sMxRd2 = 98
sKvf, sKvfMax = 73, 77
sPiece = 99
sMode = 63
sC2, sNC = 30, 82
sSel = 24


def f32bits(x):
    return struct.unpack('<I', struct.pack('<f', x))[0]


def mem(k):
    return MEM + 4 * k


def acc(i):
    return ACC + 4 * i


def slot(j):
    return STG + 8 * j


WO_ORDER = [('o', b, t, ks) for b in range(2) for t in range(4) for ks in range(2)]
WO_ORDER[1], WO_ORDER[2] = WO_ORDER[2], WO_ORDER[1]


def placement():
    P = {}
    lds = [('q', 0, 0), ('q', 1, 0), ('k', 0, 0), ('k', 1, 0), ('v', 0, 0), ('v', 1, 0)]
    lds += WO_ORDER[0:6] + WO_ORDER[10:16]
    for i, k in enumerate(lds):
        P[k] = ('l', i)
    rest = []
    for X in 'qkv':
        for kp in range(8):
            for t in range(2):
                if (X, t, kp) not in P:
                    rest.append((X, t, kp))
    rest += WO_ORDER[6:10]
    assert len(rest) == 46
    for n, k in enumerate(rest):
        P[k] = ('v', WV + 8 * n) if n < 14 else ('a', 8 * (n - 14))
    return P


PL = placement()


def breg(key):
    kind, r = PL[key]
    if kind == 'v':
        return vr(r, 8)
    if kind == 'a':
        return ar(r, 8)
    return vr(slot(r % 6), 8)


def d0_instr(m):
    return 32 * (m // 4) + 8 * (m % 2) + 2 * ((m % 4) // 2)


def srd(a, s, ptr, size):
    a.I('s_mov_b32 s%d, s%d', s, ptr)
    a.I('s_and_b32 s%d, s%d, 0xffff', s + 1, ptr + 1)
    a.I('s_mov_b32 s%d, 0x%x', s + 2, size)
    a.I('s_mov_b32 s%d, 0x20000', s + 3)


def stamp(a, cfg, idx):
    if not cfg.get('stamps'):
        return
    if cfg['stamps'] >= 2 and idx != 0:
        return
    if cfg['stamps'] == 4:
        return
    a.I('%s s[%d:%d]', 's_memrealtime' if cfg.get('rt') else 's_memtime', 32 + 2 * idx, 33 + 2 * idx)


def gen_rec(a, cfg):
    if cfg.get('stamps') == 3:
        orig_emit = a.emit
        cnt = dict(n=0, on=False)

        def emit(line):
            if line.startswith('R_goA:'):
                cnt['on'] = True
            if cnt['on'] and (line.startswith('v_smfmac') or line.startswith('v_mfma')):
                k = cnt['n'] - cfg['st0']
                if cnt['n'] >= 12 and k >= 0 and k % cfg['stp'] == 0 and k // cfg['stp'] < 9:
                    orig_emit('s_memtime s[%d:%d]' % (34 + 2 * (k // cfg['stp']), 35 + 2 * (k // cfg['stp'])))
                cnt['n'] += 1
            return orig_emit(line)
        a.emit = emit
    fast = cfg.get('fast', True)
    stf = '' if fast else ' sc1'
    nsteps = cfg.get('nsteps', 64)
    T0, T1, T2, T3 = vT0, vT0 + 1, vT0 + 2, vT0 + 3
    WS = 's[%d:%d]' % (S_WS, S_WS + 3)
    vLane = VT + 15
    vN, vG = T0, T1
    a.c('================ recurrence role: s%d = head ================' % S_ROLE)
    if cfg.get('hxor'):
        a.I('s_xor_b32 s%d, s%d, %d', S_ROLE, S_ROLE, cfg['hxor'])
    a.I('v_and_b32 v%d, 63, v0', vLane)
    a.I('v_lshlrev_b32 v%d, 4, v%d', vL16, vLane)
    a.I('v_and_b32 v%d, 15, v%d', vN, vLane)
    a.I('v_lshrrev_b32 v%d, 4, v%d', vG, vLane)
    a.I('s_mov_b32 s%d, 0xcccccccc', sHalf)
    a.I('s_mov_b32 s%d, 0xcccccccc', sHalf + 1)
    a.I('v_mov_b32 v%d, 0x4444', vIdx)
    a.I('v_mov_b32 v%d, 0xeeee', T2)
    a.I('v_cndmask_b32 v%d, v%d, v%d, s[%d:%d]', vIdx, vIdx, T2, sHalf, sHalf + 1)
    a.I('s_mov_b32 s%d, 0', sT)
    a.I('s_mov_b32 s%d, 0x33333333', sT + 1)
    a.I('v_mov_b32 v%d, 0', vBias)
    a.I('v_mov_b32 v%d, 0x%x', T2, f32bits(3.0e38))
    a.I('v_cndmask_b32 v%d, v%d, v%d, s[%d:%d]', vBias, vBias, T2, sT, sT + 1)
    a.I('s_mov_b32 s%d, 0x%x', sC2, f32bits(128 ** -0.5 * 1.4426950408889634))
    a.I('s_mov_b32 s%d, 0x%x', sC2 + 1, f32bits(128 ** -0.5 * 1.4426950408889634))
    a.I('s_mov_b32 s%d, 0x%x', sNC, f32bits(-128 ** -0.5 * 1.4426950408889634))
    a.I('s_mov_b32 s%d, 0x05040100', sPermLo)
    a.I('s_mov_b32 s%d, 0x07060302', sPermHi)
    for k, m in enumerate((0x000f000f, 0x00f000f0, 0xaaaaaaaa)):
        a.I('s_mov_b32 s%d, 0x%x', sSel + 2 * k, m)
        a.I('s_mov_b32 s%d, 0x%x', sSel + 2 * k + 1, m)
    a.I('s_mul_i32 s%d, s%d, %d', sT, S_WAVE, LWSTRIDE)
    a.I('s_add_u32 s%d, s%d, %d', sT, sT, LW)
    a.I('v_add_u32 v%d, s%d, v%d', vLW, sT, vL16)
    a.I('s_lshl_b32 s%d, s%d, 10', sT, S_WAVE)
    a.I('s_add_u32 s%d, s%d, 0x%x', sMxW, sT, WS_MEMX)
    a.I('s_add_u32 s%d, s%d, %d', sT, sT, LM)
    a.I('v_add_u32 v%d, s%d, v%d', vM0, sT, vL16)
    a.I('v_xor_b32 v%d, 1024, v%d', vM1, vM0)
    a.I('v_xor_b32 v%d, 2048, v%d', vM2, vM0)
    a.I('v_xor_b32 v%d, 3072, v%d', vM3, vM0)
    a.I('v_lshlrev_b32 v%d, 13, v%d', vInSt, vG)
    a.I('v_lshrrev_b32 v%d, 2, v%d', T2, vN)
    a.I('v_lshl_add_u32 v%d, v%d, 11, v%d', vInSt, T2, vInSt)
    a.I('v_and_b32 v%d, 3, v%d', T2, vN)
    a.I('v_lshl_add_u32 v%d, v%d, 4, v%d', vInSt, T2, vInSt)
    a.I('s_lshl_b32 s%d, s%d, 15', sT, S_WAVE)
    a.I('s_lshl_b32 s%d, s%d, 6', sT + 1, S_ROLE)
    a.I('s_add_u32 s%d, s%d, s%d', sT, sT, sT + 1)
    a.I('s_add_u32 s%d, s%d, 0x%x', sIn, sT, WS_INBOX)
    a.I('s_add_u32 s%d, s%d, 0x%x', sIn + 1, sT, WS_INBOX + 131072)
    sPi = sT + 4
    a.I('s_lshl_b32 s%d, s%d, 1', sPi, S_ROLE)
    a.I('s_and_b32 s%d, s%d, 1', sT, S_WAVE)
    a.I('s_add_u32 s%d, s%d, s%d', sPi, sPi, sT)
    a.I('s_lshr_b32 s%d, s%d, 1', sT, S_WAVE)
    a.I('s_lshl_b32 s%d, s%d, 6', sT, sT)
    a.I('s_add_u32 s%d, s%d, s%d', sPi, sPi, sT)
    a.I('s_mov_b32 s%d, s%d', sPiece, sPi)
    a.I('s_lshl_b32 s%d, s%d, 11', sT, sPi)
    a.I('s_add_u32 s%d, s%d, 0x%x', sInLd, sT, WS_INBOX)
    a.I('s_lshr_b32 s%d, s%d, 4', sT, sPi)
    a.I('s_lshl_b32 s%d, s%d, 10', sT, sT)
    a.I('s_bfe_u32 s%d, s%d, 0x20002', sT + 1, sPi)
    a.I('s_lshl_b32 s%d, s%d, 6', sT + 1, sT + 1)
    a.I('s_add_u32 s%d, s%d, s%d', sT, sT, sT + 1)
    a.I('s_and_b32 s%d, s%d, 3', sT + 1, sPi)
    a.I('s_lshl_b32 s%d, s%d, 8', sT + 1, sT + 1)
    a.I('s_add_u32 s%d, s%d, s%d', sT, sT, sT + 1)
    a.I('v_and_b32 v%d, 1, v%d', T2, vG)
    a.I('v_lshlrev_b32 v%d, 4, v%d', vMxSt, T2)
    a.I('v_bfe_u32 v%d, v%d, 1, 1', T2, vN)
    a.I('v_lshl_add_u32 v%d, v%d, 5, v%d', vMxSt, T2, vMxSt)
    a.I('v_and_b32 v%d, 1, v%d', T2, vN)
    a.I('v_lshl_add_u32 v%d, v%d, 3, v%d', vMxSt, T2, vMxSt)
    a.I('v_add_u32 v%d, s%d, v%d', vMxSt, sT, vMxSt)
    a.I('v_and_b32 v%d, 1, v%d', T2, vN)
    a.I('v_lshlrev_b32 v%d, 11, v%d', vVld, T2)
    a.I('v_lshrrev_b32 v%d, 1, v%d', T2, vG)
    a.I('v_lshl_add_u32 v%d, v%d, 8, v%d', vVld, T2, vVld)
    a.I('v_lshrrev_b32 v%d, 1, v%d', T2, vN)
    a.I('v_lshl_add_u32 v%d, v%d, 4, v%d', vVld, T2, vVld)
    a.I('v_and_b32 v%d, 1, v%d', T2, vG)
    a.I('v_lshlrev_b32 v%d, 2, v%d', T2, T2)
    a.I('v_sub_u32 v%d, v%d, v%d', vVld, vVld, T2)
    a.I('s_lshr_b32 s%d, s%d, 1', sT, S_WAVE)
    a.I('s_lshl_b32 s%d, s%d, 12', sT, sT)
    a.I('s_and_b32 s%d, s%d, 1', sT + 1, S_WAVE)
    a.I('s_lshl_b32 s%d, s%d, 7', sT + 1, sT + 1)
    a.I('s_add_u32 s%d, s%d, s%d', sT, sT, sT + 1)
    a.I('s_add_u32 s%d, s%d, 4', sT, sT)
    a.I('v_add_u32 v%d, s%d, v%d', vVld, sT, vVld)
    a.I('v_and_b32 v%d, 1, v%d', T2, vG)
    a.I('v_lshlrev_b32 v%d, 10, v%d', vKxSrc, T2)
    a.I('v_lshrrev_b32 v%d, 1, v%d', T2, vG)
    a.I('v_lshl_add_u32 v%d, v%d, 8, v%d', vKxSrc, T2, vKxSrc)
    a.I('v_lshl_add_u32 v%d, v%d, 4, v%d', vKxSrc, vN, vKxSrc)
    a.I('s_lshl_b32 s%d, s%d, 11', sM0a, S_WAVE)
    a.I('v_add_u32 v%d, s%d, v%d', vKxSrc, sM0a, vKxSrc)
    a.I('s_add_u32 s%d, s%d, %d', sM0a, sM0a, LKX)
    a.I('s_add_u32 s%d, s%d, %d', sM0b, sM0a, 1024 - 512)
    a.I('s_mov_b32 s%d, %d', sT + 1, GS)
    a.I('v_lshrrev_b32 v%d, 2, v%d', T2, vN)
    a.I('v_mul_lo_u32 v%d, v%d, s%d', vX1w, T2, sT + 1)
    a.I('v_lshl_add_u32 v%d, v%d, 5, v%d', vX1w, vG, vX1w)
    a.I('v_and_b32 v%d, 3, v%d', T2, vN)
    a.I('v_lshl_add_u32 v%d, v%d, 2, v%d', vX1w, T2, vX1w)
    a.I('s_mul_i32 s%d, s%d, %d', sT, S_WAVE, KS)
    a.I('s_add_u32 s%d, s%d, %d', sT, sT, LX1)
    a.I('v_add_u32 v%d, s%d, v%d', vX1w, sT, vX1w)
    a.I('v_bfe_u32 v%d, v%d, 2, 1', T2, vN)
    a.I('v_mul_u32_u24 v%d, 192, v%d', T2, T2)
    a.I('v_xor_b32 v%d, v%d, v%d', vX1w, T2, vX1w)
    a.I('v_mul_lo_u32 v%d, v%d, s%d', vX1rk, vG, sT + 1)
    a.I('v_lshrrev_b32 v%d, 2, v%d', T2, vN)
    a.I('v_lshlrev_b32 v%d, 5, v%d', T2, T2)
    a.I('v_and_b32 v%d, 1, v%d', T3, vN)
    a.I('v_lshl_add_u32 v%d, v%d, 4, v%d', T2, T3, T2)
    a.I('v_add_u32 v%d, v%d, v%d', vX1rq, vX1rk, T2)
    a.I('v_add_u32 v%d, %d, v%d', vX1rq, LX1, vX1rq)
    a.I('v_and_b32 v%d, 7, v%d', T2, vN)
    a.I('v_lshl_add_u32 v%d, v%d, 4, v%d', vX1rk, T2, vX1rk)
    a.I('v_add_u32 v%d, %d, v%d', vX1rk, LX1 + 128, vX1rk)
    a.I('v_and_b32 v%d, 1, v%d', T2, vG)
    a.I('v_mul_u32_u24 v%d, 192, v%d', T2, T2)
    a.I('v_xor_b32 v%d, v%d, v%d', vX1rq, T2, vX1rq)
    a.I('v_xor_b32 v%d, v%d, v%d', vX1rk, T2, vX1rk)
    a.I('v_lshrrev_b32 v%d, 3, v%d', T2, vN)
    a.I('v_lshlrev_b32 v%d, 8, v%d', vX2w, T2)
    a.I('v_lshl_add_u32 v%d, v%d, 6, v%d', vX2w, vG, vX2w)
    a.I('v_bfe_u32 v%d, v%d, 2, 1', T2, vN)
    a.I('v_lshl_add_u32 v%d, v%d, 5, v%d', vX2w, T2, vX2w)
    a.I('v_and_b32 v%d, 3, v%d', T2, vN)
    a.I('v_lshl_add_u32 v%d, v%d, 2, v%d', vX2w, T2, vX2w)
    a.I('s_lshl_b32 s%d, s%d, 9', sT, S_WAVE)
    a.I('s_add_u32 s%d, s%d, %d', sT, sT, LX2)
    a.I('v_add_u32 v%d, s%d, v%d', vX2w, sT, vX2w)
    if cfg.get('warm128'):
        a.I('v_lshrrev_b32 v%d, 1, v%d', vWarm, vLane)
        a.I('v_lshlrev_b32 v%d, 7, v%d', vWarm, vWarm)
    else:
        a.I('v_lshlrev_b32 v%d, 6, v%d', vWarm, vLane)
    a.I('s_lshl_b32 s%d, s%d, 13', sT, S_ROLE)
    a.I('s_and_b32 s%d, s%d, 1', sT + 1, S_WAVE)
    a.I('s_lshl_b32 s%d, s%d, 12', sT + 1, sT + 1)
    a.I('s_add_u32 s%d, s%d, s%d', sT, sT, sT + 1)
    a.I('s_lshr_b32 s%d, s%d, 1', sT + 1, S_WAVE)
    a.I('s_mul_i32 s%d, s%d, 0x%x', sT + 1, sT + 1, WS_V - WS_K)
    a.I('s_add_u32 s%d, s%d, s%d', sT, sT, sT + 1)
    a.I('v_add_u32 v%d, s%d, v%d', vWarm, sT, vWarm)
    a.I('s_lshl_b32 s%d, s%d, 13', sT, S_ROLE)
    a.I('s_add_u32 s%d, s%d, 0x%x', sKx, sT, WS_K)
    a.I('s_add_u32 s%d, s%d, 0x%x', sV, sT, WS_V - 4)
    a.I('s_lshl_b32 s%d, s%d, 12', sT, S_ROLE)
    a.I('s_lshl_b32 s%d, s%d, 10', sT + 1, S_WAVE)
    a.I('s_add_u32 s%d, s%d, s%d', sT, sT, sT + 1)
    a.I('s_add_u32 s%d, s%d, 0x%x', sStampAddr, sT, WS_VM)
    a.I('s_lshl_b32 s%d, s%d, 9', sT, S_ROLE)
    a.I('s_lshl_b32 s%d, s%d, 7', sT + 1, S_WAVE)
    a.I('s_add_u32 s%d, s%d, s%d', sT, sT, sT + 1)
    a.I('s_add_u32 s%d, s%d, 0x%x', sFl, sT, WS_FLAGS + FL_KM)
    a.I('s_mov_b32 s%d, 0x%x', sWarm, WS_K + 2 * 262144)

    a.c('init exchange buffers')
    for k in range(4):
        a.I('v_mov_b32 v%d, -1', ACC + k)
    for k in range(2):
        a.I('buffer_store_dwordx4 v[%d:%d], v%d, %s, s%d offen offset:%d sc1', ACC, ACC + 3, vL16, WS, sInLd, 1024 * k)
    for k in range(1, 4):
        a.I('s_mov_b32 s%d, 0x%x', sT, WS_MEMX + k * 8192)
        a.I('buffer_store_dwordx2 v[%d:%d], v%d, %s, s%d offen sc1', ACC, ACC + 1, vMxSt, WS, sT)
    srd(a, S_W, P_MEM0, 8192)
    a.I('v_and_b32 v%d, 1, v%d', T2, vG)
    a.I('v_lshlrev_b32 v%d, 10, v%d', T2, T2)
    a.I('v_and_b32 v%d, 3, v%d', T3, vN)
    a.I('v_lshl_add_u32 v%d, v%d, 3, v%d', T2, T3, T2)
    a.I('s_and_b32 s%d, s%d, 3', sT, sPiece)
    a.I('s_lshl_b32 s%d, s%d, 5', sT, sT)
    a.I('v_add_u32 v%d, s%d, v%d', T2, sT, T2)
    a.I('s_bfe_u32 s%d, s%d, 0x20002', sT, sPiece)
    a.I('s_lshl_b32 s%d, s%d, 11', sT, sT)
    a.I('s_lshr_b32 s%d, s%d, 4', sT + 1, sPiece)
    a.I('s_lshl_b32 s%d, s%d, 7', sT + 1, sT + 1)
    a.I('s_add_u32 s%d, s%d, s%d', sT, sT, sT + 1)
    a.I('buffer_load_dwordx2 v[%d:%d], v%d, s[%d:%d], s%d offen', vSaveV, vSaveV + 1, T2, S_W, S_W + 3, sT)

    a.c('weights')
    vRow, vWo, vDs = VT + 13, VT + 14, VT + 12
    GA = [VT + 8, VT + 9, VT + 10, VT + 11]
    a.I('v_lshrrev_b32 v%d, 1, v%d', vRow, vG)
    a.I('v_lshlrev_b32 v%d, 4, v%d', vRow, vRow)
    a.I('v_and_b32 v%d, 1, v%d', vWo, vG)
    a.I('v_lshl_add_u32 v%d, v%d, 2, v%d', vRow, vWo, vRow)
    a.I('v_lshlrev_b32 v%d, 10, v%d', vWo, vRow)
    a.I('v_lshl_add_u32 v%d, v%d, 3, v%d', vWo, vN, vWo)
    a.I('v_lshlrev_b32 v%d, 8, v%d', vRow, vRow)
    a.I('v_lshl_add_u32 v%d, v%d, 2, v%d', vRow, vN, vRow)
    for kp in range(4):
        a.I('s_xor_b32 s%d, s%d, %d', sT, S_WAVE, kp)
        a.I('s_lshl_b32 s%d, s%d, 14', sT, sT)
        a.I('s_lshl_b32 s%d, s%d, 6', sT + 1, S_WAVE)
        a.I('s_add_u32 s%d, s%d, s%d', sT, sT, sT + 1)
        a.I('s_add_u32 s%d, s%d, %d', sT, sT, LW)
        a.I('v_add_u32 v%d, s%d, v%d', GA[kp], sT, vRow)
    a.I('v_lshlrev_b32 v%d, 13, v%d', vDs, vG)
    a.I('v_lshl_add_u32 v%d, v%d, 4, v%d', vDs, vN, vDs)
    sSrc, sDst, sOb = sT + 2, sT + 3, sT + 6
    a.I('s_lshl_b32 s%d, s%d, 8', sSrc, S_ROLE)
    a.I('s_lshl_b32 s%d, s%d, 19', sT, S_WAVE)
    a.I('s_add_u32 s%d, s%d, s%d', sSrc, sSrc, sT)
    a.I('s_lshl_b32 s%d, s%d, 14', sDst, S_WAVE)
    a.I('s_add_u32 s%d, s%d, %d', sDst, sDst, LW)
    a.I('s_lshl_b32 s%d, s%d, 17', sOb, S_ROLE)
    a.I('s_lshl_b32 s%d, s%d, 7', sT, S_WAVE)
    a.I('s_add_u32 s%d, s%d, s%d', sOb, sOb, sT)
    outb = MEM
    utok = {}
    word = ('qkv', 'kvq', 'kqv', 'vkq')[cfg.get('word', 0)]

    def dma_unit(u):
        sr_ = S_W if (u // 2) % 2 == 0 else S_W2
        if u % 2 == 0:
            srd(a, sr_, {'q': P_WQ, 'k': P_WK, 'v': P_WV}[word[u // 2]], 4194304)
        for j in range(16):
            a.I('s_add_u32 m0, s%d, %d', sDst, (u % 2) * 65536 + j * 1024)
            a.I('s_add_u32 s%d, s%d, %d', sT, sSrc, ((u % 2) * 256 + 4 * j) * 8192)
            utok[u] = a.I('buffer_load_dwordx4 v%d, s[%d:%d], s%d offen%s lds', vDs, sr_, sr_ + 3, sT, ' nt' if cfg.get('wnt') else '')

    late_lds = []

    def put(key, m0, nm, srcs, hold=False):
        kind, r = PL[key]
        ob = outb + (put.n % 2) * 8
        put.n += 1
        for k, (rh, rl, sel) in enumerate(srcs):
            if kind == 'v':
                dst = r + m0 + k
            elif kind == 'l' and hold:
                dst = slot(r) + m0 + k
            else:
                dst = ob + k
            a.I('v_perm_b32 v%d, v%d, v%d, s%d', dst, rh, rl, sel)
        if kind == 'a':
            for k in range(nm):
                a.I('v_accvgpr_write_b32 a%d, v%d', r + m0 + k, ob + k)
        elif kind == 'l' and hold:
            late_lds.append(r)
        elif kind == 'l':
            for q in range(nm // 4):
                a.I('ds_write_b128 v%d, v[%d:%d] offset:%d', vLW, ob + 4 * q, ob + 4 * q + 3, r * 2048 + ((m0 // 4) + q) * 1024)
    put.n = 0
    gb = [40, 56]

    def gather_unit(u):
        X = word[u // 2]
        gt = {}

        def rd(k):
            b = gb[k % 2]
            for m in range(8):
                gt[k] = a.I('ds_read2st64_b32 v[%d:%d], v%d offset0:%d offset1:%d', b + 2 * m, b + 2 * m + 1, GA[k], d0_instr(m), d0_instr(m) + 1)
        rd(0)
        for k in range(4):
            if k + 1 < 4:
                rd(k + 1)
            a.wait(gt[k])
            b = gb[k % 2]
            for t in range(2):
                put((X, t, 4 * (u % 2) + k), 0, 8, [(b + 2 * m + 1, b + 2 * m, sPermLo if t == 0 else sPermHi) for m in range(8)], hold=True)
        for k in range(4):
            a.I('v_xor_b32 v%d, 0x%x, v%d', GA[k], (LW ^ (LW + 65536)) if False else 0, GA[k]) if False else None
        for k in range(4):
            if u % 2 == 0:
                a.I('v_add_u32 v%d, 65536, v%d', GA[k], GA[k])
            else:
                a.I('v_subrev_u32 v%d, 65536, v%d', GA[k], GA[k])

    wgroups = [(ks, b, mh) for b in range(2) for ks in range(2) for mh in range(2)]
    wbufs = [40, 56, 72]
    wtok = {}

    def wissue(gi, bufs):
        ks, b_, mh = wgroups[gi]
        b = bufs[gi % len(bufs)]
        for mm in range(4):
            m = 4 * mh + mm
            for j in range(2):
                row = 64 * ks + d0_instr(m) + j
                a.I('s_add_u32 s%d, s%d, %d', sT, sOb, row * 1024 + 512 * b_)
                r = b + 4 * mm + 2 * j
                wtok[gi] = a.I('buffer_load_dwordx2 v[%d:%d], v%d, s[%d:%d], s%d offen', r, r + 1, vWo, S_W2, S_W2 + 3, sT)

    def wconsume(gi, bufs):
        ks, b_, mh = wgroups[gi]
        b = bufs[gi % len(bufs)]
        a.wait(wtok[gi])
        for t in range(4):
            a.I('s_waitcnt lgkmcnt(1)')
            sel = sPermLo if t % 2 == 0 else sPermHi
            put(('o', b_, t, ks), 4 * mh, 4, [(b + 4 * mm + 2 + t // 2, b + 4 * mm + t // 2, sel) for mm in range(4)])

    dma_unit(0)
    dma_unit(1)
    for u in range(6):
        a.wait(utok[u])
        a.I('s_barrier')
        if u == 0:
            a.I('v_min_u32 v%d, -2, v%d', vSaveV, vSaveV)
            a.I('s_mov_b32 s%d, 0x%x', sT, WS_MEMX)
            a.I('buffer_store_dwordx2 v[%d:%d], v%d, %s, s%d offen sc1', vSaveV, vSaveV + 1, vMxSt, WS, sT)
        if u == 2:
            lab = a.newlabel('R_sig')
            a.I('s_cmp_lg_u32 s%d, 0', S_WAVE)
            a.I('s_cbranch_scc1 %s', lab)
            a.I('s_mov_b64 exec, 1')
            a.I('v_mov_b32 v%d, 1', VT)
            a.I('v_mov_b32 v%d, %d', VT + 1, D_INIT * 4)
            a.I('buffer_atomic_add v%d, v%d, s[%d:%d], 0 offen', VT, VT + 1, S_DBG, S_DBG + 3)
            a.I('s_mov_b64 exec, -1')
            a.label(lab)
            a.vm_n -= 1
        if u == cfg.get('wou', 4):
            srd(a, S_W2, P_WO, 4194304)
            a.I('v_lshlrev_b32 v%d, 7, v%d', VT + 2, vLane)
            a.I('s_lshl_b32 s%d, s%d, 17', sT, S_ROLE)
            a.I('s_lshl_b32 s%d, s%d, 15', sT + 1, S_WAVE)
            a.I('s_add_u32 s%d, s%d, s%d', sT, sT, sT + 1)
            for k in range(4):
                a.I('buffer_load_dword v%d, v%d, s[%d:%d], s%d offen', VT + 3, VT + 2, S_W2, S_W2 + 3, sT)
                a.I('s_add_u32 s%d, s%d, 8192', sT, sT)
        gather_unit(u)
        if cfg.get('stamps') and u == cfg.get('wst', -1):
            a.I('s_memrealtime s[100:101]')
            a.I('s_waitcnt lgkmcnt(0)')
            a.I('s_mov_b32 s3, s100')
        a.I('s_barrier')
        if u + 2 < 6:
            dma_unit(u + 2)
    def gspin():
        a.I('s_add_u32 s%d, s%d, 1', sSpin, sSpin)
        a.I('s_cmp_gt_u32 s%d, 0x100000', sSpin)
        a.I('s_cbranch_scc1 R_fail')

    def dbg_load():
        return a.I('buffer_load_dwordx4 v[%d:%d], v%d, s[%d:%d], 0 offen offset:%d sc1', T0, T3, vSaveV, S_DBG, S_DBG + 3, D_CNT_OTH * 4)

    def kv_load():
        return a.I('buffer_load_dword v%d, v%d, %s, s%d offen sc1', vDummy, vL16, WS, sKvf)
    assert D_INIT == D_CNT_OTH + 1 and D_FINIT == D_CNT_OTH + 3
    a.I('v_mov_b32 v%d, 0', vSaveV)
    a.I('s_mov_b32 s%d, 0', sSpin)
    a.I('s_mov_b32 s%d, 0', sStep)
    dt = dbg_load()
    for gi in range(3):
        wissue(gi, wbufs)
    for r in late_lds:
        for q in range(2):
            a.I('ds_write_b128 v%d, v[%d:%d] offset:%d', vLW, slot(r) + 4 * q, slot(r) + 4 * q + 3, r * 2048 + q * 1024)
    a.I('s_lshr_b32 s%d, s%d, 1', sKvf, S_ROLE)
    a.I('s_lshl_b32 s%d, s%d, 11', sKvf, sKvf)
    a.I('s_add_u32 s%d, s%d, 0x%x', sKvf, sKvf, WS_FLAGS + FL_KV)
    a.I('s_add_u32 s%d, s%d, %d', sKvfMax, sKvf, 63 * 32)
    for gi in range(8):
        wconsume(gi, wbufs)
        if gi + 3 < 8:
            wissue(gi + 3, wbufs)
        if gi == 4:
            a.c('all 32 inits done, flag area zeroed?')
            a.label('R_dchk')
            a.I('v_readfirstlane_b32 s%d, v%d', sT, T1)
            a.I('v_readfirstlane_b32 s%d, v%d', sT + 1, T3)
            a.I('v_readfirstlane_b32 s%d, v%d', sMode, T0)
            a.I('s_cmp_lt_u32 s%d, 32', sT)
            a.I('s_cbranch_scc1 R_dwait')
            if cfg.get('both_modes'):
                a.I('s_cmp_lt_u32 s%d, %d', sT + 1, NZERO)
                a.I('s_cbranch_scc1 R_dwait')
            if cfg.get('pretouch', 1):
                a.I('v_lshlrev_b32 v%d, 1, v%d', T0, vL16)
                a.I('buffer_load_dword v%d, v%d, %s, s%d offen sc1', T1, T0, WS, sInLd)
                a.I('v_lshlrev_b32 v%d, 3, v%d', T0, vL16)
                a.I('s_lshl_b32 s%d, s%d, 13', sT, S_WAVE)
                a.I('s_add_u32 s%d, s%d, 0x%x', sT, sT, WS_MEMX)
                a.I('buffer_load_dword v%d, v%d, %s, s%d offen sc1', T1, T0, WS, sT)
            if cfg.get('kvflags'):
                kv_load()
    if cfg.get('stamps') and 'wst' not in cfg:
        a.I('s_memrealtime s[100:101]')
        a.I('s_waitcnt lgkmcnt(0)')
        a.I('s_mov_b32 s3, s100')
    a.I('s_mov_b32 s%d, s%d', sVm, sStampAddr)
    a.I('s_mov_b32 s%d, s%d', sVmPrev, sStampAddr)
    a.I('s_mov_b32 s%d, 0', sTag)
    a.I('s_mov_b32 s%d, 0', sRetry)
    a.I('s_mov_b32 s%d, s%d', sMxRd, sMxW)
    for k in range(4):
        a.I('s_mov_b32 s%d, 0x%x', sRing + k, WS_MEMX + k * 8192)
    a.I('s_lshl_b32 s%d, s%d, 10', sW10, S_WAVE)
    if cfg.get('kvflags'):
        a.label('R_kvfirst')
        a.I('s_waitcnt vmcnt(0)')
        a.I('v_cmp_eq_u32 vcc, 0, v%d', vDummy)
        a.I('s_nop 1')
        a.I('s_and_b32 s%d, vcc_lo, 15', sT)
        a.I('s_cbranch_scc0 R_kvgo')
        kv_load()
        gspin()
        a.I('s_branch R_kvfirst')
        a.label('R_kvgo')
        if cfg.get('pretouch', 1):
            a.I('v_xor_b32 v%d, 8192, v%d', T0, vWarm)
            for sg in range(2):
                a.I('s_mov_b32 s%d, 0x%x', sT, WS_K + sg * 262144)
                a.I('buffer_load_dword v%d, v%d, %s, s%d offen sc1', vDummy, T0, WS, sT)
                a.I('buffer_load_dword v%d, v%d, %s, s%d offen sc1', vDummy, vWarm, WS, sT)
        a.I('s_add_u32 s%d, s%d, 64', sKvf, sKvf)

    def rest(PFX, stf):
        def load_kx():
            a.I('s_mov_b32 m0, s%d', sM0a)
            a.I('buffer_load_dwordx4 v%d, %s, s%d offen sc1 lds', vKxSrc, WS, sKx)
            a.I('s_mov_b32 m0, s%d', sM0b)
            a.I('buffer_load_dwordx4 v%d, %s, s%d offen offset:512 sc1 lds', vKxSrc, WS, sKx)

        def load_v():
            for t in range(2):
                for hf in range(2):
                    a.I('buffer_load_dwordx4 v[%d:%d], v%d, %s, s%d offen offset:%d sc1', VT + 8 * t + 4 * hf, VT + 8 * t + 4 * hf + 3,
                        vVld, WS, sV, 1024 * t + 512 * hf)

        def backoff(cyc):
            if cfg.get('sleep'):
                if cyc >= 64:
                    a.I('s_sleep %d', cyc // 64)
                if cyc % 64 >= 32:
                    a.I('s_nop 7')
            else:
                n = cyc // 4
                while n > 0:
                    k = min(n, 16)
                    a.I('s_nop %d', k - 1)
                    n -= k

        def lds_half(j, hf):
            sl = j % 6
            return a.I('ds_read_b128 v[%d:%d], v%d offset:%d', slot(sl) + 4 * hf, slot(sl) + 4 * hf + 3, vLW, j * 2048 + 1024 * hf)

        def lds_set(j):
            lds_half(j, 0)
            return lds_half(j, 1)

        def zero(r, n):
            for k in range(0, n, 2):
                a.I('v_mov_b64 v[%d:%d], 0', r + k, r + k + 1)

        def spin():
            a.I('s_add_u32 s%d, s%d, 1', sSpin, sSpin)
            a.I('s_cmp_gt_u32 s%d, 0x100000', sSpin)
            a.I('s_cbranch_scc1 ' + PFX + 'fail')

        a.I('s_waitcnt lgkmcnt(0)')
        a.I('s_barrier')
        load_kx()
        if cfg.get('kvflags'):
            kv_load()
        a.I('s_add_u32 s%d, s%d, 262144', sKx, sKx)
        zero(T0, 4)
        C0, C1 = vSaveV, vSaveV + 1
        zero(ACC, 24)
        a.I('s_mov_b32 s%d, 0', sSpin)

        accidx = {('q', 0): 0, ('q', 1): 1, ('k', 0): 2, ('k', 1): 3, ('v', 0): 4, ('v', 1): 5}

        def M(X, t, kp, src=None):
            d = acc(accidx[(X, t)])
            r = mem(kp) if src is None else src
            a.I('v_smfmac_f32_16x16x64_bf16 v[%d:%d], v[%d:%d], %s, v%d', d, d + 3, r, r + 3, breg((X, t, kp)), vIdx)

        def ldv(i):
            if cfg.get('no_kv'):
                return None
            t, hf = i // 2, i % 2
            return a.I('buffer_load_dwordx4 v[%d:%d], v%d, %s, s%d offen offset:%d sc1', VT + 8 * t + 4 * hf, VT + 8 * t + 4 * hf + 3,
                       vVld, WS, sV, 1024 * t + 512 * hf)

        def poll(r0, r1):
            a.I('buffer_load_dwordx4 v[%d:%d], v%d, %s, s%d offen sc1', r0, r0 + 3, vL16, WS, sMxRd)
            a.I('buffer_load_dwordx4 v[%d:%d], v%d, %s, s%d offen sc1', r1, r1 + 3, vL16, WS, sMxRd2)

        kx, mt = {}, {}

        def rkx(f):
            kx[f] = a.I('ds_read_b128 v[%d:%d], v%d offset:%d', STG + 4 * f, STG + 4 * f + 3, vL16, LKX + f * 1024)

        def rm(k):
            mt[k] = a.I('ds_read_b128 v[%d:%d], v%d offset:%d', mem(k), mem(k) + 3, (vM0, vM1, vM2, vM3)[k & 3], 4096 * (k // 4))

        vSaveK = vSaveV

        def savepub():
            a.I('v_mov_b32 v%d, v%d', T0, VT)
            a.I('v_mov_b32 v%d, v%d', T1, vSaveK)
            a.I('v_mov_b32 v%d, v%d', T2, vSaveK + 1)
            a.I('v_mov_b32 v%d, v%d', T3, VT + 8)

        if cfg.get('stamps'):
            a.I('s_memrealtime s[6:7]')
            a.I('s_waitcnt lgkmcnt(0)')
        if cfg.get('dbgt'):
            import bulk
            bulk.dbg_time(a, 9, V=MEM)
        a.I('s_add_u32 s%d, s%d, 4096', sMxRd2, sMxRd)
        a.c('================ step loop ================')
        a.label(PFX + 'loop')
        stamp(a, cfg, 0)
        PA, PB = (mem(0), mem(4)), (VT, VT + 4)
        light = cfg.get('light', 0)
        a.label(PFX + 'repoll')
        poll(*PA)
        if cfg.get('stamps') and cfg['stamps'] != 4:
            a.I('s_waitcnt lgkmcnt(0)')
            a.I('v_mov_b32 v%d, 0', VT + 12)
            a.I('v_writelane_b32 v%d, s%d, 0', VT + 12, 52)
            for k in range(1, 10):
                a.I('v_writelane_b32 v%d, s%d, %d', VT + 12, 32 + 2 * k, k)
            a.I('v_writelane_b32 v%d, s%d, 10', VT + 12, sRetry)
            a.I('s_mov_b32 s52, s32')
            a.I('s_lshl_b32 s%d, s%d, 6', sT, S_ROLE)
            a.I('s_add_u32 s%d, s%d, s%d', sT, sT, sStep)
            a.I('s_lshl_b32 s%d, s%d, 2', sT, sT)
            a.I('s_add_u32 s%d, s%d, s%d', sT, sT, S_WAVE)
            a.I('s_lshl_b32 s%d, s%d, 6', sT, sT)
            a.I('s_add_u32 s%d, s%d, 0x%x', sStampAddr, sT, WS_DBG)
        else:
            backoff(cfg.get('pgap', 2) * (16 if light else 48))
        if light:
            a.I('buffer_load_dwordx4 v[%d:%d], v%d, %s, s%d offen sc1', VT, VT + 3, vL16, WS, sMxRd2)
        else:
            poll(*PB)

        def head(src, bad, n=2):
            s0, s1 = src
            a.I('s_waitcnt vmcnt(%d)' % (n + 1))
            a.I('ds_write_b128 v%d, v[%d:%d]', vM0, s0, s0 + 3)
            a.I('v_max_u32 v%d, v%d, v%d', C0, s0, s0 + 2)
            M('q', 0, 0, s0)
            a.I('s_waitcnt vmcnt(%d)' % n)
            wA = a.I('ds_write_b128 v%d, v[%d:%d] offset:4096', vM0, s1, s1 + 3)
            a.I('v_max3_u32 v%d, v%d, v%d, v%d', C0, C0, s1, s1 + 2)
            a.I('v_cmp_eq_u32 vcc, -1, v%d', C0)
            M('q', 1, 0, s0)
            M('q', 0, 4, s1)
            a.I('s_cbranch_vccnz %s', bad)
            stamp(a, cfg, 1)
            M('q', 1, 4, s1)
            M('k', 0, 0, s0)
            M('k', 1, 0, s0)
            a.wait(wA)
            a.I('s_barrier')
            rm(1)
            M('k', 0, 4, s1); rm(2)
            M('k', 1, 4, s1); rm(3)
            M('v', 0, 0, s0); rm(5)
            M('v', 1, 0, s0); rm(6)
            M('v', 0, 4, s1); rm(7)
            M('v', 1, 4, s1)
        a.I('s_branch ' + PFX + 'goA')
        if light:
            a.label(PFX + 'badB')
            spin()
            a.I('s_add_u32 s%d, s%d, 0x1000000', sRetry, sRetry)
            a.I('s_nop 2')
            zero(ACC, 8)
            a.I('s_branch ' + PFX + 'repoll')
            a.label(PFX + 'badA')
            a.I('s_add_u32 s%d, s%d, 0x10000', sRetry, sRetry)
            a.I('s_nop 5')
            zero(ACC, 8)
            head((mem(0), VT), PFX + 'badB', 0)
            a.I('s_branch ' + PFX + 'join')
            a.label(PFX + 'goA')
            head(PA, PFX + 'badA', 1)
        else:
            a.label(PFX + 'badA')
            poll(*PA)
            spin()
            a.I('s_add_u32 s%d, s%d, 0x10000', sRetry, sRetry)
            a.I('s_nop 1')
            zero(ACC, 8)
            head(PB, PFX + 'badB')
            a.I('s_branch ' + PFX + 'join')
            a.label(PFX + 'badB')
            poll(*PB)
            a.I('s_add_u32 s%d, s%d, 0x10000', sRetry, sRetry)
            a.I('s_nop 4')
            zero(ACC, 8)
            a.label(PFX + 'goA')
            head(PA, PFX + 'badA')
        a.label(PFX + 'join')
        a.I('s_cmp_eq_u32 s%d, %d', sStep, nsteps - 1)
        a.I('s_cbranch_scc1 ' + PFX + 'done')
        rkx(0)
        a.wait(mt[2])
        q0, q1, k0, k1, v0_, v1_ = [acc(i) for i in range(6)]
        QT = mem(0)

        def add(d, x, y):
            a.I('v_add_f32 v%d, v%d, v%d', d, x, y)

        def cvt(d, x, y):
            a.I('v_cvt_pk_bf16_f32 v%d, v%d, v%d', d, x, y)

        def pkadd(d, x, y):
            a.I('v_pk_add_f32 v[%d:%d], v[%d:%d], v[%d:%d]', d, d + 1, x, x + 1, y, y + 1)

        def sel(d, x, y):
            a.I('v_cndmask_b32 v%d, v%d, v%d, s[%d:%d]', d, x, y, sHalf, sHalf + 1)
        M('q', 0, 1); ldv(0)
        a.I('s_sub_u32 s%d, s%d, 1', sT, sStep)
        M('q', 1, 1); rkx(1)
        a.I('s_max_i32 s%d, s%d, 0', sT, sT)
        a.I('v_mov_b32 v%d, s%d', C1, sT)
        M('q', 0, 2); ldv(1)
        if cfg.get('kvflags'):
            a.I('v_cmp_eq_u32 vcc, 0, v%d', vDummy)
        M('q', 1, 2); rkx(2); a.wait(mt[5])
        M('q', 0, 3); ldv(2)
        if cfg.get('stamps') and cfg['stamps'] != 4:
            a.I('v_lshrrev_b32 v%d, 2, v%d', C0, vL16)
            a.I('s_mov_b64 exec, 0xffff')
            a.I('buffer_store_dword v%d, v%d, %s, s%d offen', VT + 12, C0, WS, sStampAddr)
            a.I('s_mov_b64 exec, -1')
        M('q', 1, 3); rkx(3)
        if cfg.get('kvflags'):
            a.I('s_and_b32 s%d, vcc_lo, 3', sT)
            a.I('s_cbranch_scc1 ' + PFX + 'kvwait')
            a.label(PFX + 'kvok')
        M('q', 0, 5); tv = ldv(3)
        if cfg.get('kvflags'):
            a.I('s_add_u32 s%d, s%d, 32', sKvf, sKvf)
        M('q', 1, 5); rkx(4); a.wait(mt[7])
        M('q', 0, 6)
        a.I('s_barrier')
        a.I('s_mov_b64 exec, 3')
        if not cfg.get('no_pub') and not cfg.get('no_flag'):
            a.I('buffer_store_dword v%d, v%d, %s, s%d offen sc1', C1, vL16, WS, sFl)
        a.I('s_mov_b64 exec, -1')
        M('q', 1, 6)
        if not cfg.get('no_pub'):
            a.I('buffer_store_dwordx4 v[%d:%d], v%d, %s, s%d offen sc1', T0, T0 + 3, vL16, WS, sVmPrev)
        M('q', 0, 7); rkx(5)
        if cfg.get('kvflags'):
            a.I('s_min_u32 s%d, s%d, s%d', sKvf, sKvf, sKvfMax)
        M('q', 1, 7); rkx(6)
        a.I('s_add_u32 s%d, s%d, 262144', sV, sV)
        stamp(a, cfg, 2)
        M('k', 0, 1); rkx(7)
        a.I('s_waitcnt vmcnt(%d)' % (a.vm_n - tv[1] + 4 if tv else 0))
        M('k', 1, 1)
        a.I('s_mov_b32 s%d, s%d', sT, sRing)
        a.I('s_mov_b32 s%d, s%d', sRing, sRing + 1)
        add(QT, q0, q0 + 2)
        M('k', 0, 2)
        add(QT + 1, q0 + 1, q0 + 3)
        add(QT + 2, q1, q1 + 2)
        add(QT + 3, q1 + 1, q1 + 3)
        cvt(QT, QT, QT + 2)
        cvt(QT + 1, QT + 1, QT + 3)
        wq = a.I('ds_write2_b32 v%d, v%d, v%d offset0:0 offset1:4', vX1w, QT, QT + 1)
        M('k', 1, 2)
        if not cfg.get('no_warm'):
            a.I('buffer_load_dword v%d, v%d, %s, s%d offen sc1', vDummy, vWarm, WS, sWarm)
        a.I('s_mov_b32 s%d, s%d', sRing + 1, sRing + 2)
        M('k', 0, 3)
        a.I('s_mov_b32 s%d, s%d', sRing + 2, sRing + 3)
        a.I('s_mov_b32 s%d, s%d', sRing + 3, sT)
        M('k', 1, 3)
        if cfg.get('kvflags'):
            a.I('s_mov_b64 exec, 3')
            kv_load()
            a.I('s_mov_b64 exec, -1')
        M('k', 0, 5)
        a.I('s_add_u32 s%d, s%d, s%d', sMxRd, sRing, sW10)
        a.I('s_and_b32 s%d, s%d, 1', sTag, sStep)
        M('k', 1, 5)
        a.wait(wq)
        a.I('s_barrier')
        qt = {}

        def rq(ks):
            qt[ks] = a.I('ds_read_b128 v[%d:%d], v%d offset:%d', slot(4) + 4 * ks, slot(4) + 4 * ks + 3, vX1rq, ks * KS)
        rq(0)
        M('k', 0, 6); rq(1)
        M('k', 1, 6); rq(2)
        M('k', 0, 7); rq(3)
        a.I('s_mov_b32 m0, s%d', sM0a)
        M('k', 1, 7)
        a.I('s_add_u32 s%d, s%d, 4096', sMxRd2, sMxRd)
        stamp(a, cfg, 3)
        S0, S1, S2, Pm = acc(0), acc(1), acc(2), acc(3)
        X0, X1 = S1 + 2, S1 + 3
        ON = T0
        PV0, PV1, LS = mem(4), mem(0), mem(1)
        KMR = [STG, STG + 4, STG + 8, STG + 12]

        def SM(D, A, ks):
            a.I('v_mfma_f32_16x16x32_bf16 v[%d:%d], v[%d:%d], v[%d:%d], %s', D, D + 3, A, A + 3,
                slot(4) + 4 * ks, slot(4) + 4 * ks + 3, '0' if ks == 0 else vr(D, 4))
        km = {}

        def rkm(k):
            km[k] = a.I('ds_read_b128 v[%d:%d], v%d offset:%d', KMR[k], KMR[k] + 3, vX1rk, k * KS)
        M('v', 0, 1)
        if not cfg.get('no_kv'):
            a.I('buffer_load_dwordx4 v%d, %s, s%d offen sc1 lds', vKxSrc, WS, sKx)
        a.I('s_mov_b32 m0, s%d', sM0b)
        a.I('v_xor_b32 v%d, 128, v%d', PV0, vX1w)
        M('v', 1, 1)
        a.wait(qt[3])
        add(QT, k0, k0 + 2)
        SM(S0, STG, 0)
        add(QT + 1, k0 + 1, k0 + 3)
        add(QT + 2, k1, k1 + 2)
        SM(S0, STG + 4, 1)
        add(QT + 3, k1 + 1, k1 + 3)
        cvt(vSaveK, QT, QT + 2)
        SM(S0, STG + 8, 2)
        cvt(vSaveK + 1, QT + 1, QT + 3)
        wk = a.I('ds_write2_b32 v%d, v%d, v%d offset0:0 offset1:4', PV0, vSaveK, vSaveK + 1)
        SM(S0, STG + 12, 3)
        if not cfg.get('no_kv'):
            a.I('buffer_load_dwordx4 v%d, %s, s%d offen offset:512 sc1 lds', vKxSrc, WS, sKx)
        a.I('v_mov_b32 v%d, 0', Pm + 3)
        SM(S1, STG + 16, 0)
        a.I('v_mov_b32 v%d, 0x3f803f80', ON + 2)
        a.I('v_mov_b32 v%d, 0x3f803f80', ON + 3)
        SM(S1, STG + 20, 1)
        vm_mark = a.vm_n
        zero(PV0, 4)
        SM(S1, STG + 24, 2)
        a.I('s_add_u32 s%d, s%d, 262144', sKx, sKx)
        a.I('v_mov_b32 v%d, 0x3f803f80', ON)
        SM(S1, STG + 28, 3)
        a.wait(wk)
        a.I('s_barrier')
        rkm(0)
        M('v', 0, 2); rkm(1)
        a.I('v_max3_f32 v%d, v%d, v%d, v%d', Pm, S0, S0 + 1, S0 + 2)
        M('v', 1, 2); rkm(2)
        a.I('s_add_u32 s%d, s%d, 262144', sWarm, sWarm)
        a.I('v_mov_b32 v%d, 0x3f803f80', ON + 1)
        M('v', 0, 3); rkm(3)
        a.I('v_max3_f32 v%d, v%d, v%d, v%d', Pm, Pm, S0 + 3, S1)
        M('v', 1, 3); lds_half(8, 0)
        a.I('v_max3_f32 v%d, v%d, v%d, v%d', Pm + 1, S1 + 1, S1 + 2, S1 + 3)
        M('v', 0, 5); lds_half(8, 1)
        a.wait(km[1])
        sel(S1, S1, S1 + 2)
        SM(S2, KMR[0], 0); lds_half(9, 0)
        sel(S1 + 1, S1 + 1, S1 + 3)
        a.I('v_max_f32 v%d, v%d, v%d', X0, Pm, Pm + 1)
        SM(S2, KMR[1], 1)
        a.wait(km[3])
        zero(PV1, 4)
        SM(S2, KMR[2], 2); lds_half(9, 1)
        a.I('v_mul_f32 v%d, s%d, v%d', S1 + 1, sC2, S1 + 1)
        SM(S2, KMR[3], 3); lds_half(6, 0)
        a.I('v_mov_b32 v%d, v%d', X1, X0)
        a.I('v_mul_f32 v%d, s%d, v%d', S1, sC2, S1)
        stamp(a, cfg, 4)
        M('v', 1, 5); lds_half(6, 1)
        a.I('v_permlane32_swap_b32 v%d, v%d', X0, X1)
        M('v', 0, 6); lds_half(7, 0)
        a.I('v_max3_f32 v%d, v%d, v%d, v%d', X0, X0, X1, S2)
        M('v', 1, 6); lds_half(7, 1)
        a.I('v_max3_f32 v%d, v%d, v%d, v%d', X1, S2 + 1, S2 + 2, S2 + 3)
        a.I('v_max_f32 v%d, v%d, v%d', X0, X0, X1)
        a.I('v_mov_b32 v%d, v%d', X1, X0)
        M('v', 0, 7); lds_half(10, 0)
        a.I('v_permlane16_swap_b32 v%d, v%d', X0, X1)
        sel(S2, S2, S0 + 2)
        M('v', 1, 7); lds_half(10, 1)
        a.I('v_max_f32 v%d, v%d, v%d', X0, X0, X1)
        sel(S2 + 1, S2 + 1, S0 + 3)
        a.I('v_mul_f32 v%d, s%d, v%d', X0, sNC, X0)
        sel(S2 + 2, S2 + 2, S0)
        sel(S2 + 3, S2 + 3, S0 + 1)
        a.I('v_sub_f32 v%d, v%d, v%d', X1, X0, vBias)

        def pkmulc(d):
            a.I('v_pk_mul_f32 v[%d:%d], v[%d:%d], s[%d:%d]', d, d + 1, d, d + 1, sC2, sC2 + 1)

        def pksub(d, hi):
            a.I('v_pk_add_f32 v[%d:%d], v[%d:%d], v[%d:%d] op_sel:[0,%d] op_sel_hi:[1,%d]', d, d + 1, d, d + 1, X0, X1, hi, hi)
        pksub(S1, 0)
        pkmulc(S2)
        a.I('v_exp_f32 v%d, v%d', S1, S1)
        pkmulc(S2 + 2)
        pksub(S2, 1)
        pksub(S2 + 2, 1)
        a.I('v_exp_f32 v%d, v%d', S1 + 1, S1 + 1)
        pkadd(S0, v0_, v0_ + 2)
        a.I('v_exp_f32 v%d, v%d', S2, S2)
        pkadd(S0 + 2, v1_, v1_ + 2)
        a.I('v_exp_f32 v%d, v%d', S2 + 1, S2 + 1)
        cvt(Pm + 1, S1, S1 + 1)
        a.I('v_exp_f32 v%d, v%d', S2 + 2, S2 + 2)
        if tv:
            a.I('s_waitcnt vmcnt(%d)' % (vm_mark - tv[1]))
        cvt(VT, S0, S0 + 1)
        a.I('v_exp_f32 v%d, v%d', S2 + 3, S2 + 3)
        cvt(Pm, S2, S2 + 1)
        cvt(VT + 8, S0 + 2, S0 + 3)
        cvt(Pm + 2, S2 + 2, S2 + 3)
        lds_half(11, 0)
        stamp(a, cfg, 5)
        a.I('v_mfma_f32_16x16x32_bf16 v[%d:%d], v[%d:%d], v[%d:%d], 0', LS, LS + 3, Pm, Pm + 3, ON, ON + 3)
        lds_half(11, 1)
        a.I('v_smfmac_f32_16x16x64_bf16 v[%d:%d], v[%d:%d], v[%d:%d], v%d', PV0, PV0 + 3, Pm, Pm + 3, VT, VT + 7, vIdx)
        a.I('v_mov_b32 v%d, v%d', T0, VT)
        a.I('v_smfmac_f32_16x16x64_bf16 v[%d:%d], v[%d:%d], v[%d:%d], v%d', PV1, PV1 + 3, Pm, Pm + 3, VT + 8, VT + 15, vIdx)
        a.I('v_mov_b32 v%d, v%d', T1, vSaveK)
        a.I('v_mov_b32 v%d, v%d', T2, vSaveK + 1)
        a.I('v_mov_b32 v%d, v%d', T3, VT + 8)
        pkadd(X0, LS, LS + 2)
        a.I('v_rcp_f32 v%d, v%d', X0, X0)
        a.I('v_rcp_f32 v%d, v%d', X1, X1)
        pkadd(PV0, PV0, PV0 + 2)
        pkadd(PV1, PV1, PV1 + 2)
        a.I('v_pk_mul_f32 v[%d:%d], v[%d:%d], v[%d:%d]', PV0, PV0 + 1, PV0, PV0 + 1, X0, X1)
        a.I('v_pk_mul_f32 v[%d:%d], v[%d:%d], v[%d:%d]', PV1, PV1 + 1, PV1, PV1 + 1, X0, X1)
        cvt(S0, PV0, PV1)
        cvt(S0 + 1, PV0 + 1, PV1 + 1)
        wo = a.I('ds_write2_b32 v%d, v%d, v%d offset0:0 offset1:4', vX2w, S0, S0 + 1)
        zero(MEM, 16)
        a.wait(wo)
        a.I('s_barrier')
        OF = acc(4)
        of0 = a.I('ds_read_b128 v[%d:%d], v%d offset:%d', OF, OF + 3, vL16, LX2)
        of1 = a.I('ds_read_b128 v[%d:%d], v%d offset:%d', OF + 4, OF + 7, vL16, LX2 + 1024)
        zero(MEM + 16, 16)
        SEL, RD = ACC + 8, ACC + 12
        stamp(a, cfg, 6)

        def wt(b, t):
            return MEM + 16 * b + 4 * t

        def W(n):
            key = WO_ORDER[n]
            _, b, t, ks = key
            a.I('v_smfmac_f32_16x16x64_bf16 v[%d:%d], v[%d:%d], %s, v%d', wt(b, t), wt(b, t) + 3, OF + 4 * ks, OF + 4 * ks + 3, breg(key), vIdx)

        def ha(b, t, h):
            D = wt(b, t) + h
            add(D, D, D + 2)

        def hp(b, t):
            D = wt(b, t)
            pkadd(D, D, D + 2)

        G = [ACC, ACC + 4]

        def pk(b, h, tok):
            cvt(G[b] + 2 * tok + h, wt(b, 2 * h) + tok, wt(b, 2 * h + 1) + tok)

        def send(b):
            a.I('buffer_store_dwordx4 v[%d:%d], v%d, %s, s%d offen%s', G[b], G[b] + 3, vInSt, WS, sIn + b, stf)

        def tag(b):
            a.I('v_bfi_b32 v%d, 1, s%d, v%d', G[b], sTag, G[b])

        def selgen(k):
            if k == 0:
                a.I('v_mov_b32 v%d, 0x3f80', RD)
            elif k == 1:
                a.I('v_cndmask_b32 v%d, v%d, 1.0, s[%d:%d]', RD, RD, sSel + 4, sSel + 5)
            else:
                a.I('v_cndmask_b32 v%d, 0, v%d, s[%d:%d]', SEL + k - 2, RD, sSel + 2 * (k % 2), sSel + 2 * (k % 2) + 1)

        def rload(i):
            return a.I('buffer_load_dwordx4 v[%d:%d], v%d, %s, s%d offen offset:%d sc1', VT + 4 * i, VT + 4 * i + 3, vL16, WS, sInLd, i * 1024)

        lt = {}
        a.wait(of0)
        W(0); lds_half(12, 0)
        W(1); a.wait(of1); lt[12] = lds_half(12, 1)
        W(2); lds_half(13, 0)
        W(3); lt[13] = lds_half(13, 1)
        W(4); lds_half(14, 0)
        W(5); lt[14] = lds_half(14, 1); ha(0, 0, 0)
        W(6); lds_half(15, 0); ha(0, 0, 1)
        W(7); lt[15] = lds_half(15, 1); ha(0, 1, 0)
        ha(0, 1, 1)
        pk(0, 0, 0); pk(0, 0, 1)
        tag(0)
        hp(0, 2)
        lds_half(16, 0)
        lt[16] = lds_half(16, 1)
        hp(0, 3)
        pk(0, 1, 0); pk(0, 1, 1)
        send(0)
        W(8); lds_half(17, 0)
        W(9); lt[17] = lds_half(17, 1); a.wait(lt[13])
        W(10)
        a.I('s_mov_b32 s%d, s%d', sVmPrev, sVm)
        a.I('s_add_u32 s%d, s%d, 131072', sVm, sVm)
        a.I('s_mov_b32 s%d, 0', sSpin)
        W(11); a.wait(lt[15])
        a.I('s_add_u32 s%d, s%d, 1', sStep, sStep)
        W(12); lds_half(0, 0); ha(1, 0, 0)
        W(13); a.wait(lt[17]); ha(1, 0, 1)
        W(14); lds_half(0, 1); ha(1, 1, 0)
        W(15); lds_half(1, 0); ha(1, 1, 1)
        pk(1, 0, 0); pk(1, 0, 1)
        tag(1)
        hp(1, 2)
        lds_half(1, 1)
        a.I('s_cmp_ge_u32 s%d, 2', S_WAVE)
        hp(1, 3)
        pk(1, 1, 0); pk(1, 1, 1)
        send(1)
        stamp(a, cfg, 7)
        U0, U1, U2, U3 = ACC + 16, ACC + 17, ACC + 18, ACC + 19
        npre = cfg.get('npre', 3)
        a.I('s_cbranch_scc1 ' + PFX + 'late')
        backoff(cfg.get('d0', 0) * 32)
        rload(0); rload(1)
        a.label(PFX + 'late')
        for j in range(2, 1 + npre):
            lds_set(j)
        for k in range(6):
            selgen(k)
        zero(RD, 4)
        a.I('s_cbranch_scc0 ' + PFX + 'early')
        backoff(cfg.get('d1', 0) * 32)
        rload(0); rload(1)
        a.label(PFX + 'early')
        for j in range(1 + npre, 6):
            lds_set(j)
        zero(ACC + 20, 4)
        zero(ACC, 8)
        a.I('v_mov_b32 v%d, -1', U2)
        a.I('v_mov_b32 v%d, -1', U3)
        DP = ' row_mask:0xf bank_mask:0xf'
        Z = VT + 8
        dbl = cfg.get('dbl1', 0)
        R2 = MEM + 8

        def rl(R):
            for i in range(2):
                a.I('buffer_load_dwordx4 v[%d:%d], v%d, %s, s%d offen offset:%d sc1', R + 4 * i, R + 4 * i + 3, vL16, WS, sInLd, i * 1024)

        def red1(R, bad):
            a.I('v_smfmac_f32_16x16x64_bf16 v[%d:%d], v[%d:%d], v[%d:%d], v%d', RD, RD + 3, SEL, SEL + 3, R, R + 7, vIdx)
            a.I('v_bitop3_b32 v%d, v%d, v%d, s%d bitop3:0x7e', U0, R, R + 4, sTag)
            a.I('v_and_b32 v%d, 1, v%d', U0, U0)
            a.I('v_cmp_ne_u32 vcc, 0, v%d', U0)
            for k in range(4):
                a.I('v_add_f32_dpp v%d, v%d, v%d row_ror:4' + DP, Z + k, RD + k, RD + k)
            a.I('s_cbranch_vccnz ' + bad)
        if dbl:
            backoff(cfg.get('rgap', 2) * 32)
            rl(R2)
            a.I('s_waitcnt vmcnt(2) lgkmcnt(0)')
            a.label(PFX + 'chk1')
            red1(VT, PFX + 'slow1')
            a.label(PFX + 'ok1')
        else:
            a.I('s_waitcnt vmcnt(0) lgkmcnt(0)')
            a.label(PFX + 'chk1')
            red1(VT, PFX + 'slow1')
        for k in range(4):
            a.I('v_add_f32_dpp v%d, v%d, v%d row_ror:8' + DP, Z + 4 + k, Z + k, Z + k)
        stamp(a, cfg, 8)
        a.I('s_mov_b64 exec, 0x000f000f')
        a.I('v_cvt_pk_bf16_f32 v%d, v%d, v%d', U0, Z + 4, Z + 5)
        a.I('v_cvt_pk_bf16_f32 v%d, v%d, v%d', U1, Z + 6, Z + 7)
        a.I('v_min_u32 v%d, -2, v%d', U0, U0)
        a.I('buffer_store_dwordx2 v[%d:%d], v%d, %s, s%d offen%s', U0, U1, vMxSt, WS, sMxWr, stf)
        a.I('buffer_store_dwordx2 v[%d:%d], v%d, %s, s%d offen%s', U2, U3, vMxSt, WS, sMxRst, stf)
        a.I('s_mov_b64 exec, -1')
        stamp(a, cfg, 9)
        a.I('s_add_u32 s%d, s%d, s%d', sRetry, sRetry, sSpin)
        a.I('s_mov_b32 s%d, 0', sSpin)
        zero(ACC + 8, 12)
        backoff(cfg.get('d2', 0) * 32)
        if cfg.get('b3'):
            a.I('s_barrier')
        a.I('s_branch ' + PFX + 'loop')

        a.label(PFX + 'slow1')
        rload(0); rload(1)
        spin()
        zero(RD, 4)
        if dbl:
            a.I('s_waitcnt vmcnt(2)')
            red1(R2, PFX + 'slow2')
            a.I('s_branch ' + PFX + 'ok1')
            a.label(PFX + 'slow2')
            rl(R2)
            spin()
            zero(RD, 4)
            a.I('s_waitcnt vmcnt(2)')
        else:
            a.I('s_waitcnt vmcnt(0)')
        a.I('s_branch ' + PFX + 'chk1')

        if cfg.get('kvflags'):
            a.label(PFX + 'kvwait')
            kv_load()
            spin()
            a.I('s_waitcnt vmcnt(0)')
            a.I('v_cmp_eq_u32 vcc, 0, v%d', vDummy)
            a.I('s_nop 1')
            a.I('s_and_b32 s%d, vcc_lo, 3', sT)
            a.I('s_cbranch_scc1 ' + PFX + 'kvwait')
            a.I('s_branch ' + PFX + 'kvok')

        a.label(PFX + 'done')
        a.c('last segment: only k and v of the memory rows are needed')
        a.I('buffer_store_dwordx4 v[%d:%d], v%d, %s, s%d offen sc1', T0, T0 + 3, vL16, WS, sVmPrev)
        a.I('s_waitcnt lgkmcnt(0)')
        for kp in (1, 2, 3, 5, 6, 7):
            M('k', 0, kp); M('k', 1, kp); M('v', 0, kp); M('v', 1, kp)
        L = STG
        pkadd(L, k0, k0 + 2)
        pkadd(L + 2, k1, k1 + 2)
        pkadd(L + 4, v0_, v0_ + 2)
        pkadd(L + 6, v1_, v1_ + 2)
        cvt(L + 9, L, L + 2)
        cvt(L + 10, L + 1, L + 3)
        cvt(L + 8, L + 4, L + 5)
        cvt(L + 11, L + 6, L + 7)
        a.I('buffer_store_dwordx4 v[%d:%d], v%d, %s, s%d offen sc1', L + 8, L + 11, vL16, WS, sVm)
        a.I('s_waitcnt vmcnt(0)')
        if cfg.get('dbgt'):
            bulk.dbg_time(a, 10, V=MEM)
        a.I('v_mov_b32 v%d, %d', T1, nsteps)
        a.I('s_mov_b64 exec, 1')
        a.I('buffer_store_dword v%d, v%d, %s, s%d offen sc1', T1, vL16, WS, sFl)
        if cfg.get('stamps'):
            a.I('s_memrealtime s[100:101]')
            a.I('s_waitcnt lgkmcnt(0)')
            a.I('v_mov_b32 v%d, s4', T0)
            if cfg.get('hwid'):
                a.I('s_getreg_b32 s6, hwreg(HW_REG_HW_ID)')
            a.I('v_mov_b32 v%d, s6', T1)
            a.I('v_mov_b32 v%d, s100', T2)
            a.I('v_mov_b32 v%d, s%d', T3, sRetry if cfg.get('cnt') else 3)
            a.I('s_lshl_b32 s%d, s%d, 2', sT, S_ROLE)
            a.I('s_add_u32 s%d, s%d, s%d', sT, sT, S_WAVE)
            a.I('s_lshl_b32 s%d, s%d, 4', sT, sT)
            a.I('s_add_u32 s%d, s%d, 0x%x', sT, sT, WS_DBG + 0x80000)
            a.I('buffer_store_dwordx4 v[%d:%d], v%d, %s, s%d offen', T0, T3, vL16, WS, sT)
        a.I('s_endpgm')
        a.label(PFX + 'fail')
        a.I('s_mov_b64 exec, 1')
        a.I('v_mov_b32 v%d, %d', T2, D_ERR * 4)
        a.I('v_mov_b32 v%d, s%d', T3, sStep)
        a.I('v_or_b32 v%d, 0x40000000, v%d', T3, T3)
        a.I('buffer_store_dword v%d, v%d, s[%d:%d], 0 offen sc1', T3, T2, S_DBG, S_DBG + 3)
        a.I('s_endpgm')

    if cfg.get('both_modes'):
        a.c('mode: plain stores only if all 32 recurrence workgroups sit on the chosen XCD')
        a.I('s_cmp_lg_u32 s%d, 0', sMode)
        a.I('s_cbranch_scc1 R_safe')
        rest('R_', '')
        a.label('R_safe')
        rest('RS_', ' sc1')
    else:
        rest('R_', stf)
    a.label('R_dwait')
    dbg_load()
    gspin()
    a.I('s_waitcnt vmcnt(0)')
    a.I('s_branch R_dchk')
```

```python
import sys
from asmlib import *
from common import *
import importlib, os
rec = importlib.import_module(os.environ.get('REC_MOD', 'rec'))
import bulk
from bulk import sT, WS, DBG

LDS_TK = 14336


def ticket(a, dword, sdst, pre=None, between=None):
    lab = a.newlabel('TK')
    a.I('v_mov_b32 v253, %d', LDS_TK)
    a.I('s_cmp_lg_u32 s%d, 0', S_WAVE)
    a.I('s_cbranch_scc1 %s', lab)
    a.I('s_mov_b64 exec, 1')
    a.I('v_mov_b32 v251, 1')
    a.I('v_mov_b32 v252, %d', dword * 4)
    if pre is not None:
        sk = a.newlabel('TKs')
        a.I('v_mov_b32 v251, 32')
        a.I('s_cmp_lt_u32 s%d, 256', pre)
        a.I('s_cbranch_scc1 %s', sk)
        a.I('v_mov_b32 v251, 1')
    a.I('buffer_atomic_add v251, v252, %s, 0 offen sc0', DBG)
    if between is not None:
        lab2 = a.newlabel('TK')
        a.I('s_mov_b64 exec, -1')
        a.label(lab)
        a.I('s_barrier')
        n = between(a)
        a.I('s_cmp_lg_u32 s%d, 0', S_WAVE)
        a.I('s_cbranch_scc1 %s', lab2)
        a.I('s_mov_b64 exec, 1')
        a.I('s_waitcnt vmcnt(%d)', n)
        lab = lab2
    else:
        a.I('s_waitcnt vmcnt(0)')
    if pre is not None:
        a.label(sk)
    a.I('ds_write_b32 v253, v251')
    a.I('s_waitcnt lgkmcnt(0)')
    a.I('s_mov_b64 exec, -1')
    a.label(lab)
    a.I('s_barrier')
    a.I('ds_read_b32 v251, v253')
    a.I('s_waitcnt lgkmcnt(0)')
    a.I('v_readfirstlane_b32 s%d, v251', sdst)
    a.I('s_barrier')


def dbg_add(a, dword):
    lab = a.newlabel('DA')
    a.I('s_cmp_lg_u32 s%d, 0', S_WAVE)
    a.I('s_cbranch_scc1 %s', lab)
    a.I('s_mov_b64 exec, 1')
    a.I('v_mov_b32 v251, 1')
    a.I('v_mov_b32 v252, %d', dword * 4)
    a.I('buffer_atomic_add v251, v252, %s, 0 offen', DBG)
    a.I('s_waitcnt vmcnt(0)')
    a.I('s_mov_b64 exec, -1')
    a.label(lab)


def build(cfg):
    a = Asm()
    bulk.BST = bool(cfg.get('stamps'))
    bulk.GI = cfg.get('gi', 0)
    bulk.HALF = cfg.get('half', 0)
    bulk.GSL = cfg.get('gsl', 0)
    bulk.SL1, bulk.SL2 = cfg.get('sl1', 2), cfg.get('sl2', 2)
    a.I('s_cmp_ge_u32 s2, 256')
    a.I('s_cbranch_scc1 K_exit')
    if cfg.get('stamps'):
        a.I('s_memrealtime s[4:5]')
    a.I('s_load_dwordx16 s[32:47], s[0:1], 0')
    a.I('s_load_dwordx8 s[48:55], s[0:1], 64')
    a.I('s_load_dwordx4 s[56:59], s[0:1], 96')
    a.I('s_getreg_b32 s%d, hwreg(HW_REG_XCC_ID)', S_XCC)
    a.I('s_and_b32 s%d, s%d, 15', S_XCC, S_XCC)
    a.I('v_lshrrev_b32 v1, 6, v0')
    a.I('v_readfirstlane_b32 s%d, v1', S_WAVE)
    a.I('s_waitcnt lgkmcnt(0)')
    rec.srd(a, S_WS, P_WS, WS_SIZE)
    rec.srd(a, S_DBG, P_DBG, 256)
    if cfg.get('dbgt'):
        bulk.DBGT = True
        bulk.dbg_time(a, 12, invert=True)
    if cfg.get('codepf', 1):
        a.I('s_getpc_b64 s[4:5]' if not cfg.get('stamps') else 's_getpc_b64 s[6:7]')
        a.label('K_pc')
        pc = 6 if cfg.get('stamps') else 4
        a.I('v_lshlrev_b32 v254, 7, v0')
        for k in range(cfg.get('codekb', 96) // 32):
            a.I('v_min_u32 v255, K_end-K_pc-4, v254')
            a.I('global_load_dword v%d, v255, s[%d:%d]', 240 + k, pc, pc + 1)
            a.I('v_add_u32 v254, 0x8000, v254')
    a.I('s_cmp_lg_u32 s%d, %d', S_XCC, cfg.get('xcd', 0))
    a.I('s_cbranch_scc1 K_bulk_t')
    if cfg.get('mixed'):
        a.I('s_bitcmp1_b32 s2, 3')
        a.I('s_cbranch_scc1 K_bulk_t')

    def kick(a):
        rec.srd(a, S_W, P_WQ, 4194304)
        a.I('v_and_b32 v250, 63, v0')
        a.I('v_lshlrev_b32 v250, 7, v250')
        a.I('s_lshr_b32 s%d, s2, 3', sT)
        a.I('s_and_b32 s%d, s%d, 31', sT, sT)
        a.I('s_lshl_b32 s%d, s%d, 2', sT, sT)
        a.I('s_add_u32 s%d, s%d, s%d', sT, sT, S_WAVE)
        a.I('s_lshl_b32 s%d, s%d, 13', sT, sT)
        n = cfg.get('kick', 0)
        for k in range(n):
            a.I('buffer_load_dword v249, v250, s[%d:%d], s%d offen', S_W, S_W + 3, sT)
            a.I('s_add_u32 s%d, s%d, %d', sT, sT, 128 * 8192)
        return n
    ticket(a, D_TICK_REC, S_ROLE, between=kick if cfg.get('kick') else None)
    a.I('s_cmp_lt_u32 s%d, 32', S_ROLE)
    a.I('s_cbranch_scc1 K_rec')
    a.label('K_bulk_t')
    ticket(a, D_TICK_A, S_ROLE)
    bulk.bstamp(a, 0)
    a.I('s_sub_u32 s%d, s%d, 128', sT + 1, S_ROLE)
    a.I('s_cmp_ge_u32 s%d, %d', sT + 1, NZERO)
    a.I('s_cbranch_scc1 K_nz')
    for k in range(4):
        a.I('v_mov_b32 v%d, 0', 240 + k)
    a.I('v_and_b32 v244, 63, v0')
    a.I('v_lshlrev_b32 v244, 4, v244')
    per = FL_SIZE // (4 * NZERO)
    assert per % 1024 == 0
    a.I('s_lshl_b32 s%d, s%d, 2', sT + 1, sT + 1)
    a.I('s_add_u32 s%d, s%d, s%d', sT + 1, sT + 1, S_WAVE)
    a.I('s_mul_i32 s%d, s%d, %d', sT, sT + 1, per)
    a.I('s_add_u32 s%d, s%d, 0x%x', sT, sT, WS_FLAGS)
    for k in range(per // 1024):
        if k and k % 4 == 0:
            a.I('s_add_u32 s%d, s%d, 4096', sT, sT)
        a.I('buffer_store_dwordx4 v[240:243], v244, %s, s%d offen offset:%d sc1', WS, sT, (k % 4) * 1024)
    a.I('s_waitcnt vmcnt(0)')
    a.I('s_barrier')
    dbg_add(a, D_FINIT)
    a.label('K_nz')
    a.I('s_sub_u32 s%d, s%d, 128', sT + 5, S_ROLE)
    a.I('s_cmp_ge_u32 s%d, 96', sT + 5)
    a.I('s_cbranch_scc1 K_a')
    rec.srd(a, S_W, P_X, 2097152)
    a.label('K_ln')
    a.I('s_lshl_b32 s%d, s%d, 14', sT + 6, sT + 5)
    a.I('s_lshl_b32 s%d, s%d, 12', sT, S_WAVE)
    a.I('s_add_u32 s%d, s%d, s%d', sT + 6, sT + 6, sT)
    a.I('s_add_u32 s%d, s%d, 2048', sT + 7, sT + 6)
    t0 = bulk.ln_issue(a, sT + 6, B=200)
    t1 = bulk.ln_issue(a, sT + 7, B=150)
    if cfg.get('wopf', 1):
        rec.srd(a, S_W2, P_WO, 4194304)
        a.I('s_lshl_b32 s%d, s%d, 1', sT + 4, sT + 6)
        for k in range(8):
            if k == 4:
                a.I('s_add_u32 s%d, s%d, 4096', sT + 4, sT + 4)
            a.I('buffer_load_dwordx4 v[%d:%d], v208, s[%d:%d], s%d offen offset:%d', 100 + 4 * k, 103 + 4 * k, S_W2, S_W2 + 3, sT + 4, (k % 4) * 1024)
    bulk.ln_compute(a, t0, sT + 6, B=200)
    bulk.ln_compute(a, t1, sT + 7, B=150)
    bulk.wait_dbg(a, D_FINIT, NZERO)
    a.I('s_barrier')
    lab = a.newlabel('LNF')
    a.I('s_cmp_lg_u32 s%d, 0', S_WAVE)
    a.I('s_cbranch_scc1 %s', lab)
    a.I('s_lshl_b32 s%d, s%d, 2', sT + 1, sT + 5)
    a.I('s_add_u32 s%d, s%d, 0x%x', sT + 1, sT + 1, WS_FLAGS + FL_XN)
    bulk.flag_store(a, sT + 1)
    a.label(lab)
    a.I('s_add_u32 s%d, s%d, 96', sT + 5, sT + 5)
    a.I('s_cmp_lt_u32 s%d, 128', sT + 5)
    a.I('s_cbranch_scc1 K_ln')
    bulk.bstamp(a, 1)
    a.label('K_a')
    bulk.gen_phase_a(a)
    bulk.wait_dbg(a, D_FINIT, NZERO)
    a.I('s_mov_b32 s%d, 0', bulk.sSpin)
    a.I('v_mov_b32 v250, 0')
    a.label('K_arr')
    a.I('buffer_load_dword v251, v250, %s, 0 offen offset:%d sc1', DBG, D_TICK_REC * 4)
    a.I('buffer_load_dword v252, v250, %s, 0 offen offset:%d sc1', DBG, D_TICK_A * 4)
    bulk.spin(a)
    a.I('s_waitcnt vmcnt(0)')
    a.I('v_readfirstlane_b32 s%d, v251', sT)
    a.I('v_readfirstlane_b32 s%d, v252', sT + 1)
    a.I('s_cmp_ge_u32 s%d, 32', sT)
    a.I('s_cbranch_scc1 K_arr2')
    a.I('s_add_u32 s%d, s%d, s%d', sT, sT, sT + 1)
    a.I('s_cmp_lt_u32 s%d, 256', sT)
    a.I('s_cbranch_scc1 K_arr')
    a.label('K_arr2')
    ticket(a, D_TICK_REC, S_ROLE, pre=sT)
    a.I('s_cmp_ge_u32 s%d, 32', S_ROLE)
    a.I('s_cbranch_scc1 K_b')
    dbg_add(a, D_CNT_OTH)
    a.I('s_branch K_rec')
    a.label('K_b')
    ticket(a, D_TICK_B, S_ROLE)
    if cfg.get('t2first', 0):
        a.I('s_cmp_ge_u32 s%d, 128', S_ROLE)
        a.I('s_cbranch_scc1 K_t1')
        bulk.gen_t2(a)
        a.label('K_t1')
        a.I('s_sub_u32 s%d, s%d, 128', S_ROLE, S_ROLE)
        a.I('s_cmp_ge_u32 s%d, %d', S_ROLE, bulk.NT1)
        a.I('s_cbranch_scc1 K_exit')
        bulk.gen_t1(a)
    else:
        a.I('s_cmp_lt_u32 s%d, %d', S_ROLE, bulk.NT1)
        a.I('s_cbranch_scc1 K_t1')
        a.I('s_sub_u32 s%d, s%d, %d', S_ROLE, S_ROLE, bulk.NT1)
        a.I('s_cmp_ge_u32 s%d, 128', S_ROLE)
        a.I('s_cbranch_scc1 K_exit')
        bulk.gen_t2(a)
        a.label('K_t1')
        bulk.gen_t1(a)
    a.label('B_fail')
    a.I('s_mov_b64 exec, 1')
    a.I('v_mov_b32 v252, %d', (D_ERR + 2) * 4)
    a.I('v_mov_b32 v251, s%d', S_ROLE)
    a.I('v_or_b32 v251, 0x20000000, v251')
    a.I('buffer_store_dword v251, v252, %s, 0 offen sc1', DBG)
    a.label('K_exit')
    a.I('s_endpgm')
    a.label('K_rec')
    rec.gen_rec(a, cfg)
    a.label('K_end')
    errs = a.verify_edges()
    for e in errs:
        print('HAZARD', e, file=sys.stderr)
    k = KNAME + '_kernel'
    ref = open('cdna_kernels/%s.s.ref' % KNAME).read().split('\n')
    hdr = '\n'.join(l for l in ref[:17] if l.startswith(';') and '@launch' not in l) + '\n'
    hdr += '; @launch grid=(256,1,1) block=(256,1,1) lds=163840\n.amdgcn_target "amdgcn-amd-amdhsa--gfx950"\n.text\n.globl %s\n.p2align 8\n.type %s,@function\n%s:\n' % (k, k, k)
    ftr = '''.section .rodata,"a"
.p2align 6
.amdhsa_kernel %s
  .amdhsa_next_free_vgpr 512
  .amdhsa_next_free_sgpr 102
  .amdhsa_accum_offset 256
  .amdhsa_group_segment_fixed_size 0
  .amdhsa_kernarg_size 112
  .amdhsa_user_sgpr_count 2
  .amdhsa_user_sgpr_kernarg_segment_ptr 1
  .amdhsa_system_sgpr_workgroup_id_x 1
  .amdhsa_float_denorm_mode_32 3
.end_amdhsa_kernel
''' % k
    return hdr + a.text() + ftr


if __name__ == '__main__':
    cfg = dict(fast=True, kvflags=1, both_modes=1, npre=5, d0=5, d1=6, d2=2, pgap=3, b3=1, warm128=1, pubpos=0, dbl1=1, rgap=3, codepf=0, wnt=0, word=1)
    for arg in sys.argv[2:]:
        k, v = arg.split('=')
        cfg[k] = int(v)
    open(sys.argv[1], 'w').write(build(cfg))
```

```python
import sys
from asmlib import *
from common import *
import importlib, os
rec = importlib.import_module(os.environ.get('REC_MOD', 'rec'))
import bulk
from bulk import sT, WS, DBG

LDS_TK = 14336

DOC = """
; ---------------------------------------------------------------------------------------------
; ---------------------------------------------------------------------------------------------
"""


def ticket(a, dword, sdst, pre=None, between=None):
    lab = a.newlabel('TK')
    a.I('v_mov_b32 v253, %d', LDS_TK)
    a.I('s_cmp_lg_u32 s%d, 0', S_WAVE)
    a.I('s_cbranch_scc1 %s', lab)
    a.I('s_mov_b64 exec, 1')
    a.I('v_mov_b32 v251, 1')
    a.I('v_mov_b32 v252, %d', dword * 4)
    if pre is not None:
        sk = a.newlabel('TKs')
        a.I('v_mov_b32 v251, 32')
        a.I('s_cmp_lt_u32 s%d, 256', pre)
        a.I('s_cbranch_scc1 %s', sk)
        a.I('v_mov_b32 v251, 1')
    a.I('buffer_atomic_add v251, v252, %s, 0 offen sc0', DBG)
    if between is not None:
        lab2 = a.newlabel('TK')
        a.I('s_mov_b64 exec, -1')
        a.label(lab)
        a.I('s_barrier')
        n = between(a)
        a.I('s_cmp_lg_u32 s%d, 0', S_WAVE)
        a.I('s_cbranch_scc1 %s', lab2)
        a.I('s_mov_b64 exec, 1')
        a.I('s_waitcnt vmcnt(%d)', n)
        lab = lab2
    else:
        a.I('s_waitcnt vmcnt(0)')
    if pre is not None:
        a.label(sk)
    a.I('ds_write_b32 v253, v251')
    a.I('s_waitcnt lgkmcnt(0)')
    a.I('s_mov_b64 exec, -1')
    a.label(lab)
    a.I('s_barrier')
    a.I('ds_read_b32 v251, v253')
    a.I('s_waitcnt lgkmcnt(0)')
    a.I('v_readfirstlane_b32 s%d, v251', sdst)
    a.I('s_barrier')


def dbg_add(a, dword):
    lab = a.newlabel('DA')
    a.I('s_cmp_lg_u32 s%d, 0', S_WAVE)
    a.I('s_cbranch_scc1 %s', lab)
    a.I('s_mov_b64 exec, 1')
    a.I('v_mov_b32 v251, 1')
    a.I('v_mov_b32 v252, %d', dword * 4)
    a.I('buffer_atomic_add v251, v252, %s, 0 offen', DBG)
    a.I('s_waitcnt vmcnt(0)')
    a.I('s_mov_b64 exec, -1')
    a.label(lab)


def build(cfg):
    a = Asm()
    bulk.BST = bool(cfg.get('stamps'))
    bulk.GI = cfg.get('gi', 0)
    bulk.HALF = cfg.get('half', 0)
    bulk.GSL = cfg.get('gsl', 0)
    bulk.SL1, bulk.SL2 = cfg.get('sl1', 2), cfg.get('sl2', 2)
    a.I('s_cmp_ge_u32 s2, 256')
    a.I('s_cbranch_scc1 K_exit')
    if cfg.get('stamps'):
        a.I('s_memrealtime s[4:5]')
    a.I('s_load_dwordx16 s[32:47], s[0:1], 0')
    a.I('s_load_dwordx8 s[48:55], s[0:1], 64')
    a.I('s_load_dwordx4 s[56:59], s[0:1], 96')
    a.I('s_getreg_b32 s%d, hwreg(HW_REG_XCC_ID)', S_XCC)
    a.I('s_and_b32 s%d, s%d, 15', S_XCC, S_XCC)
    a.I('v_lshrrev_b32 v1, 6, v0')
    a.I('v_readfirstlane_b32 s%d, v1', S_WAVE)
    a.I('s_waitcnt lgkmcnt(0)')
    rec.srd(a, S_WS, P_WS, WS_SIZE)
    rec.srd(a, S_DBG, P_DBG, 256)
    if cfg.get('dbgt'):
        bulk.DBGT = True
        bulk.dbg_time(a, 12, invert=True)
    if cfg.get('codepf', 1):
        a.I('s_getpc_b64 s[4:5]' if not cfg.get('stamps') else 's_getpc_b64 s[6:7]')
        a.label('K_pc')
        pc = 6 if cfg.get('stamps') else 4
        a.I('v_lshlrev_b32 v254, 7, v0')
        for k in range(cfg.get('codekb', 96) // 32):
            a.I('v_min_u32 v255, K_end-K_pc-4, v254')
            a.I('global_load_dword v%d, v255, s[%d:%d]', 240 + k, pc, pc + 1)
            a.I('v_add_u32 v254, 0x8000, v254')
    a.I('s_cmp_lg_u32 s%d, %d', S_XCC, cfg.get('xcd', 3))
    a.I('s_cbranch_scc1 K_bulk_t')
    if cfg.get('mixed'):
        a.I('s_bitcmp1_b32 s2, 3')
        a.I('s_cbranch_scc1 K_bulk_t')

    def kick(a):
        rec.srd(a, S_W, P_WQ, 4194304)
        a.I('v_and_b32 v250, 63, v0')
        a.I('v_lshlrev_b32 v250, 7, v250')
        a.I('s_lshr_b32 s%d, s2, 3', sT)
        a.I('s_and_b32 s%d, s%d, 31', sT, sT)
        a.I('s_lshl_b32 s%d, s%d, 2', sT, sT)
        a.I('s_add_u32 s%d, s%d, s%d', sT, sT, S_WAVE)
        a.I('s_lshl_b32 s%d, s%d, 13', sT, sT)
        n = cfg.get('kick', 0)
        for k in range(n):
            a.I('buffer_load_dword v249, v250, s[%d:%d], s%d offen', S_W, S_W + 3, sT)
            a.I('s_add_u32 s%d, s%d, %d', sT, sT, 128 * 8192)
        return n
    ticket(a, D_TICK_REC, S_ROLE, between=kick if cfg.get('kick') else None)
    a.I('s_cmp_lt_u32 s%d, 32', S_ROLE)
    a.I('s_cbranch_scc1 K_rec')
    a.label('K_bulk_t')
    ticket(a, D_TICK_A, S_ROLE)
    bulk.bstamp(a, 0)
    a.I('s_sub_u32 s%d, s%d, 128', sT + 1, S_ROLE)
    a.I('s_cmp_ge_u32 s%d, %d', sT + 1, NZERO)
    a.I('s_cbranch_scc1 K_nz')
    for k in range(4):
        a.I('v_mov_b32 v%d, 0', 240 + k)
    a.I('v_and_b32 v244, 63, v0')
    a.I('v_lshlrev_b32 v244, 4, v244')
    per = FL_SIZE // (4 * NZERO)
    assert per % 1024 == 0
    a.I('s_lshl_b32 s%d, s%d, 2', sT + 1, sT + 1)
    a.I('s_add_u32 s%d, s%d, s%d', sT + 1, sT + 1, S_WAVE)
    a.I('s_mul_i32 s%d, s%d, %d', sT, sT + 1, per)
    a.I('s_add_u32 s%d, s%d, 0x%x', sT, sT, WS_FLAGS)
    for k in range(per // 1024):
        if k and k % 4 == 0:
            a.I('s_add_u32 s%d, s%d, 4096', sT, sT)
        a.I('buffer_store_dwordx4 v[240:243], v244, %s, s%d offen offset:%d sc1', WS, sT, (k % 4) * 1024)
    a.I('s_waitcnt vmcnt(0)')
    a.I('s_barrier')
    dbg_add(a, D_FINIT)
    a.label('K_nz')
    a.I('s_sub_u32 s%d, s%d, 128', sT + 5, S_ROLE)
    a.I('s_cmp_ge_u32 s%d, 96', sT + 5)
    a.I('s_cbranch_scc1 K_a')
    rec.srd(a, S_W, P_X, 2097152)
    a.label('K_ln')
    a.I('s_lshl_b32 s%d, s%d, 14', sT + 6, sT + 5)
    a.I('s_lshl_b32 s%d, s%d, 12', sT, S_WAVE)
    a.I('s_add_u32 s%d, s%d, s%d', sT + 6, sT + 6, sT)
    a.I('s_add_u32 s%d, s%d, 2048', sT + 7, sT + 6)
    t0 = bulk.ln_issue(a, sT + 6, B=200)
    t1 = bulk.ln_issue(a, sT + 7, B=150)
    if cfg.get('wopf', 1):
        rec.srd(a, S_W2, P_WO, 4194304)
        a.I('s_lshl_b32 s%d, s%d, 1', sT + 4, sT + 6)
        for k in range(8):
            if k == 4:
                a.I('s_add_u32 s%d, s%d, 4096', sT + 4, sT + 4)
            a.I('buffer_load_dwordx4 v[%d:%d], v208, s[%d:%d], s%d offen offset:%d', 100 + 4 * k, 103 + 4 * k, S_W2, S_W2 + 3, sT + 4, (k % 4) * 1024)
    bulk.ln_compute(a, t0, sT + 6, B=200)
    bulk.ln_compute(a, t1, sT + 7, B=150)
    bulk.wait_dbg(a, D_FINIT, NZERO)
    a.I('s_barrier')
    lab = a.newlabel('LNF')
    a.I('s_cmp_lg_u32 s%d, 0', S_WAVE)
    a.I('s_cbranch_scc1 %s', lab)
    a.I('s_lshl_b32 s%d, s%d, 2', sT + 1, sT + 5)
    a.I('s_add_u32 s%d, s%d, 0x%x', sT + 1, sT + 1, WS_FLAGS + FL_XN)
    bulk.flag_store(a, sT + 1)
    a.label(lab)
    a.I('s_add_u32 s%d, s%d, 96', sT + 5, sT + 5)
    a.I('s_cmp_lt_u32 s%d, 128', sT + 5)
    a.I('s_cbranch_scc1 K_ln')
    bulk.bstamp(a, 1)
    a.label('K_a')
    bulk.gen_phase_a(a)
    bulk.wait_dbg(a, D_FINIT, NZERO)
    a.I('s_mov_b32 s%d, 0', bulk.sSpin)
    a.I('v_mov_b32 v250, 0')
    a.label('K_arr')
    a.I('buffer_load_dword v251, v250, %s, 0 offen offset:%d sc1', DBG, D_TICK_REC * 4)
    a.I('buffer_load_dword v252, v250, %s, 0 offen offset:%d sc1', DBG, D_TICK_A * 4)
    bulk.spin(a)
    a.I('s_waitcnt vmcnt(0)')
    a.I('v_readfirstlane_b32 s%d, v251', sT)
    a.I('v_readfirstlane_b32 s%d, v252', sT + 1)
    a.I('s_cmp_ge_u32 s%d, 32', sT)
    a.I('s_cbranch_scc1 K_arr2')
    a.I('s_add_u32 s%d, s%d, s%d', sT, sT, sT + 1)
    a.I('s_cmp_lt_u32 s%d, 256', sT)
    a.I('s_cbranch_scc1 K_arr')
    a.label('K_arr2')
    ticket(a, D_TICK_REC, S_ROLE, pre=sT)
    a.I('s_cmp_ge_u32 s%d, 32', S_ROLE)
    a.I('s_cbranch_scc1 K_b')
    dbg_add(a, D_CNT_OTH)
    a.I('s_branch K_rec')
    a.label('K_b')
    ticket(a, D_TICK_B, S_ROLE)
    if cfg.get('t2first', 0):
        a.I('s_cmp_ge_u32 s%d, 128', S_ROLE)
        a.I('s_cbranch_scc1 K_t1')
        bulk.gen_t2(a)
        a.label('K_t1')
        a.I('s_sub_u32 s%d, s%d, 128', S_ROLE, S_ROLE)
        a.I('s_cmp_ge_u32 s%d, %d', S_ROLE, bulk.NT1)
        a.I('s_cbranch_scc1 K_exit')
        bulk.gen_t1(a)
    else:
        a.I('s_cmp_lt_u32 s%d, %d', S_ROLE, bulk.NT1)
        a.I('s_cbranch_scc1 K_t1')
        a.I('s_sub_u32 s%d, s%d, %d', S_ROLE, S_ROLE, bulk.NT1)
        a.I('s_cmp_ge_u32 s%d, 128', S_ROLE)
        a.I('s_cbranch_scc1 K_exit')
        bulk.gen_t2(a)
        a.label('K_t1')
        bulk.gen_t1(a)
    a.label('B_fail')
    a.I('s_mov_b64 exec, 1')
    a.I('v_mov_b32 v252, %d', (D_ERR + 2) * 4)
    a.I('v_mov_b32 v251, s%d', S_ROLE)
    a.I('v_or_b32 v251, 0x20000000, v251')
    a.I('buffer_store_dword v251, v252, %s, 0 offen sc1', DBG)
    a.label('K_exit')
    a.I('s_endpgm')
    a.label('K_rec')
    rec.gen_rec(a, cfg)
    a.label('K_end')
    errs = a.verify_edges()
    for e in errs:
        print('HAZARD', e, file=sys.stderr)
    k = KNAME + '_kernel'
    ref = open('cdna_kernels/%s.s.ref' % KNAME).read().split('\n')
    hdr = '\n'.join(l for l in ref[:17] if l.startswith(';') and '@launch' not in l) + '\n'
    hdr += '; @launch grid=(256,1,1) block=(256,1,1) lds=163840' + DOC + '.amdgcn_target "amdgcn-amd-amdhsa--gfx950"\n.text\n.globl %s\n.p2align 8\n.type %s,@function\n%s:\n' % (k, k, k)
    ftr = '''.section .rodata,"a"
.p2align 6
.amdhsa_kernel %s
  .amdhsa_next_free_vgpr 512
  .amdhsa_next_free_sgpr 102
  .amdhsa_accum_offset 256
  .amdhsa_group_segment_fixed_size 0
  .amdhsa_kernarg_size 112
  .amdhsa_user_sgpr_count 2
  .amdhsa_user_sgpr_kernarg_segment_ptr 1
  .amdhsa_system_sgpr_workgroup_id_x 1
  .amdhsa_float_denorm_mode_32 3
.end_amdhsa_kernel
''' % k
    return hdr + a.text() + ftr


if __name__ == '__main__':
    cfg = dict(fast=True, kvflags=1, both_modes=1, npre=5, d0=5, d1=6, d2=2, pgap=3, b3=1, warm128=1, pubpos=0, dbl1=1, rgap=3, codepf=0, wnt=0, word=1)
    for arg in sys.argv[2:]:
        k, v = arg.split('=')
        cfg[k] = int(v)
    open(sys.argv[1], 'w').write(build(cfg))
```
